```python
import torch

def _softmax(x, axis=-1):
    return torch.softmax(x, dim=axis)
def _gelu(x):
    return torch.nn.functional.gelu(x, approximate="tanh")
def _silu(x):
    return torch.nn.functional.silu(x)
def _sigmoid(x):
    return torch.sigmoid(x)
def _layernorm(x, axis=-1, eps=1e-5):
    m = x.mean(dim=axis, keepdim=True)
    v = x.var(dim=axis, keepdim=True, unbiased=False)
    return (x - m) / torch.sqrt(v + eps)
def _scatter_add(tgt, idx, src, axis=0):
    return tgt.clone().index_add_(axis, idx, src)
def _segment_sum(src, seg, n):
    out = torch.zeros((n,) + src.shape[1:], dtype=src.dtype)
    return out.index_add_(0, seg, src)
def _pad(x, pw):
    flat = tuple(v for pair in reversed(pw) for v in pair)
    return torch.nn.functional.pad(x, flat)

kernel_name = 'recurrent_scan__ssm_conv_s5__dense_activation_gelu__prompt'

def setup_inputs():

    _w = (lambda a: (lambda t: t.to(torch.bfloat16) if t.is_floating_point() else t)(torch.as_tensor(a)))
    def _A_setup():
        B, S, D = 1, 2048, 640
        P = D
        Lambda_re = -0.5 * (lambda _x: torch.exp(torch.as_tensor(_x)))((lambda *s: torch.randn(*s, dtype=torch.bfloat16) * 0.4)(P))
        Lambda_im = (lambda *s: torch.randn(*s, dtype=torch.bfloat16) * 0.8)(P) * 1.0
        B_re = (lambda *s: torch.randn(*s, dtype=torch.bfloat16) * 0.8)(P, D) * (D ** -0.5)
        B_im = (lambda *s: torch.randn(*s, dtype=torch.bfloat16) * 0.8)(P, D) * (D ** -0.5)
        C_re = (lambda *s: torch.randn(*s, dtype=torch.bfloat16) * 0.4)(D, P) * (P ** -0.5)
        C_im = (lambda *s: torch.randn(*s, dtype=torch.bfloat16) * 0.8)(D, P) * (P ** -0.5)
        log_dt = (lambda *s: torch.randn(*s, dtype=torch.bfloat16) * 0.4)(P) * 0.3 - 2.0
        Dskip = (lambda *s: torch.randn(*s, dtype=torch.bfloat16) * 0.2)(D)
        return {
            "x": _w((lambda *s: torch.randn(*s, dtype=torch.bfloat16) * 0.05)(B, S, D)),
            "Lambda_re": _w(Lambda_re),
            "Lambda_im": _w(Lambda_im),
            "B_re": _w(B_re),
            "B_im": _w(B_im),
            "C_re": _w(C_re),
            "C_im": _w(C_im),
            "log_dt": _w(log_dt),
            "Dskip": _w(Dskip),
        }
    _A_in = _A_setup()

    def _B_setup():
        B, S, D, F = 1, 2048, 640, 1536
        return {
            "x": _w((lambda *s: torch.randn(*s, dtype=torch.bfloat16) * 0.05)(B, S, D)),
            "w1": _w((lambda *s: torch.randn(*s, dtype=torch.bfloat16) * 0.8)(D, F) * (D ** -0.5)),
            "b1": _w((lambda *s: torch.randn(*s, dtype=torch.bfloat16) * 12.8)(F) * 0.01),
            "w2": _w((lambda *s: torch.randn(*s, dtype=torch.bfloat16) * 1.6)(F, D) * (F ** -0.5)),
            "b2": _w((lambda *s: torch.randn(*s, dtype=torch.bfloat16) * 12.8)(D) * 0.01),
        }
    _B_in = _B_setup()

    return {
        "A_x": _A_in["x"],
        "A_Lambda_re": _A_in["Lambda_re"],
        "A_Lambda_im": _A_in["Lambda_im"],
        "A_B_re": _A_in["B_re"],
        "A_B_im": _A_in["B_im"],
        "A_C_re": _A_in["C_re"],
        "A_C_im": _A_in["C_im"],
        "A_log_dt": _A_in["log_dt"],
        "A_Dskip": _A_in["Dskip"],
        "B_x": _B_in["x"],
        "B_w1": _B_in["w1"],
        "B_b1": _B_in["b1"],
        "B_w2": _B_in["w2"],
        "B_b2": _B_in["b2"],
    }

def reference(A_x, A_Lambda_re, A_Lambda_im, A_B_re, A_B_im, A_C_re, A_C_im, A_log_dt, A_Dskip, B_x, B_w1, B_b1, B_w2, B_b2):
    def _A_ref(x, Lambda_re, Lambda_im, B_re, B_im, C_re, C_im, log_dt, Dskip):
        Bsz, L, H = x.shape
        Lam = Lambda_re + 1j * Lambda_im
        Bmat = B_re + 1j * B_im
        Cmat = C_re + 1j * C_im
        dt = torch.exp(log_dt)
        Lam_bar = torch.exp(dt * Lam)
        B_bar = ((Lam_bar - 1.0) / Lam)[:, None] * Bmat
        Bu = torch.einsum("bld,pd->blp", x + 0j, B_bar)
        h = torch.zeros_like(Bu[:, 0, :])
        hs = []
        for t in range(L):
            h = Lam_bar[None, :] * h + Bu[:, t, :]
            hs.append(h)
        hseq = torch.stack(hs, 1)
        y = 2.0 * torch.einsum("blp,dp->bld", hseq, Cmat).real + x * Dskip[None, None, :]
        return y

    def _B_ref(x, w1, b1, w2, b2):
        h = torch.einsum("bsd,df->bsf", x, w1) + b1
        h = _gelu(h)
        return torch.einsum("bsf,fd->bsd", h, w2) + b2

    x = A_x
    xn = _layernorm(x, axis=-1)
    s = _A_ref(xn, A_Lambda_re, A_Lambda_im, A_B_re, A_B_im, A_C_re, A_C_im, A_log_dt, A_Dskip)
    g = _silu(_B_ref(xn, B_w1, B_b1, B_w2, B_b2))
    return x + s * g
```

```python
import re

TRANS = ("v_exp_f32", "v_log_f32", "v_rcp_f32", "v_rsq_f32", "v_sqrt_f32", "v_sin_f32", "v_cos_f32", "v_rcp_iflag_f32")

def _expand(tok):
    tok = tok.strip()
    neg = tok.lstrip('-')
    if neg.startswith("abs(") or neg.startswith("|"):
        neg = neg.replace("abs(", "").replace(")", "").replace("|", "")
    tok = neg
    m = re.fullmatch(r"([vas])(\d+)", tok)
    if m: return [(m.group(1), int(m.group(2)))]
    m = re.fullmatch(r"([vas])\[(\d+):(\d+)\]", tok)
    if m: return [(m.group(1), i) for i in range(int(m.group(2)), int(m.group(3)) + 1)]
    if tok == "vcc": return [("s", "vcc")]
    if tok == "exec": return [("s", "exec")]
    if tok == "m0": return [("s", "m0")]
    return []

class Ins:
    __slots__ = ("text", "mn", "cls", "wr", "rd", "states", "passes", "srcc", "dpp", "srcab", "stdata")

def parse(text):
    t = text.split(";")[0].strip()
    ins = Ins(); ins.text = text; ins.states = 1; ins.passes = 0; ins.srcc = []; ins.srcab = []; ins.dpp = False; ins.stdata = []
    parts = t.split(None, 1)
    mn = parts[0]; ins.mn = mn
    rest = parts[1] if len(parts) > 1 else ""
    ops = []; cur = ""; depth = 0
    for ch in rest:
        if ch == "[": depth += 1
        if ch == "]": depth -= 1
        if ch == "," and depth == 0: ops.append(cur.strip()); cur = ""
        else: cur += ch
    if cur.strip(): ops.append(cur.strip())
    mods = ""
    if ops:
        sp = ops[-1].split(None, 1)
        ops[-1] = sp[0]
        if len(sp) > 1: mods = sp[1]
    wr = []; rd = []
    if mn == "s_nop":
        ins.cls = "nop"; ins.states = int(ops[0], 0) + 1
    elif mn.startswith("v_mfma"):
        ins.cls = "mfma"
        wr = _expand(ops[0]); ins.srcab = _expand(ops[1]) + _expand(ops[2]); ins.srcc = _expand(ops[3])
        rd = ins.srcab + ins.srcc
        ins.passes = 8 if "32x32" in mn else 4
    elif mn.startswith("v_"):
        ins.cls = "valu"
        if "dpp" in mn or "row_" in mods or "quad_perm" in mods: ins.dpp = True
        base = mn.replace("_dpp", "").replace("_e64", "").replace("_e32", "").replace("_sdwa", "")
        if base.startswith("v_cmp"):
            wr = _expand(ops[0]);
            for o in ops[1:]: rd += _expand(o)
            if base.startswith("v_cmpx"): wr += [("s", "exec")]
        elif base.startswith("v_permlane") and "swap" in base:
            wr = _expand(ops[0]) + _expand(ops[1]); rd = list(wr)
        elif base in ("v_add_co_u32", "v_sub_co_u32", "v_addc_co_u32", "v_subb_co_u32", "v_mad_u64_u32", "v_div_scale_f32"):
            wr = _expand(ops[0]) + _expand(ops[1])
            for o in ops[2:]: rd += _expand(o)
        else:
            wr = _expand(ops[0])
            for o in ops[1:]: rd += _expand(o)
            if base in ("v_fmac_f32", "v_dot2c_f32_bf16", "v_pk_fmac_f16", "v_writelane_b32") or ins.dpp:
                rd += _expand(ops[0])
            if base == "v_cndmask_b32" and len(ops) == 3: rd += [("s", "vcc")]
        if base in TRANS: ins.cls = "trans"
    elif mn.startswith("ds_"):
        ins.cls = "ds"
        if mn.startswith("ds_read") or mn.startswith("ds_bpermute") or mn.startswith("ds_permute") or mn.startswith("ds_swizzle"):
            wr = _expand(ops[0])
            for o in ops[1:]: rd += _expand(o)
        else:
            for o in ops: rd += _expand(o)
    elif mn.startswith("buffer_") or mn.startswith("global_"):
        ins.cls = "vmem"
        is_lds = (" lds" in (" " + mods)) or ("_lds_" in mn)
        if is_lds:
            for o in ops: rd += _expand(o)
            rd += [("s", "m0")]
        elif "load" in mn:
            wr = _expand(ops[0])
            for o in ops[1:]: rd += _expand(o)
        elif "atomic" in mn:
            for o in ops: rd += _expand(o)
            if "sc0" in mods: wr = _expand(ops[0])
        else:
            for o in ops: rd += _expand(o)
            if "x4" in mn or "x3" in mn:
                ins.stdata = _expand(ops[0]) if mn.startswith("buffer_") else _expand(ops[1])
    elif mn.startswith("s_"):
        ins.cls = "salu"
        if mn.startswith("s_load") or mn.startswith("s_buffer_load") or mn.startswith("s_memtime"): ins.cls = "smem"
        if mn.startswith("s_cmp") or mn.startswith("s_cbranch") or mn.startswith("s_waitcnt") or mn in ("s_barrier", "s_branch", "s_endpgm", "s_setprio", "s_sleep"):
            for o in ops: rd += _expand(o)
        else:
            if ops: wr = _expand(ops[0])
            for o in ops[1:]: rd += _expand(o)
            if "saveexec" in mn: wr += [("s", "exec")]
    else:
        raise ValueError("unknown instr " + text)
    ins.wr = set(wr); ins.rd = set(rd)
    return ins

def need_states(prod, cons):
    n = 0
    pv = prod.cls in ("valu", "trans")
    cv = cons.cls in ("valu", "trans")
    vw = {r for r in prod.wr if r[0] in "va"}
    sw = {r for r in prod.wr if r[0] == "s"}
    if pv:
        if cons.cls == "mfma" and vw & cons.rd: n = max(n, 2)
        if cv and cons.dpp and vw & cons.rd: n = max(n, 2)
        if cons.mn.startswith("v_permlane") and vw & cons.rd: n = max(n, 2)
        if cons.mn.startswith("v_readfirstlane") or cons.mn.startswith("v_readlane"):
            if vw & cons.rd: n = max(n, 1)
            if sw & cons.rd: n = max(n, 4)
        if prod.cls == "trans" and cons.cls == "valu" and vw & (cons.rd | cons.wr): n = max(n, 1)
        if prod.cls == "trans" and cons.cls in ("mfma",) and vw & cons.rd: n = max(n, 2)
        if sw:
            if cons.cls == "vmem" and sw & cons.rd: n = max(n, 5)
            if cv and sw & cons.rd: n = max(n, 2)
            if ("s", "exec") in sw:
                if cons.cls == "mfma": n = max(n, 4)
                if cv and cons.dpp: n = max(n, 5)
                if cons.mn.startswith("v_readfirstlane") or cons.mn.startswith("v_readlane") or cons.mn.startswith("v_permlane"): n = max(n, 4)
            if cons.cls == "salu" and sw & cons.rd: n = max(n, 1)
    if prod.cls == "mfma":
        p = prod.passes
        d = prod.wr
        if cons.cls == "mfma":
            if d & set(cons.srcab): n = max(n, {4: 8, 8: 12}[p])
            if d & set(cons.srcc):
                if set(cons.srcc) == d and cons.passes == p: pass
                else: n = max(n, {4: 6, 8: 10}[p])
            elif d & cons.wr:
                n = max(n, {4: 6, 8: 10}[p])
        elif cv:
            if d & (cons.rd | cons.wr): n = max(n, {4: 8, 8: 12}[p])
            if set(prod.srcc) & cons.wr: n = max(n, {4: 3, 8: 7}[p])
        elif cons.cls in ("vmem", "ds"):
            if d & (cons.rd | cons.wr): n = max(n, {4: 8, 8: 12}[p])
            if set(prod.srcc) & cons.wr: n = max(n, {4: 3, 8: 7}[p])
    if prod.cls == "salu" and ("s", "m0") in prod.wr and cons.cls == "vmem" and ("s", "m0") in cons.rd: n = max(n, 1)
    if prod.cls == "vmem" and prod.stdata:
        if set(prod.stdata) & cons.wr: n = max(n, 2 if cv else 1)
    return n

class Stream:
    def __init__(self, parent=None):
        self.lines = []
        self.hist = list(parent.hist) if parent else []
        self.vm = list(parent.vm) if parent else []
        self.lg = list(parent.lg) if parent else []
        self.nins = 0
    def raw(self, text):
        self.lines.append(text)
    def label(self, name):
        self.lines.append(name + ":")
    def comment(self, t):
        self.lines.append("    ; " + t)
    def I(self, text, tag=None):
        ins = parse(text)
        need = 0; dist = 0
        for prev in reversed(self.hist[-24:]):
            n = need_states(prev, ins)
            if n > dist: need = max(need, n - dist)
            dist += prev.states
            if dist >= 20: break
        while need > 0:
            k = min(need, 16)
            nop = parse(f"s_nop {k-1}")
            self.lines.append(f"    s_nop {k-1}")
            self.hist.append(nop); need -= k; self.nins += 1
        self.lines.append("    " + text)
        self.hist.append(ins); self.nins += 1
        if ins.cls == "vmem": self.vm.append(tag)
        if ins.cls == "ds": self.lg.append(tag)
        if ins.cls == "smem": self.lg.append("SMEM")
        return ins
    def wait_vm(self, tags):
        if isinstance(tags, str): tags = [tags]
        idx = -1
        for i, t in enumerate(self.vm):
            if t in tags: idx = i
        if idx < 0: return
        n = len(self.vm) - 1 - idx
        assert n <= 63
        self.I(f"s_waitcnt vmcnt({n})")
        self.vm = self.vm[idx + 1:]
    def wait_lg(self, tags=None):
        if tags is None:
            if not self.lg: return
            self.I("s_waitcnt lgkmcnt(0)"); self.lg = []; return
        if isinstance(tags, str): tags = [tags]
        idx = -1
        for i, t in enumerate(self.lg):
            if t in tags: idx = i
        if idx < 0: return
        if "SMEM" in self.lg:
            self.I("s_waitcnt lgkmcnt(0)"); self.lg = []; return
        n = len(self.lg) - 1 - idx
        if n > 15: n = 15; idx = len(self.lg) - 1 - 15
        self.I(f"s_waitcnt lgkmcnt({n})")
        self.lg = self.lg[idx + 1:]
    def wait_all(self):
        self.I("s_waitcnt vmcnt(0) lgkmcnt(0)"); self.vm = []; self.lg = []
    def fence_hazards(self):
        self.I("s_nop 7"); self.I("s_nop 7")
    def text(self):
        return "\n".join(self.lines)

def vr(b, n=1, k="v"):
    return f"{k}{b}" if n == 1 else f"{k}[{b}:{b+n-1}]"
```

```python
import sys, re
sys.path.insert(0, "gen")
HDR = open("recurrent_scan__ssm_conv_s5__dense_activation_gelu__prompt.s.ref").read().split("; Override launch")[0]
def build(kernels, launches):
    s = HDR
    for (n, g, b, l) in launches:
        s += f"; @launch kernel={n} grid=({g},1,1) block=({b},1,1) lds={l}\n"
    s += '.amdgcn_target "amdgcn-amd-amdhsa--gfx950"\n.text\n'
    s += "\n".join(kernels) + "\n"
    return s
```

```python
from asmfw import *
from layout import *
import struct
def f2u(f): return struct.unpack("<I", struct.pack("<f", f))[0]
LOG2E = f2u(1.4426950408889634)
INV2PI = f2u(0.15915494309189535)
SLOT = 26624
WDED = 106496
MISC = 155648
STATS_L = MISC
CSB_L = MISC + 1024
SEG_L = MISC + 1024 + 1280
TR_L = SLOT * 1
Q_L = SLOT * 1
HS_L = SLOT * 1 + 21760
STG_L = WDED + 24576
def w1base(q):
    if q < 4: return WDED + 12288 * q
    return SLOT * {4: 2, 5: 2, 6: 3, 7: 3, 8: 0, 9: 0}[q] + 12288 * (q & 1)
DPP = "row_ror:8 row_mask:0xf bank_mask:0xf"

def mk_srd(A, d, lo, hi, nbytes, off_s=None, off_imm=0):
    if off_s is None and off_imm == 0:
        A.I(f"s_mov_b32 s{d}, s{lo}")
        A.I(f"s_and_b32 s{d+1}, s{hi}, 0xffff")
    else:
        if off_s is not None:
            if off_imm: A.I(f"s_add_u32 s{off_s}, s{off_s}, {off_imm}")
            A.I(f"s_add_u32 s{d}, s{lo}, s{off_s}")
        else:
            A.I(f"s_add_u32 s{d}, s{lo}, {off_imm}")
        A.I(f"s_addc_u32 s{d+1}, s{hi}, 0")
        A.I(f"s_and_b32 s{d+1}, s{d+1}, 0xffff")
    A.I(f"s_mov_b32 s{d+2}, {nbytes}")
    A.I(f"s_mov_b32 s{d+3}, 0x00020000")

def gen_k1(name="k1_kernel", stamps=False):
    A = Stream()
    A.raw(f".globl {name}\n.p2align 8\n.type {name},@function\n{name}:")
    A.I("s_cmp_ge_u32 s2, 256")
    A.I(f"s_cbranch_scc1 L_{name}_end")
    class St:
        n = 0
    def mkstamp(X):
        st = St()
        def stamp():
            if not stamps: return
            assert st.n < 12
            X.I(f"s_memtime s[{74+2*st.n}:{75+2*st.n}]"); st.n += 1
        return stamp, st
    if stamps:
        A.I("s_memtime s[72:73]")
        A.I("s_memrealtime s[98:99]")
    A.I("s_load_dwordx16 s[4:19], s[0:1], 0")
    A.I("s_load_dwordx4 s[20:23], s[0:1], 80")
    A.I("s_load_dwordx2 s[24:25], s[0:1], 96")
    A.I("s_load_dwordx4 s[28:31], s[0:1], 120")
    A.I("s_and_b32 s36, s2, 7")
    A.I("s_lshr_b32 s37, s2, 3")
    A.I("s_and_b32 s32, s36, 1")
    A.I("s_lshl_b32 s32, s32, 3")
    A.I("s_and_b32 s38, s37, 7")
    A.I("s_add_u32 s32, s32, s38")
    A.I("s_lshr_b32 s33, s36, 1")
    A.I("s_lshl_b32 s33, s33, 2")
    A.I("s_lshr_b32 s38, s37, 3")
    A.I("s_add_u32 s33, s33, s38")
    A.I("v_lshrrev_b32 v1, 6, v0")
    A.I("v_and_b32 v0, 63, v0")
    A.I("v_readfirstlane_b32 s34, v1")
    A.I("s_and_b32 s35, s34, 3")
    A.I("s_cmp_ge_u32 s34, 4")
    A.wait_lg()
    A.I(f"s_cbranch_scc1 L_{name}_M")

    def final_stamps(X, st):
        if not stamps: return
        X.wait_all()
        X.I(f"s_memtime s[{74+2*st.n}:{75+2*st.n}]"); st.n += 1
        X.I("s_memrealtime s[100:101]")
        X.wait_lg()
        X.I("s_lshl_b32 s36, s2, 3")
        X.I("s_add_u32 s36, s36, s34")
        X.I("s_lshl_b32 s36, s36, 7")
        X.I("s_add_u32 s36, s36, 0x2000000")
        X.I("s_add_u32 s40, s30, s36")
        X.I("s_addc_u32 s41, s31, 0")
        X.I("s_and_b32 s41, s41, 0xffff")
        X.I("s_mov_b32 s42, 128")
        X.I("s_mov_b32 s43, 0x00020000")
        X.I("v_mov_b32 v1, 0")
        for i in range(st.n + 1):
            X.I(f"v_mov_b32 v2, s{72+2*i}")
            X.I(f"buffer_store_dword v2, v1, s[40:43], 0 offen offset:{4*i}")
        X.I("v_mov_b32 v2, s98")
        X.I("buffer_store_dword v2, v1, s[40:43], 0 offen offset:120")
        X.I("v_mov_b32 v2, s100")
        X.I("buffer_store_dword v2, v1, s[40:43], 0 offen offset:124")

    S = Stream(A)
    stamp, st = mkstamp(S)
    ACC = 16
    BUF = 56
    CA, CSB, CCO, CCX, CAS, CSBS = 168, 173, 178, 183, 188, 193
    A8, SB8, A128, SB128 = 198, 200, 202, 204
    T0 = 206
    vG_, vC_, vSg = 1, 2, 3
    S.I(f"v_lshrrev_b32 v{vG_}, 4, v0")
    S.I(f"v_and_b32 v{vC_}, 15, v0")
    S.I("s_mul_i32 s36, s33, 80")
    S.I(f"v_and_b32 v4, 7, v0")
    S.I(f"v_lshlrev_b32 v4, 1, v4")
    S.I(f"v_add_u32 v4, s36, v4")
    S.I(f"v_lshlrev_b32 v5, 4, v{vG_}")
    S.I(f"v_add_u32 v5, v4, v5")
    PL = BUF
    for t in range(6):
        vo = "v4" if t < 5 else "v5"
        off = 16 * t if t < 5 else 0
        S.I(f"global_load_ushort v{PL+3*t}, {vo}, s[6:7] offset:{off}", tag="par")
        S.I(f"global_load_ushort v{PL+3*t+1}, {vo}, s[8:9] offset:{off}", tag="par")
        S.I(f"global_load_ushort v{PL+3*t+2}, {vo}, s[18:19] offset:{off}", tag="par")
    SW2, SCR, SCI, SWS = 40, 44, 48, 52
    mk_srd(S, SW2, 24, 25, 1966080)
    mk_srd(S, SCR, 14, 15, 819200)
    mk_srd(S, SCI, 16, 17, 819200)
    mk_srd(S, SWS, 30, 31, STATS_OFF - W2F_OFF, None, W2F_OFF)
    S.I("s_lshl_b32 s56, s2, 2")
    S.I("s_add_u32 s56, s56, s35")
    S.I("v_lshrrev_b32 v6, 1, v0")
    S.I("v_mul_u32_u24 v6, 1280, v6")
    S.I("v_and_b32 v7, 1, v0")
    S.I("v_lshlrev_b32 v7, 4, v7")
    S.I("v_add_u32 v6, v6, v7")
    S.I(f"v_mul_u32_u24 v7, 1280, v{vC_}")
    S.I(f"v_lshrrev_b32 v8, 1, v{vG_}")
    S.I("v_lshlrev_b32 v8, 4, v8")
    S.I("v_add_u32 v7, v7, v8")
    S.I(f"v_and_b32 v8, 1, v{vG_}")
    S.I("v_lshlrev_b32 v8, 31, v8")
    S.I("v_or_b32 v9, v7, v8")
    S.I("v_xor_b32 v10, 0x80000000, v9")
    S.I("v_lshlrev_b32 v11, 4, v0")
    S.I(f"v_lshrrev_b32 v12, 1, v{vG_}")
    S.I("v_lshlrev_b32 v12, 9, v12")
    S.I(f"v_and_b32 v13, 1, v{vG_}")
    S.I("v_lshlrev_b32 v13, 7, v13")
    S.I("v_add_u32 v12, v12, v13")
    S.I(f"v_lshlrev_b32 v13, 3, v{vC_}")
    S.I("v_add_u32 v12, v12, v13")
    S.I("s_lshl_b32 s57, s35, 11")
    S.I(f"s_add_u32 s57, s57, {STG_L}")
    S.I("v_add_u32 v12, s57, v12")
    SJ = T0
    for rep in range(2):
        S.I(f"s_add_u32 s58, s56, {1024*rep}")
        if rep == 1:
            S.I("s_min_u32 s58, s58, 1919")
        S.I(f"s_mul_hi_u32 s59, s58, {(2**32 + 47)//48}")
        S.I("s_mul_i32 s60, s59, 48")
        S.I("s_sub_u32 s60, s58, s60")
        S.I("s_mul_i32 s60, s60, 40960")
        S.I("s_lshl_b32 s59, s59, 5")
        S.I("s_add_u32 s60, s60, s59")
        S.I(f"s_add_u32 m0, s57, {1024*rep}")
        S.I(f"buffer_load_dwordx4 v6, s[{SW2}:{SW2+3}], s60 offen lds", tag=f"w2l{rep}")
        S.I(f"s_lshl_b32 s{61+rep}, s58, 10")
        S.I(f"s_add_u32 s58, s56, {1024*rep}")
        if rep == 1:
            S.I("s_min_u32 s58, s58, 1599")
        S.I(f"s_mul_hi_u32 s59, s58, {(2**32 + 39)//40}")
        S.I("s_mul_i32 s60, s59, 40")
        S.I("s_sub_u32 s60, s58, s60")
        S.I("s_lshl_b32 s60, s60, 5")
        S.I("s_mul_i32 s59, s59, 20480")
        S.I("s_add_u32 s60, s60, s59")
        S.I(f"buffer_load_dwordx4 {vr(SJ+8*rep,4)}, v9, s[{SCR}:{SCR+3}], s60 offen", tag=f"cl{rep}")
        S.I(f"buffer_load_dwordx4 {vr(SJ+8*rep+4,4)}, v10, s[{SCI}:{SCI+3}], s60 offen", tag=f"cl{rep}")
        S.I("s_lshl_b32 s58, s58, 10")
        S.I(f"s_add_u32 s{63+rep}, s58, {CF_OFF - W2F_OFF}")
    S.wait_vm("par")
    S.I(f"v_lshrrev_b32 v{vSg}, 3, v{vC_}")
    S.I(f"v_cvt_f32_u32 v{vSg}, v{vSg}")
    S.I(f"v_fma_f32 v{vSg}, v{vSg}, 2.0, -1.0")
    S.I(f"s_mov_b32 s66, {LOG2E}")
    S.I(f"s_mov_b32 s67, {INV2PI}")
    S.I("s_lshl_b32 s36, s35, 2")
    S.I(f"v_add_u32 v13, s36, v{vG_}")
    S.I("v_lshlrev_b32 v13, 3, v13")
    S.I("v_cvt_f32_u32 v13, v13")
    TT = T0 + 16
    def powr(ar, rev, n, da, dsb):
        if n is None:
            S.I(f"v_exp_f32 v{TT}, v{ar}")
            S.I(f"v_fract_f32 v{TT+1}, v{rev}")
        else:
            S.I(f"v_mul_f32 v{TT}, {n}, v{ar}")
            S.I(f"v_mul_f32 v{TT+1}, {n}, v{rev}")
            S.I(f"v_exp_f32 v{TT}, v{TT}")
            S.I(f"v_fract_f32 v{TT+1}, v{TT+1}")
        S.I(f"v_cos_f32 v{TT+2}, v{TT+1}")
        S.I(f"v_sin_f32 v{TT+3}, v{TT+1}")
        S.I(f"v_mul_f32 v{da}, v{TT}, v{TT+2}")
        S.I(f"v_mul_f32 v{TT+3}, v{TT}, v{TT+3}")
        S.I(f"v_mul_f32 v{dsb}, v{TT+3}, v{vSg}")
    for t in range(6):
        lre, lim, ldt = PL + 3 * t, PL + 3 * t + 1, PL + 3 * t + 2
        S.I(f"v_lshlrev_b32 v{lre}, 16, v{lre}")
        S.I(f"v_lshlrev_b32 v{lim}, 16, v{lim}")
        S.I(f"v_lshlrev_b32 v{ldt}, 16, v{ldt}")
        S.I(f"v_mul_f32 v{ldt}, s66, v{ldt}")
        S.I(f"v_exp_f32 v{ldt}, v{ldt}")
        S.I(f"v_cvt_pk_bf16_f32 v{ldt}, 0, v{ldt}")
        ar, rev = TT + 4, TT + 5
        S.I(f"v_mul_f32 v{ar}, v{ldt}, v{lre}")
        S.I(f"v_mul_f32 v{rev}, v{ldt}, v{lim}")
        S.I(f"v_mul_f32 v{ar}, s66, v{ar}")
        S.I(f"v_mul_f32 v{rev}, s67, v{rev}")
        if t < 5:
            powr(ar, rev, None, CA + t, CSB + t)
            S.I(f"v_add_f32 v{TT+6}, -1.0, v{CA+t}")
            S.I(f"v_mul_f32 v{TT+7}, v{lre}, v{lre}")
            S.I(f"v_fmac_f32 v{TT+7}, v{lim}, v{lim}")
            S.I(f"v_rcp_f32 v{TT+7}, v{TT+7}")
            S.I(f"v_mul_f32 v{TT+8}, v{TT+6}, v{lre}")
            S.I(f"v_fmac_f32 v{TT+8}, v{TT+3}, v{lim}")
            S.I(f"v_mul_f32 v{TT+9}, v{TT+3}, v{lre}")
            S.I(f"v_fma_f32 v{TT+9}, -v{TT+6}, v{lim}, v{TT+9}")
            S.I(f"v_mul_f32 v{TT+7}, -2.0, v{TT+7}")
            S.I(f"v_mul_f32 v{CCX+t}, v{TT+9}, v{TT+7}")
            S.I(f"v_mul_f32 v{TT+8}, v{TT+8}, v{TT+7}")
            S.I(f"v_mul_f32 v{CCO+t}, v{TT+8}, v{vSg}")
            powr(ar, rev, "v13", CAS + t, CSBS + t)
        if t >= 4:
            k = 1 if t == 4 else 0
            powr(ar, rev, f"{f2u(8.0)}", A8 + k, SB8 + k)
            powr(ar, rev, f"{f2u(128.0)}", A128 + k, SB128 + k)
    for rep in range(2):
        S.wait_vm(f"w2l{rep}")
        S.I(f"ds_read_b64_tr_b16 {vr(TT+4*rep,2)}, v12 offset:{1024*rep}", tag="sj")
        S.I(f"ds_read_b64_tr_b16 {vr(TT+4*rep+2,2)}, v12 offset:{1024*rep+256}", tag="sj")
    for rep in range(2):
        S.wait_vm(f"cl{rep}")
        for k in range(4):
            S.I(f"v_or_b32 v{SJ+8*rep+k}, v{SJ+8*rep+k}, v{SJ+8*rep+4+k}")
        S.I(f"buffer_store_dwordx4 {vr(SJ+8*rep,4)}, v11, s[{SWS}:{SWS+3}], s{63+rep} offen", tag="st")
    S.wait_lg()
    for rep in range(2):
        S.I(f"buffer_store_dwordx4 {vr(TT+4*rep,4)}, v11, s[{SWS}:{SWS+3}], s{61+rep} offen", tag="st")
    S.I(f"v_lshrrev_b32 v{TT}, 2, v{vC_}")
    S.I(f"v_and_b32 v{TT+1}, 3, v{vC_}")
    S.I(f"v_lshlrev_b32 v{TT+2}, 3, v{TT}")
    S.I(f"v_add_u32 v{TT+2}, v{TT+2}, v{TT+1}")
    S.I("s_lshl_b32 s36, s35, 5")
    S.I(f"v_add_u32 v{TT+2}, s36, v{TT+2}")
    S.I(f"v_lshlrev_b32 v{TT+2}, 7, v{TT+2}")
    S.I(f"v_lshrrev_b32 v{TT+3}, 1, v{TT}")
    S.I(f"v_lshlrev_b32 v{TT+3}, 2, v{TT+3}")
    S.I(f"v_and_b32 v{TT+4}, 2, v{TT+1}")
    S.I(f"v_or_b32 v{TT+3}, v{TT+3}, v{TT+4}")
    S.I(f"v_xor_b32 v{TT+3}, v{TT+3}, v{vG_}")
    for T in range(2):
        for sp in range(2):
            d = 4 + 2 * T + sp
            S.I(f"v_xor_b32 v{TT+4}, {(4*sp) ^ T}, v{TT+3}")
            S.I(f"v_lshlrev_b32 v{TT+4}, 4, v{TT+4}")
            S.I(f"v_add3_u32 v{d}, v{TT+2}, v{TT+4}, {0}") if False else S.I(f"v_add_u32 v{d}, v{TT+2}, v{TT+4}")
            if T: S.I(f"v_add_u32 v{d}, 512, v{d}")
            S.I(f"v_add_u32 v{d+4}, {2*SLOT}, v{d}")
    S.I(f"v_and_b32 v{TT}, 7, v{vC_}")
    S.I(f"v_xor_b32 v{TT}, v{TT}, v{vG_}")
    S.I(f"v_lshlrev_b32 v{TT+1}, 7, v{vC_}")
    for sp in range(2):
        S.I(f"v_xor_b32 v{TT+2}, {4*sp}, v{TT}")
        S.I(f"v_lshlrev_b32 v{TT+2}, 4, v{TT+2}")
        S.I(f"v_add_u32 v{12+sp}, v{TT+1}, v{TT+2}")
        S.I(f"v_add_u32 v{12+sp}, 16384, v{12+sp}")
        S.I(f"v_add_u32 v{14+sp}, {2*SLOT}, v{12+sp}")
    stamp()
    def s_reads(p):
        q = p % 4; hi = q >= 2; so = (q & 1) * SLOT
        b = BUF + (p & 1) * 56
        for sp in range(2):
            for T in range(2):
                S.I(f"ds_read_b128 {vr(b+(sp*2+T)*4,4)}, v{4+2*T+sp+(4 if hi else 0)} offset:{so}", tag=f"r{p}")
            for j in range(5):
                S.I(f"ds_read_b128 {vr(b+16+(sp*5+j)*4,4)}, v{12+sp+(2 if hi else 0)} offset:{so+2048*j}", tag=f"r{p}")
    def s_mfma(p):
        b = BUF + (p & 1) * 56
        for sp in range(2):
            for j in range(5):
                for T in range(2):
                    ac = ACC + 8 * j + 4 * T
                    c = "0" if (p == 0 and sp == 0) else vr(ac, 4)
                    S.I(f"v_mfma_f32_16x16x32_bf16 {vr(ac,4)}, {vr(b+(sp*2+T)*4,4)}, {vr(b+16+(sp*5+j)*4,4)}, {c}")
    for p in range(10):
        S.I("s_barrier")
        if p in (0, 5): stamp()
        s_reads(p)
        if p > 0: s_mfma(p - 1)
        S.wait_lg()
    S.I("s_barrier")
    stamp()
    ST = BUF
    CS = BUF + 16
    S.I("s_lshl_b32 s36, s35, 8")
    S.I(f"v_lshlrev_b32 v4, 6, v{vG_}")
    S.I(f"v_add_u32 v4, s36, v4")
    for k in range(4):
        S.I(f"ds_read_b128 {vr(ST+4*k,4)}, v4 offset:{STATS_L+16*k}" if STATS_L + 64 < 65536 else "", tag="x") if False else None
    S.I(f"v_add_u32 v4, {STATS_L}, v4")
    for k in range(4):
        S.I(f"ds_read_b128 {vr(ST+4*k,4)}, v4 offset:{16*k}", tag="stt")
    S.I(f"v_lshlrev_b32 v5, 2, v{vC_}")
    S.I(f"v_add_u32 v5, {CSB_L}, v5")
    for wv in range(4):
        for j in range(5):
            S.I(f"ds_read_b32 v{CS+wv*5+j}, v5 offset:{wv*320+j*64}", tag="cs")
    s_mfma(9)
    S.wait_lg()
    for j in range(5):
        S.I(f"v_add_f32 v{CS+j}, v{CS+j}, v{CS+5+j}")
        S.I(f"v_add_f32 v{CS+10+j}, v{CS+10+j}, v{CS+15+j}")
    for j in range(5):
        S.I(f"v_add_f32 v{CS+j}, v{CS+j}, v{CS+10+j}")
    for tl in range(8):
        for j in range(5):
            S.I(f"v_fma_f32 v{ACC+8*j+tl}, -v{ST+2*tl}, v{CS+j}, v{ACC+8*j+tl}")
        for j in range(5):
            S.I(f"v_mul_f32 v{ACC+8*j+tl}, v{ACC+8*j+tl}, v{ST+2*tl+1}")
    EA, EB = BUF + 40, BUF + 45
    cur = [ACC + 8 * j for j in range(5)]
    for tl in range(1, 8):
        dst = EA if tl & 1 else EB
        for j in range(5):
            S.I(f"v_fma_f32 v{dst+j}, v{CA+j}, v{cur[j]}, v{ACC+8*j+tl}")
        for j in range(5):
            S.I(f"v_fmac_f32_dpp v{dst+j}, v{cur[j]}, v{CSB+j} {DPP}")
        cur = [dst + j for j in range(5)]
    S.I("s_mul_i32 s36, s35, 1280")
    S.I(f"v_mul_u32_u24 v6, 320, v{vG_}")
    S.I(f"v_lshlrev_b32 v7, 2, v{vC_}")
    S.I("v_add3_u32 v6, v6, v7, s36")
    S.I(f"v_add_u32 v7, {SEG_L}, v6")
    for j in range(5):
        S.I(f"ds_write_b32 v7, v{cur[j]} offset:{64*j}")
    S.wait_lg()
    S.I("s_barrier")
    stamp()
    EC = BUF
    S.I("v_lshlrev_b32 v8, 2, v0")
    S.I(f"v_add_u32 v9, {SEG_L}, v8")
    S.I(f"v_lshlrev_b32 v10, 2, v{vC_}")
    S.I(f"v_add_u32 v11, {SEG_L+256}, v10")
    for s_ in range(16):
        S.I(f"ds_read_b32 v{EC+s_}, v9 offset:{320*s_}", tag=f"e{s_}")
        S.I(f"ds_read_b32 v{EC+16+s_}, v11 offset:{320*s_}", tag=f"e{s_}")
    S.I(f"v_add_u32 v9, {Q_L}, v8")
    S.I(f"v_add_u32 v11, {Q_L+256}, v10")
    S.I(f"v_mov_b32 v{T0}, 0")
    S.I(f"ds_write_b32 v9, v{T0}", tag="q")
    S.I(f"ds_write_b32 v11, v{T0}", tag="q")
    for s_ in range(16):
        S.wait_lg(f"e{s_}")
        if s_ > 0:
            for k in range(2):
                S.I(f"v_fmac_f32 v{EC+16*k+s_}, v{A8+k}, v{EC+16*k+s_-1}")
            for k in range(2):
                S.I(f"v_fmac_f32_dpp v{EC+16*k+s_}, v{EC+16*k+s_-1}, v{SB8+k} {DPP}")
        if s_ < 15:
            S.I(f"ds_write_b32 v9, v{EC+s_} offset:{320*(s_+1)}", tag="q")
            S.I(f"ds_write_b32 v11, v{EC+16+s_} offset:{320*(s_+1)}", tag="q")
    SAG, SDB, SHF = 40, 44, 48
    S.I("s_mul_i32 s36, s33, 5120")
    mk_srd(S, SAG, 30, 31, 5120, 36, AGG_OFF)
    mk_srd(S, SDB, 28, 29, 256)
    S.I("s_mul_i32 s37, s32, 320")
    S.I("s_cmp_lg_u32 s35, 0")
    S.I(f"s_cbranch_scc1 L_{name}_nopub")
    S.I(f"buffer_store_dword v{EC+15}, v8, s[{SAG}:{SAG+3}], s37 offen sc1", tag="pub")
    S.I(f"buffer_store_dword v{EC+31}, v10, s[{SAG}:{SAG+3}], s37 offen offset:256 sc1", tag="pub")
    S.I("s_lshl_b32 s38, 1, s32")
    S.I(f"v_mov_b32 v{T0+1}, s38")
    S.I("s_lshl_b32 s38, s33, 2")
    S.I(f"v_mov_b32 v{T0+2}, s38")
    S.I("s_waitcnt vmcnt(0)")
    S.I("s_mov_b64 exec, 1")
    S.I(f"buffer_atomic_or v{T0+1}, v{T0+2}, s[{SDB}:{SDB+3}], 0 offen", tag="pub")
    S.I("s_mov_b64 exec, -1")
    S.label(f"L_{name}_nopub")
    S.vm = ["pub"]
    stamp()
    QV = BUF + 40
    S.wait_lg()
    S.I(f"v_add_u32 v7, {Q_L}, v6")
    for j in range(5):
        S.I(f"ds_read_b32 v{QV+j}, v7 offset:{64*j}", tag="qv")
    S.wait_lg()
    S.I("s_barrier")
    S.I("s_lshl_b32 s38, 1, s32")
    S.I("s_sub_u32 s38, s38, 1")
    S.I("s_lshl_b32 s39, s33, 2")
    S.I(f"v_mov_b32 v{T0+2}, s39")
    S.I("s_mov_b32 s39, 0")
    AV = BUF + 48
    S.I("v_add_u32 v9, s37, v8")
    S.I("v_add_u32 v11, s37, v10")
    S.I("v_add_u32 v11, 256, v11")
    for d in range(1, 16):
        S.I(f"v_add_u32 v{AV+d-1}, {(-320*d) & 0xffffffff}, v9")
        S.I(f"v_add_u32 v{AV+16+d-1}, {(-320*d) & 0xffffffff}, v11")
    S.label(f"L_{name}_poll")
    S.I(f"buffer_load_dword v{T0+3}, v{T0+2}, s[{SDB}:{SDB+3}], 0 offen sc1", tag="poll")
    S.I("s_waitcnt vmcnt(0)")
    S.vm = []
    S.I(f"v_readfirstlane_b32 s36, v{T0+3}")
    S.I("s_add_u32 s39, s39, 1")
    S.I("s_and_b32 s36, s36, s38")
    S.I("s_cmp_eq_u32 s36, s38")
    S.I(f"s_cbranch_scc1 L_{name}_polldone")
    S.I("s_cmp_lt_u32 s39, 0x100000")
    S.I(f"s_cbranch_scc1 L_{name}_poll")
    S.label(f"L_{name}_polldone")
    stamp()
    AG = BUF
    for d in range(15, 0, -1):
        S.I(f"buffer_load_dword v{AG+d-1}, v{AV+d-1}, s[{SAG}:{SAG+3}], 0 offen sc1", tag=f"ag{d}")
        S.I(f"buffer_load_dword v{AG+16+d-1}, v{AV+16+d-1}, s[{SAG}:{SAG+3}], 0 offen sc1", tag=f"ag{d}")
    for d in range(15, 0, -1):
        S.wait_vm(f"ag{d}")
        if d < 15:
            for k in range(2):
                S.I(f"v_fmac_f32 v{AG+16*k+d-1}, v{A128+k}, v{AG+16*k+d}")
            for k in range(2):
                S.I(f"v_fmac_f32_dpp v{AG+16*k+d-1}, v{AG+16*k+d}, v{SB128+k} {DPP}")
    S.I("s_lshl_b32 s36, s35, 9")
    S.I(f"s_add_u32 s36, s36, {HS_L}")
    S.I("v_add_u32 v9, s36, v8")
    S.I("v_add_u32 v11, s36, v10")
    S.I(f"ds_write_b32 v9, v{AG}", tag="h")
    S.I(f"ds_write_b32 v11, v{AG+16} offset:256", tag="h")
    HV = BUF + 32
    for j in range(5):
        S.I(f"ds_read_b32 v{HV+j}, v11 offset:{64*j}", tag="hv")
    S.wait_lg()
    for j in range(5):
        S.I(f"v_fmac_f32 v{QV+j}, v{CAS+j}, v{HV+j}")
    for j in range(5):
        S.I(f"v_fmac_f32_dpp v{QV+j}, v{HV+j}, v{CSBS+j} {DPP}")
    for tl in range(8):
        prev = [QV + j if tl == 0 else ACC + 8 * j + tl - 1 for j in range(5)]
        for j in range(5):
            S.I(f"v_fmac_f32 v{ACC+8*j+tl}, v{CA+j}, v{prev[j]}")
        for j in range(5):
            S.I(f"v_fmac_f32_dpp v{ACC+8*j+tl}, v{prev[j]}, v{CSB+j} {DPP}")
    OV = BUF + 56
    PK = BUF + 100
    S.I(f"v_mul_u32_u24 v9, 272, v{vC_}")
    S.I(f"v_lshlrev_b32 v11, 4, v{vG_}")
    S.I("s_lshl_b32 s36, s35, 6")
    S.I(f"s_add_u32 s36, s36, {TR_L}")
    S.I("v_add3_u32 v9, v9, v11, s36")
    for j in range(5):
        for tl in range(8):
            S.I(f"v_mul_f32 v{OV+8*j+tl}, v{CCO+j}, v{ACC+8*j+tl}")
        for tl in range(8):
            S.I(f"v_fmac_f32_dpp v{OV+8*j+tl}, v{ACC+8*j+tl}, v{CCX+j} {DPP}")
        for k in range(4):
            S.I(f"v_cvt_pk_bf16_f32 v{PK+4*j+k}, v{OV+8*j+2*k}, v{OV+8*j+2*k+1}")
        S.I(f"ds_write_b128 v9, {vr(PK+4*j,4)} offset:{16*272*j}", tag="tw")
    S.I(f"v_lshrrev_b32 v11, 2, v{vC_}")
    S.I("v_mul_u32_u24 v11, 272, v11")
    S.I(f"v_and_b32 v4, 3, v{vC_}")
    S.I("v_lshlrev_b32 v4, 4, v4")
    S.I("v_add3_u32 v11, v11, v4, s36")
    S.I(f"v_mul_u32_u24 v4, {8*272}, v{vG_}")
    S.I("v_add_u32 v4, v11, v4")
    S.I(f"v_and_b32 v5, 1, v{vG_}")
    S.I(f"v_mul_u32_u24 v5, {8*272}, v5")
    S.I(f"v_lshrrev_b32 v7, 1, v{vG_}")
    S.I("v_lshlrev_b32 v7, 3, v7")
    S.I("v_add3_u32 v5, v11, v5, v7")
    S.I("s_lshl_b32 s36, s32, 2")
    S.I("s_add_u32 s36, s36, s35")
    S.I(f"s_mul_i32 s36, s36, {2*HF_RT}")
    S.I("s_mul_i32 s37, s33, 2560")
    S.I("s_add_u32 s36, s36, s37")
    mk_srd(S, SHF, 30, 31, HF_RT + 2560, 36, HF_OFF)
    S.I("v_lshlrev_b32 v7, 4, v0")
    S.I(f"v_and_b32 v10, 1, v{vG_}")
    S.I("v_lshlrev_b32 v10, 8, v10")
    S.I(f"v_lshlrev_b32 v8, 4, v{vC_}")
    S.I("v_add_u32 v10, v10, v8")
    S.I(f"v_lshrrev_b32 v8, 1, v{vG_}")
    S.I(f"v_mul_u32_u24 v8, {HF_RT}, v8")
    S.I("v_add_u32 v10, v10, v8")
    S.I(f"s_mov_b32 s37, {HF_RT}")
    S.wait_lg()
    RD = BUF
    for n in range(5):
        for e in range(2):
            if n < 4:
                off = (n & 1) * 32 * 272 + e * 4 * 272 + (n >> 1) * 8
                S.I(f"ds_read_b64_tr_b16 {vr(RD+4*n+2*e,2)}, v4 offset:{off}", tag=f"t{n}")
            else:
                S.I(f"ds_read_b64_tr_b16 {vr(RD+4*n+2*e,2)}, v5 offset:{64*272+e*4*272}", tag=f"t{n}")
    for n in range(5):
        S.wait_lg(f"t{n}")
        if n < 4:
            so = "0" if n < 2 else "s37"
            S.I(f"buffer_store_dwordx4 {vr(RD+4*n,4)}, v7, s[{SHF}:{SHF+3}], {so} offen offset:{(n&1)*1024}", tag="st")
        else:
            S.I(f"buffer_store_dwordx4 {vr(RD+4*n,4)}, v10, s[{SHF}:{SHF+3}], 0 offen offset:2048", tag="st")
    final_stamps(S, st)
    S.I("s_endpgm")

    M = Stream(A)
    M.label(f"L_{name}_M")
    stamp, st = mkstamp(M)
    SX, SBB, SW1, SB1, SH1, SSTAT = 40, 44, 56, 60, 64, 68
    XF, MACC, AF = 96, 48, 24
    M.I(f"s_mul_i32 s36, s32, {128*1280}")
    mk_srd(M, SX, 4, 5, 128 * 1280, 36)
    M.I("v_lshrrev_b32 v22, 3, v0")
    M.I("v_and_b32 v23, 7, v0")
    M.I("v_and_b32 v5, 2, v22")
    M.I("v_lshrrev_b32 v6, 2, v22")
    M.I("v_or_b32 v5, v5, v6")
    M.I("v_xor_b32 v5, v5, v23")
    M.I("s_mul_i32 s36, s35, 40960")
    M.I("v_mul_u32_u24 v6, 1280, v22")
    M.I("v_add_u32 v6, s36, v6")
    for e in range(4):
        M.I(f"v_xor_b32 v7, {4 if e >= 2 else 0}, v5")
        M.I("v_lshlrev_b32 v7, 4, v7")
        M.I(f"v_add3_u32 v{1+e}, v6, v7, 0") if False else M.I(f"v_add_u32 v{1+e}, v6, v7")
        if e: M.I(f"v_add_u32 v{1+e}, {10240*e}, v{1+e}")
    M.I("s_lshl_b32 s37, s35, 12")
    def dma_x(p):
        q = p % 4
        M.I(f"s_mov_b32 s38, {128*p}")
        for e in range(4):
            M.I(f"s_add_u32 m0, s37, {q*SLOT + 1024*e}")
            M.I(f"buffer_load_dwordx4 v{1+e}, s[{SX}:{SX+3}], s38 offen lds", tag=f"c{p}")
    dma_x(0)
    for e in range(3):
        M.I("s_mul_i32 s36, s35, 3")
        M.I(f"s_add_u32 s36, s36, {e}")
        M.I("s_sub_u32 s39, s36, 2")
        M.I("s_cmp_lt_u32 s36, 10")
        M.I("s_cselect_b32 s36, s36, s39")
        M.I(f"s_lshl_b32 s{69+e}, s36, 10")
        M.I("s_and_b32 s39, s36, 1")
        M.I("s_cmp_eq_u32 s39, 0")
        M.I(f"s_cselect_b32 s{SBB+4*e}, s10, s12")
        M.I(f"s_cselect_b32 s{SBB+4*e+1}, s11, s13")
        M.I("s_lshr_b32 s36, s36, 1")
        M.I("s_lshl_b32 s36, s36, 3")
        M.I("s_mul_i32 s39, s33, 40")
        M.I("s_add_u32 s36, s36, s39")
        M.I("s_mul_i32 s36, s36, 1280")
        M.I(f"s_add_u32 s{SBB+4*e}, s{SBB+4*e}, s36")
        M.I(f"s_addc_u32 s{SBB+4*e+1}, s{SBB+4*e+1}, 0")
        M.I(f"s_and_b32 s{SBB+4*e+1}, s{SBB+4*e+1}, 0xffff")
        M.I(f"s_mov_b32 s{SBB+4*e+2}, 10240")
        M.I(f"s_mov_b32 s{SBB+4*e+3}, 0x00020000")
    M.I("v_xor_b32 v5, v22, v23")
    M.I("v_lshlrev_b32 v5, 4, v5")
    M.I("v_mad_u32_u24 v5, v22, s36, v5") if False else None
    M.I("v_mul_u32_u24 v6, 1280, v22")
    M.I("v_add_u32 v5, v5, v6")
    def dma_bb(p):
        q = p % 4
        M.I(f"s_mov_b32 s38, {128*p}")
        for e in range(3):
            M.I(f"s_add_u32 m0, s{69+e}, {q*SLOT + 16384}")
            M.I(f"buffer_load_dwordx4 v5, s[{SBB+4*e}:{SBB+4*e+3}], s38 offen lds", tag=f"c{p}")
    dma_bb(0)
    for p in range(1, 4):
        dma_x(p); dma_bb(p)
    mk_srd(M, SW1, 20, 21, 1966080)
    M.I("s_mul_i32 s36, s35, 49152")
    M.I("s_mul_i32 s39, s33, 192")
    M.I("s_add_u32 s36, s36, s39")
    for e in range(3):
        M.I(f"v_add_u32 v22, {64*e}, v0")
        M.I("v_mul_u32_u24 v23, 43691, v22")
        M.I("v_lshrrev_b32 v23, 19, v23")
        M.I("v_mul_u32_u24 v9, 12, v23")
        M.I("v_sub_u32 v22, v22, v9")
        M.I("v_lshlrev_b32 v22, 4, v22")
        M.I("v_mul_u32_u24 v23, 3072, v23")
        M.I(f"v_add3_u32 v{6+e}, v22, v23, s36")
    M.I("s_mul_i32 s68, s35, 3072")
    def dma_w1(q):
        M.I(f"s_mov_b32 s38, {196608*q}")
        for e in range(3):
            M.I(f"s_add_u32 m0, s68, {w1base(q) + 1024*e}")
            M.I(f"buffer_load_dwordx4 v{6+e}, s[{SW1}:{SW1+3}], s38 offen lds", tag=f"w{q}")
    dma_w1(0); dma_w1(1)
    stamp()
    M.I("v_and_b32 v22, 15, v0")
    M.I("v_bfe_u32 v23, v0, 4, 1")
    M.I(f"v_lshrrev_b32 v{AF}, 2, v22")
    M.I(f"v_and_b32 v{AF+1}, 3, v22")
    M.I(f"v_lshlrev_b32 v{AF+2}, 3, v{AF}")
    M.I(f"v_lshl_add_u32 v{AF+2}, v23, 2, v{AF+2}")
    M.I(f"v_add_u32 v{AF+2}, v{AF+2}, v{AF+1}")
    M.I("s_lshl_b32 s36, s35, 5")
    M.I(f"v_add_u32 v{AF+5}, s36, v{AF+2}")
    M.I(f"v_lshlrev_b32 v{AF+2}, 7, v{AF+5}")
    M.I(f"v_lshrrev_b32 v{AF+3}, 1, v{AF}")
    M.I(f"v_lshlrev_b32 v{AF+3}, 2, v{AF+3}")
    M.I(f"v_and_b32 v{AF+4}, 2, v{AF+1}")
    M.I(f"v_or3_b32 v{AF+3}, v{AF+3}, v{AF+4}, v23")
    M.I(f"v_lshrrev_b32 v{AF+4}, 5, v0")
    M.I(f"v_xor_b32 v{AF+3}, v{AF+3}, v{AF+4}")
    for u in range(4):
        M.I(f"v_xor_b32 v{AF+4}, {2*u}, v{AF+3}")
        M.I(f"v_lshl_add_u32 v{9+u}, v{AF+4}, 4, v{AF+2}")
    M.I(f"v_mov_b32 v23, v{AF+5}")
    M.I(f"v_lshrrev_b32 v{AF}, 4, v0")
    M.I("s_and_b32 s36, s35, 1")
    M.I("s_lshl_b32 s36, s36, 2")
    M.I(f"v_add_u32 v{AF}, s36, v{AF}")
    M.I(f"v_and_b32 v{AF+1}, 7, v0")
    M.I(f"v_xor_b32 v{AF}, v{AF}, v{AF+1}")
    M.I(f"v_lshlrev_b32 v{AF+1}, 7, v22")
    M.I(f"v_lshl_add_u32 v13, v{AF}, 4, v{AF+1}")
    M.I("v_add_u32 v13, 16384, v13")
    for k in range(4): M.I(f"v_mov_b32 v{14+k}, 0")
    for k in range(4): M.I(f"v_mov_b32 v{18+k}, 0x3f803f80")
    for k in range(20): M.I(f"v_mov_b32 v{MACC+k}, 0")
    M.I("s_lshr_b32 s39, s35, 1")
    for p in range(10):
        M.wait_vm(f"c{p}")
        M.I("s_barrier")
        if p in (0, 5): stamp()
        for u in range(4):
            M.I(f"ds_read_b128 {vr(XF+16*p+4*u,4)}, v{9+u}", tag=f"x{p}")
        if 1 <= p <= 6:
            dma_x(p + 3); dma_bb(p + 3)
        if p == 7:
            for q in (2, 3, 4, 5): dma_w1(q)
        if p == 8:
            dma_w1(6); dma_w1(7)
        if p == 9:
            dma_w1(8); dma_w1(9)
        M.I(f"s_cmp_lg_u32 s39, {p & 1}")
        M.I(f"s_cbranch_scc1 L_{name}_nocs{p}")
        for j in range(5):
            M.I(f"ds_read_b128 {vr(AF+4*j,4)}, v13 offset:{2048*j}", tag="bb")
        M.I("s_waitcnt lgkmcnt(0)")
        for j in range(5):
            M.I(f"v_mfma_f32_16x16x32_bf16 {vr(MACC+4*j,4)}, v[18:21], {vr(AF+4*j,4)}, {vr(MACC+4*j,4)}")
        M.label(f"L_{name}_nocs{p}")
        M.wait_lg()
        for k in range(16):
            M.I(f"v_dot2c_f32_bf16 v{14+(k&1)}, v{XF+16*p+k}, v18")
            M.I(f"v_dot2c_f32_bf16 v{16+(k&1)}, v{XF+16*p+k}, v{XF+16*p+k}")
        delta = SLOT if p % 4 != 3 else (-3 * SLOT) & 0xffffffff
        for k in range(5):
            M.I(f"v_add_u32 v{9+k}, {delta}, v{9+k}")
    M.I("s_nop 2")
    M.I("v_add_f32 v14, v14, v15")
    M.I("v_add_f32 v16, v16, v17")
    M.I("v_mov_b32 v15, v14")
    M.I("v_mov_b32 v17, v16")
    M.I("v_permlane32_swap_b32 v14, v15")
    M.I("v_permlane32_swap_b32 v16, v17")
    M.I("v_add_f32 v14, v14, v15")
    M.I("v_add_f32 v16, v16, v17")
    M.I(f"v_mul_f32 v14, {f2u(1.0/640)}, v14")
    M.I(f"v_mul_f32 v16, {f2u(1.0/640)}, v16")
    M.I("v_fma_f32 v16, -v14, v14, v16")
    M.I("v_max_f32 v16, 0, v16")
    M.I("v_cvt_pk_bf16_f32 v14, 0, v14")
    M.I("v_cvt_pk_bf16_f32 v16, 0, v16")
    M.I(f"v_add_f32 v16, {f2u(1e-5)}, v16")
    M.I("v_cvt_pk_bf16_f32 v16, 0, v16")
    M.I("v_sqrt_f32 v16, v16")
    M.I("v_cvt_pk_bf16_f32 v16, 0, v16")
    M.I("v_rcp_f32 v15, v16")
    M.I("v_lshlrev_b32 v16, 3, v23")
    M.I(f"v_add_u32 v17, {STATS_L}, v16")
    M.I("ds_write_b64 v17, v[14:15]", tag="sw")
    M.I("s_mul_i32 s36, s35, 320")
    M.I(f"s_add_u32 s36, s36, {CSB_L}")
    M.I("v_lshlrev_b32 v17, 2, v22")
    M.I("v_add_u32 v17, s36, v17")
    for j in range(5):
        M.I(f"ds_write_b32 v17, v{MACC+4*j} offset:{64*j}", tag="sw")
    M.I("s_cmp_lg_u32 s33, 0")
    M.I(f"s_cbranch_scc1 L_{name}_nostat")
    M.I("s_lshl_b32 s36, s32, 10")
    mk_srd(M, SB1, 30, 31, 1024, 36, STATS_OFF)
    M.I(f"buffer_store_dwordx2 v[14:15], v16, s[{SB1}:{SB1+3}], 0 offen")
    M.vm.pop()
    M.label(f"L_{name}_nostat")
    CONDVM = 1
    M.wait_vm(["w0", "w1"])
    M.wait_lg()
    M.I("s_barrier")
    stamp()
    M.I("v_lshrrev_b32 v9, 5, v0")
    M.I("v_lshlrev_b32 v9, 3, v9")
    M.I("v_bfe_u32 v10, v0, 2, 2")
    M.I("v_add_u32 v9, v9, v10")
    M.I("v_mul_u32_u24 v9, 192, v9")
    M.I("v_bfe_u32 v10, v0, 4, 1")
    M.I("v_lshl_add_u32 v9, v10, 5, v9")
    M.I("v_and_b32 v10, 3, v0")
    M.I("v_lshl_add_u32 v9, v10, 3, v9")
    M.I("v_add_u32 v10, 53248, v9")
    M.I("v_add_u32 v11, 106496, v9")
    CSW = [12, 13, 16]
    for k in CSW: M.I(f"v_mov_b32 v{k}, 0")
    def tr_reads(u):
        q = u >> 2
        base = w1base(q) + (u & 3) * 3072
        sel = base // 53248; sel = min(sel, 2)
        off = base - sel * 53248
        b = AF + (u & 1) * 12
        for jt in range(3):
            for e in range(2):
                o = off + e * 768 + jt * 64
                assert o < 65536
                M.I(f"ds_read_b64_tr_b16 {vr(b+4*jt+2*e,2)}, v{9+sel} offset:{o}", tag=f"a{u}")
    def m_mfma(u):
        b = AF + (u & 1) * 12
        for jt in range(3):
            c = "0" if u == 0 else vr(MACC + 16 * jt, 16)
            M.I(f"v_mfma_f32_32x32x16_bf16 {vr(MACC+16*jt,16)}, {vr(b+4*jt,4)}, {vr(XF+4*u,4)}, {c}")
            for k in range(4):
                M.I(f"v_dot2c_f32_bf16 v{CSW[jt]}, v{b+4*jt+k}, v18")
    mk_srd(M, SB1, 22, 23, 3072)
    B1V = XF
    tr_reads(0)
    for u in range(40):
        if u in (8, 24):
            M.wait_vm(["w2", "w3", "w4", "w5"] if u == 8 else ["w6", "w7", "w8", "w9"])
            M.I("s_barrier")
            stamp()
            tr_reads(u)
        if u + 1 < 40 and (u + 1) not in (8, 24): tr_reads(u + 1)
        M.wait_lg(f"a{u}")
        m_mfma(u)
        if u == 30:
            M.I("s_mul_i32 s36, s33, 192")
            M.I("v_lshrrev_b32 v17, 5, v0")
            M.I("v_lshlrev_b32 v17, 3, v17")
            M.I("v_add_u32 v17, s36, v17")
            for jt in range(3):
                for q in range(4):
                    M.I(f"buffer_load_dwordx2 {vr(B1V+(jt*4+q)*2,2)}, v17, s[{SB1}:{SB1+3}], 0 offen offset:{64*jt+16*q}", tag="b1")
    stamp()
    CSV = XF + 32
    M.I("s_nop 2")
    for k in range(3):
        M.I(f"v_mov_b32 v{AF+k}, v{CSW[k]}")
    for k in range(3):
        M.I(f"v_permlane32_swap_b32 v{CSW[k]}, v{AF+k}")
    for k in range(3):
        M.I(f"v_add_f32 v{CSW[k]}, v{CSW[k]}, v{AF+k}")
    M.I("s_lshl_b32 s36, s35, 9")
    M.I(f"s_add_u32 s36, s36, {WDED}")
    M.I("v_and_b32 v9, 31, v0")
    M.I("v_lshlrev_b32 v9, 2, v9")
    M.I("v_add_u32 v9, s36, v9")
    for k in range(3):
        M.I(f"ds_write_b32 v9, v{CSW[k]} offset:{128*k}", tag="cw")
    M.I("v_lshrrev_b32 v10, 5, v0")
    M.I("v_lshlrev_b32 v10, 4, v10")
    M.I("v_add_u32 v10, s36, v10")
    for jt in range(3):
        for q in range(4):
            M.I(f"ds_read_b128 {vr(CSV+(jt*4+q)*4,4)}, v10 offset:{128*jt+32*q}", tag="cr")
    M.I("s_lshl_b32 s36, s32, 2")
    M.I("s_add_u32 s36, s36, s35")
    M.I(f"s_mul_i32 s36, s36, {2*H1F_RT}")
    M.I("s_mul_i32 s39, s33, 3072")
    M.I("s_add_u32 s36, s36, s39")
    mk_srd(M, SH1, 30, 31, H1F_RT + 3072, 36, H1F_OFF)
    M.I("v_bfe_u32 v9, v0, 4, 1")
    M.I(f"v_mul_u32_u24 v9, {H1F_RT}, v9")
    M.I("v_lshrrev_b32 v10, 5, v0")
    M.I("v_lshl_add_u32 v9, v10, 8, v9")
    M.I("v_lshl_add_u32 v9, v22, 4, v9")
    C1 = -2.0 * 1.4426950408889634 * 0.7978845608028654
    C2 = C1 * 0.044715
    M.I(f"s_mov_b32 s36, {f2u(C2)}")
    M.I(f"v_mov_b32 v10, {f2u(C1)}")
    M.I("s_mov_b32 s39, 0xffff0000")
    M.wait_vm("b1")
    M.wait_lg()
    TM = XF + 80
    for jt in range(3):
        for AB in range(2):
            regs = [MACC + 16 * jt + 8 * AB + k for k in range(8)]
            cs = [CSV + (jt * 4 + 2 * AB) * 4 + k for k in range(8)]
            for k in range(8):
                M.I(f"v_fma_f32 v{regs[k]}, -v14, v{cs[k]}, v{regs[k]}")
            for k in range(4):
                src = B1V + (jt * 4 + 2 * AB) * 2 + k
                M.I(f"v_lshlrev_b32 v{TM+2*k}, 16, v{src}")
                M.I(f"v_and_b32 v{TM+2*k+1}, s39, v{src}")
            for k in range(8):
                M.I(f"v_mul_f32 v{regs[k]}, v{regs[k]}, v15")
            for k in range(8):
                M.I(f"v_cvt_pk_bf16_f32 v{regs[k]}, 0, v{regs[k]}")
            for k in range(8):
                M.I(f"v_add_f32 v{regs[k]}, v{regs[k]}, v{TM+k}")
            for k in range(8):
                M.I(f"v_cvt_pk_bf16_f32 v{regs[k]}, 0, v{regs[k]}")
            for k in range(8):
                M.I(f"v_mul_f32 v{TM+k}, v{regs[k]}, v{regs[k]}")
            for k in range(8):
                M.I(f"v_fma_f32 v{TM+k}, v{TM+k}, s36, v10")
            for k in range(8):
                M.I(f"v_mul_f32 v{TM+k}, v{TM+k}, v{regs[k]}")
            for k in range(8):
                M.I(f"v_exp_f32 v{TM+k}, v{TM+k}")
            for k in range(8):
                M.I(f"v_add_f32 v{TM+k}, 1.0, v{TM+k}")
            for k in range(8):
                M.I(f"v_rcp_f32 v{TM+k}, v{TM+k}")
            for k in range(8):
                M.I(f"v_mul_f32 v{regs[k]}, v{regs[k]}, v{TM+k}")
            PKM = TM + 8 + 4 * ((jt * 2 + AB) % 2)
            for k in range(4):
                M.I(f"v_cvt_pk_bf16_f32 v{PKM+k}, v{regs[2*k]}, v{regs[2*k+1]}")
            M.I(f"buffer_store_dwordx4 {vr(PKM,4)}, v9, s[{SH1}:{SH1+3}], 0 offen offset:{1024*jt+512*AB}", tag="st")
    final_stamps(M, st)
    M.label(f"L_{name}_end")
    M.I("s_endpgm")
    desc = f""".section .rodata,"a"
.p2align 6
.amdhsa_kernel {name}
  .amdhsa_next_free_vgpr 256
  .amdhsa_next_free_sgpr 102
  .amdhsa_accum_offset 256
  .amdhsa_group_segment_fixed_size 0
  .amdhsa_kernarg_size 136
  .amdhsa_user_sgpr_count 2
  .amdhsa_user_sgpr_kernarg_segment_ptr 1
  .amdhsa_system_sgpr_workgroup_id_x 1
.end_amdhsa_kernel
.text"""
    return A.text() + "\n" + S.text() + "\n" + M.text() + "\n" + desc, (A.nins, S.nins, M.nins)
```

```python
from asmfw import *
from layout import *

LOG2E = 0x3fb8aa3b
NEG_LOG2E = 0xbfb8aa3b

def srd(A, d, lo, hi, nbytes):
    A.I(f"s_mov_b32 s{d}, {lo}")
    A.I(f"s_and_b32 s{d+1}, {hi}, 0xffff")
    A.I(f"s_mov_b32 s{d+2}, {nbytes}")
    A.I(f"s_mov_b32 s{d+3}, 0x00020000")

def gen_k2(name="k2_kernel", D=5, stamps=False):
    A = Stream()
    nst = [0]
    def stamp():
        if not stamps: return
        A.I(f"s_memtime s[{64+2*nst[0]}:{65+2*nst[0]}]"); nst[0] += 1
    A.raw(f".globl {name}\n.p2align 8\n.type {name},@function\n{name}:")
    A.I("s_cmp_ge_u32 s2, 256")
    A.I(f"s_cbranch_scc1 L_{name}_end")
    stamp()
    if stamps: A.I("s_memrealtime s[96:97]")
    A.I("s_load_dwordx2 s[4:5], s[0:1], 0")
    A.I("s_load_dwordx2 s[6:7], s[0:1], 64")
    A.I("s_load_dwordx4 s[8:11], s[0:1], 104")
    A.I("s_load_dwordx2 s[12:13], s[0:1], 128")
    A.I("s_and_b32 s14, s2, 7")
    A.I("s_lshr_b32 s15, s2, 3")
    A.I("s_and_b32 s16, s14, 3")
    A.I("s_lshl_b32 s16, s16, 3")
    A.I("s_and_b32 s17, s15, 7")
    A.I("s_add_u32 s16, s16, s17")
    A.I("s_lshr_b32 s17, s14, 2")
    A.I("s_lshl_b32 s17, s17, 2")
    A.I("s_lshr_b32 s18, s15, 3")
    A.I("s_add_u32 s17, s17, s18")
    A.I("v_lshrrev_b32 v1, 6, v0")
    A.I("v_and_b32 v0, 63, v0")
    A.I("v_readfirstlane_b32 s19, v1")
    A.I("v_lshlrev_b32 v2, 4, v0")
    for n in range(1, 5):
        A.I(f"v_add_u32 v{2+n}, {n*H1F_RT}, v2")
    A.I("v_mov_b32 v7, v2")
    for n in range(1, 5):
        A.I(f"v_add_u32 v{7+n}, {n*HF_RT}, v2")
    A.wait_lg()
    stamp()
    def ws_srd(d, off, mul_s, mulc, nbytes):
        A.I(f"s_mul_i32 s20, s{mul_s}, {mulc}")
        A.I(f"s_add_u32 s20, s20, {off}")
        A.I(f"s_add_u32 s{d}, s12, s20")
        A.I(f"s_addc_u32 s{d+1}, s13, 0")
        A.I(f"s_and_b32 s{d+1}, s{d+1}, 0xffff")
        A.I(f"s_mov_b32 s{d+2}, {nbytes}")
        A.I(f"s_mov_b32 s{d+3}, 0x00020000")
    SAG, SBG, SAY, SBY, SX, SO, SST, SB2, SDS = 24, 28, 32, 36, 40, 44, 48, 52, 56
    ws_srd(SAG, H1F_OFF, 16, 4 * H1F_RT, 4 * H1F_RT)
    ws_srd(SBG, W2F_OFF, 17, 5 * H1F_RT, 5 * H1F_RT)
    A.I("s_mul_i32 s60, s19, 12288")
    A.I("s_mul_i32 s61, s19, 10240")
    NG, NY = 12, 10
    NS = NG + NY
    STG = 16
    def stage(s): return STG + (s % D) * 36
    def issue(s, defer=False):
        L = []
        b = stage(s)
        if s < NG:
            sa, sb, vo, ks, sk = SAG, SBG, 2, s, 60
        else:
            sa, sb, vo, ks, sk = SAY, SBY, 7, s - NG, 61
        if ks > 0 and ks % 4 == 0:
            A.I(f"s_add_u32 s{sk}, s{sk}, 4096")
        io = (ks % 4) * 1024
        for n in range(4):
            L.append((f"buffer_load_dwordx4 {vr(b+4*n,4)}, v{vo+n}, s[{sa}:{sa+3}], s{sk} offen offset:{io}", f"st{s}"))
        for n in range(5):
            L.append((f"buffer_load_dwordx4 {vr(b+16+4*n,4)}, v{vo+n}, s[{sb}:{sb+3}], s{sk} offen offset:{io}", f"st{s}"))
        if defer: return L
        for t, g in L: A.I(t, tag=g)
    issue(0)
    stamp()
    ws_srd(SAY, HF_OFF, 16, 4 * HF_RT, 4 * HF_RT)
    ws_srd(SBY, CF_OFF, 17, 5 * HF_RT, 5 * HF_RT)
    for s in range(1, D - 1): issue(s)
    srd(A, SX, "s4", "s5", 2621440)
    srd(A, SO, "s10", "s11", 5242880)
    srd(A, SB2, "s8", "s9", 1280)
    srd(A, SDS, "s6", "s7", 1280)
    A.I(f"s_add_u32 s{SST}, s12, {STATS_OFF}")
    A.I(f"s_addc_u32 s{SST+1}, s13, 0")
    A.I(f"s_and_b32 s{SST+1}, s{SST+1}, 0xffff")
    A.I(f"s_mov_b32 s{SST+2}, 16384")
    A.I(f"s_mov_b32 s{SST+3}, 0x00020000")
    E = STG + D * 36
    vT, vXo, vOo, vPo, vLw, vLr, vLr2, vtmp = E, E+1, E+2, E+3, E+4, E+5, E+6, E+7
    vX = E + 8
    vB2 = vX + 10
    vDs = vB2 + 10
    vSt = vDs + 10
    vG = vSt + 2
    assert vG + 20 <= 256, vG + 20
    A.I(f"v_and_b32 v{vtmp}, 15, v0")
    A.I(f"v_lshrrev_b32 v{vT}, 2, v{vtmp}")
    A.I(f"v_lshlrev_b32 v{vT}, 3, v{vT}")
    A.I(f"v_and_b32 v{vtmp}, 3, v{vtmp}")
    A.I(f"v_add_u32 v{vT}, v{vT}, v{vtmp}")
    A.I("s_lshl_b32 s20, s16, 6")
    A.I("s_lshr_b32 s21, s19, 1")
    A.I("s_lshl_b32 s21, s21, 5")
    A.I("s_add_u32 s20, s20, s21")
    A.I("s_and_b32 s21, s19, 1")
    A.I("s_lshl_b32 s21, s21, 2")
    A.I("s_add_u32 s20, s20, s21")
    A.I(f"v_add_u32 v{vT}, s20, v{vT}")
    A.I(f"v_lshrrev_b32 v{vtmp}, 4, v0")
    A.I(f"v_lshlrev_b32 v{vtmp}, 3, v{vtmp}")
    A.I("s_mul_i32 s20, s17, 160")
    A.I(f"v_add_u32 v{vPo}, s20, v{vtmp}")
    A.I(f"v_mul_u32_u24 v{vXo}, 1280, v{vT}")
    A.I(f"v_add_u32 v{vXo}, v{vXo}, v{vPo}")
    A.I(f"v_lshlrev_b32 v{vOo}, 1, v{vXo}")
    A.I(f"v_lshlrev_b32 v{vtmp}, 3, v{vT}")
    for dt in range(5):
        A.I(f"buffer_load_dwordx2 {vr(vB2+2*dt,2)}, v{vPo}, s[{SB2}:{SB2+3}], 0 offen offset:{32*dt}", tag="ep")
    for dt in range(5):
        A.I(f"buffer_load_dwordx2 {vr(vDs+2*dt,2)}, v{vPo}, s[{SDS}:{SDS+3}], 0 offen offset:{32*dt}", tag="ep")
    for dt in range(5):
        A.I(f"buffer_load_dwordx2 {vr(vX+2*dt,2)}, v{vXo}, s[{SX}:{SX+3}], 0 offen offset:{32*dt}", tag="ep")
    A.I(f"buffer_load_dwordx2 {vr(vSt,2)}, v{vtmp}, s[{SST}:{SST+3}], 0 offen", tag="ep")
    A.I("s_mul_i32 s20, s19, 5120")
    A.I(f"v_add_u32 v{vLw}, s20, v2")
    A.I("s_mul_i32 s20, s19, 20480")
    A.I(f"v_add_u32 v{vLr}, s20, v2")
    A.I(f"v_add_u32 v{vLr2}, 81920, v{vLr}")
    def zero_acc():
        for i in range(80): A.I(f"v_accvgpr_write_b32 a{i}, 0")
    zero_acc()
    stamp()
    def mfmas(s, L=()):
        b = stage(s)
        L = list(L)
        k = 0
        for rt in range(4):
            for dt in range(5):
                ac = (rt * 5 + dt) * 4
                A.I(f"v_mfma_f32_16x16x32_bf16 {vr(ac,4,'a')}, {vr(b+16+4*dt,4)}, {vr(b+4*rt,4)}, {vr(ac,4,'a')}")
                k += 1
                if L and k % 2 == 1:
                    t, g = L.pop(0); A.I(t, tag=g)
        for t, g in L: A.I(t, tag=g)
    def dump(region):
        for rt in range(4):
            if rt == 2 or (rt == 0 and region):
                A.I(f"v_add_u32 v{vLw}, 40960, v{vLw}")
            for dt in range(5):
                A.I(f"ds_write_b128 v{vLw}, {vr(4*(rt*5+dt),4,'a')} offset:{(rt%2)*20480+dt*1024}")
    def reduce(vaddr, dst):
        for sw in range(4):
            for dt in range(5):
                A.I(f"ds_read_b128 {vr(80+(sw*5+dt)*4,4,'a')}, v{vaddr} offset:{sw*5120+dt*1024}", tag=f"rd{sw}")
        A.wait_lg("rd1")
        for e in range(20):
            A.I(f"v_accvgpr_read_b32 v{dst+e}, a{80+e}")
        for e in range(20):
            A.I(f"v_accvgpr_read_b32 v{vtmp}, a{100+e}") if False else None
        T0 = vG + 20
        for sw in range(1, 4):
            if sw == 2: A.wait_lg("rd2")
            if sw == 3: A.wait_lg("rd3")
            for e in range(20):
                A.I(f"v_accvgpr_read_b32 v{TM+(e%4)}, a{80+sw*20+e}")
                A.I(f"v_add_f32 v{dst+e}, v{dst+e}, v{TM+(e%4)}") if False else None
                pend.append((dst+e, TM+(e%4)))
                if len(pend) == 3:
                    d_, t_ = pend.pop(0)
                    A.I(f"v_add_f32 v{d_}, v{d_}, v{t_}")
            while pend:
                d_, t_ = pend.pop(0)
                A.I(f"v_add_f32 v{d_}, v{d_}, v{t_}")
    TM = 12
    pend = []
    vY = None
    for s in range(NS):
        A.wait_vm(f"st{s}")
        L = issue(s + D - 1, defer=True) if s + D - 1 < NS else []
        if s in (0, 4, 8, 16): stamp()
        mfmas(s, L)
        if s == NG - 1 or s == NS - 1: stamp()
        if s == NG - 1:
            dump(0)
            zero_acc()
            A.wait_lg()
            A.I("s_barrier")
            reduce(vLr, vG)
            A.wait_vm("ep")
            A.I(f"s_mov_b32 s20, {NEG_LOG2E}")
            A.I("s_mov_b32 s21, 0xffff0000")
            for dt in range(5):
                A.I(f"v_lshlrev_b32 v{TM}, 16, v{vB2+2*dt}")
                A.I(f"v_and_b32 v{TM+1}, s21, v{vB2+2*dt}")
                A.I(f"v_lshlrev_b32 v{TM+2}, 16, v{vB2+2*dt+1}")
                A.I(f"v_and_b32 v{TM+3}, s21, v{vB2+2*dt+1}")
                for r in range(4):
                    A.I(f"v_cvt_pk_bf16_f32 v{vG+4*dt+r}, 0, v{vG+4*dt+r}")
                for r in range(4):
                    A.I(f"v_add_f32 v{vG+4*dt+r}, v{vG+4*dt+r}, v{TM+r}")
                for r in range(4):
                    A.I(f"v_cvt_pk_bf16_f32 v{vG+4*dt+r}, 0, v{vG+4*dt+r}")
                for r in range(4):
                    A.I(f"v_mul_f32 v{TM+r}, s20, v{vG+4*dt+r}")
                for r in range(4):
                    A.I(f"v_exp_f32 v{TM+r}, v{TM+r}")
                for r in range(4):
                    A.I(f"v_add_f32 v{TM+r}, 1.0, v{TM+r}")
                for r in range(4):
                    A.I(f"v_rcp_f32 v{TM+r}, v{TM+r}")
                for r in range(4):
                    A.I(f"v_mul_f32 v{vG+4*dt+r}, v{vG+4*dt+r}, v{TM+r}")
                for r in range(4):
                    A.I(f"v_cvt_pk_bf16_f32 v{vG+4*dt+r}, 0, v{vG+4*dt+r}")
            for dt in range(5):
                A.I(f"v_lshlrev_b32 v{TM}, 16, v{vX+2*dt}")
                A.I(f"v_and_b32 v{TM+1}, s21, v{vX+2*dt}")
                A.I(f"v_lshlrev_b32 v{TM+2}, 16, v{vX+2*dt+1}")
                A.I(f"v_and_b32 v{TM+3}, s21, v{vX+2*dt+1}")
                for r in range(4):
                    A.I(f"v_accvgpr_write_b32 a{180+4*dt+r}, v{TM+r}")
                for r in range(4):
                    A.I(f"v_sub_f32 v{TM+r}, v{TM+r}, v{vSt}")
                for r in range(4):
                    A.I(f"v_cvt_pk_bf16_f32 v{TM+r}, 0, v{TM+r}")
                for r in range(4):
                    A.I(f"v_mul_f32 v{TM+r}, v{TM+r}, v{vSt+1}")
                for r in range(4):
                    A.I(f"v_cvt_pk_bf16_f32 v{TM+r}, 0, v{TM+r}")
                A.I(f"v_lshlrev_b32 v{vB2}, 16, v{vDs+2*dt}")
                A.I(f"v_and_b32 v{vB2+1}, s21, v{vDs+2*dt}")
                A.I(f"v_lshlrev_b32 v{vB2+2}, 16, v{vDs+2*dt+1}")
                A.I(f"v_and_b32 v{vB2+3}, s21, v{vDs+2*dt+1}")
                for r in range(4):
                    A.I(f"v_mul_f32 v{TM+r}, v{TM+r}, v{vB2+r}")
                for r in range(4):
                    A.I(f"v_cvt_pk_bf16_f32 v{TM+r}, 0, v{TM+r}")
                for r in range(4):
                    A.I(f"v_accvgpr_write_b32 a{160+4*dt+r}, v{TM+r}")
            stamp()
    dump(81920)
    A.wait_lg()
    A.I("s_barrier")
    vY = STG
    reduce(vLr2, vY)
    for dt in range(5):
        for r in range(4):
            A.I(f"v_accvgpr_read_b32 v{TM+r}, a{160+4*dt+r}")
        for r in range(4):
            A.I(f"v_accvgpr_read_b32 v{vY+20+4*dt+r}, a{180+4*dt+r}")
        for r in range(4):
            A.I(f"v_add_f32 v{vY+4*dt+r}, v{vY+4*dt+r}, v{TM+r}")
        for r in range(4):
            A.I(f"v_fmac_f32 v{vY+20+4*dt+r}, v{vY+4*dt+r}, v{vG+4*dt+r}")
        A.I(f"buffer_store_dwordx4 {vr(vY+20+4*dt,4)}, v{vOo}, s[{SO}:{SO+3}], 0 offen offset:{64*dt}")
    if stamps:
        A.wait_all()
        stamp()
        A.I("s_memrealtime s[98:99]")
        A.wait_lg()
        A.I("s_lshl_b32 s20, s2, 2")
        A.I("s_add_u32 s20, s20, s19")
        A.I("s_lshl_b32 s20, s20, 7")
        A.I("s_add_u32 s20, s20, 0x2000000")
        A.I("s_add_u32 s24, s12, s20")
        A.I("s_addc_u32 s25, s13, 0")
        A.I("s_and_b32 s25, s25, 0xffff")
        A.I("s_mov_b32 s26, 128")
        A.I("v_mov_b32 v1, 0")
        for i in range(nst[0]):
            A.I(f"v_mov_b32 v2, s{64+2*i}")
            A.I(f"buffer_store_dword v2, v1, s[24:27], 0 offen offset:{4*i}")
        A.I("v_mov_b32 v2, s96")
        A.I("buffer_store_dword v2, v1, s[24:27], 0 offen offset:120")
        A.I("v_mov_b32 v2, s98")
        A.I("buffer_store_dword v2, v1, s[24:27], 0 offen offset:124")
    A.label(f"L_{name}_end")
    A.I("s_endpgm")
    desc = f""".section .rodata,"a"
.p2align 6
.amdhsa_kernel {name}
  .amdhsa_next_free_vgpr 512
  .amdhsa_next_free_sgpr 102
  .amdhsa_accum_offset 256
  .amdhsa_group_segment_fixed_size 0
  .amdhsa_kernarg_size 136
  .amdhsa_user_sgpr_count 2
  .amdhsa_user_sgpr_kernarg_segment_ptr 1
  .amdhsa_system_sgpr_workgroup_id_x 1
.end_amdhsa_kernel
.text"""
    return A.text() + "\n" + desc, A.nins

if __name__ == "__main__":
    t, n = gen_k2()
    print(t)
```

```python
H1F_OFF = 0
H1F_RT = 48 * 1024
HF_OFF = 128 * H1F_RT
HF_RT = 40 * 1024
W2F_OFF = HF_OFF + 128 * HF_RT
CF_OFF = W2F_OFF + 40 * H1F_RT
STATS_OFF = CF_OFF + 40 * HF_RT
AGG_OFF = STATS_OFF + 16384
AGG_G = 32 * 640 + 2048
GO_O = 32 * 640
WS_END = AGG_OFF + 16 * AGG_G
YF_OFF = WS_END
YB_OFF = YF_OFF + 16384
WS_END = YB_OFF + 128 * 40960
FL_OFF = YF_OFF
```

```python
import sys
from build import build
from k1 import gen_k1
from k2 import gen_k2
st = sys.argv[1] if len(sys.argv) > 1 else ""
t1, n1 = gen_k1(stamps=("1" in st))
t2, n2 = gen_k2(D=4, stamps=("2" in st))
out = sys.argv[2] if len(sys.argv) > 2 else "full.s"
open(out, "w").write(build([t1, t2], [("k1_kernel", 256, 512, 163840), ("k2_kernel", 256, 256, 163840)]))
print("k1 instrs", n1, "k2", n2)
```

```python
from asmfw import *
from layout import *
import struct
def f2u(f): return struct.unpack("<I", struct.pack("<f", f))[0]
LOG2E = f2u(1.4426950408889634)
INV2PI = f2u(0.15915494309189535)
SLOT = 38912
BB_O = 16384
W1_O = 26624
MISC = 155648
SEG_L = MISC
CSW_L = MISC + 5120
CNT_L = CSW_L + 384
STATS_L = MISC + 5632
CSB_L = STATS_L + 1024
STG_L = 81920
TR_L = 0
Q_L = 24576
HS_L = 32768
TAG = 0x5a17c3e9
DPP = "row_ror:8 row_mask:0xf bank_mask:0xf"

def mk_srd(A, d, lo, hi, nbytes, off_s=None, off_imm=0):
    if off_s is None and off_imm == 0:
        A.I(f"s_mov_b32 s{d}, s{lo}")
        A.I(f"s_and_b32 s{d+1}, s{hi}, 0xffff")
    else:
        if off_s is not None:
            if off_imm: A.I(f"s_add_u32 s{off_s}, s{off_s}, {off_imm}")
            A.I(f"s_add_u32 s{d}, s{lo}, s{off_s}")
        else:
            A.I(f"s_add_u32 s{d}, s{lo}, {off_imm}")
        A.I(f"s_addc_u32 s{d+1}, s{hi}, 0")
        A.I(f"s_and_b32 s{d+1}, s{d+1}, 0xffff")
    A.I(f"s_mov_b32 s{d+2}, {nbytes}")
    A.I(f"s_mov_b32 s{d+3}, 0x00020000")

def bb_srd(X, d, ldsreg):
    X.I(f"s_lshl_b32 s{ldsreg}, s36, 10")
    X.I(f"s_add_u32 s{ldsreg}, s{ldsreg}, {BB_O}")
    X.I("s_and_b32 s39, s36, 1")
    X.I("s_cmp_eq_u32 s39, 0")
    X.I(f"s_cselect_b32 s{d}, s10, s12")
    X.I(f"s_cselect_b32 s{d+1}, s11, s13")
    X.I("s_lshr_b32 s36, s36, 1")
    X.I("s_lshl_b32 s36, s36, 3")
    X.I("s_mul_i32 s39, s33, 40")
    X.I("s_add_u32 s36, s36, s39")
    X.I("s_mul_i32 s36, s36, 1280")
    X.I(f"s_add_u32 s{d}, s{d}, s36")
    X.I(f"s_addc_u32 s{d+1}, s{d+1}, 0")
    X.I(f"s_and_b32 s{d+1}, s{d+1}, 0xffff")
    X.I(f"s_mov_b32 s{d+2}, 10240")
    X.I(f"s_mov_b32 s{d+3}, 0x00020000")

def put(X, item):
    t, g = item
    if t.endswith(":"): X.label(t[:-1])
    else: X.I(t, tag=g)
def emit(X, L):
    for grp in L:
        for it in grp: put(X, it)
def merge(X, main, side, frac=1.0):
    side = list(side)
    n = max(1, int(len(main) * frac))
    done = 0
    for k, m in enumerate(main):
        X.I(m)
        tgt = min(len(side), ((k + 1) * len(side) + n - 1) // n)
        while done < tgt:
            for it in side[done]: put(X, it)
            done += 1
    while done < len(side):
        for it in side[done]: put(X, it)
        done += 1
def mix(a, b):
    out = []; ia = ib = 0
    while ia < len(a) or ib < len(b):
        if ib >= len(b) or (ia < len(a) and ia * len(b) <= ib * len(a)):
            out.append(a[ia]); ia += 1
        else:
            out.append(b[ib]); ib += 1
    return out

def gen_k1(name="k1_kernel", stamps=False, rot=True, dbg=""):
    A = Stream()
    A.raw(f".globl {name}\n.p2align 8\n.type {name},@function\n{name}:")
    A.I("s_cmp_ge_u32 s2, 256")
    A.I(f"s_cbranch_scc1 L_{name}_end")
    class St:
        n = 0
    def mkstamp(X):
        st = St()
        def stamp(ph=False):
            if not stamps: return
            if ("phst" in dbg) != ph: return
            assert st.n < 11
            X.I(f"s_memtime s[{74+2*st.n}:{75+2*st.n}]"); st.n += 1
        return stamp, st
    if stamps:
        A.I("s_memtime s[72:73]")
        A.I("s_memrealtime s[98:99]")
    A.I("s_load_dwordx16 s[4:19], s[0:1], 0")
    A.I("s_load_dwordx4 s[20:23], s[0:1], 80")
    A.I("s_load_dwordx2 s[24:25], s[0:1], 96")
    A.I("s_load_dwordx4 s[28:31], s[0:1], 120")
    A.I("s_and_b32 s36, s2, 7")
    A.I("s_lshr_b32 s37, s2, 3")
    A.I("s_and_b32 s32, s36, 1")
    A.I("s_lshl_b32 s32, s32, 3")
    A.I("s_and_b32 s38, s37, 7")
    A.I("s_add_u32 s32, s32, s38")
    A.I("s_lshr_b32 s33, s36, 1")
    A.I("s_lshl_b32 s33, s33, 2")
    A.I("s_lshr_b32 s38, s37, 3")
    A.I("s_add_u32 s33, s33, s38")
    if rot:
        A.I("s_and_b32 s26, s33, 3")
        A.I("s_mul_i32 s26, s26, 3")
        A.I("s_and_b32 s27, s32, 7")
        A.I("s_add_u32 s26, s26, s27")
        A.I("s_sub_u32 s27, s26, 10")
        A.I("s_cmp_ge_u32 s26, 10")
        A.I("s_cselect_b32 s26, s27, s26")
    else:
        A.I("s_mov_b32 s26, 0")
    A.I("v_lshrrev_b32 v1, 6, v0")
    A.I("v_and_b32 v0, 63, v0")
    A.I("v_readfirstlane_b32 s34, v1")
    A.I("s_and_b32 s35, s34, 3")
    A.I("s_cmp_ge_u32 s34, 4")
    A.wait_lg()
    A.I(f"s_cbranch_scc1 L_{name}_M")

    def final_stamps(X, st):
        if not stamps: return
        X.wait_all()
        X.I(f"s_memtime s[{74+2*st.n}:{75+2*st.n}]"); st.n += 1
        X.I("s_memrealtime s[100:101]")
        X.wait_lg()
        X.I("s_lshl_b32 s36, s2, 3")
        X.I("s_add_u32 s36, s36, s34")
        X.I("s_lshl_b32 s36, s36, 7")
        X.I("s_add_u32 s36, s36, 0x2000000")
        X.I("s_add_u32 s40, s30, s36")
        X.I("s_addc_u32 s41, s31, 0")
        X.I("s_and_b32 s41, s41, 0xffff")
        X.I("s_mov_b32 s42, 128")
        X.I("s_mov_b32 s43, 0x00020000")
        X.I("v_mov_b32 v1, 0")
        for i in range(st.n + 1):
            X.I(f"v_mov_b32 v2, s{72+2*i}")
            X.I(f"buffer_store_dword v2, v1, s[40:43], 0 offen offset:{4*i}")
        X.I("v_mov_b32 v2, s98")
        X.I("buffer_store_dword v2, v1, s[40:43], 0 offen offset:120")
        X.I("v_mov_b32 v2, s100")
        X.I("buffer_store_dword v2, v1, s[40:43], 0 offen offset:124")
    def adv():
        return [("s_add_u32 s26, s26, 1", None), ("s_cmp_eq_u32 s26, 10", None), ("s_cselect_b32 s26, 0, s26", None)]

    S = Stream(A)
    stamp, st = mkstamp(S)
    ACC = 16
    BUF = 56
    CA, CSB, CCO, CCX, CAS, CSBS = 168, 173, 178, 183, 188, 193
    A8, SB8, A128, SB128 = 198, 200, 202, 204
    SUM, SQ, ONE = 206, 214, 222
    STV = 226
    DV = 246
    vG_, vC_, vSg = 1, 2, 3
    SX, SBBS = 40, 44
    S.I(f"s_mul_i32 s36, s32, {128*1280}")
    mk_srd(S, SX, 4, 5, 128 * 1280, 36)
    S.I("v_lshrrev_b32 v4, 3, v0")
    S.I("v_and_b32 v5, 7, v0")
    S.I("v_and_b32 v6, 2, v4")
    S.I("v_lshrrev_b32 v7, 2, v4")
    S.I("v_or_b32 v6, v6, v7")
    S.I("v_xor_b32 v6, v6, v5")
    S.I("s_mul_i32 s36, s35, 40960")
    S.I("v_mul_u32_u24 v7, 1280, v4")
    S.I("v_add_u32 v8, s36, v7")
    for e in range(4):
        S.I(f"v_xor_b32 v9, {4 if e >= 2 else 0}, v6")
        S.I(f"v_lshl_add_u32 v{DV+e}, v9, 4, v8")
        if e: S.I(f"v_add_u32 v{DV+e}, {10240*e}, v{DV+e}")
    S.I("v_xor_b32 v9, v4, v5")
    S.I(f"v_lshl_add_u32 v{DV+4}, v9, 4, v7")
    S.I("s_lshl_b32 s37, s35, 12")
    S.I("s_mov_b32 s36, s35")
    bb_srd(S, SBBS, 27)
    def s_dma(p):
        q = p % 4
        L = []
        for e in range(4):
            g = [(f"s_add_u32 m0, s37, {q*SLOT + 1024*e}", None), (f"buffer_load_dwordx4 v{DV+e}, s[{SX}:{SX+3}], s38 offen lds", f"c{p}")]
            if e == 0: g = [("s_lshl_b32 s38, s26, 7", None)] + g
            L.append(g)
        L.append([(f"s_add_u32 m0, s27, {q*SLOT}", None), (f"buffer_load_dwordx4 v{DV+4}, s[{SBBS}:{SBBS+3}], s38 offen lds", f"c{p}")] + adv())
        return L
    S.I(f"v_lshrrev_b32 v{vG_}, 4, v0")
    S.I(f"v_and_b32 v{vC_}, 15, v0")
    emit(S, s_dma(0))
    emit(S, s_dma(1))
    S.I("s_mul_i32 s36, s33, 80")
    S.I(f"v_and_b32 v4, 7, v0")
    S.I(f"v_lshlrev_b32 v4, 1, v4")
    S.I(f"v_add_u32 v4, s36, v4")
    S.I(f"v_lshlrev_b32 v5, 4, v{vG_}")
    S.I(f"v_add_u32 v5, v4, v5")
    def pslots(t):
        return (CCO + t, CCX + t, CAS + t) if t < 5 else (A128, SB128, A128 + 1)
    for t in range(6):
        vo = "v4" if t < 5 else "v5"
        off = 16 * t if t < 5 else 0
        lre, lim, ldt = pslots(t)
        S.I(f"global_load_ushort v{lre}, {vo}, s[6:7] offset:{off}", tag="par")
        S.I(f"global_load_ushort v{lim}, {vo}, s[8:9] offset:{off}", tag="par")
        S.I(f"global_load_ushort v{ldt}, {vo}, s[18:19] offset:{off}", tag="par")
    TT = BUF + 48
    S.I(f"v_lshrrev_b32 v{TT}, 2, v{vC_}")
    S.I(f"v_and_b32 v{TT+1}, 3, v{vC_}")
    S.I(f"v_lshlrev_b32 v{TT+2}, 3, v{TT}")
    S.I(f"v_add_u32 v{TT+2}, v{TT+2}, v{TT+1}")
    S.I("s_lshl_b32 s36, s35, 5")
    S.I(f"v_add_u32 v{TT+2}, s36, v{TT+2}")
    S.I(f"v_lshlrev_b32 v{TT+2}, 7, v{TT+2}")
    S.I(f"v_lshrrev_b32 v{TT+3}, 1, v{TT}")
    S.I(f"v_lshlrev_b32 v{TT+3}, 2, v{TT+3}")
    S.I(f"v_and_b32 v{TT+4}, 2, v{TT+1}")
    S.I(f"v_or_b32 v{TT+3}, v{TT+3}, v{TT+4}")
    S.I(f"v_xor_b32 v{TT+3}, v{TT+3}, v{vG_}")
    for T in range(2):
        for sp in range(2):
            d = 4 + 2 * T + sp
            S.I(f"v_xor_b32 v{TT+4}, {(4*sp) ^ T}, v{TT+3}")
            S.I(f"v_lshl_add_u32 v{d}, v{TT+4}, 4, v{TT+2}")
            if T: S.I(f"v_add_u32 v{d}, 512, v{d}")
    S.I(f"v_and_b32 v{TT}, 7, v{vC_}")
    S.I(f"v_xor_b32 v{TT}, v{TT}, v{vG_}")
    S.I(f"v_lshlrev_b32 v{TT+1}, 7, v{vC_}")
    for sp in range(2):
        S.I(f"v_xor_b32 v{TT+2}, {4*sp}, v{TT}")
        S.I(f"v_lshl_add_u32 v{8+sp}, v{TT+2}, 4, v{TT+1}")
        S.I(f"v_add_u32 v{8+sp}, {BB_O}, v{8+sp}")
    for k in range(4): S.I(f"v_mov_b32 v{ONE+k}, 0x3f803f80")
    S.I(f"v_mul_u32_u24 v10, 80, v{vG_}")
    S.I(f"v_lshrrev_b32 v{vSg}, 3, v{vC_}")
    S.I(f"v_cvt_f32_u32 v{vSg}, v{vSg}")
    S.I(f"v_fma_f32 v{vSg}, v{vSg}, 2.0, -1.0")
    S.I(f"s_mov_b32 s66, {LOG2E}")
    S.I(f"s_mov_b32 s67, {INV2PI}")
    def powr(ar, rev, n, da, dsb, t0):
        L = []
        if n is None:
            L.append(f"v_exp_f32 v{t0}, v{ar}")
            L.append(f"v_fract_f32 v{t0+1}, v{rev}")
        else:
            L.append(f"v_mul_f32 v{t0}, {n}, v{ar}")
            L.append(f"v_mul_f32 v{t0+1}, {n}, v{rev}")
            L.append(f"v_exp_f32 v{t0}, v{t0}")
            L.append(f"v_fract_f32 v{t0+1}, v{t0+1}")
        L.append(f"v_cos_f32 v{t0+2}, v{t0+1}")
        L.append(f"v_sin_f32 v{t0+3}, v{t0+1}")
        L.append(f"v_mul_f32 v{t0+3}, v{t0}, v{t0+3}")
        L.append(f"v_mul_f32 v{da}, v{t0}, v{t0+2}")
        L.append(f"v_mul_f32 v{dsb}, v{t0+3}, v{vSg}")
        return L
    def arrev(t):
        return (CAS + t, CSBS + t) if t < 5 else (A128, SB128)
    partA = []
    for t in range(6):
        lre, lim, ldt = pslots(t)
        ar, rev = arrev(t)
        partA += [f"v_lshlrev_b32 v{lre}, 16, v{lre}", f"v_lshlrev_b32 v{lim}, 16, v{lim}", f"v_lshlrev_b32 v11, 16, v{ldt}",
                  "v_mul_f32 v11, s66, v11", "v_exp_f32 v11, v11", "v_cvt_pk_bf16_f32 v11, 0, v11",
                  f"v_mul_f32 v12, v11, v{lre}", f"v_mul_f32 v13, v11, v{lim}",
                  f"v_mul_f32 v{ar}, s66, v12", f"v_mul_f32 v{rev}, s67, v13"]
        if t < 5: partA += powr(ar, rev, None, CA + t, CSB + t, 11)
        if t >= 4:
            k = 1 if t == 4 else 0
            partA += powr(ar, rev, f"{f2u(8.0)}", A8 + k, SB8 + k, 11)
    def partB(T):
        S.I("s_lshl_b32 s36, s35, 2")
        S.I(f"v_add_u32 v{T+10}, s36, v{vG_}")
        S.I(f"v_lshlrev_b32 v{T+10}, 3, v{T+10}")
        S.I(f"v_cvt_f32_u32 v{T+10}, v{T+10}")
        for m in powr(CAS + 4, CSBS + 4, f"{f2u(128.0)}", A128 + 1, SB128 + 1, T): S.I(m)
        for m in powr(A128, SB128, f"{f2u(128.0)}", A128, SB128, T): S.I(m)
        for t in range(5):
            lre, lim = CCO + t, CCX + t
            S.I(f"v_mul_f32 v{T+3}, v{CSB+t}, v{vSg}")
            S.I(f"v_add_f32 v{T+6}, -1.0, v{CA+t}")
            S.I(f"v_mul_f32 v{T+7}, v{lre}, v{lre}")
            S.I(f"v_fmac_f32 v{T+7}, v{lim}, v{lim}")
            S.I(f"v_rcp_f32 v{T+7}, v{T+7}")
            S.I(f"v_mul_f32 v{T+8}, v{T+6}, v{lre}")
            S.I(f"v_fmac_f32 v{T+8}, v{T+3}, v{lim}")
            S.I(f"v_mul_f32 v{T+9}, v{T+3}, v{lre}")
            S.I(f"v_fma_f32 v{T+9}, -v{T+6}, v{lim}, v{T+9}")
            S.I(f"v_mul_f32 v{T+7}, -2.0, v{T+7}")
            S.I(f"v_mul_f32 v{CCX+t}, v{T+9}, v{T+7}")
            S.I(f"v_mul_f32 v{T+8}, v{T+8}, v{T+7}")
            S.I(f"v_mul_f32 v{CCO+t}, v{T+8}, v{vSg}")
            for m in powr(CAS + t, CSBS + t, f"v{T+10}", CAS + t, CSBS + t, T): S.I(m)
    SAG, SST = 48, 52
    S.I(f"s_mul_i32 s36, s33, {AGG_G}")
    mk_srd(S, SAG, 30, 31, AGG_G, 36, AGG_OFF)
    S.I("s_lshl_b32 s36, s32, 10")
    mk_srd(S, SST, 30, 31, 1024, 36, STATS_OFF)
    stamp()
    def s_reads(p):
        b = BUF + (p & 1) * 56
        L = []
        for sp in range(2):
            for T in range(2):
                L.append([(f"ds_read_b128 {vr(b+(sp*2+T)*4,4)}, v{4+2*T+sp}", f"r{p}")])
            for j in range(5):
                L.append([(f"ds_read_b128 {vr(b+16+(sp*5+j)*4,4)}, v{8+sp} offset:{2048*j}", f"r{p}")])
        delta = SLOT if p % 4 != 3 else (-3 * SLOT) & 0xffffffff
        L.append([(f"v_add_u32 v{k}, {delta}, v{k}", None) for k in range(4, 10)])
        return L
    def s_stat(p):
        b = BUF + (p & 1) * 56
        L = []
        for sp in range(2):
            for T in range(2):
                x = vr(b + (sp * 2 + T) * 4, 4)
                z = (p == 0 and sp == 0)
                L.append(f"v_mfma_f32_16x16x32_bf16 {vr(SUM+4*T,4)}, {x}, {vr(ONE,4)}, {'0' if z else vr(SUM+4*T,4)}")
                L.append(f"v_mfma_f32_16x16x32_bf16 {vr(SQ+4*T,4)}, {x}, {x}, {'0' if z else vr(SQ+4*T,4)}")
        return L
    def s_mfma(p):
        b = BUF + (p & 1) * 56
        L = []
        for sp in range(2):
            for j in range(5):
                for T in range(2):
                    ac = ACC + 8 * j + 4 * T
                    c = "0" if (p == 0 and sp == 0) else vr(ac, 4)
                    L.append(f"v_mfma_f32_16x16x32_bf16 {vr(ac,4)}, {vr(b+(sp*2+T)*4,4)}, {vr(b+16+(sp*5+j)*4,4)}, {c}")
        return L
    for p in range(10):
        S.wait_vm(f"c{p}")
        S.I("s_barrier")
        stamp(True)
        if p in (0, 5): stamp()
        side = s_dma(p + 3) if p + 3 <= 9 else []
        if p == 0: side = s_dma(2) + side
        rd = s_reads(p)
        fill = []
        if 3 <= p <= 8:
            nper = (len(partA) + 5) // 6
            fill = [[(m, None)] for m in partA[(p - 3) * nper:(p - 2) * nper]]
        if p == 9:
            fill += [[("s_lshl_b32 s36, s32, 7", None), (f"s_add_u32 s36, s36, {GO_O}", None), ("v_mov_b32 v15, s36", None),
                      (f"buffer_load_dword v15, v15, s[{SAG}:{SAG+3}], 0 offen sc1", "clr")]]
        if p == 0: emit(S, rd + side + fill)
        else: merge(S, s_stat(p - 1) + s_mfma(p - 1), mix(mix(rd, side), fill), 0.9)
        S.wait_lg()
    for m in s_stat(9): S.I(m)
    mm = s_mfma(9)
    for m in mm[:5]: S.I(m)
    for T in range(2):
        for r in range(4):
            S.I(f"ds_bpermute_b32 v{SQ+4*T+r}, v10, v{SQ+4*T+r} offset:{4*r}", tag="bp")
    for m in mm[5:9]: S.I(m)
    S.wait_lg()
    fin = []
    K640 = f2u(1.0 / 640)
    for step in range(11):
        for k in range(8):
            su, sq, mo, ro = SUM + k, SQ + k, STV + 2 * k, STV + 2 * k + 1
            fin.append([
                f"v_mul_f32 v{su}, {K640}, v{su}",
                f"v_mul_f32 v{sq}, {K640}, v{sq}",
                f"v_fma_f32 v{sq}, -v{su}, v{su}, v{sq}",
                f"v_max_f32 v{sq}, 0, v{sq}",
                f"v_cvt_pk_bf16_f32 v{mo}, 0, v{su}",
                f"v_cvt_pk_bf16_f32 v{sq}, 0, v{sq}",
                f"v_add_f32 v{sq}, {f2u(1e-5)}, v{sq}",
                f"v_cvt_pk_bf16_f32 v{sq}, 0, v{sq}",
                f"v_sqrt_f32 v{sq}, v{sq}",
                f"v_cvt_pk_bf16_f32 v{sq}, 0, v{sq}",
                f"v_rcp_f32 v{ro}, v{sq}"][step])
    merge(S, mm[9:], [[(m, None)] for m in fin], 1.0)
    stamp()
    S.I("s_lshl_b32 s36, s35, 8")
    S.I(f"v_lshlrev_b32 v13, 6, v{vG_}")
    S.I("v_add_u32 v13, s36, v13")
    S.I(f"v_add_u32 v14, {STATS_L}, v13")
    for k in range(4):
        S.I(f"ds_write_b128 v14, {vr(STV+4*k,4)} offset:{16*k}")
    S.I(f"v_lshlrev_b32 v12, 2, v{vC_}")
    S.I(f"v_add_u32 v14, {CSB_L}, v12")
    S.I("s_mul_i32 s36, s35, 1280")
    S.I(f"v_mul_u32_u24 v6, 320, v{vG_}")
    S.I("v_add3_u32 v6, v6, v12, s36")
    S.I(f"v_add_u32 v7, {SEG_L}, v6")
    S.wait_lg()
    S.I("s_barrier")
    CSV = BUF + 16
    for wv in range(4):
        for j in range(5):
            S.I(f"ds_read_b32 v{CSV+5*wv+j}, v14 offset:{320*wv+64*j}", tag="stt")
    S.I("s_cmp_lg_u32 s33, 0")
    S.I(f"s_cbranch_scc1 L_{name}_nostat")
    for k in range(4):
        S.I(f"buffer_store_dwordx4 {vr(STV+4*k,4)}, v13, s[{SST}:{SST+3}], 0 offen offset:{16*k}")
        S.vm.pop()
    S.label(f"L_{name}_nostat")
    S.wait_lg()
    for j in range(5):
        S.I(f"v_add_f32 v{CSV+j}, v{CSV+j}, v{CSV+5+j}")
        S.I(f"v_add_f32 v{CSV+10+j}, v{CSV+10+j}, v{CSV+15+j}")
    for j in range(5):
        S.I(f"v_add_f32 v{CSV+j}, v{CSV+j}, v{CSV+10+j}")
    EA, EB = BUF + 40, BUF + 45
    cur = None
    for tl in range(8):
        for j in range(5):
            S.I(f"v_fma_f32 v{ACC+8*j+tl}, -v{STV+2*tl}, v{CSV+j}, v{ACC+8*j+tl}")
        for j in range(5):
            S.I(f"v_mul_f32 v{ACC+8*j+tl}, v{ACC+8*j+tl}, v{STV+2*tl+1}")
        if tl == 0:
            cur = [ACC + 8 * j for j in range(5)]
        else:
            dst = EA if tl & 1 else EB
            for j in range(5):
                S.I(f"v_fma_f32 v{dst+j}, v{CA+j}, v{cur[j]}, v{ACC+8*j+tl}")
            for j in range(5):
                S.I(f"v_fmac_f32_dpp v{dst+j}, v{cur[j]}, v{CSB+j} {DPP}")
            cur = [dst + j for j in range(5)]
    for j in range(5):
        S.I(f"ds_write_b32 v7, v{cur[j]} offset:{64*j}")
    S.I("v_lshlrev_b32 v8, 2, v0")
    S.I(f"v_add_u32 v9, {SEG_L}, v8")
    S.I(f"v_mov_b32 v10, v12")
    S.I(f"v_add_u32 v11, {SEG_L+256}, v10")
    S.I(f"v_mov_b32 v13, {CNT_L}")
    S.I("v_mov_b32 v14, 1")
    S.I("s_mov_b64 exec, 1")
    S.I("ds_add_u32 v13, v14")
    S.I("s_mov_b64 exec, -1")
    S.I("s_mov_b32 s39, 0")
    S.label(f"L_{name}_x1")
    S.I("ds_read_b32 v14, v13")
    S.I("s_waitcnt lgkmcnt(0)")
    S.lg = []
    S.I("v_readfirstlane_b32 s36, v14")
    S.I("s_add_u32 s39, s39, 1")
    S.I("s_cmp_eq_u32 s36, 4")
    S.I(f"s_cbranch_scc1 L_{name}_x1d")
    S.I("s_cmp_lt_u32 s39, 0x400000")
    S.I(f"s_cbranch_scc1 L_{name}_x1")
    S.label(f"L_{name}_x1d")
    stamp()
    EC = BUF + 56
    for s_ in range(16):
        S.I(f"ds_read_b32 v{EC+s_}, v9 offset:{320*s_}", tag=f"e{s_}")
        S.I(f"ds_read_b32 v{EC+16+s_}, v11 offset:{320*s_}", tag=f"e{s_}")
    S.I("v_lshlrev_b32 v4, 3, v0")
    S.I(f"v_lshlrev_b32 v5, 3, v{vC_}")
    PB = BUF + 90
    S.I(f"v_mov_b32 v{PB+1}, {TAG}")
    S.I(f"v_mov_b32 v{PB+3}, {TAG}")
    S.I("s_add_u32 s37, s32, 15")
    S.I("s_mul_i32 s37, s37, 640")
    for s_ in range(1, 16):
        S.wait_lg(f"e{s_}")
        for k in range(2):
            S.I(f"v_fmac_f32 v{EC+16*k+s_}, v{A8+k}, v{EC+16*k+s_-1}")
        for k in range(2):
            S.I(f"v_fmac_f32_dpp v{EC+16*k+s_}, v{EC+16*k+s_-1}, v{SB8+k} {DPP}")
    S.I("s_cmp_lg_u32 s35, 0")
    S.I(f"s_cbranch_scc1 L_{name}_nopub")
    S.I(f"v_mov_b32 v{PB}, v{EC+15}")
    S.I(f"v_mov_b32 v{PB+2}, v{EC+31}")
    S.I(f"buffer_store_dwordx2 {vr(PB,2)}, v4, s[{SAG}:{SAG+3}], s37 offen sc1")
    S.vm.pop()
    S.I(f"buffer_store_dwordx2 {vr(PB+2,2)}, v5, s[{SAG}:{SAG+3}], s37 offen offset:512 sc1")
    S.vm.pop()
    S.label(f"L_{name}_nopub")
    stamp()
    SW2, SCR, SCI, SWS = 40, 44, 56, 60
    mk_srd(S, SW2, 24, 25, 1966080)
    mk_srd(S, SCR, 14, 15, 819200)
    mk_srd(S, SCI, 16, 17, 819200)
    mk_srd(S, SWS, 30, 31, STATS_OFF - W2F_OFF, None, W2F_OFF)
    J = BUF + 101
    S.I(f"v_lshrrev_b32 v{J}, 1, v0")
    S.I(f"v_mul_u32_u24 v{J}, 1280, v{J}")
    S.I(f"v_and_b32 v{J+5}, 1, v0")
    S.I(f"v_lshl_add_u32 v{J}, v{J+5}, 4, v{J}")
    S.I(f"v_mul_u32_u24 v{J+1}, 1280, v{vC_}")
    S.I(f"v_lshrrev_b32 v{J+5}, 1, v{vG_}")
    S.I(f"v_lshl_add_u32 v{J+1}, v{J+5}, 4, v{J+1}")
    S.I(f"v_lshlrev_b32 v{J+4}, 9, v{J+5}")
    S.I(f"v_and_b32 v{J+5}, 1, v{vG_}")
    S.I(f"v_lshl_add_u32 v{J+4}, v{J+5}, 7, v{J+4}")
    S.I(f"v_lshlrev_b32 v{J+5}, 31, v{J+5}")
    S.I(f"v_or_b32 v{J+1}, v{J+1}, v{J+5}")
    S.I(f"v_xor_b32 v{J+2}, 0x80000000, v{J+1}")
    S.I(f"v_lshlrev_b32 v{J+3}, 4, v0")
    S.I(f"v_lshl_add_u32 v{J+4}, v{vC_}, 3, v{J+4}")
    S.I("s_lshl_b32 s65, s35, 11")
    S.I(f"s_add_u32 s65, s65, {STG_L}")
    S.I(f"v_add_u32 v{J+4}, s65, v{J+4}")
    S.I("s_lshl_b32 s64, s2, 2")
    S.I("s_add_u32 s64, s64, s35")
    SJ = 236
    for rep in range(2):
        S.I(f"s_add_u32 s68, s64, {1024*rep}")
        if rep == 1: S.I("s_min_u32 s68, s68, 1919")
        S.I(f"s_mul_hi_u32 s69, s68, {(2**32 + 47)//48}")
        S.I("s_mul_i32 s70, s69, 48")
        S.I("s_sub_u32 s70, s68, s70")
        S.I("s_mul_i32 s70, s70, 40960")
        S.I("s_lshl_b32 s69, s69, 5")
        S.I("s_add_u32 s70, s70, s69")
        S.I(f"s_add_u32 m0, s65, {1024*rep}")
        S.I(f"buffer_load_dwordx4 v{J}, s[{SW2}:{SW2+3}], s70 offen lds", tag=f"w2l{rep}")
        S.I(f"s_lshl_b32 s{14+rep}, s68, 10")
        S.I(f"s_add_u32 s68, s64, {1024*rep}")
        if rep == 1: S.I("s_min_u32 s68, s68, 1599")
        S.I(f"s_mul_hi_u32 s69, s68, {(2**32 + 39)//40}")
        S.I("s_mul_i32 s70, s69, 40")
        S.I("s_sub_u32 s70, s68, s70")
        S.I("s_lshl_b32 s70, s70, 5")
        S.I("s_mul_i32 s69, s69, 20480")
        S.I("s_add_u32 s70, s70, s69")
        S.I(f"buffer_load_dwordx4 {vr(SJ+8*rep,4)}, v{J+1}, s[{SCR}:{SCR+3}], s70 offen", tag=f"cl{rep}")
        S.I(f"buffer_load_dwordx4 {vr(SJ+8*rep+4,4)}, v{J+2}, s[{SCI}:{SCI+3}], s70 offen", tag=f"cl{rep}")
        S.I("s_lshl_b32 s68, s68, 10")
        S.I(f"s_add_u32 s{16+rep}, s68, {CF_OFF - W2F_OFF}")
    S.I(f"v_add_u32 v9, {Q_L}, v8")
    S.I(f"v_add_u32 v11, {Q_L+256}, v10")
    S.I(f"v_mov_b32 v{PB}, 0")
    S.I(f"ds_write_b32 v9, v{PB}", tag="q")
    S.I(f"ds_write_b32 v11, v{PB}", tag="q")
    for s_ in range(15):
        S.I(f"ds_write_b32 v9, v{EC+s_} offset:{320*(s_+1)}", tag="q")
        S.I(f"ds_write_b32 v11, v{EC+16+s_} offset:{320*(s_+1)}", tag="q")
    QV = BUF + 96
    S.I(f"v_add_u32 v7, {Q_L}, v6")
    for j in range(5):
        S.I(f"ds_read_b32 v{QV+j}, v7 offset:{64*j}", tag="qv")
    partB(BUF + 8)
    for rep in range(2):
        S.wait_vm(f"w2l{rep}")
        S.I(f"ds_read_b64_tr_b16 {vr(BUF+40+4*rep,2)}, v{J+4} offset:{1024*rep}", tag="sj")
        S.I(f"ds_read_b64_tr_b16 {vr(BUF+40+4*rep+2,2)}, v{J+4} offset:{1024*rep+256}", tag="sj")
    for rep in range(2):
        S.wait_vm(f"cl{rep}")
        for k in range(4):
            S.I(f"v_or_b32 v{SJ+8*rep+k}, v{SJ+8*rep+k}, v{SJ+8*rep+4+k}")
        S.I(f"buffer_store_dwordx4 {vr(SJ+8*rep,4)}, v{J+3}, s[{SWS}:{SWS+3}], s{16+rep} offen", tag="st")
    S.wait_lg()
    for rep in range(2):
        S.I(f"buffer_store_dwordx4 {vr(BUF+40+4*rep,4)}, v{J+3}, s[{SWS}:{SWS+3}], s{14+rep} offen", tag="st")
    G0, G1 = BUF, 206
    S.I("s_mul_i32 s36, s32, 640")
    S.I("s_add_u32 s71, s36, 4096")
    S.I("s_add_u32 s70, s36, 8192")
    def gran_loads():
        for d in range(15, 0, -1):
            o = (15 - d) * 640
            for (reg, vo, extra) in ((G0 + 2 * (d - 1), 4, 0), (G1 + 2 * (d - 1), 5, 512)):
                oo = o + extra
                so = "s36" if oo < 4096 else ("s71" if oo < 8192 else "s70")
                S.I(f"buffer_load_dwordx2 {vr(reg,2)}, v{vo}, s[{SAG}:{SAG+3}], {so} offen offset:{oo % 4096} sc1", tag="gr")
    S.I("s_cmp_eq_u32 s32, 0")
    S.I(f"s_cbranch_scc1 L_{name}_r0")
    S.I("s_mov_b32 s39, 0")
    S.I("s_lshl_b32 s38, s32, 7")
    S.I(f"s_add_u32 s38, s38, {GO_O}")
    S.I("v_mov_b32 v14, s38")
    S.label(f"L_{name}_cl")
    S.I("v_readfirstlane_b32 s38, v15")
    S.I("s_add_u32 s39, s39, 1")
    S.I(f"s_cmp_eq_u32 s38, {TAG}")
    S.I(f"s_cbranch_scc1 L_{name}_clok")
    S.I(f"buffer_load_dword v15, v14, s[{SAG}:{SAG+3}], 0 offen sc1")
    S.I("s_waitcnt vmcnt(0)")
    S.I("s_cmp_lt_u32 s39, 0x100000" if "nosync" not in dbg else "s_cmp_lt_u32 s39, 0")
    S.I(f"s_cbranch_scc1 L_{name}_cl")
    S.label(f"L_{name}_clok")
    S.I("s_mov_b32 s39, 0")
    S.label(f"L_{name}_gp")
    gran_loads()
    S.I("s_waitcnt vmcnt(0)")
    S.vm = []
    S.I(f"v_and_b32 v12, v{G0+1}, v{G1+1}")
    S.I(f"v_or_b32 v13, v{G0+1}, v{G1+1}")
    for d in range(2, 16):
        S.I(f"v_and_b32 v14, v{G0+2*d-1}, v{G1+2*d-1}")
        S.I(f"v_or3_b32 v13, v13, v{G0+2*d-1}, v{G1+2*d-1}")
        S.I("v_and_b32 v12, v12, v14")
    S.I(f"v_mov_b32 v14, {TAG}")
    S.I("v_cmp_eq_u32 vcc, v12, v14")
    S.I("v_cmp_eq_u32 s[68:69], v13, v14")
    S.I("s_and_b64 s[68:69], s[68:69], vcc")
    S.I("s_add_u32 s39, s39, 1")
    S.I("s_cmp_eq_u64 s[68:69], -1")
    S.I(f"s_cbranch_scc1 L_{name}_gpdone")
    S.I("s_cmp_lt_u32 s39, 0x40000" if "nosync" not in dbg else "s_cmp_lt_u32 s39, 0")
    S.I(f"s_cbranch_scc1 L_{name}_gp")
    S.I(f"s_branch L_{name}_gpdone")
    S.label(f"L_{name}_r0")
    for d in range(1, 16):
        S.I(f"v_mov_b32 v{G0+2*(d-1)}, 0")
        S.I(f"v_mov_b32 v{G1+2*(d-1)}, 0")
    S.label(f"L_{name}_gpdone")
    S.vm = []
    S.I("s_nop 1")
    stamp()
    for d in range(14, 0, -1):
        for (g_, k) in ((G0, 0), (G1, 1)):
            S.I(f"v_fmac_f32 v{g_+2*(d-1)}, v{A128+k}, v{g_+2*d}")
        for (g_, k) in ((G0, 0), (G1, 1)):
            S.I(f"v_fmac_f32_dpp v{g_+2*(d-1)}, v{g_+2*d}, v{SB128+k} {DPP}")
    S.I("s_lshl_b32 s36, s35, 9")
    S.I(f"s_add_u32 s36, s36, {HS_L}")
    S.I("v_add_u32 v9, s36, v8")
    S.I("v_add_u32 v11, s36, v10")
    S.I(f"ds_write_b32 v9, v{G0}", tag="h")
    S.I(f"ds_write_b32 v11, v{G1} offset:256", tag="h")
    HV = BUF + 32
    for j in range(5):
        S.I(f"ds_read_b32 v{HV+j}, v11 offset:{64*j}", tag="hv")
    S.I(f"v_mul_u32_u24 v9, 272, v{vC_}")
    S.I(f"v_lshlrev_b32 v12, 4, v{vG_}")
    S.I("s_lshl_b32 s36, s35, 6")
    S.I("v_add3_u32 v9, v9, v12, s36")
    S.wait_lg()
    for j in range(5):
        S.I(f"v_fmac_f32 v{QV+j}, v{CAS+j}, v{HV+j}")
    for j in range(5):
        S.I(f"v_fmac_f32_dpp v{QV+j}, v{HV+j}, v{CSBS+j} {DPP}")
    for tl in range(8):
        prev = [QV + j if tl == 0 else ACC + 8 * j + tl - 1 for j in range(5)]
        for j in range(5):
            S.I(f"v_fmac_f32 v{ACC+8*j+tl}, v{CA+j}, v{prev[j]}")
        for j in range(5):
            S.I(f"v_fmac_f32_dpp v{ACC+8*j+tl}, v{prev[j]}, v{CSB+j} {DPP}")
    OV = BUF + 40
    PK = BUF + 80
    for j in range(5):
        for tl in range(8):
            S.I(f"v_mul_f32 v{OV+8*j+tl}, v{CCO+j}, v{ACC+8*j+tl}")
        for tl in range(8):
            S.I(f"v_fmac_f32_dpp v{OV+8*j+tl}, v{ACC+8*j+tl}, v{CCX+j} {DPP}")
        for k in range(4):
            S.I(f"v_cvt_pk_bf16_f32 v{PK+4*j+k}, v{OV+8*j+2*k}, v{OV+8*j+2*k+1}")
        S.I(f"ds_write_b128 v9, {vr(PK+4*j,4)} offset:{16*272*j}", tag="tw")
    S.I(f"v_lshrrev_b32 v11, 2, v{vC_}")
    S.I("v_mul_u32_u24 v11, 272, v11")
    S.I(f"v_and_b32 v4, 3, v{vC_}")
    S.I("v_lshlrev_b32 v4, 4, v4")
    S.I("v_add3_u32 v11, v11, v4, s36")
    S.I(f"v_mul_u32_u24 v4, {8*272}, v{vG_}")
    S.I("v_add_u32 v4, v11, v4")
    S.I(f"v_and_b32 v5, 1, v{vG_}")
    S.I(f"v_mul_u32_u24 v5, {8*272}, v5")
    S.I(f"v_lshrrev_b32 v7, 1, v{vG_}")
    S.I("v_lshlrev_b32 v7, 3, v7")
    S.I("v_add3_u32 v5, v11, v5, v7")
    SHF = 56
    S.I("s_lshl_b32 s36, s32, 2")
    S.I("s_add_u32 s36, s36, s35")
    S.I(f"s_mul_i32 s36, s36, {2*HF_RT}")
    S.I("s_mul_i32 s37, s33, 2560")
    S.I("s_add_u32 s36, s36, s37")
    mk_srd(S, SHF, 30, 31, HF_RT + 2560, 36, HF_OFF)
    S.I("v_lshlrev_b32 v7, 4, v0")
    S.I(f"v_and_b32 v10, 1, v{vG_}")
    S.I("v_lshlrev_b32 v10, 8, v10")
    S.I(f"v_lshlrev_b32 v8, 4, v{vC_}")
    S.I("v_add_u32 v10, v10, v8")
    S.I(f"v_lshrrev_b32 v8, 1, v{vG_}")
    S.I(f"v_mul_u32_u24 v8, {HF_RT}, v8")
    S.I("v_add_u32 v10, v10, v8")
    S.I(f"s_mov_b32 s37, {HF_RT}")
    S.wait_lg()
    RD = BUF
    for n in range(5):
        for e in range(2):
            if n < 4:
                off = (n & 1) * 32 * 272 + e * 4 * 272 + (n >> 1) * 8
                S.I(f"ds_read_b64_tr_b16 {vr(RD+4*n+2*e,2)}, v4 offset:{off}", tag=f"t{n}")
            else:
                S.I(f"ds_read_b64_tr_b16 {vr(RD+4*n+2*e,2)}, v5 offset:{64*272+e*4*272}", tag=f"t{n}")
    for n in range(5):
        S.wait_lg(f"t{n}")
        if n < 4:
            so = "0" if n < 2 else "s37"
            S.I(f"buffer_store_dwordx4 {vr(RD+4*n,4)}, v7, s[{SHF}:{SHF+3}], {so} offen offset:{(n&1)*1024}", tag="st")
        else:
            S.I(f"buffer_store_dwordx4 {vr(RD+4*n,4)}, v10, s[{SHF}:{SHF+3}], 0 offen offset:2048", tag="st")
    final_stamps(S, st)
    S.I("s_endpgm")

    M = Stream(A)
    M.label(f"L_{name}_M")
    stamp, st = mkstamp(M)
    SBB, SW1, SB1, SH1, SDB, SAGM = 40, 48, 52, 56, 60, 64
    MACC, XB, WB, FR = 24, 72, 104, 200
    CBA, CBF, WA, MSK = FR, FR + 20, FR + 40, FR + 52
    lbl = [0]
    M.I("s_cmp_lg_u32 s35, 3")
    M.I("s_cselect_b64 vcc, -1, 0")
    mk_srd(M, SW1, 20, 21, 1966080)
    M.I("s_mul_i32 s39, s33, 192")
    M.I("s_lshl_b32 s36, s35, 8")
    for e in range(4):
        M.I(f"v_add_u32 v22, {64*e}, v0")
        M.I("v_add_u32 v22, s36, v22")
        M.I("v_min_u32 v22, 767, v22")
        M.I("v_mul_u32_u24 v23, 43691, v22")
        M.I("v_lshrrev_b32 v23, 19, v23")
        M.I("v_mul_u32_u24 v9, 12, v23")
        M.I("v_sub_u32 v22, v22, v9")
        M.I("v_lshlrev_b32 v22, 4, v22")
        M.I("v_mul_u32_u24 v23, 3072, v23")
        M.I(f"v_add3_u32 v{1+e}, v22, v23, s39")
    M.I("s_lshl_b32 s68, s35, 12")
    M.I(f"s_add_u32 s68, s68, {W1_O}")
    M.I("s_lshl_b32 s36, s35, 1")
    M.I("s_add_u32 s36, s36, 4")
    M.I("s_min_u32 s36, s36, 8")
    bb_srd(M, SBB, 69)
    M.I("s_lshl_b32 s36, s35, 1")
    M.I("s_add_u32 s36, s36, 5")
    M.I("s_min_u32 s36, s36, 9")
    bb_srd(M, SBB + 4, 70)
    M.I("v_lshrrev_b32 v22, 3, v0")
    M.I("v_and_b32 v23, 7, v0")
    M.I("v_xor_b32 v13, v22, v23")
    M.I("v_mul_u32_u24 v5, 1280, v22")
    M.I("v_lshl_add_u32 v13, v13, 4, v5")
    def guard(g):
        lbl[0] += 1
        return [(f"s_cbranch_vccz L_{name}_g{lbl[0]}", None)] + g + [(f"L_{name}_g{lbl[0]}:", None)]
    def m_dma(p):
        q = p % 4
        L = []
        g = [("s_lshl_b32 s38, s26, 7", None)]
        for e in range(2):
            g += [(f"s_add_u32 m0, s{69+e}, {q*SLOT}", None), (f"buffer_load_dwordx4 v13, s[{SBB+4*e}:{SBB+4*e+3}], s38 offen lds", f"c{p}")]
        L.append(guard(g))
        for e2 in range(2):
            g = [("s_mul_i32 s71, s26, 196608", None)] if e2 == 0 else []
            for e in (2 * e2, 2 * e2 + 1):
                g += [(f"s_add_u32 m0, s68, {q*SLOT + 1024*e}", None), (f"buffer_load_dwordx4 v{1+e}, s[{SW1}:{SW1+3}], s71 offen lds", f"c{p}")]
            if e2 == 1: g += adv()
            L.append(guard(g))
        return L
    def m_wait(tag):
        lbl[0] += 1
        M.I(f"s_cbranch_vccz L_{name}_g{lbl[0]}")
        M.wait_vm(tag)
        M.label(f"L_{name}_g{lbl[0]}")
    emit(M, m_dma(0))
    emit(M, m_dma(1))
    mk_srd(M, SDB, 28, 29, 256)
    M.I(f"s_mul_i32 s36, s33, {AGG_G}")
    mk_srd(M, SAGM, 30, 31, AGG_G, 36, AGG_OFF)
    for k in range(4): M.I(f"v_mov_b32 v{14+k}, 0")
    for k in range(4): M.I(f"v_mov_b32 v{18+k}, 0x3f803f80")
    savevm = list(M.vm)
    M.I(f"s_cbranch_vccnz L_{name}_noclr")
    M.I("v_lshlrev_b32 v8, 3, v0")
    M.I("v_and_b32 v10, 15, v0")
    M.I("v_lshlrev_b32 v10, 3, v10")
    M.I("s_add_u32 s37, s32, 15")
    M.I("s_mul_i32 s37, s37, 640")
    M.I(f"buffer_store_dwordx2 v[14:15], v8, s[{SAGM}:{SAGM+3}], s37 offen sc1")
    M.I(f"buffer_store_dwordx2 v[14:15], v10, s[{SAGM}:{SAGM+3}], s37 offen offset:512 sc1")
    M.I("s_lshl_b32 s37, s32, 7")
    M.I(f"s_add_u32 s37, s37, {GO_O}")
    M.I(f"buffer_store_dwordx2 v[14:15], v14, s[{SAGM}:{SAGM+3}], s37 offen sc1")
    M.I("s_cmp_lg_u32 s32, 0")
    M.I(f"s_cbranch_scc1 L_{name}_noclr")
    M.I("v_mov_b32 v10, 0")
    M.I(f"v_mov_b32 v11, {TAG}")
    M.I("s_mov_b32 s37, 0")
    for k in range(19):
        if k == 18:
            M.I("v_min_u32 v8, 376, v8")
        M.I(f"buffer_store_dwordx2 v[10:11], v8, s[{SAGM}:{SAGM+3}], s37 offen offset:{(k%8)*512} sc1")
        if k % 8 == 7: M.I("s_add_u32 s37, s37, 4096")
    M.label(f"L_{name}_noclr")
    M.vm = savevm
    stamp()
    M.I("v_and_b32 v22, 15, v0")
    M.I("v_bfe_u32 v23, v0, 4, 1")
    T1 = XB
    M.I(f"v_lshrrev_b32 v{T1}, 2, v22")
    M.I(f"v_and_b32 v{T1+1}, 3, v22")
    M.I(f"v_lshlrev_b32 v{T1+2}, 3, v{T1}")
    M.I(f"v_lshl_add_u32 v{T1+2}, v23, 2, v{T1+2}")
    M.I(f"v_add_u32 v{T1+2}, v{T1+2}, v{T1+1}")
    M.I("s_lshl_b32 s36, s35, 5")
    M.I(f"v_add_u32 v{T1+5}, s36, v{T1+2}")
    M.I(f"v_lshlrev_b32 v{T1+2}, 7, v{T1+5}")
    M.I(f"v_lshrrev_b32 v{T1+3}, 1, v{T1}")
    M.I(f"v_lshlrev_b32 v{T1+3}, 2, v{T1+3}")
    M.I(f"v_and_b32 v{T1+4}, 2, v{T1+1}")
    M.I(f"v_or3_b32 v{T1+3}, v{T1+3}, v{T1+4}, v23")
    M.I(f"v_lshrrev_b32 v{T1+4}, 5, v0")
    M.I(f"v_xor_b32 v{T1+3}, v{T1+3}, v{T1+4}")
    M.I(f"v_lshlrev_b32 v{T1+6}, 3, v{T1+4}")
    M.I(f"v_bfe_u32 v{T1+7}, v0, 2, 2")
    M.I(f"v_add_u32 v{T1+6}, v{T1+6}, v{T1+7}")
    M.I(f"v_mul_u32_u24 v{T1+6}, 192, v{T1+6}")
    M.I(f"v_lshl_add_u32 v{T1+6}, v23, 5, v{T1+6}")
    M.I(f"v_and_b32 v{T1+7}, 3, v0")
    M.I(f"v_lshl_add_u32 v{T1+6}, v{T1+7}, 3, v{T1+6}")
    M.I(f"v_add_u32 v{T1+6}, {W1_O}, v{T1+6}")
    M.I(f"v_xor_b32 v{T1+7}, v23, v0")
    M.I(f"v_and_b32 v{T1+7}, 1, v{T1+7}")
    M.I(f"v_add_u32 v{T1+7}, -1, v{T1+7}")
    M.I(f"v_and_b32 v{MSK}, 0x3f803f80, v{T1+7}")
    for k in range(1, 4): M.I(f"v_mov_b32 v{MSK+k}, v{MSK}")
    for u in range(4):
        M.I(f"s_add_u32 s36, s35, {u}")
        M.I("s_and_b32 s36, s36, 3")
        M.I("s_lshl_b32 s39, s36, 1")
        M.I(f"v_xor_b32 v{T1+4}, s39, v{T1+3}")
        M.I(f"v_lshl_add_u32 v{5+u}, v{T1+4}, 4, v{T1+2}")
        M.I("s_mul_i32 s39, s36, 3072")
        M.I(f"v_add_u32 v{9+u}, s39, v{T1+6}")
    M.I(f"v_lshlrev_b32 v23, 3, v{T1+5}")
    mk_srd(M, SB1, 22, 23, 3072)
    M.I(f"v_lshrrev_b32 v{T1}, 4, v0")
    M.I("s_and_b32 s36, s35, 1")
    M.I("s_lshl_b32 s36, s36, 2")
    M.I(f"v_add_u32 v{T1}, s36, v{T1}")
    M.I(f"v_and_b32 v{T1+1}, 7, v0")
    M.I(f"v_xor_b32 v{T1}, v{T1}, v{T1+1}")
    M.I(f"v_lshlrev_b32 v{T1+1}, 7, v22")
    M.I(f"v_lshl_add_u32 v16, v{T1}, 4, v{T1+1}")
    M.I(f"v_add_u32 v16, {BB_O}, v16")
    M.I(f"v_lshlrev_b32 v{T1}, 3, v0")
    M.I(f"v_min_u32 v{T1}, 384, v{T1}")
    M.I(f"v_add_u32 v{T1}, {CSW_L}, v{T1}")
    M.I(f"ds_write_b64 v{T1}, v[14:15]")
    for k in range(20): M.I(f"v_mov_b32 v{CBA+k}, 0")
    M.I("s_lshr_b32 s37, s35, 1")
    def m_reads(p):
        L = []
        for u in range(4):
            L.append([(f"ds_read_b128 {vr(XB+16*(p&1)+4*u,4)}, v{5+u}", f"r{p}")])
            for jt in range(3):
                L.append([(f"ds_read_b64_tr_b16 {vr(WB+48*(p&1)+12*u+4*jt+2*e,2)}, v{9+u} offset:{e*768+jt*64}", f"r{p}") for e in range(2)])
        delta = SLOT if p % 4 != 3 else (-3 * SLOT) & 0xffffffff
        L.append([(f"v_add_u32 v{k}, {delta}, v{k}", None) for k in range(5, 13)])
        return L
    def m_mfma(p):
        L = []
        for jt in range(3):
            c = "0" if p == 0 else vr(WA + 4 * jt, 4)
            L.append(f"v_mfma_f32_16x16x32_bf16 {vr(WA+4*jt,4)}, {vr(WB+48*(p&1)+4*jt,4)}, {vr(MSK,4)}, {c}")
        for u in range(4):
            for jt in range(3):
                c = "0" if (p == 0 and u == 0) else vr(MACC + 16 * jt, 16)
                L.append(f"v_mfma_f32_32x32x16_bf16 {vr(MACC+16*jt,16)}, {vr(WB+48*(p&1)+12*u+4*jt,4)}, {vr(XB+16*(p&1)+4*u,4)}, {c}")
        return L
    B1V = WB + 24
    for p in range(10):
        m_wait(f"c{p}")
        if p == 0: M.wait_lg()
        M.I("s_barrier")
        stamp(True)
        if p in (0, 5): stamp()
        side = m_dma(p + 3) if p + 3 <= 9 else []
        if p == 0: side = m_dma(2) + side
        rd = m_reads(p)
        M.I(f"s_cmp_lg_u32 s37, {p & 1}")
        M.I(f"s_cbranch_scc1 L_{name}_cs{p}a")
        for j in range(5):
            M.I(f"ds_read_b128 {vr(CBF+4*j,4)}, v16 offset:{2048*j}")
            M.lg.pop()
        M.label(f"L_{name}_cs{p}a")
        delta = SLOT if p % 4 != 3 else (-3 * SLOT) & 0xffffffff
        M.I(f"v_add_u32 v16, {delta}, v16")
        if p == 0: emit(M, rd + side)
        else: merge(M, m_mfma(p - 1), mix(rd, side), 0.9)
        if p == 1:
            M.I(f"s_cbranch_vccnz L_{name}_na")
            M.I("s_waitcnt vmcnt(0)")
            M.I("s_lshl_b32 s36, s33, 4")
            M.I("v_mov_b32 v14, s36")
            M.I("v_mov_b32 v15, 1")
            M.I("s_mov_b64 exec, 1")
            M.I(f"buffer_atomic_add v15, v14, s[{SDB}:{SDB+3}], 0 offen sc0")
            M.vm.pop()
            M.I("s_mov_b64 exec, -1")
            M.label(f"L_{name}_na")
        if p == 6:
            M.I(f"s_cbranch_vccnz L_{name}_nb")
            M.I("s_waitcnt vmcnt(0)")
            M.I("v_readfirstlane_b32 s36, v15")
            M.I("s_cmp_lg_u32 s36, 15")
            M.I(f"s_cbranch_scc1 L_{name}_nb")
            M.I("v_lshlrev_b32 v14, 7, v22")
            M.I(f"v_add_u32 v14, {GO_O}, v14")
            M.I(f"v_mov_b32 v15, {TAG}")
            M.I("s_mov_b64 exec, 0xffff")
            M.I(f"buffer_store_dword v15, v14, s[{SAGM}:{SAGM+3}], 0 offen sc1")
            M.vm.pop()
            M.I("s_mov_b64 exec, -1")
            M.label(f"L_{name}_nb")
        if p == 9:
            M.I("s_mul_i32 s36, s33, 192")
            M.I("v_lshrrev_b32 v17, 5, v0")
            M.I("v_lshlrev_b32 v17, 3, v17")
            M.I("v_add_u32 v17, s36, v17")
            for jt in range(3):
                for q in range(4):
                    M.I(f"buffer_load_dwordx2 {vr(B1V+(jt*4+q)*2,2)}, v17, s[{SB1}:{SB1+3}], 0 offen offset:{64*jt+16*q}", tag="b1")
        M.I("s_waitcnt lgkmcnt(0)")
        M.lg = []
        M.I(f"s_cmp_lg_u32 s37, {p & 1}")
        M.I(f"s_cbranch_scc1 L_{name}_cs{p}b")
        for j in range(5):
            M.I(f"v_mfma_f32_16x16x32_bf16 {vr(CBA+4*j,4)}, v[18:21], {vr(CBF+4*j,4)}, {vr(CBA+4*j,4)}")
        M.label(f"L_{name}_cs{p}b")
    mm = m_mfma(9)
    for m in mm[:6]: M.I(m)
    M.I("s_mul_i32 s36, s35, 320")
    M.I(f"s_add_u32 s36, s36, {CSB_L}")
    M.I("v_lshlrev_b32 v17, 2, v22")
    M.I("v_add_u32 v17, s36, v17")
    for j in range(5):
        M.I(f"ds_write_b32 v17, v{CBA+4*j} offset:{64*j}", tag="sw")
    M.I("v_lshlrev_b32 v16, 6, v22")
    M.I("v_lshrrev_b32 v17, 4, v0")
    M.I("v_lshl_add_u32 v16, v17, 4, v16")
    M.I(f"v_add_u32 v16, {CSW_L}, v16")
    M.I("v_cmp_gt_u32 vcc, 2, v22")
    M.I("s_and_saveexec_b64 s[38:39], vcc")
    for jt in range(3):
        for r in range(4):
            M.I(f"ds_add_f32 v16, v{WA+4*jt+r} offset:{128*jt+4*r}")
    M.I("s_mov_b64 exec, -1")
    for m in mm[6:]: M.I(m)
    M.wait_lg()
    stamp()
    M.I("s_barrier")
    stamp()
    CSV = XB
    M.I("v_lshrrev_b32 v10, 5, v0")
    M.I("v_lshlrev_b32 v11, 4, v10")
    M.I(f"v_add_u32 v11, {CSW_L}, v11")
    M.I(f"v_add_u32 v12, {STATS_L}, v23")
    M.I("ds_read_b64 v[14:15], v12")
    for jt in range(3):
        for q in range(4):
            M.I(f"ds_read_b128 {vr(CSV+(jt*4+q)*4,4)}, v11 offset:{128*jt+32*q}", tag="cr")
    M.I("s_lshl_b32 s36, s32, 2")
    M.I("s_add_u32 s36, s36, s35")
    M.I(f"s_mul_i32 s36, s36, {2*H1F_RT}")
    M.I("s_mul_i32 s39, s33, 3072")
    M.I("s_add_u32 s36, s36, s39")
    mk_srd(M, SH1, 30, 31, H1F_RT + 3072, 36, H1F_OFF)
    M.I("v_bfe_u32 v9, v0, 4, 1")
    M.I(f"v_mul_u32_u24 v9, {H1F_RT}, v9")
    M.I("v_lshl_add_u32 v9, v10, 8, v9")
    M.I("v_lshl_add_u32 v9, v22, 4, v9")
    C1 = -2.0 * 1.4426950408889634 * 0.7978845608028654
    C2 = C1 * 0.044715
    M.I(f"s_mov_b32 s36, {f2u(C2)}")
    M.I(f"v_mov_b32 v10, {f2u(C1)}")
    M.I("s_mov_b32 s39, 0xffff0000")
    M.wait_vm("b1")
    M.wait_lg()
    TM = FR
    for jt in range(3):
        for AB in range(2):
            regs = [MACC + 16 * jt + 8 * AB + k for k in range(8)]
            cs = [CSV + (jt * 4 + 2 * AB) * 4 + k for k in range(8)]
            for k in range(8):
                M.I(f"v_fma_f32 v{regs[k]}, -v14, v{cs[k]}, v{regs[k]}")
            for k in range(4):
                src = B1V + (jt * 4 + 2 * AB) * 2 + k
                M.I(f"v_lshlrev_b32 v{TM+2*k}, 16, v{src}")
                M.I(f"v_and_b32 v{TM+2*k+1}, s39, v{src}")
            for k in range(8):
                M.I(f"v_mul_f32 v{regs[k]}, v{regs[k]}, v15")
            for k in range(8):
                M.I(f"v_cvt_pk_bf16_f32 v{regs[k]}, 0, v{regs[k]}")
            for k in range(8):
                M.I(f"v_add_f32 v{regs[k]}, v{regs[k]}, v{TM+k}")
            for k in range(8):
                M.I(f"v_cvt_pk_bf16_f32 v{regs[k]}, 0, v{regs[k]}")
            for k in range(8):
                M.I(f"v_mul_f32 v{TM+k}, v{regs[k]}, v{regs[k]}")
            for k in range(8):
                M.I(f"v_fma_f32 v{TM+k}, v{TM+k}, s36, v10")
            for k in range(8):
                M.I(f"v_mul_f32 v{TM+k}, v{TM+k}, v{regs[k]}")
            for k in range(8):
                M.I(f"v_exp_f32 v{TM+k}, v{TM+k}")
            for k in range(8):
                M.I(f"v_add_f32 v{TM+k}, 1.0, v{TM+k}")
            for k in range(8):
                M.I(f"v_rcp_f32 v{TM+k}, v{TM+k}")
            for k in range(8):
                M.I(f"v_mul_f32 v{regs[k]}, v{regs[k]}, v{TM+k}")
            PKM = TM + 8 + 4 * ((jt * 2 + AB) % 2)
            for k in range(4):
                M.I(f"v_cvt_pk_bf16_f32 v{PKM+k}, v{regs[2*k]}, v{regs[2*k+1]}")
            M.I(f"buffer_store_dwordx4 {vr(PKM,4)}, v9, s[{SH1}:{SH1+3}], 0 offen offset:{1024*jt+512*AB}", tag="st")
    final_stamps(M, st)
    M.label(f"L_{name}_end")
    M.I("s_endpgm")
    desc = f""".section .rodata,"a"
.p2align 6
.amdhsa_kernel {name}
  .amdhsa_next_free_vgpr 256
  .amdhsa_next_free_sgpr 102
  .amdhsa_accum_offset 256
  .amdhsa_group_segment_fixed_size 0
  .amdhsa_kernarg_size 136
  .amdhsa_user_sgpr_count 2
  .amdhsa_user_sgpr_kernarg_segment_ptr 1
  .amdhsa_system_sgpr_workgroup_id_x 1
.end_amdhsa_kernel
.text"""
    return A.text() + "\n" + S.text() + "\n" + M.text() + "\n" + desc, (A.nins, S.nins, M.nins)
```

```python
from asmfw import *
from layout import *

NEG_LOG2E = 0xbfb8aa3b

def srd(A, d, lo, hi, nbytes):
    A.I(f"s_mov_b32 s{d}, {lo}")
    A.I(f"s_and_b32 s{d+1}, {hi}, 0xffff")
    A.I(f"s_mov_b32 s{d+2}, {nbytes}")
    A.I(f"s_mov_b32 s{d+3}, 0x00020000")

def gen_k2(name="k2_kernel", D=3, stamps=False):
    A = Stream()
    nst = [0]
    def stamp():
        if not stamps: return
        A.I(f"s_memtime s[{64+2*nst[0]}:{65+2*nst[0]}]"); nst[0] += 1
    A.raw(f".globl {name}\n.p2align 8\n.type {name},@function\n{name}:")
    A.I("s_cmp_ge_u32 s2, 256")
    A.I(f"s_cbranch_scc1 L_{name}_end")
    stamp()
    if stamps: A.I("s_memrealtime s[96:97]")
    A.I("s_load_dwordx2 s[12:13], s[0:1], 128")
    A.I("s_load_dwordx2 s[4:5], s[0:1], 0")
    A.I("s_load_dwordx2 s[6:7], s[0:1], 64")
    A.I("s_load_dwordx4 s[8:11], s[0:1], 104")
    A.I("s_and_b32 s14, s2, 7")
    A.I("s_lshr_b32 s15, s2, 3")
    A.I("s_and_b32 s16, s14, 3")
    A.I("s_lshl_b32 s16, s16, 3")
    A.I("s_and_b32 s17, s15, 7")
    A.I("s_add_u32 s16, s16, s17")
    A.I("s_lshr_b32 s17, s14, 2")
    A.I("s_lshl_b32 s17, s17, 2")
    A.I("s_lshr_b32 s18, s15, 3")
    A.I("s_add_u32 s17, s17, s18")
    A.I("v_lshrrev_b32 v1, 6, v0")
    A.I("v_and_b32 v0, 63, v0")
    A.I("v_readfirstlane_b32 s19, v1")
    A.I("v_lshlrev_b32 v2, 4, v0")
    def set_voff(stride):
        for n in range(1, 5):
            A.I(f"v_add_u32 v{2+n}, {n*stride}, v2")
        for n in range(4):
            A.I(f"s_add_u32 s20, s19, {n}")
            A.I("s_and_b32 s20, s20, 3")
            A.I(f"s_mul_i32 s20, s20, {stride}")
            A.I(f"v_add_u32 v{7+n}, s20, v2")
    set_voff(H1F_RT)
    A.I("s_mul_i32 s60, s19, 12288")
    A.I("s_mul_i32 s61, s19, 10240")
    A.wait_lg()
    def ws_srd(d, off, mul_s, mulc, nbytes):
        A.I(f"s_mul_i32 s20, s{mul_s}, {mulc}")
        if off: A.I(f"s_add_u32 s20, s20, {off}")
        A.I(f"s_add_u32 s{d}, s12, s20")
        A.I(f"s_addc_u32 s{d+1}, s13, 0")
        A.I(f"s_and_b32 s{d+1}, s{d+1}, 0xffff")
        A.I(f"s_mov_b32 s{d+2}, {nbytes}")
        A.I(f"s_mov_b32 s{d+3}, 0x00020000")
    SAG, SBG, SAY, SBY, SX, SO, SST, SB2, SDS = 24, 28, 32, 36, 40, 44, 48, 52, 56
    ws_srd(SAG, H1F_OFF, 16, 4 * H1F_RT, 4 * H1F_RT)
    ws_srd(SBG, W2F_OFF, 17, 5 * H1F_RT, 5 * H1F_RT)
    NG, NY = 12, 10
    NS = NG + NY
    ACC = 16
    STG = 96
    FRE = STG + D * 36
    assert FRE + 52 <= 256
    YV = FRE + 43
    def stage(s): return STG + (s % D) * 36
    def issue(s):
        L = []
        b = stage(s)
        if s < NG: sa, sb, va, vb, ks, sk = SAG, SBG, 7, 2, s, 60
        else: sa, sb, va, vb, ks, sk = SAY, SBY, YV + 5, YV, s - NG, 61
        pre = [(f"s_add_u32 s{sk}, s{sk}, 4096", None)] if (ks > 0 and ks % 4 == 0) else []
        io = (ks % 4) * 1024
        for n in range(4):
            L.append((f"buffer_load_dwordx4 {vr(b+4*n,4)}, v{va+n}, s[{sa}:{sa+3}], s{sk} offen offset:{io}", f"st{s}"))
        for n in range(5):
            L.append((f"buffer_load_dwordx4 {vr(b+16+4*n,4)}, v{vb+n}, s[{sb}:{sb+3}], s{sk} offen offset:{io}", f"st{s}"))
        return pre + L
    for s in range(D - 1):
        for t, g in issue(s): A.I(t, tag=g)
    stamp()
    ws_srd(SAY, HF_OFF, 16, 4 * HF_RT, 4 * HF_RT)
    ws_srd(SBY, CF_OFF, 17, 5 * HF_RT, 5 * HF_RT)
    srd(A, SX, "s4", "s5", 2621440)
    srd(A, SO, "s10", "s11", 5242880)
    srd(A, SB2, "s8", "s9", 1280)
    srd(A, SDS, "s6", "s7", 1280)
    A.I(f"s_add_u32 s{SST}, s12, {STATS_OFF}")
    A.I(f"s_addc_u32 s{SST+1}, s13, 0")
    A.I(f"s_and_b32 s{SST+1}, s{SST+1}, 0xffff")
    A.I(f"s_mov_b32 s{SST+2}, 16384")
    A.I(f"s_mov_b32 s{SST+3}, 0x00020000")
    A.I(f"v_mov_b32 v{YV}, v2")
    for n in range(1, 5):
        A.I(f"v_add_u32 v{YV+n}, {n*HF_RT}, v2")
    for n in range(4):
        A.I(f"s_add_u32 s20, s19, {n}")
        A.I("s_and_b32 s20, s20, 3")
        A.I(f"s_mul_i32 s20, s20, {HF_RT}")
        A.I(f"v_add_u32 v{YV+5+n}, s20, v2")
    vT, vPo, vOo, vtmp = 11, 12, 13, 14
    A.I(f"v_and_b32 v{vtmp}, 15, v0")
    A.I(f"v_lshrrev_b32 v{vT}, 2, v{vtmp}")
    A.I(f"v_lshlrev_b32 v{vT}, 3, v{vT}")
    A.I(f"v_and_b32 v{vtmp}, 3, v{vtmp}")
    A.I(f"v_add_u32 v{vT}, v{vT}, v{vtmp}")
    A.I("s_lshl_b32 s20, s16, 6")
    A.I("s_lshr_b32 s21, s19, 1")
    A.I("s_lshl_b32 s21, s21, 5")
    A.I("s_add_u32 s20, s20, s21")
    A.I("s_and_b32 s21, s19, 1")
    A.I("s_lshl_b32 s21, s21, 2")
    A.I("s_add_u32 s20, s20, s21")
    A.I(f"v_add_u32 v{vT}, s20, v{vT}")
    A.I(f"v_lshrrev_b32 v{vtmp}, 4, v0")
    A.I(f"v_lshlrev_b32 v{vtmp}, 3, v{vtmp}")
    A.I("s_mul_i32 s20, s17, 160")
    A.I(f"v_add_u32 v{vPo}, s20, v{vtmp}")
    A.I(f"v_mul_u32_u24 v15, 1280, v{vT}")
    A.I(f"v_add_u32 v15, v15, v{vPo}")
    A.I(f"v_lshlrev_b32 v{vOo}, 1, v15")
    A.I(f"v_lshlrev_b32 v{vtmp}, 3, v{vT}")
    aB2, aDs, aX, aSt = 0, 10, 20, 30
    ep = []
    for dt in range(5):
        ep.append((f"buffer_load_dwordx2 {vr(aB2+2*dt,2,'a')}, v{vPo}, s[{SB2}:{SB2+3}], 0 offen offset:{32*dt}", "ep"))
        ep.append((f"buffer_load_dwordx2 {vr(aDs+2*dt,2,'a')}, v{vPo}, s[{SDS}:{SDS+3}], 0 offen offset:{32*dt}", "ep"))
        ep.append((f"buffer_load_dwordx2 {vr(aX+2*dt,2,'a')}, v15, s[{SX}:{SX+3}], 0 offen offset:{32*dt}", "ep"))
    ep.append((f"buffer_load_dwordx2 {vr(aSt,2,'a')}, v{vtmp}, s[{SST}:{SST+3}], 0 offen", "ep"))
    LW = FRE + 40
    for n in range(1, 4):
        A.I(f"s_add_u32 s20, s19, {n}")
        A.I("s_and_b32 s20, s20, 3")
        A.I("s_mul_i32 s20, s20, 15360")
        A.I(f"s_add_u32 s20, s20, {(n-1)*5120}")
        A.I(f"v_add_u32 v{LW+n-1}, s20, v2")
    A.I("s_mul_i32 s20, s19, 15360")
    A.I("v_add_u32 v1, s20, v2")
    YA = 32
    def accreg(s, idx):
        return vr(ACC + idx * 4, 4) if s < NG else vr(YA + idx * 4, 4, 'a')
    def mfmas(s, L, fill=(), order=None, post=None):
        b = stage(s)
        L = list(L); fill = list(fill)
        nf = (len(fill) + 19) // 20
        k = 0
        first = (s == 0 or s == NG)
        for rt in (order or range(4)):
            for dt in range(5):
                ac = accreg(s, rt * 5 + dt)
                A.I(f"v_mfma_f32_16x16x32_bf16 {ac}, {vr(b+16+4*dt,4)}, {vr(b+4*rt,4)}, {'0' if first else ac}")
                k += 1
                if L and k % 2 == 1:
                    t, g = L.pop(0); A.I(t, tag=g)
                    if t.startswith("s_") and L:
                        t, g = L.pop(0); A.I(t, tag=g)
                for _ in range(nf):
                    if fill: fill.pop(0)()
                if post: post(k)
        for t, g in L: A.I(t, tag=g)
        for f in fill: f()
    T = ACC + 20
    G = FRE
    BS = FRE + 20
    def I(t, tag=None): return lambda: A.I(t, tag=tag)
    gep = []
    for k in range(3):
        for dt in range(5):
            gep.append(I(f"ds_read_b128 {vr(ACC+20+(k*5+dt)*4,4)}, v1 offset:{k*5120+dt*1024}", f"rd{k}"))
    gep.append(I(f"s_mov_b32 s20, {NEG_LOG2E}"))
    gep.append(I("s_mov_b32 s21, 0xffff0000"))
    for k in range(10): gep.append(I(f"v_accvgpr_read_b32 v{G+k}, a{aB2+k}"))
    gep.append(lambda: A.wait_lg("rd1"))
    for e in range(20): gep.append(I(f"v_add_f32 v{ACC+e}, v{ACC+e}, v{ACC+20+e}"))
    gep.append(lambda: A.wait_lg("rd2"))
    for e in range(20): gep.append(I(f"v_add_f32 v{ACC+40+e}, v{ACC+40+e}, v{ACC+60+e}"))
    for e in range(20): gep.append(I(f"v_add_f32 v{ACC+e}, v{ACC+e}, v{ACC+40+e}"))
    for k in range(10):
        gep.append(I(f"v_lshlrev_b32 v{T+2*k}, 16, v{G+k}"))
        gep.append(I(f"v_and_b32 v{T+2*k+1}, s21, v{G+k}"))
    for e in range(20): gep.append(I(f"v_cvt_pk_bf16_f32 v{ACC+e}, 0, v{ACC+e}"))
    for e in range(20): gep.append(I(f"v_add_f32 v{ACC+e}, v{ACC+e}, v{T+e}"))
    for e in range(20): gep.append(I(f"v_cvt_pk_bf16_f32 v{ACC+e}, 0, v{ACC+e}"))
    for e in range(20): gep.append(I(f"v_mul_f32 v{T+e}, s20, v{ACC+e}"))
    for e in range(20): gep.append(I(f"v_exp_f32 v{T+e}, v{T+e}"))
    for e in range(20): gep.append(I(f"v_add_f32 v{T+e}, 1.0, v{T+e}"))
    for e in range(20): gep.append(I(f"v_rcp_f32 v{T+e}, v{T+e}"))
    for e in range(20): gep.append(I(f"v_mul_f32 v{ACC+e}, v{ACC+e}, v{T+e}"))
    for e in range(20): gep.append(I(f"v_cvt_pk_bf16_f32 v{G+e}, 0, v{ACC+e}"))
    for k in range(10): gep.append(I(f"v_accvgpr_read_b32 v{T+40+k}, a{aX+k}"))
    for k in range(10): gep.append(I(f"v_accvgpr_read_b32 v{T+50+k}, a{aDs+k}"))
    gep.append(I(f"v_accvgpr_read_b32 v{vT}, a{aSt}"))
    gep.append(I(f"v_accvgpr_read_b32 v{vPo}, a{aSt+1}"))
    for k in range(10):
        gep.append(I(f"v_lshlrev_b32 v{BS+2*k}, 16, v{T+40+k}"))
        gep.append(I(f"v_and_b32 v{BS+2*k+1}, s21, v{T+40+k}"))
        gep.append(I(f"v_lshlrev_b32 v{T+20+2*k}, 16, v{T+50+k}"))
        gep.append(I(f"v_and_b32 v{T+20+2*k+1}, s21, v{T+50+k}"))
    for e in range(20): gep.append(I(f"v_sub_f32 v{T+e}, v{BS+e}, v{vT}"))
    for e in range(20): gep.append(I(f"v_cvt_pk_bf16_f32 v{T+e}, 0, v{T+e}"))
    for e in range(20): gep.append(I(f"v_mul_f32 v{T+e}, v{T+e}, v{vPo}"))
    for e in range(20): gep.append(I(f"v_cvt_pk_bf16_f32 v{T+e}, 0, v{T+e}"))
    for e in range(20): gep.append(I(f"v_mul_f32 v{T+e}, v{T+e}, v{T+20+e}"))
    for e in range(20): gep.append(I(f"v_cvt_pk_bf16_f32 v{T+e}, 0, v{T+e}"))
    for e in range(20): gep.append(I(f"v_fmac_f32 v{BS+e}, v{T+e}, v{G+e}"))
    gdump = [I(f"ds_write_b128 v{LW+n-1}, {vr(ACC+(n*5+dt)*4,4)} offset:{dt*1024}", "gw") for n in range(1, 4) for dt in range(5)]
    F0, NF = NG + 1, 7
    per = (len(gep) + NF - 1) // NF
    for s in range(NS):
        A.wait_vm(f"st{s}")
        L = issue(s + D - 1) if s + D - 1 < NS else []
        if s == 2: L = L + ep
        if s in (0, 4, 8, 16): stamp()
        fill = []
        if s == NG: fill = gdump
        if s == F0:
            A.wait_lg()
            A.I("s_barrier")
            for n in range(3): A.I(f"v_add_u32 v{LW+n}, 61440, v{LW+n}")
        if F0 <= s < F0 + NF: fill = gep[(s - F0) * per:(s - F0 + 1) * per]
        if s == NS - 1:
            pend = []
            def post(k):
                if k >= 8 and k - 8 < 15:
                    j = k - 8
                    n, dt = 1 + j // 5, j % 5
                    A.I(f"ds_write_b128 v{LW+n-1}, {vr(YA+(n*5+dt)*4,4,'a')} offset:{dt*1024}", tag="yw")
            mfmas(s, L, fill, order=[1, 2, 3, 0], post=post)
            for j in range(13, 15):
                n, dt = 1 + j // 5, j % 5
                A.I(f"ds_write_b128 v{LW+n-1}, {vr(YA+(n*5+dt)*4,4,'a')} offset:{dt*1024}", tag="yw")
        else:
            mfmas(s, L, fill)
        if s == NG - 1 or s == NS - 1: stamp()
    A.I("v_add_u32 v1, 61440, v1")
    for e in range(20): A.I(f"v_accvgpr_read_b32 v{ACC+e}, a{YA+e}")
    A.wait_lg()
    A.I("s_barrier")
    stamp()
    RT = STG
    for dt in range(5):
        for k in range(3):
            A.I(f"ds_read_b128 {vr(RT+(dt*3+k)*4,4)}, v1 offset:{k*5120+dt*1024}", tag=f"y{dt}")
    for dt in range(5):
        A.wait_lg(f"y{dt}")
        for r in range(4):
            A.I(f"v_add_f32 v{ACC+4*dt+r}, v{ACC+4*dt+r}, v{RT+dt*12+r}")
        for r in range(4):
            A.I(f"v_add_f32 v{RT+dt*12+4+r}, v{RT+dt*12+4+r}, v{RT+dt*12+8+r}")
        for r in range(4):
            A.I(f"v_add_f32 v{ACC+4*dt+r}, v{ACC+4*dt+r}, v{RT+dt*12+4+r}")
        for r in range(4):
            A.I(f"v_fmac_f32 v{BS+4*dt+r}, v{ACC+4*dt+r}, v{G+4*dt+r}")
        A.I(f"buffer_store_dwordx4 {vr(BS+4*dt,4)}, v{vOo}, s[{SO}:{SO+3}], 0 offen offset:{64*dt}")
    stamp()
    if stamps:
        A.wait_all()
        stamp()
        A.I("s_memrealtime s[98:99]")
        A.wait_lg()
        A.I("s_lshl_b32 s20, s2, 2")
        A.I("s_add_u32 s20, s20, s19")
        A.I("s_lshl_b32 s20, s20, 7")
        A.I("s_add_u32 s20, s20, 0x2000000")
        A.I("s_add_u32 s24, s12, s20")
        A.I("s_addc_u32 s25, s13, 0")
        A.I("s_and_b32 s25, s25, 0xffff")
        A.I("s_mov_b32 s26, 128")
        A.I("v_mov_b32 v1, 0")
        for i in range(nst[0]):
            A.I(f"v_mov_b32 v2, s{64+2*i}")
            A.I(f"buffer_store_dword v2, v1, s[24:27], 0 offen offset:{4*i}")
        A.I("v_mov_b32 v2, s96")
        A.I("buffer_store_dword v2, v1, s[24:27], 0 offen offset:120")
        A.I("v_mov_b32 v2, s98")
        A.I("buffer_store_dword v2, v1, s[24:27], 0 offen offset:124")
    A.label(f"L_{name}_end")
    A.I("s_endpgm")
    desc = f""".section .rodata,"a"
.p2align 6
.amdhsa_kernel {name}
  .amdhsa_next_free_vgpr 368
  .amdhsa_next_free_sgpr 102
  .amdhsa_accum_offset 256
  .amdhsa_group_segment_fixed_size 0
  .amdhsa_kernarg_size 136
  .amdhsa_user_sgpr_count 2
  .amdhsa_user_sgpr_kernarg_segment_ptr 1
  .amdhsa_system_sgpr_workgroup_id_x 1
.end_amdhsa_kernel
.text"""
    return A.text() + "\n" + desc, A.nins
```

```python
import sys
from build import build
from k1 import gen_k1
from k2 import gen_k2
st = sys.argv[1] if len(sys.argv) > 1 else ""
import os
t1, n1 = gen_k1(stamps=("1" in st), dbg=os.environ.get("K1DBG", ""), rot=(os.environ.get("NOROT") is None))
t2, n2 = gen_k2(D=int(os.environ.get("K2D", "3")), rot=int(os.environ.get("K2ROT", "0")), stamps=("2" in st))
out = sys.argv[2] if len(sys.argv) > 2 else "full.s"
open(out, "w").write(build([t1, t2], [("k1_kernel", 256, 512, 163840), ("k2_kernel", 256, 256, 139264)]))
print("k1 instrs", n1, "k2", n2)
```

```python
import sys, os
from build import build
from k1 import gen_k1
from k2 import gen_k2
t1, n1 = gen_k1(rot=False)
t2, n2 = gen_k2(D=3)
nop = """.globl nop_kernel
.p2align 8
.type nop_kernel,@function
nop_kernel:
    s_endpgm
.section .rodata,"a"
.p2align 6
.amdhsa_kernel nop_kernel
  .amdhsa_next_free_vgpr 8
  .amdhsa_next_free_sgpr 8
  .amdhsa_accum_offset 8
  .amdhsa_group_segment_fixed_size 0
  .amdhsa_kernarg_size 136
  .amdhsa_user_sgpr_count 2
  .amdhsa_user_sgpr_kernarg_segment_ptr 1
  .amdhsa_system_sgpr_workgroup_id_x 1
.end_amdhsa_kernel
.text"""
K1 = ("k1_kernel", 256, 512, 163840); K2 = ("k2_kernel", 256, 256, 122880); N = ("nop_kernel", 1, 64, 0)
V = {"base": [K1, K2], "nop1": [K1, K2, N], "nop3": [K1, K2, N, N, N], "k2x2": [K1, K2, K2], "k1x2": [K1, K1, K2]}
for k, L in V.items():
    ks = [t1, t2] + ([nop] if N in L else [])
    open(f"var_{k}.s", "w").write(build(ks, L))
```

```python
from asmfw import *
from layout import *
import struct
def f2u(f): return struct.unpack("<I", struct.pack("<f", f))[0]
LOG2E = f2u(1.4426950408889634)
INV2PI = f2u(0.15915494309189535)
SLOT = 38912
BB_O = 16384
W1_O = 26624
MISC = 155648
SEG_L = MISC
CSW_L = MISC + 5120
CNT_L = CSW_L + 384
STATS_L = MISC + 5632
CSB_L = STATS_L + 1024
STG_L = 2 * SLOT
PAR_L = SEG_L
B1F_L = 139264
GR_L = 98304
TR_L = 0
Q_L = 24576
HS_L = 32768
TAG = 0x5a17c3e9
DPP = "row_ror:8 row_mask:0xf bank_mask:0xf"

def mk_srd(A, d, lo, hi, nbytes, off_s=None, off_imm=0):
    if off_s is None and off_imm == 0:
        A.I(f"s_mov_b32 s{d}, s{lo}")
        A.I(f"s_and_b32 s{d+1}, s{hi}, 0xffff")
    else:
        if off_s is not None:
            if off_imm: A.I(f"s_add_u32 s{off_s}, s{off_s}, {off_imm}")
            A.I(f"s_add_u32 s{d}, s{lo}, s{off_s}")
        else:
            A.I(f"s_add_u32 s{d}, s{lo}, {off_imm}")
        A.I(f"s_addc_u32 s{d+1}, s{hi}, 0")
        A.I(f"s_and_b32 s{d+1}, s{d+1}, 0xffff")
    A.I(f"s_mov_b32 s{d+2}, {nbytes}")
    A.I(f"s_mov_b32 s{d+3}, 0x00020000")

def bb_srd(X, d, ldsreg):
    X.I(f"s_lshl_b32 s{ldsreg}, s36, 10")
    X.I(f"s_add_u32 s{ldsreg}, s{ldsreg}, {BB_O}")
    X.I("s_and_b32 s39, s36, 1")
    X.I("s_cmp_eq_u32 s39, 0")
    X.I(f"s_cselect_b32 s{d}, s10, s12")
    X.I(f"s_cselect_b32 s{d+1}, s11, s13")
    X.I("s_lshr_b32 s36, s36, 1")
    X.I("s_lshl_b32 s36, s36, 3")
    X.I("s_mul_i32 s39, s33, 40")
    X.I("s_add_u32 s36, s36, s39")
    X.I("s_mul_i32 s36, s36, 1280")
    X.I(f"s_add_u32 s{d}, s{d}, s36")
    X.I(f"s_addc_u32 s{d+1}, s{d+1}, 0")
    X.I(f"s_and_b32 s{d+1}, s{d+1}, 0xffff")
    X.I(f"s_mov_b32 s{d+2}, 10240")
    X.I(f"s_mov_b32 s{d+3}, 0x00020000")

def put(X, item):
    t, g = item
    if t.endswith(":"): X.label(t[:-1])
    else: X.I(t, tag=g)
def emit(X, L):
    for grp in L:
        for it in grp: put(X, it)
def merge(X, main, side, frac=1.0):
    side = list(side)
    n = max(1, int(len(main) * frac))
    done = 0
    for k, m in enumerate(main):
        X.I(m)
        tgt = min(len(side), ((k + 1) * len(side) + n - 1) // n)
        while done < tgt:
            for it in side[done]: put(X, it)
            done += 1
    while done < len(side):
        for it in side[done]: put(X, it)
        done += 1
def mix(a, b):
    out = []; ia = ib = 0
    while ia < len(a) or ib < len(b):
        if ib >= len(b) or (ia < len(a) and ia * len(b) <= ib * len(a)):
            out.append(a[ia]); ia += 1
        else:
            out.append(b[ib]); ib += 1
    return out

def cnt_add(X, va, vt, addr):
    X.I(f"v_mov_b32 v{va}, {addr}")
    X.I(f"v_mov_b32 v{vt}, 1")
    X.I("s_mov_b64 exec, 1")
    X.I(f"ds_add_u32 v{va}, v{vt}")
    X.I("s_mov_b64 exec, -1")
def cnt_wait(X, lab, va, vt, addr, val):
    X.I(f"v_mov_b32 v{va}, {addr}")
    X.I("s_mov_b32 s39, 0")
    X.label(lab)
    X.I(f"ds_read_b32 v{vt}, v{va}")
    X.I("s_waitcnt lgkmcnt(0)")
    X.lg = []
    X.I(f"v_readfirstlane_b32 s36, v{vt}")
    X.I("s_add_u32 s39, s39, 1")
    X.I(f"s_cmp_eq_u32 s36, {val}")
    X.I(f"s_cbranch_scc1 {lab}d")
    X.I("s_cmp_lt_u32 s39, 0x400000")
    X.I(f"s_cbranch_scc1 {lab}")
    X.label(lab + "d")

def pr(idx):
    return f"v[{idx & ~1}:{(idx & ~1) + 1}]", idx & 1

def gen_k1(name="k1_kernel", stamps=False, rot=True, dbg=""):
    A = Stream()
    A.raw(f".globl {name}\n.p2align 8\n.type {name},@function\n{name}:")
    A.I("s_cmp_ge_u32 s2, 256")
    A.I(f"s_cbranch_scc1 L_{name}_end")
    class St:
        n = 0
    def mkstamp(X):
        st = St()
        def stamp(ph=False):
            if not stamps: return
            if ("phst" in dbg) != ph: return
            assert st.n < 12
            X.I(f"s_memtime s[{74+2*st.n}:{75+2*st.n}]"); st.n += 1
        return stamp, st
    if stamps:
        A.I("s_memtime s[72:73]")
        A.I("s_memrealtime s[98:99]")
    A.I("s_load_dwordx16 s[4:19], s[0:1], 0")
    A.I("s_load_dwordx4 s[20:23], s[0:1], 80")
    A.I("s_load_dwordx2 s[24:25], s[0:1], 96")
    A.I("s_load_dwordx4 s[28:31], s[0:1], 120")
    A.I("s_and_b32 s36, s2, 7")
    A.I("s_lshr_b32 s37, s2, 3")
    A.I("s_and_b32 s32, s36, 1")
    A.I("s_lshl_b32 s32, s32, 3")
    A.I("s_and_b32 s38, s37, 7")
    A.I("s_add_u32 s32, s32, s38")
    A.I("s_lshr_b32 s33, s36, 1")
    A.I("s_lshl_b32 s33, s33, 2")
    A.I("s_lshr_b32 s38, s37, 3")
    A.I("s_add_u32 s33, s33, s38")
    import os
    rm = os.environ.get("ROTM", "full")
    if rot and rm == "full":
        A.I("s_and_b32 s26, s33, 3")
        A.I("s_mul_i32 s26, s26, 3")
        A.I("s_and_b32 s27, s32, 7")
        A.I("s_add_u32 s26, s26, s27")
        A.I("s_sub_u32 s27, s26, 10")
        A.I("s_cmp_ge_u32 s26, 10")
        A.I("s_cselect_b32 s26, s27, s26")
    elif rot and rm == "r4":
        A.I("s_add_u32 s26, s33, s32")
        A.I("s_and_b32 s26, s26, 3")
    elif rot and rm == "r2":
        A.I("s_add_u32 s26, s33, s32")
        A.I("s_and_b32 s26, s26, 1")
        A.I("s_lshl_b32 s26, s26, 1")
    elif rot and rm == "r4x2":
        A.I("s_add_u32 s26, s33, s32")
        A.I("s_and_b32 s26, s26, 3")
        A.I("s_lshl_b32 s26, s26, 1")
    else:
        A.I("s_mov_b32 s26, 0")
    A.I("v_lshrrev_b32 v1, 6, v0")
    A.I("v_and_b32 v0, 63, v0")
    A.I("v_readfirstlane_b32 s34, v1")
    A.I("s_and_b32 s35, s34, 3")
    A.I("s_cmp_ge_u32 s34, 4")
    A.wait_lg()
    A.I(f"s_cbranch_scc1 L_{name}_M")

    def final_stamps(X, st):
        if not stamps: return
        X.wait_all()
        X.I(f"s_memtime s[{74+2*st.n}:{75+2*st.n}]"); st.n += 1
        X.I("s_memrealtime s[100:101]")
        X.wait_lg()
        X.I("s_lshl_b32 s36, s2, 3")
        X.I("s_add_u32 s36, s36, s34")
        X.I("s_lshl_b32 s36, s36, 7")
        X.I("s_add_u32 s36, s36, 0x2000000")
        X.I("s_add_u32 s40, s30, s36")
        X.I("s_addc_u32 s41, s31, 0")
        X.I("s_and_b32 s41, s41, 0xffff")
        X.I("s_mov_b32 s42, 128")
        X.I("s_mov_b32 s43, 0x00020000")
        X.I("v_mov_b32 v1, 0")
        for i in range(st.n + 1):
            X.I(f"v_mov_b32 v2, s{72+2*i}")
            X.I(f"buffer_store_dword v2, v1, s[40:43], 0 offen offset:{4*i}")
        X.I("v_mov_b32 v2, s98")
        X.I("buffer_store_dword v2, v1, s[40:43], 0 offen offset:120")
        X.I("v_mov_b32 v2, s100")
        X.I("buffer_store_dword v2, v1, s[40:43], 0 offen offset:124")
    def side_issue(S, vG_, vC_, vBB, SJA, SJB, SWS, t1, t2, t3, vL, vA):
        mk_srd(S, SWS, 30, 31, STATS_OFF - W2F_OFF, None, W2F_OFF)
        S.I("s_lshl_b32 s26, s2, 2")
        S.I("s_add_u32 s26, s26, s35")
        if "nosj" in dbg: S.I("s_mov_b32 s26, 1000")
        S.I("s_lshl_b32 s27, s35, 12")
        S.I(f"s_add_u32 s27, s27, {STG_L}")
        S.I(f"v_lshlrev_b32 v{vL}, 4, v0")
        S.I(f"v_mov_b32 v{vA}, 0")
        S.I("s_mov_b32 s22, 0")
        S.I("s_mov_b32 s23, 0")
        savevm = list(S.vm)
        S.I("s_cmp_ge_u32 s26, 880")
        S.I(f"s_cbranch_scc1 L_{name}_sj0")
        S.I("s_cmp_ge_u32 s26, 480")
        S.I(f"s_cbranch_scc1 L_{name}_sjc")
        mk_srd(S, SJA, 24, 25, 1966080)
        S.I(f"s_mul_hi_u32 s36, s26, {(2**32 + 47)//48}")
        S.I("s_mul_i32 s39, s36, 48")
        S.I("s_sub_u32 s39, s26, s39")
        S.I(f"s_mul_i32 s22, s36, {4*H1F_RT}")
        S.I("s_lshl_b32 s23, s39, 10")
        S.I("s_add_u32 s22, s22, s23")
        S.I(f"s_mov_b32 s23, {H1F_RT}")
        S.I("s_mul_i32 s39, s39, 40960")
        S.I("s_lshl_b32 s36, s36, 7")
        S.I("s_add_u32 s36, s36, s39")
        S.I(f"v_lshrrev_b32 v{t1}, 3, v0")
        S.I(f"v_mul_u32_u24 v{t1}, 1280, v{t1}")
        S.I(f"v_and_b32 v{t2}, 7, v0")
        S.I(f"v_lshl_add_u32 v{t1}, v{t2}, 4, v{t1}")
        for e in range(4):
            S.I(f"s_add_u32 m0, s27, {1024*e}")
            S.I(f"buffer_load_dwordx4 v{t1}, s[{SJA}:{SJA+3}], s36 offen lds")
            if e < 3: S.I("s_add_u32 s36, s36, 10240")
        S.I(f"v_lshrrev_b32 v{t1}, 1, v{vG_}")
        S.I(f"v_lshlrev_b32 v{t1}, 11, v{t1}")
        S.I(f"v_and_b32 v{t2}, 1, v{vG_}")
        S.I(f"v_lshl_add_u32 v{t1}, v{t2}, 9, v{t1}")
        S.I(f"v_lshrrev_b32 v{t2}, 2, v{vC_}")
        S.I(f"v_lshl_add_u32 v{t1}, v{t2}, 7, v{t1}")
        S.I(f"v_and_b32 v{t2}, 3, v{vC_}")
        S.I(f"v_lshl_add_u32 v{t1}, v{t2}, 3, v{t1}")
        S.I(f"v_add_u32 v{vA}, s27, v{t1}")
        S.I(f"s_branch L_{name}_sj0")
        S.label(f"L_{name}_sjc")
        mk_srd(S, SJA, 14, 15, 819200)
        mk_srd(S, SJB, 16, 17, 819200)
        S.I("s_sub_u32 s39, s26, 480")
        S.I(f"s_mul_hi_u32 s36, s39, {(2**32 + 9)//10}")
        S.I("s_mul_i32 s22, s36, 10")
        S.I("s_sub_u32 s39, s39, s22")
        S.I(f"s_mul_i32 s22, s36, {HF_RT}")
        S.I("s_lshl_b32 s23, s39, 12")
        S.I("s_add_u32 s22, s22, s23")
        S.I(f"s_add_u32 s22, s22, {CF_OFF - W2F_OFF}")
        S.I("s_mov_b32 s23, 1024")
        S.I("s_mul_i32 s36, s36, 20480")
        S.I("s_lshl_b32 s39, s39, 7")
        S.I("s_add_u32 s36, s36, s39")
        S.I("s_add_u32 s39, s36, 10240")
        for (srd_, mo) in ((SJA, 0), (SJB, 2048)):
            S.I(f"s_add_u32 m0, s27, {mo}")
            S.I(f"buffer_load_dwordx4 v{vBB}, s[{srd_}:{srd_+3}], s36 offen lds")
            S.I(f"s_add_u32 m0, s27, {mo+1024}")
            S.I(f"buffer_load_dwordx4 v{vBB}, s[{srd_}:{srd_+3}], s39 offen lds")
        S.I(f"v_and_b32 v{t1}, 1, v{vG_}")
        S.I(f"v_lshlrev_b32 v{t1}, 11, v{t1}")
        S.I(f"v_lshl_add_u32 v{t1}, v{vC_}, 7, v{t1}")
        S.I(f"v_lshrrev_b32 v{t2}, 1, v{vG_}")
        S.I(f"v_and_b32 v{t3}, 7, v{vC_}")
        S.I(f"v_xor_b32 v{t2}, v{t2}, v{t3}")
        S.I(f"v_lshl_add_u32 v{t1}, v{t2}, 4, v{t1}")
        S.I(f"v_add_u32 v{vA}, s27, v{t1}")
        S.label(f"L_{name}_sj0")
        S.vm = savevm
    def adv():
        return [("s_add_u32 s26, s26, 1", None), ("s_cmp_eq_u32 s26, 10", None), ("s_cselect_b32 s26, 0, s26", None)]

    S = Stream(A)
    stamp, st = mkstamp(S)
    ACC = 16
    BUF = 56
    CA, CSB, CCO, CCX, CAS, CSBS = 168, 173, 178, 183, 188, 193
    A8, SB8, A128, SB128 = 198, 200, 202, 204
    SUM, SQ, ONE = 206, 214, 222
    MRV, RV = 226, 234
    DV = 246
    vG_, vC_, vSg = 1, 2, 3
    SX, SBBS = 40, 44
    if "early" in dbg: stamp()
    S.I(f"s_mul_i32 s36, s32, {128*1280}")
    mk_srd(S, SX, 4, 5, 128 * 1280, 36)
    S.I("v_lshrrev_b32 v4, 3, v0")
    S.I("v_and_b32 v5, 7, v0")
    S.I("v_and_b32 v6, 2, v4")
    S.I("v_lshrrev_b32 v7, 2, v4")
    S.I("v_or_b32 v6, v6, v7")
    S.I("v_xor_b32 v6, v6, v5")
    S.I("s_mul_i32 s36, s35, 40960")
    S.I("v_mul_u32_u24 v7, 1280, v4")
    S.I("v_add_u32 v8, s36, v7")
    for e in range(4):
        S.I(f"v_xor_b32 v9, {4 if e >= 2 else 0}, v6")
        S.I(f"v_lshl_add_u32 v{DV+e}, v9, 4, v8")
        if e: S.I(f"v_add_u32 v{DV+e}, {10240*e}, v{DV+e}")
    S.I("v_xor_b32 v9, v4, v5")
    S.I(f"v_lshl_add_u32 v{DV+4}, v9, 4, v7")
    S.I("s_lshl_b32 s37, s35, 12")
    S.I("s_mov_b32 s36, s35")
    bb_srd(S, SBBS, 27)
    def s_dma(p):
        q = p % 4
        L = []
        for e in range(4):
            g = [(f"s_add_u32 m0, s37, {q*SLOT + 1024*e}", None), (f"buffer_load_dwordx4 v{DV+e}, s[{SX}:{SX+3}], s38 offen lds", f"c{p}")]
            if e == 0: g = [("s_lshl_b32 s38, s26, 7", None)] + g
            L.append(g)
        L.append([(f"s_add_u32 m0, s27, {q*SLOT}", None), (f"buffer_load_dwordx4 v{DV+4}, s[{SBBS}:{SBBS+3}], s38 offen lds", f"c{p}")] + adv())
        return L
    S.I(f"v_lshrrev_b32 v{vG_}, 4, v0")
    S.I(f"v_and_b32 v{vC_}, 15, v0")
    if "early" in dbg: stamp()
    emit(S, s_dma(0))
    if "early" in dbg: stamp()
    def pslots(t):
        return (CCO + t, CCX + t, CAS + t) if t < 5 else (A128, SB128, A128 + 1)
    def par_issue():
        S.I("v_and_b32 v11, 7, v0")
        S.I("v_lshlrev_b32 v11, 1, v11")
        S.I(f"v_add_u32 v11, {PAR_L}, v11")
        S.I(f"v_lshlrev_b32 v12, 4, v{vG_}")
        S.I("v_add_u32 v12, v11, v12")
        for t in range(6):
            vo = "v11" if t < 5 else "v12"
            off = 16 * t if t < 5 else 0
            lre, lim, ldt = pslots(t)
            S.I(f"ds_read_u16 v{lre}, {vo} offset:{off}")
            S.I(f"ds_read_u16 v{lim}, {vo} offset:{off+128}")
            S.I(f"ds_read_u16 v{ldt}, {vo} offset:{off+256}")
    SJA, SJB, SWS = 56, 60, 64
    TT = BUF + 48
    S.I(f"v_lshrrev_b32 v{TT}, 2, v{vC_}")
    S.I(f"v_and_b32 v{TT+1}, 3, v{vC_}")
    S.I(f"v_lshlrev_b32 v{TT+2}, 3, v{TT}")
    S.I(f"v_add_u32 v{TT+2}, v{TT+2}, v{TT+1}")
    S.I("s_lshl_b32 s36, s35, 5")
    S.I(f"v_add_u32 v{TT+2}, s36, v{TT+2}")
    S.I(f"v_lshlrev_b32 v{TT+2}, 7, v{TT+2}")
    S.I(f"v_lshrrev_b32 v{TT+3}, 1, v{TT}")
    S.I(f"v_lshlrev_b32 v{TT+3}, 2, v{TT+3}")
    S.I(f"v_and_b32 v{TT+4}, 2, v{TT+1}")
    S.I(f"v_or_b32 v{TT+3}, v{TT+3}, v{TT+4}")
    S.I(f"v_xor_b32 v{TT+3}, v{TT+3}, v{vG_}")
    for T in range(2):
        for sp in range(2):
            d = 4 + 2 * T + sp
            S.I(f"v_xor_b32 v{TT+4}, {(4*sp) ^ T}, v{TT+3}")
            S.I(f"v_lshl_add_u32 v{d}, v{TT+4}, 4, v{TT+2}")
            if T: S.I(f"v_add_u32 v{d}, 512, v{d}")
    S.I(f"v_and_b32 v{TT}, 7, v{vC_}")
    S.I(f"v_xor_b32 v{TT}, v{TT}, v{vG_}")
    S.I(f"v_lshlrev_b32 v{TT+1}, 7, v{vC_}")
    for sp in range(2):
        S.I(f"v_xor_b32 v{TT+2}, {4*sp}, v{TT}")
        S.I(f"v_lshl_add_u32 v{8+sp}, v{TT+2}, 4, v{TT+1}")
        S.I(f"v_add_u32 v{8+sp}, {BB_O}, v{8+sp}")
    for k in range(4): S.I(f"v_mov_b32 v{ONE+k}, 0x3f803f80")
    S.I(f"v_mul_u32_u24 v10, 80, v{vG_}")
    S.I(f"v_lshrrev_b32 v{vSg}, 3, v{vC_}")
    S.I(f"v_cvt_f32_u32 v{vSg}, v{vSg}")
    S.I(f"v_fma_f32 v{vSg}, v{vSg}, 2.0, -1.0")
    S.I(f"s_mov_b32 s20, {LOG2E}")
    S.I(f"s_mov_b32 s21, {INV2PI}")
    def powr(ar, rev, n, da, dsb, t0):
        L = []
        if n is None:
            L.append(f"v_exp_f32 v{t0}, v{ar}")
            L.append(f"v_fract_f32 v{t0+1}, v{rev}")
        else:
            L.append(f"v_mul_f32 v{t0}, {n}, v{ar}")
            L.append(f"v_mul_f32 v{t0+1}, {n}, v{rev}")
            L.append(f"v_exp_f32 v{t0}, v{t0}")
            L.append(f"v_fract_f32 v{t0+1}, v{t0+1}")
        L.append(f"v_cos_f32 v{t0+2}, v{t0+1}")
        L.append(f"v_sin_f32 v{t0+3}, v{t0+1}")
        L.append(f"v_mul_f32 v{t0+3}, v{t0}, v{t0+3}")
        L.append(f"v_mul_f32 v{da}, v{t0}, v{t0+2}")
        L.append(f"v_mul_f32 v{dsb}, v{t0+3}, v{vSg}")
        return L
    def arrev(t):
        return (CAS + t, CSBS + t) if t < 5 else (A128, SB128)
    partA = ["s_lshl_b32 s36, s35, 2", f"v_add_u32 v245, s36, v{vG_}", "v_lshlrev_b32 v245, 3, v245", "v_cvt_f32_u32 v245, v245"]
    for t in range(6):
        lre, lim, ldt = pslots(t)
        ar, rev = 242, 243
        partA += [f"v_lshlrev_b32 v{lre}, 16, v{lre}", f"v_lshlrev_b32 v{lim}, 16, v{lim}", f"v_lshlrev_b32 v11, 16, v{ldt}",
                  "v_mul_f32 v11, s20, v11", "v_exp_f32 v11, v11", "v_cvt_pk_bf16_f32 v11, 0, v11",
                  f"v_mul_f32 v12, v11, v{lre}", f"v_mul_f32 v13, v11, v{lim}",
                  f"v_mul_f32 v{ar}, s20, v12", f"v_mul_f32 v{rev}, s21, v13"]
        if t < 5:
            partA += powr(ar, rev, None, CA + t, CSB + t, 11)
            partA += [f"v_add_f32 v11, -1.0, v{CA+t}", f"v_mul_f32 v12, v{lre}, v{lre}", f"v_fmac_f32 v12, v{lim}, v{lim}",
                      "v_rcp_f32 v12, v12", f"v_mul_f32 v13, v11, v{lre}", f"v_fmac_f32 v13, v14, v{lim}",
                      f"v_mul_f32 v244, v14, v{lre}", f"v_fma_f32 v244, -v11, v{lim}, v244", "v_mul_f32 v12, -2.0, v12",
                      f"v_mul_f32 v{CCX+t}, v244, v12", "v_mul_f32 v13, v13, v12", f"v_mul_f32 v{CCO+t}, v13, v{vSg}"]
            partA += powr(ar, rev, "v245", CAS + t, CSBS + t, 11)
        if t >= 4:
            k = 1 if t == 4 else 0
            partA += powr(ar, rev, f"{f2u(8.0)}", A8 + k, SB8 + k, 11)
            partA += powr(ar, rev, f"{f2u(128.0)}", 254 if t == 4 else A128, 255 if t == 4 else SB128, 11)
    partA += [f"v_mov_b32 v{A128+1}, v254", f"v_mov_b32 v{SB128+1}, v255"]
    SAG, SST = 48, 52
    S.I(f"s_mul_i32 s36, s33, {AGG_G}")
    mk_srd(S, SAG, 30, 31, AGG_G, 36, AGG_OFF)
    S.I("s_lshl_b32 s36, s32, 9")
    mk_srd(S, SST, 30, 31, 8192 + 512, 36, STATS_OFF)
    emit(S, s_dma(1))
    stamp()
    def s_reads(p):
        b = BUF + (p & 1) * 56
        L = []
        for sp in range(2):
            for T in range(2):
                L.append([(f"ds_read_b128 {vr(b+(sp*2+T)*4,4)}, v{4+2*T+sp}", f"r{p}")])
            for j in range(5):
                L.append([(f"ds_read_b128 {vr(b+16+(sp*5+j)*4,4)}, v{8+sp} offset:{2048*j}", f"r{p}")])
        delta = SLOT if p % 4 != 3 else (-3 * SLOT) & 0xffffffff
        L.append([(f"v_add_u32 v{k}, {delta}, v{k}", None) for k in range(4, 10)])
        return L
    def s_stat(p):
        b = BUF + (p & 1) * 56
        L = []
        for sp in range(2):
            for T in range(2):
                x = vr(b + (sp * 2 + T) * 4, 4)
                z = (p == 0 and sp == 0)
                L.append(f"v_mfma_f32_16x16x32_bf16 {vr(SUM+4*T,4)}, {x}, {vr(ONE,4)}, {'0' if z else vr(SUM+4*T,4)}")
                L.append(f"v_mfma_f32_16x16x32_bf16 {vr(SQ+4*T,4)}, {x}, {x}, {'0' if z else vr(SQ+4*T,4)}")
        return L
    def s_mfma(p):
        b = BUF + (p & 1) * 56
        L = []
        for sp in range(2):
            for j in range(5):
                for T in range(2):
                    ac = ACC + 8 * j + 4 * T
                    c = "0" if (p == 0 and sp == 0) else vr(ac, 4)
                    L.append(f"v_mfma_f32_16x16x32_bf16 {vr(ac,4)}, {vr(b+(sp*2+T)*4,4)}, {vr(b+16+(sp*5+j)*4,4)}, {c}")
        return L
    for p in range(10):
        S.wait_vm(f"c{p}")
        S.I("s_barrier")
        stamp(True)
        if p in (0, 5): stamp()
        side = s_dma(p + 3) if p + 3 <= 9 else []
        if p == 0: side = s_dma(2)
        if p == 1: side = s_dma(3) + side
        rd = s_reads(p)
        if p == 2:
            par_issue()
        fill = []
        if 3 <= p <= 8:
            nper = (len(partA) + 5) // 6
            fill = [[(m, None)] for m in partA[(p - 3) * nper:(p - 2) * nper]]
        if p == 9:
            fill += [[("s_lshl_b32 s36, s32, 7", None), (f"s_add_u32 s36, s36, {GO_O}", None), ("v_mov_b32 v15, s36", None),
                      (f"buffer_load_dword v15, v15, s[{SAG}:{SAG+3}], 0 offen sc1", "clr")]]
        if "dmaonly" in dbg: emit(S, side)
        elif p == 0: emit(S, rd + side + fill)
        else: merge(S, s_stat(p - 1) + s_mfma(p - 1), mix(mix(rd, side), fill), 0.9)
        S.wait_lg()
    for m in s_stat(9): S.I(m)
    mm = s_mfma(9)
    for m in mm[:5]: S.I(m)
    for T in range(2):
        for r in range(4):
            S.I(f"ds_bpermute_b32 v{SQ+4*T+r}, v10, v{SQ+4*T+r} offset:{4*r}", tag="bp")
    for m in mm[5:9]: S.I(m)
    S.wait_lg()
    fin = []
    K640 = f2u(1.0 / 640)
    for step in range(12):
        for k in range(8):
            su, sq = SUM + k, SQ + k
            fin.append([
                f"v_mul_f32 v{su}, {K640}, v{su}",
                f"v_mul_f32 v{sq}, {K640}, v{sq}",
                f"v_fma_f32 v{sq}, -v{su}, v{su}, v{sq}",
                f"v_max_f32 v{sq}, 0, v{sq}",
                f"v_cvt_pk_bf16_f32 v{su}, 0, v{su}",
                f"v_cvt_pk_bf16_f32 v{sq}, 0, v{sq}",
                f"v_add_f32 v{sq}, {f2u(1e-5)}, v{sq}",
                f"v_cvt_pk_bf16_f32 v{sq}, 0, v{sq}",
                f"v_sqrt_f32 v{sq}, v{sq}",
                f"v_cvt_pk_bf16_f32 v{sq}, 0, v{sq}",
                f"v_rcp_f32 v{RV+k}, v{sq}",
                f"v_mul_f32 v{MRV+k}, v{su}, v{RV+k}"][step])
    merge(S, mm[9:], [[(m, None)] for m in fin], 1.0)
    stamp()
    S.I("s_lshl_b32 s36, s35, 7")
    S.I(f"v_lshlrev_b32 v13, 5, v{vG_}")
    S.I("v_add_u32 v13, s36, v13")
    S.I(f"v_add_u32 v14, {STATS_L}, v13")
    for k in range(2):
        S.I(f"ds_write_b128 v14, {vr(MRV+4*k,4)} offset:{16*k}")
        S.I(f"ds_write_b128 v14, {vr(RV+4*k,4)} offset:{512+16*k}")
    S.I(f"v_lshlrev_b32 v12, 2, v{vC_}")
    S.I(f"v_add_u32 v14, {CSB_L}, v12")
    S.I("s_mul_i32 s36, s35, 1280")
    S.I(f"v_mul_u32_u24 v6, 320, v{vG_}")
    S.I("v_add3_u32 v6, v6, v12, s36")
    S.I(f"v_add_u32 v7, {SEG_L}, v6")
    S.I("s_lshl_b32 s38, s35, 2")
    S.I(f"s_add_u32 s38, s38, {CNT_L+16}")
    cnt_add(S, 4, 5, "s38")
    for t2 in range(4):
        for j in range(5):
            a = ACC + 8 * j + 2 * t2
            S.I(f"v_pk_mul_f32 {vr(a,2)}, {vr(a,2)}, {vr(RV+2*t2,2)}")
    cnt_wait(S, f"L_{name}_e0", 4, 5, CNT_L + 4, 4)
    CSV = BUF + 16
    for wv in range(4):
        for j in range(5):
            S.I(f"ds_read_b32 v{CSV+5*wv+j}, v14 offset:{320*wv+64*j}", tag="stt")
    S.I("s_cmp_lg_u32 s33, 0")
    S.I(f"s_cbranch_scc1 L_{name}_nostat")
    S.I("s_mov_b32 s36, 8192")
    for k in range(2):
        S.I(f"buffer_store_dwordx4 {vr(MRV+4*k,4)}, v13, s[{SST}:{SST+3}], 0 offen offset:{16*k}")
        S.vm.pop()
        S.I(f"buffer_store_dwordx4 {vr(RV+4*k,4)}, v13, s[{SST}:{SST+3}], s36 offen offset:{16*k}")
        S.vm.pop()
    S.label(f"L_{name}_nostat")
    S.wait_lg()
    for j in range(5):
        S.I(f"v_add_f32 v{CSV+j}, v{CSV+j}, v{CSV+5+j}")
        S.I(f"v_add_f32 v{CSV+10+j}, v{CSV+10+j}, v{CSV+15+j}")
    for j in range(5):
        S.I(f"v_add_f32 v{CSV+j}, v{CSV+j}, v{CSV+10+j}")
    EA, EB = BUF + 40, BUF + 45
    cur = None
    for tl in range(8):
        if tl % 2 == 0:
            for j in range(5):
                a = ACC + 8 * j + tl
                p_, sel = pr(CSV + j)
                S.I(f"v_pk_fma_f32 {vr(a,2)}, {vr(MRV+tl,2)}, {p_}, {vr(a,2)} op_sel:[0,{sel},0] op_sel_hi:[1,{sel},1] neg_lo:[1,0,0] neg_hi:[1,0,0]")
        if tl == 0:
            cur = [ACC + 8 * j for j in range(5)]
        else:
            dst = EA if tl & 1 else EB
            for j in range(5):
                S.I(f"v_fma_f32 v{dst+j}, v{CA+j}, v{cur[j]}, v{ACC+8*j+tl}")
            for j in range(5):
                S.I(f"v_fmac_f32_dpp v{dst+j}, v{cur[j]}, v{CSB+j} {DPP}")
            cur = [dst + j for j in range(5)]
    for j in range(5):
        S.I(f"ds_write_b32 v7, v{cur[j]} offset:{64*j}")
    S.I("v_lshlrev_b32 v8, 2, v0")
    S.I(f"v_add_u32 v9, {SEG_L}, v8")
    S.I(f"v_mov_b32 v10, v12")
    S.I(f"v_add_u32 v11, {SEG_L+256}, v10")
    cnt_add(S, 13, 14, CNT_L)
    cnt_wait(S, f"L_{name}_x1", 13, 14, CNT_L, 4)
    stamp()
    EC = BUF + 56
    for s_ in range(16):
        S.I(f"ds_read_b32 v{EC+s_}, v9 offset:{320*s_}", tag=f"e{s_}")
        S.I(f"ds_read_b32 v{EC+16+s_}, v11 offset:{320*s_}", tag=f"e{s_}")
    S.I("v_lshlrev_b32 v4, 3, v0")
    S.I(f"v_lshlrev_b32 v5, 3, v{vC_}")
    PB = BUF + 90
    S.I(f"v_mov_b32 v{PB+1}, {TAG}")
    S.I(f"v_mov_b32 v{PB+3}, {TAG}")
    S.I("s_add_u32 s37, s32, 15")
    S.I("s_mul_i32 s37, s37, 640")
    for s_ in range(1, 16):
        S.wait_lg(f"e{s_}")
        for k in range(2):
            S.I(f"v_fmac_f32 v{EC+16*k+s_}, v{A8+k}, v{EC+16*k+s_-1}")
        for k in range(2):
            S.I(f"v_fmac_f32_dpp v{EC+16*k+s_}, v{EC+16*k+s_-1}, v{SB8+k} {DPP}")
    S.I("s_waitcnt vmcnt(0)")
    S.vm = []
    S.I("s_cmp_lg_u32 s35, 0")
    S.I(f"s_cbranch_scc1 L_{name}_nopub")
    S.I(f"v_mov_b32 v{PB}, v{EC+15}")
    S.I(f"v_mov_b32 v{PB+2}, v{EC+31}")
    S.I(f"buffer_store_dwordx2 {vr(PB,2)}, v4, s[{SAG}:{SAG+3}], s37 offen sc1")
    S.vm.pop()
    S.I(f"buffer_store_dwordx2 {vr(PB+2,2)}, v5, s[{SAG}:{SAG+3}], s37 offen offset:512 sc1")
    S.vm.pop()
    S.label(f"L_{name}_nopub")
    stamp()
    S.I(f"v_add_u32 v9, {Q_L}, v8")
    S.I(f"v_add_u32 v11, {Q_L+256}, v10")
    S.I(f"v_mov_b32 v{PB}, 0")
    S.I(f"ds_write_b32 v9, v{PB}", tag="q")
    S.I(f"ds_write_b32 v11, v{PB}", tag="q")
    for s_ in range(15):
        S.I(f"ds_write_b32 v9, v{EC+s_} offset:{320*(s_+1)}", tag="q")
        S.I(f"ds_write_b32 v11, v{EC+16+s_} offset:{320*(s_+1)}", tag="q")
    QV = BUF + 96
    S.I(f"v_add_u32 v7, {Q_L}, v6")
    for j in range(5):
        S.I(f"ds_read_b32 v{QV+j}, v7 offset:{64*j}", tag="qv")
    S.I("v_lshlrev_b32 v252, 4, v0")
    G0, G1 = BUF, 206
    S.I("s_mul_i32 s70, s32, 640")
    S.I("s_mul_i32 s71, s35, 10240")
    S.I(f"s_add_u32 s71, s71, {GR_L}")
    S.I("v_add_u32 v4, s71, v4")
    S.I("v_add_u32 v5, s71, v5")
    S.wait_lg()
    S.I("v_add_u32 v7, s71, v252")
    S.vm = []
    def gran_loads():
        S.I("s_mov_b32 s36, s70")
        for n in range(10):
            S.I(f"buffer_load_dwordx4 {vr(BUF+56+4*n,4)}, v252, s[{SAG}:{SAG+3}], s36 offen offset:{(n%4)*1024} sc1", tag=f"gr{n}")
            if n % 4 == 3: S.I("s_add_u32 s36, s36, 4096")
        for n in range(10):
            S.wait_vm(f"gr{n}")
            S.I(f"ds_write_b128 v7, {vr(BUF+56+4*n,4)} offset:{1024*n}")
        S.vm = []
        for d in range(15, 0, -1):
            o = (15 - d) * 640
            S.I(f"ds_read_b64 {vr(G0+2*(d-1),2)}, v4 offset:{o}")
            S.I(f"ds_read_b64 {vr(G1+2*(d-1),2)}, v5 offset:{o+512}")
        S.I("s_waitcnt lgkmcnt(0)")
        S.lg = []
    S.I("s_cmp_eq_u32 s32, 0")
    S.I(f"s_cbranch_scc1 L_{name}_r0")
    S.I("s_mov_b32 s39, 0")
    S.I("s_lshl_b32 s38, s32, 7")
    S.I(f"s_add_u32 s38, s38, {GO_O}")
    S.I("v_mov_b32 v14, s38")
    S.label(f"L_{name}_cl")
    S.I("v_readfirstlane_b32 s38, v15")
    S.I("s_add_u32 s39, s39, 1")
    S.I(f"s_cmp_eq_u32 s38, {TAG}")
    S.I(f"s_cbranch_scc1 L_{name}_clok")
    S.I(f"buffer_load_dword v15, v14, s[{SAG}:{SAG+3}], 0 offen sc1")
    S.I("s_waitcnt vmcnt(0)")
    S.I("s_cmp_lt_u32 s39, 0x100000" if "nosync" not in dbg else "s_cmp_lt_u32 s39, 0")
    S.I(f"s_cbranch_scc1 L_{name}_cl")
    S.label(f"L_{name}_clok")
    S.I("s_mov_b32 s39, 0")
    S.label(f"L_{name}_gp")
    gran_loads()
    S.I(f"v_and_b32 v12, v{G0+1}, v{G1+1}")
    S.I(f"v_or_b32 v13, v{G0+1}, v{G1+1}")
    for d in range(2, 16):
        S.I(f"v_and_b32 v14, v{G0+2*d-1}, v{G1+2*d-1}")
        S.I(f"v_or3_b32 v13, v13, v{G0+2*d-1}, v{G1+2*d-1}")
        S.I("v_and_b32 v12, v12, v14")
    S.I(f"v_mov_b32 v14, {TAG}")
    S.I("v_cmp_eq_u32 vcc, v12, v14")
    S.I("v_cmp_eq_u32 s[68:69], v13, v14")
    S.I("s_and_b64 s[68:69], s[68:69], vcc")
    S.I("s_add_u32 s39, s39, 1")
    S.I("s_cmp_eq_u64 s[68:69], -1")
    S.I(f"s_cbranch_scc1 L_{name}_gpdone")
    S.I("s_cmp_lt_u32 s39, 0x40000" if "nosync" not in dbg else "s_cmp_lt_u32 s39, 0")
    S.I(f"s_cbranch_scc1 L_{name}_gp")
    S.I(f"s_branch L_{name}_gpdone")
    S.label(f"L_{name}_r0")
    for d in range(1, 16):
        S.I(f"v_mov_b32 v{G0+2*(d-1)}, 0")
        S.I(f"v_mov_b32 v{G1+2*(d-1)}, 0")
    S.label(f"L_{name}_gpdone")
    S.vm = []
    S.I("s_nop 1")
    stamp()
    for d in range(14, 0, -1):
        for (g_, k) in ((G0, 0), (G1, 1)):
            S.I(f"v_fmac_f32 v{g_+2*(d-1)}, v{A128+k}, v{g_+2*d}")
        for (g_, k) in ((G0, 0), (G1, 1)):
            S.I(f"v_fmac_f32_dpp v{g_+2*(d-1)}, v{g_+2*d}, v{SB128+k} {DPP}")
    S.I("s_lshl_b32 s36, s35, 9")
    S.I(f"s_add_u32 s36, s36, {HS_L}")
    S.I("v_add_u32 v9, s36, v8")
    S.I("v_add_u32 v11, s36, v10")
    S.I(f"ds_write_b32 v9, v{G0}", tag="h")
    S.I(f"ds_write_b32 v11, v{G1} offset:256", tag="h")
    HV = BUF + 32
    for j in range(5):
        S.I(f"ds_read_b32 v{HV+j}, v11 offset:{64*j}", tag="hv")
    S.I(f"v_mul_u32_u24 v9, 272, v{vC_}")
    S.I(f"v_lshlrev_b32 v12, 4, v{vG_}")
    S.I("s_lshl_b32 s36, s35, 6")
    S.I("v_add3_u32 v9, v9, v12, s36")
    S.wait_lg()
    for j in range(5):
        S.I(f"v_fmac_f32 v{QV+j}, v{CAS+j}, v{HV+j}")
    for j in range(5):
        S.I(f"v_fmac_f32_dpp v{QV+j}, v{HV+j}, v{CSBS+j} {DPP}")
    for tl in range(8):
        prev = [QV + j if tl == 0 else ACC + 8 * j + tl - 1 for j in range(5)]
        for j in range(5):
            S.I(f"v_fmac_f32 v{ACC+8*j+tl}, v{CA+j}, v{prev[j]}")
        for j in range(5):
            S.I(f"v_fmac_f32_dpp v{ACC+8*j+tl}, v{prev[j]}, v{CSB+j} {DPP}")
    OV = BUF + 40
    PK = BUF + 80
    for j in range(5):
        p_, sel = pr(CCO + j)
        for t2 in range(4):
            S.I(f"v_pk_mul_f32 {vr(OV+8*j+2*t2,2)}, {vr(ACC+8*j+2*t2,2)}, {p_} op_sel:[0,{sel}] op_sel_hi:[1,{sel}]")
        for tl in range(8):
            S.I(f"v_fmac_f32_dpp v{OV+8*j+tl}, v{ACC+8*j+tl}, v{CCX+j} {DPP}")
        for k in range(4):
            S.I(f"v_cvt_pk_bf16_f32 v{PK+4*j+k}, v{OV+8*j+2*k}, v{OV+8*j+2*k+1}")
        S.I(f"ds_write_b128 v9, {vr(PK+4*j,4)} offset:{16*272*j}", tag="tw")
    S.I(f"v_lshrrev_b32 v11, 2, v{vC_}")
    S.I("v_mul_u32_u24 v11, 272, v11")
    S.I(f"v_and_b32 v4, 3, v{vC_}")
    S.I("v_lshlrev_b32 v4, 4, v4")
    S.I("v_add3_u32 v11, v11, v4, s36")
    S.I(f"v_mul_u32_u24 v4, {8*272}, v{vG_}")
    S.I("v_add_u32 v4, v11, v4")
    S.I(f"v_and_b32 v5, 1, v{vG_}")
    S.I(f"v_mul_u32_u24 v5, {8*272}, v5")
    S.I(f"v_lshrrev_b32 v7, 1, v{vG_}")
    S.I("v_lshlrev_b32 v7, 3, v7")
    S.I("v_add3_u32 v5, v11, v5, v7")
    SHF = 40
    S.I("s_lshl_b32 s36, s32, 2")
    S.I("s_add_u32 s36, s36, s35")
    S.I(f"s_mul_i32 s36, s36, {2*HF_RT}")
    S.I("s_mul_i32 s37, s33, 2560")
    S.I("s_add_u32 s36, s36, s37")
    mk_srd(S, SHF, 30, 31, HF_RT + 2560, 36, HF_OFF)
    S.I("v_lshlrev_b32 v7, 4, v0")
    S.I(f"v_and_b32 v10, 1, v{vG_}")
    S.I("v_lshlrev_b32 v10, 8, v10")
    S.I(f"v_lshlrev_b32 v8, 4, v{vC_}")
    S.I("v_add_u32 v10, v10, v8")
    S.I(f"v_lshrrev_b32 v8, 1, v{vG_}")
    S.I(f"v_mul_u32_u24 v8, {HF_RT}, v8")
    S.I("v_add_u32 v10, v10, v8")
    S.I(f"s_mov_b32 s37, {HF_RT}")
    S.wait_lg()
    RD = BUF
    for n in range(5):
        for e in range(2):
            if n < 4:
                off = (n & 1) * 32 * 272 + e * 4 * 272 + (n >> 1) * 8
                S.I(f"ds_read_b64_tr_b16 {vr(RD+4*n+2*e,2)}, v4 offset:{off}", tag=f"t{n}")
            else:
                S.I(f"ds_read_b64_tr_b16 {vr(RD+4*n+2*e,2)}, v5 offset:{64*272+e*4*272}", tag=f"t{n}")
    for n in range(5):
        S.wait_lg(f"t{n}")
        if n < 4:
            so = "0" if n < 2 else "s37"
            S.I(f"buffer_store_dwordx4 {vr(RD+4*n,4)}, v7, s[{SHF}:{SHF+3}], {so} offen offset:{(n&1)*1024}", tag="st")
        else:
            S.I(f"buffer_store_dwordx4 {vr(RD+4*n,4)}, v10, s[{SHF}:{SHF+3}], 0 offen offset:2048", tag="st")
    final_stamps(S, st)
    S.I("s_endpgm")

    M = Stream(A)
    M.label(f"L_{name}_M")
    stamp, st = mkstamp(M)
    SBB, SW1, SB1, SH1, SDB, SAGM = 40, 48, 52, 56, 60, 64
    MACC, XB, WB, FR = 24, 72, 104, 200
    CBA, CBF, WA, MSK = FR, FR + 20, FR + 40, FR + 52
    lbl = [0]
    if "early" in dbg: stamp()
    M.I("s_cmp_lg_u32 s35, 3")
    M.I("s_cselect_b64 vcc, -1, 0")
    mk_srd(M, SW1, 20, 21, 1966080)
    M.I("s_mul_i32 s39, s33, 192")
    M.I("s_lshl_b32 s36, s35, 8")
    for e in range(4):
        M.I(f"v_add_u32 v22, {64*e}, v0")
        M.I("v_add_u32 v22, s36, v22")
        M.I("v_min_u32 v22, 767, v22")
        M.I("v_mul_u32_u24 v23, 43691, v22")
        M.I("v_lshrrev_b32 v23, 19, v23")
        M.I("v_mul_u32_u24 v9, 12, v23")
        M.I("v_sub_u32 v22, v22, v9")
        M.I("v_lshlrev_b32 v22, 4, v22")
        M.I("v_mul_u32_u24 v23, 3072, v23")
        M.I(f"v_add3_u32 v{1+e}, v22, v23, s39")
    M.I("s_lshl_b32 s68, s35, 12")
    M.I(f"s_add_u32 s68, s68, {W1_O}")
    M.I("s_lshl_b32 s36, s35, 1")
    M.I("s_add_u32 s36, s36, 4")
    M.I("s_min_u32 s36, s36, 8")
    bb_srd(M, SBB, 69)
    M.I("s_lshl_b32 s36, s35, 1")
    M.I("s_add_u32 s36, s36, 5")
    M.I("s_min_u32 s36, s36, 9")
    bb_srd(M, SBB + 4, 70)
    M.I("v_lshrrev_b32 v22, 3, v0")
    M.I("v_and_b32 v23, 7, v0")
    M.I("v_xor_b32 v13, v22, v23")
    M.I("v_mul_u32_u24 v5, 1280, v22")
    M.I("v_lshl_add_u32 v13, v13, 4, v5")
    def guard(g):
        lbl[0] += 1
        return [(f"s_cbranch_vccz L_{name}_g{lbl[0]}", None)] + g + [(f"L_{name}_g{lbl[0]}:", None)]
    def m_dma(p):
        q = p % 4
        L = []
        g = [("s_lshl_b32 s38, s26, 7", None)]
        for e in range(2):
            g += [(f"s_add_u32 m0, s{69+e}, {q*SLOT}", None), (f"buffer_load_dwordx4 v13, s[{SBB+4*e}:{SBB+4*e+3}], s38 offen lds", f"c{p}")]
        L.append(guard(g))
        for e2 in range(2):
            g = [("s_mul_i32 s71, s26, 196608", None)] if e2 == 0 else []
            for e in (2 * e2, 2 * e2 + 1):
                g += [(f"s_add_u32 m0, s68, {q*SLOT + 1024*e}", None), (f"buffer_load_dwordx4 v{1+e}, s[{SW1}:{SW1+3}], s71 offen lds", f"c{p}")]
            if e2 == 1: g += adv()
            L.append(guard(g))
        return L
    def m_wait(tag):
        lbl[0] += 1
        M.I(f"s_cbranch_vccz L_{name}_g{lbl[0]}")
        M.wait_vm(tag)
        M.label(f"L_{name}_g{lbl[0]}")
    M.vm = []
    if "early" in dbg: stamp()
    emit(M, m_dma(0))
    if "early" in dbg: stamp()
    mk_srd(M, SDB, 28, 29, 256)
    M.I(f"s_mul_i32 s36, s33, {AGG_G}")
    mk_srd(M, SAGM, 30, 31, AGG_G, 36, AGG_OFF)
    for k in range(2): M.I(f"v_mov_b32 v{14+k}, 0")
    for k in range(4): M.I(f"v_mov_b32 v{18+k}, 0x3f803f80")
    savevm = list(M.vm)
    M.I(f"s_cbranch_vccnz L_{name}_noclr")
    M.I("v_min_u32 v8, 19, v0")
    M.I("v_lshlrev_b32 v8, 2, v8")
    M.I("s_mul_i32 s36, s33, 80")
    M.I("v_add_u32 v8, s36, v8")
    M.I("global_load_dword v1, v8, s[6:7]")
    M.I("global_load_dword v2, v8, s[8:9]")
    M.I("global_load_dword v3, v8, s[18:19]")
    M.I("v_min_u32 v8, 47, v0")
    M.I("v_lshlrev_b32 v8, 2, v8")
    M.I("s_mul_i32 s36, s33, 192")
    M.I("v_add_u32 v8, s36, v8")
    M.I("global_load_dword v4, v8, s[22:23]")
    M.I("v_lshlrev_b32 v8, 3, v0")
    M.I("v_and_b32 v10, 15, v0")
    M.I("v_lshlrev_b32 v10, 3, v10")
    M.I("s_add_u32 s37, s32, 15")
    M.I("s_mul_i32 s37, s37, 640")
    M.I(f"buffer_store_dwordx2 v[14:15], v8, s[{SAGM}:{SAGM+3}], s37 offen sc1")
    M.I(f"buffer_store_dwordx2 v[14:15], v10, s[{SAGM}:{SAGM+3}], s37 offen offset:512 sc1")
    M.I("s_lshl_b32 s37, s32, 7")
    M.I(f"s_add_u32 s37, s37, {GO_O}")
    M.I(f"buffer_store_dwordx2 v[14:15], v14, s[{SAGM}:{SAGM+3}], s37 offen sc1")
    M.I("s_cmp_lg_u32 s32, 0")
    M.I(f"s_cbranch_scc1 L_{name}_noclr")
    M.I("v_mov_b32 v10, 0")
    M.I(f"v_mov_b32 v11, {TAG}")
    M.I("s_mov_b32 s37, 0")
    for k in range(19):
        if k == 18:
            M.I("v_min_u32 v8, 376, v8")
        M.I(f"buffer_store_dwordx2 v[10:11], v8, s[{SAGM}:{SAGM+3}], s37 offen offset:{(k%8)*512} sc1")
        if k % 8 == 7: M.I("s_add_u32 s37, s37, 4096")
    M.label(f"L_{name}_noclr")
    M.vm = savevm
    stamp()
    M.I("v_and_b32 v22, 15, v0")
    M.I("v_bfe_u32 v23, v0, 4, 1")
    T1 = XB
    M.I(f"v_lshrrev_b32 v{T1}, 2, v22")
    M.I(f"v_and_b32 v{T1+1}, 3, v22")
    M.I(f"v_lshlrev_b32 v{T1+2}, 3, v{T1}")
    M.I(f"v_lshl_add_u32 v{T1+2}, v23, 2, v{T1+2}")
    M.I(f"v_add_u32 v{T1+2}, v{T1+2}, v{T1+1}")
    M.I("s_lshl_b32 s36, s35, 5")
    M.I(f"v_add_u32 v{T1+5}, s36, v{T1+2}")
    M.I(f"v_lshlrev_b32 v{T1+2}, 7, v{T1+5}")
    M.I(f"v_lshrrev_b32 v{T1+3}, 1, v{T1}")
    M.I(f"v_lshlrev_b32 v{T1+3}, 2, v{T1+3}")
    M.I(f"v_and_b32 v{T1+4}, 2, v{T1+1}")
    M.I(f"v_or3_b32 v{T1+3}, v{T1+3}, v{T1+4}, v23")
    M.I(f"v_lshrrev_b32 v{T1+4}, 5, v0")
    M.I(f"v_xor_b32 v{T1+3}, v{T1+3}, v{T1+4}")
    M.I(f"v_lshlrev_b32 v{T1+6}, 3, v{T1+4}")
    M.I(f"v_bfe_u32 v{T1+7}, v0, 2, 2")
    M.I(f"v_add_u32 v{T1+6}, v{T1+6}, v{T1+7}")
    M.I(f"v_mul_u32_u24 v{T1+6}, 192, v{T1+6}")
    M.I(f"v_lshl_add_u32 v{T1+6}, v23, 5, v{T1+6}")
    M.I(f"v_and_b32 v{T1+7}, 3, v0")
    M.I(f"v_lshl_add_u32 v{T1+6}, v{T1+7}, 3, v{T1+6}")
    M.I(f"v_add_u32 v{T1+6}, {W1_O}, v{T1+6}")
    M.I(f"v_xor_b32 v{T1+7}, v23, v0")
    M.I(f"v_and_b32 v{T1+7}, 1, v{T1+7}")
    M.I(f"v_add_u32 v{T1+7}, -1, v{T1+7}")
    M.I(f"v_and_b32 v{MSK}, 0x3f803f80, v{T1+7}")
    for k in range(1, 4): M.I(f"v_mov_b32 v{MSK+k}, v{MSK}")
    for u in range(4):
        M.I(f"v_xor_b32 v{T1+4}, {2*u}, v{T1+3}")
        M.I(f"v_lshl_add_u32 v{5+u}, v{T1+4}, 4, v{T1+2}")
    for j2 in range(3):
        M.I(f"s_add_u32 s36, s35, {j2}")
        M.I("s_sub_u32 s39, s36, 3")
        M.I("s_cmp_ge_u32 s36, 3")
        M.I(f"s_cselect_b32 s{4+j2}, s39, s36")
        M.I(f"s_lshl_b32 s39, s{4+j2}, 6")
        M.I(f"v_add_u32 v{9+j2}, s39, v{T1+6}")
    M.I(f"v_lshlrev_b32 v23, 3, v{T1+5}")
    mk_srd(M, SB1, 22, 23, 3072)
    M.I(f"v_lshrrev_b32 v{T1}, 4, v0")
    M.I("s_and_b32 s36, s35, 1")
    M.I("s_lshl_b32 s36, s36, 2")
    M.I(f"v_add_u32 v{T1}, s36, v{T1}")
    M.I(f"v_and_b32 v{T1+1}, 7, v0")
    M.I(f"v_xor_b32 v{T1}, v{T1}, v{T1+1}")
    M.I(f"v_lshlrev_b32 v{T1+1}, 7, v22")
    M.I(f"v_lshl_add_u32 v16, v{T1}, 4, v{T1+1}")
    M.I(f"v_add_u32 v16, {BB_O}, v16")
    M.I(f"v_lshlrev_b32 v{T1}, 3, v0")
    M.I(f"v_min_u32 v{T1}, 408, v{T1}")
    M.I(f"v_add_u32 v{T1}, {CSW_L}, v{T1}")
    M.I(f"ds_write_b64 v{T1}, v[14:15]")
    for k in range(20): M.I(f"v_mov_b32 v{CBA+k}, 0")
    M.I("s_lshr_b32 s37, s35, 1")
    emit(M, m_dma(1))
    def m_reads(p):
        L = []
        for u in range(4):
            L.append([(f"ds_read_b128 {vr(XB+16*(p&1)+4*u,4)}, v{5+u}", f"r{p}")])
            for jt in range(3):
                L.append([(f"ds_read_b64_tr_b16 {vr(WB+48*(p&1)+12*u+4*jt+2*e,2)}, v{9+jt} offset:{u*3072+e*768}", f"r{p}") for e in range(2)])
        delta = SLOT if p % 4 != 3 else (-3 * SLOT) & 0xffffffff
        L.append([(f"v_add_u32 v{k}, {delta}, v{k}", None) for k in range(5, 12)])
        return L
    def m_mfma(p):
        L = []
        for u in range(4):
            c = "0" if (p == 0 and u < 2) else vr(WA + 4 * (u & 1), 4)
            L.append(f"v_mfma_f32_16x16x32_bf16 {vr(WA+4*(u&1),4)}, {vr(WB+48*(p&1)+12*u,4)}, {vr(MSK,4)}, {c}")
        for u in range(4):
            for jt in range(3):
                c = "0" if (p == 0 and u == 0) else vr(MACC + 16 * jt, 16)
                L.append(f"v_mfma_f32_32x32x16_bf16 {vr(MACC+16*jt,16)}, {vr(WB+48*(p&1)+12*u+4*jt,4)}, {vr(XB+16*(p&1)+4*u,4)}, {c}")
        return L
    B1V = WB + 24
    for p in range(10):
        m_wait(f"c{p}")
        if p == 1:
            M.I(f"s_cbranch_vccnz L_{name}_w7")
            M.I("s_waitcnt vmcnt(0)")
            M.I("v_min_u32 v17, 19, v0")
            M.I("v_lshlrev_b32 v17, 2, v17")
            M.I(f"v_add_u32 v17, {PAR_L}, v17")
            M.I("ds_write_b32 v17, v1")
            M.I("ds_write_b32 v17, v2 offset:128")
            M.I("ds_write_b32 v17, v3 offset:256")
            M.lg = []
            M.label(f"L_{name}_w7")
        if p == 0: M.wait_lg()
        M.I("s_barrier")
        stamp(True)
        if p in (0, 5): stamp()
        side = m_dma(p + 3) if p + 3 <= 9 else []
        if p == 0: side = m_dma(2)
        if p == 1: side = m_dma(3) + side
        rd = m_reads(p)
        M.I(f"s_cmp_lg_u32 s37, {p & 1}")
        M.I(f"s_cbranch_scc1 L_{name}_cs{p}a")
        for j in range(5):
            M.I(f"ds_read_b128 {vr(CBF+4*j,4)}, v16 offset:{2048*j}")
            M.lg.pop()
        M.label(f"L_{name}_cs{p}a")
        delta = SLOT if p % 4 != 3 else (-3 * SLOT) & 0xffffffff
        M.I(f"v_add_u32 v16, {delta}, v16")
        def cs_mfma():
            M.I(f"s_cmp_lg_u32 s37, {p & 1}")
            M.I(f"s_cbranch_scc1 L_{name}_cs{p}b")
            for j in range(5):
                M.I(f"v_mfma_f32_16x16x32_bf16 {vr(CBA+4*j,4)}, v[18:21], {vr(CBF+4*j,4)}, {vr(CBA+4*j,4)}")
            M.label(f"L_{name}_cs{p}b")
        if "dmaonly" in dbg: emit(M, side)
        elif p == 0: emit(M, rd + side)
        elif p == 9:
            mm8 = m_mfma(8)
            for m in mm8[:6]: M.I(m)
            M.I("s_waitcnt lgkmcnt(0)")
            cs_mfma()
            for m in mm8[6:8]: M.I(m)
            M.I("s_mul_i32 s36, s35, 320")
            M.I(f"s_add_u32 s36, s36, {CSB_L}")
            M.I("v_lshlrev_b32 v17, 2, v22")
            M.I("v_add_u32 v17, s36, v17")
            M.I("s_nop 3")
            for j in range(5):
                M.I(f"ds_write_b32 v17, v{CBA+4*j} offset:{64*j}", tag="sw")
            cnt_add(M, 16, 17, CNT_L + 4)
            merge(M, mm8[8:], rd, 0.9)
            M.I(f"s_cbranch_vccnz L_{name}_nb1")
            M.I("v_min_u32 v17, 47, v0")
            M.I("v_lshlrev_b32 v17, 3, v17")
            M.I(f"v_add_u32 v17, {B1F_L}, v17")
            M.I("v_lshlrev_b32 v2, 16, v4")
            M.I("v_and_b32 v3, 0xffff0000, v4")
            M.I("ds_write_b64 v17, v[2:3]")
            M.label(f"L_{name}_nb1")
        else: merge(M, m_mfma(p - 1), mix(rd, side), 0.9)
        if p == 1:
            M.I(f"s_cbranch_vccnz L_{name}_na")
            M.I("s_waitcnt vmcnt(0)")
            M.I("s_lshl_b32 s36, s33, 4")
            M.I("v_mov_b32 v14, s36")
            M.I("v_mov_b32 v15, 1")
            M.I("s_mov_b64 exec, 1")
            M.I(f"buffer_atomic_add v15, v14, s[{SDB}:{SDB+3}], 0 offen sc0")
            M.vm.pop()
            M.I("s_mov_b64 exec, -1")
            M.label(f"L_{name}_na")
        if p == 6:
            M.I(f"s_cbranch_vccnz L_{name}_nb")
            M.I("s_waitcnt vmcnt(0)")
            M.I("v_readfirstlane_b32 s36, v15")
            M.I("s_cmp_lg_u32 s36, 15")
            M.I(f"s_cbranch_scc1 L_{name}_nb")
            M.I("v_lshlrev_b32 v14, 7, v22")
            M.I(f"v_add_u32 v14, {GO_O}, v14")
            M.I(f"v_mov_b32 v15, {TAG}")
            M.I("s_mov_b64 exec, 0xffff")
            M.I(f"buffer_store_dword v15, v14, s[{SAGM}:{SAGM+3}], 0 offen sc1")
            M.vm.pop()
            M.I("s_mov_b64 exec, -1")
            M.label(f"L_{name}_nb")
        M.I("s_waitcnt lgkmcnt(0)")
        M.lg = []
        if p < 9: cs_mfma()
    mm = m_mfma(9)
    for m in mm[:4]: M.I(m)
    for m in mm[4:8]: M.I(m)
    for r in range(4): M.I(f"v_add_f32 v{WA+r}, v{WA+r}, v{WA+4+r}")
    M.I("v_and_b32 v16, 1, v0")
    M.I("v_lshlrev_b32 v16, 6, v16")
    M.I("v_lshrrev_b32 v17, 4, v0")
    M.I("v_lshl_add_u32 v16, v17, 4, v16")
    M.I("s_lshl_b32 s36, s4, 7")
    M.I(f"s_add_u32 s36, s36, {CSW_L}")
    M.I("v_add_u32 v16, s36, v16")
    M.I(f"ds_write_b128 v16, {vr(WA,4)}")
    cnt_add(M, 16, 17, CNT_L + 8)
    for m in mm[8:]: M.I(m)
    M.I("v_lshrrev_b32 v1, 4, v0")
    side_issue(M, 1, 22, 13, 40, 44, 48, 2, 3, 4, 5, 6)
    stamp()
    cnt_wait(M, f"L_{name}_mw1", 16, 17, CNT_L + 8, 4)
    M.I("s_lshl_b32 s38, s35, 2")
    M.I(f"s_add_u32 s38, s38, {CNT_L+16}")
    cnt_wait(M, f"L_{name}_mw2", 16, 17, "s38", 1)
    stamp()
    CSV = XB
    B1V = WB + 16
    M.I("v_lshrrev_b32 v10, 5, v0")
    M.I("v_lshlrev_b32 v11, 4, v10")
    M.I(f"v_add_u32 v12, {B1F_L}, v11")
    M.I(f"v_add_u32 v11, {CSW_L}, v11")
    M.I("v_lshrrev_b32 v23, 1, v23")
    M.I(f"v_add_u32 v23, {STATS_L}, v23")
    M.I("ds_read_b32 v14, v23")
    M.I("ds_read_b32 v15, v23 offset:512")
    for jt in range(3):
        M.I(f"s_lshl_b32 s36, s{4+jt}, 7")
        M.I("v_add_u32 v16, s36, v11")
        M.I("v_add_u32 v17, s36, v12")
        M.I(f"s_lshl_b32 s{4+jt}, s{4+jt}, 10")
        for q in range(4):
            M.I(f"ds_read_b128 {vr(CSV+(jt*4+q)*4,4)}, v16 offset:{32*q}", tag=f"cr{jt}")
            M.I(f"ds_read_b128 {vr(B1V+(jt*4+q)*4,4)}, v17 offset:{32*q}", tag=f"cr{jt}")
    M.I("s_lshl_b32 s36, s32, 2")
    M.I("s_add_u32 s36, s36, s35")
    M.I(f"s_mul_i32 s36, s36, {2*H1F_RT}")
    M.I("s_mul_i32 s39, s33, 3072")
    M.I("s_add_u32 s36, s36, s39")
    mk_srd(M, SH1, 30, 31, H1F_RT + 3072, 36, H1F_OFF)
    M.I("v_bfe_u32 v9, v0, 4, 1")
    M.I(f"v_mul_u32_u24 v9, {H1F_RT}, v9")
    M.I("v_lshl_add_u32 v9, v10, 8, v9")
    M.I("v_lshl_add_u32 v9, v22, 4, v9")
    C1 = -2.0 * 1.4426950408889634 * 0.7978845608028654
    C2 = C1 * 0.044715
    M.I(f"v_mov_b32 v16, {f2u(C2)}")
    M.I(f"v_mov_b32 v17, {f2u(C1)}")
    TM = FR
    for jt in range(3):
        M.wait_lg(f"cr{jt}")
        P = [MACC + 16 * jt + 2 * k for k in range(8)]
        cs = [CSV + jt * 16 + 2 * k for k in range(8)]
        b1 = [B1V + jt * 16 + 2 * k for k in range(8)]
        T_ = [TM + 2 * k for k in range(8)]
        for k in range(8):
            M.I(f"v_pk_fma_f32 {vr(b1[k],2)}, v[14:15], {vr(cs[k],2)}, {vr(b1[k],2)} op_sel:[0,0,0] op_sel_hi:[0,1,1] neg_lo:[1,0,0] neg_hi:[1,0,0]")
        for k in range(8):
            M.I(f"v_pk_fma_f32 {vr(P[k],2)}, {vr(P[k],2)}, v[14:15], {vr(b1[k],2)} op_sel:[0,1,0] op_sel_hi:[1,1,1]")
        for k in range(8):
            M.I(f"v_pk_mul_f32 {vr(T_[k],2)}, {vr(P[k],2)}, {vr(P[k],2)}")
        for k in range(8):
            M.I(f"v_pk_fma_f32 {vr(T_[k],2)}, {vr(T_[k],2)}, v[16:17], v[16:17] op_sel:[0,0,1] op_sel_hi:[1,0,1]")
        for k in range(8):
            M.I(f"v_pk_mul_f32 {vr(T_[k],2)}, {vr(T_[k],2)}, {vr(P[k],2)}")
        for k in range(16):
            M.I(f"v_exp_f32 v{TM+k}, v{TM+k}")
        for k in range(8):
            M.I(f"v_pk_add_f32 {vr(T_[k],2)}, {vr(T_[k],2)}, 1.0 op_sel_hi:[1,0]")
        for k in range(16):
            M.I(f"v_rcp_f32 v{TM+k}, v{TM+k}")
        for k in range(8):
            M.I(f"v_pk_mul_f32 {vr(P[k],2)}, {vr(P[k],2)}, {vr(T_[k],2)}")
        PKM = TM + 16 + 8 * (jt % 2)
        for k in range(8):
            M.I(f"v_cvt_pk_bf16_f32 v{PKM+k}, v{P[k]}, v{P[k]+1}")
        for AB in range(2):
            M.I(f"buffer_store_dwordx4 {vr(PKM+4*AB,4)}, v9, s[{SH1}:{SH1+3}], s{4+jt} offen offset:{512*AB}", tag="st")
    M.I("s_waitcnt vmcnt(6)")
    RJ = XB
    M.I("s_cmp_ge_u32 s26, 880")
    M.I(f"s_cbranch_scc1 L_{name}_sj1")
    M.I("s_cmp_ge_u32 s26, 480")
    M.I(f"s_cbranch_scc1 L_{name}_sj1c")
    for j in range(4):
        for e in range(2):
            M.I(f"ds_read_b64_tr_b16 {vr(RJ+4*j+2*e,2)}, v6 offset:{32*j+1024*e}")
    M.I(f"s_branch L_{name}_sj1s")
    M.label(f"L_{name}_sj1c")
    for j in range(4):
        M.I(f"v_xor_b32 v2, {32*j}, v6")
        M.I(f"ds_read_b128 {vr(RJ+4*j,4)}, v2")
    M.label(f"L_{name}_sj1s")
    M.I("s_waitcnt lgkmcnt(0)")
    for j in range(4):
        M.I(f"buffer_store_dwordx4 {vr(RJ+4*j,4)}, v5, s[48:51], s22 offen")
        if j < 3: M.I("s_add_u32 s22, s22, s23")
    M.label(f"L_{name}_sj1")
    final_stamps(M, st)
    M.label(f"L_{name}_end")
    M.I("s_endpgm")
    desc = f""".section .rodata,"a"
.p2align 6
.amdhsa_kernel {name}
  .amdhsa_next_free_vgpr 256
  .amdhsa_next_free_sgpr 102
  .amdhsa_accum_offset 256
  .amdhsa_group_segment_fixed_size 0
  .amdhsa_kernarg_size 136
  .amdhsa_user_sgpr_count 2
  .amdhsa_user_sgpr_kernarg_segment_ptr 1
  .amdhsa_system_sgpr_workgroup_id_x 1
.end_amdhsa_kernel
.text"""
    return A.text() + "\n" + S.text() + "\n" + M.text() + "\n" + desc, (A.nins, S.nins, M.nins)
```

```python
from asmfw import *
from layout import *

NEG_LOG2E = 0xbfb8aa3b

def srd(A, d, lo, hi, nbytes):
    A.I(f"s_mov_b32 s{d}, {lo}")
    A.I(f"s_and_b32 s{d+1}, {hi}, 0xffff")
    A.I(f"s_mov_b32 s{d+2}, {nbytes}")
    A.I(f"s_mov_b32 s{d+3}, 0x00020000")

def gen_k2(name="k2_kernel", D=3, stamps=False):
    A = Stream()
    nst = [0]
    def stamp():
        if not stamps: return
        A.I(f"s_memtime s[{64+2*nst[0]}:{65+2*nst[0]}]"); nst[0] += 1
    A.raw(f".globl {name}\n.p2align 8\n.type {name},@function\n{name}:")
    A.I("s_cmp_ge_u32 s2, 256")
    A.I(f"s_cbranch_scc1 L_{name}_end")
    stamp()
    if stamps: A.I("s_memrealtime s[96:97]")
    A.I("s_load_dwordx2 s[12:13], s[0:1], 128")
    A.I("s_load_dwordx2 s[4:5], s[0:1], 0")
    A.I("s_load_dwordx2 s[6:7], s[0:1], 64")
    A.I("s_load_dwordx4 s[8:11], s[0:1], 104")
    A.I("s_and_b32 s14, s2, 7")
    A.I("s_lshr_b32 s15, s2, 3")
    A.I("s_and_b32 s16, s14, 3")
    A.I("s_lshl_b32 s16, s16, 3")
    A.I("s_and_b32 s17, s15, 7")
    A.I("s_add_u32 s16, s16, s17")
    A.I("s_lshr_b32 s17, s14, 2")
    A.I("s_lshl_b32 s17, s17, 2")
    A.I("s_lshr_b32 s18, s15, 3")
    A.I("s_add_u32 s17, s17, s18")
    A.I("v_lshrrev_b32 v1, 6, v0")
    A.I("v_and_b32 v0, 63, v0")
    A.I("v_readfirstlane_b32 s19, v1")
    A.I("v_lshlrev_b32 v2, 4, v0")
    def set_voff(stride):
        for n in range(1, 5):
            A.I(f"v_add_u32 v{2+n}, {n*stride}, v2")
        for n in range(4):
            A.I(f"s_add_u32 s20, s19, {n}")
            A.I("s_and_b32 s20, s20, 3")
            A.I(f"s_mul_i32 s20, s20, {stride}")
            A.I(f"v_add_u32 v{7+n}, s20, v2")
    set_voff(H1F_RT)
    A.I("s_mul_i32 s60, s19, 12288")
    A.I("s_mul_i32 s61, s19, 10240")
    A.wait_lg()
    def ws_srd(d, off, mul_s, mulc, nbytes):
        A.I(f"s_mul_i32 s20, s{mul_s}, {mulc}")
        if off: A.I(f"s_add_u32 s20, s20, {off}")
        A.I(f"s_add_u32 s{d}, s12, s20")
        A.I(f"s_addc_u32 s{d+1}, s13, 0")
        A.I(f"s_and_b32 s{d+1}, s{d+1}, 0xffff")
        A.I(f"s_mov_b32 s{d+2}, {nbytes}")
        A.I(f"s_mov_b32 s{d+3}, 0x00020000")
    SAG, SBG, SAY, SBY, SX, SO, SST, SB2, SDS = 24, 28, 32, 36, 40, 44, 48, 52, 56
    ws_srd(SAG, H1F_OFF, 16, 4 * H1F_RT, 4 * H1F_RT)
    ws_srd(SBG, W2F_OFF, 17, 5 * H1F_RT, 5 * H1F_RT)
    NG, NY = 12, 10
    NS = NG + NY
    ACC = 16
    STG = 96
    FRE = STG + D * 36
    assert FRE + 52 <= 256
    YV = FRE + 43
    def stage(s): return STG + (s % D) * 36
    def issue(s):
        L = []
        b = stage(s)
        if s < NG: sa, sb, va, vb, ks, sk = SAG, SBG, 7, 2, s, 60
        else: sa, sb, va, vb, ks, sk = SAY, SBY, YV + 5, YV, s - NG, 61
        pre = [(f"s_add_u32 s{sk}, s{sk}, 4096", None)] if (ks > 0 and ks % 4 == 0) else []
        io = (ks % 4) * 1024
        for n in range(4):
            L.append((f"buffer_load_dwordx4 {vr(b+4*n,4)}, v{va+n}, s[{sa}:{sa+3}], s{sk} offen offset:{io}", f"st{s}"))
        for n in range(5):
            L.append((f"buffer_load_dwordx4 {vr(b+16+4*n,4)}, v{vb+n}, s[{sb}:{sb+3}], s{sk} offen offset:{io}", f"st{s}"))
        return pre + L
    for s in range(D - 1):
        for t, g in issue(s): A.I(t, tag=g)
    stamp()
    ws_srd(SAY, HF_OFF, 16, 4 * HF_RT, 4 * HF_RT)
    ws_srd(SBY, CF_OFF, 17, 5 * HF_RT, 5 * HF_RT)
    srd(A, SX, "s4", "s5", 2621440)
    srd(A, SO, "s10", "s11", 5242880)
    srd(A, SB2, "s8", "s9", 1280)
    srd(A, SDS, "s6", "s7", 1280)
    A.I(f"s_add_u32 s{SST}, s12, {STATS_OFF}")
    A.I(f"s_addc_u32 s{SST+1}, s13, 0")
    A.I(f"s_and_b32 s{SST+1}, s{SST+1}, 0xffff")
    A.I(f"s_mov_b32 s{SST+2}, 16384")
    A.I(f"s_mov_b32 s{SST+3}, 0x00020000")
    A.I(f"v_mov_b32 v{YV}, v2")
    for n in range(1, 5):
        A.I(f"v_add_u32 v{YV+n}, {n*HF_RT}, v2")
    for n in range(4):
        A.I(f"s_add_u32 s20, s19, {n}")
        A.I("s_and_b32 s20, s20, 3")
        A.I(f"s_mul_i32 s20, s20, {HF_RT}")
        A.I(f"v_add_u32 v{YV+5+n}, s20, v2")
    vT, vPo, vOo, vtmp = 11, 12, 13, 14
    A.I(f"v_and_b32 v{vtmp}, 15, v0")
    A.I(f"v_lshrrev_b32 v{vT}, 2, v{vtmp}")
    A.I(f"v_lshlrev_b32 v{vT}, 3, v{vT}")
    A.I(f"v_and_b32 v{vtmp}, 3, v{vtmp}")
    A.I(f"v_add_u32 v{vT}, v{vT}, v{vtmp}")
    A.I("s_lshl_b32 s20, s16, 6")
    A.I("s_lshr_b32 s21, s19, 1")
    A.I("s_lshl_b32 s21, s21, 5")
    A.I("s_add_u32 s20, s20, s21")
    A.I("s_and_b32 s21, s19, 1")
    A.I("s_lshl_b32 s21, s21, 2")
    A.I("s_add_u32 s20, s20, s21")
    A.I(f"v_add_u32 v{vT}, s20, v{vT}")
    A.I(f"v_lshrrev_b32 v{vtmp}, 4, v0")
    A.I(f"v_lshlrev_b32 v{vtmp}, 3, v{vtmp}")
    A.I("s_mul_i32 s20, s17, 160")
    A.I(f"v_add_u32 v{vPo}, s20, v{vtmp}")
    A.I(f"v_mul_u32_u24 v15, 1280, v{vT}")
    A.I(f"v_add_u32 v15, v15, v{vPo}")
    A.I(f"v_lshlrev_b32 v{vOo}, 1, v15")
    A.I(f"v_lshlrev_b32 v{vtmp}, 2, v{vT}")
    A.I("s_mov_b32 s22, 8192")
    aB2, aDs, aX, aSt = 0, 10, 20, 30
    ep = []
    for dt in range(5):
        ep.append((f"buffer_load_dwordx2 {vr(aB2+2*dt,2,'a')}, v{vPo}, s[{SB2}:{SB2+3}], 0 offen offset:{32*dt}", "ep"))
        ep.append((f"buffer_load_dwordx2 {vr(aDs+2*dt,2,'a')}, v{vPo}, s[{SDS}:{SDS+3}], 0 offen offset:{32*dt}", "ep"))
        ep.append((f"buffer_load_dwordx2 {vr(aX+2*dt,2,'a')}, v15, s[{SX}:{SX+3}], 0 offen offset:{32*dt}", "ep"))
    ep.append((f"buffer_load_dword a{aSt}, v{vtmp}, s[{SST}:{SST+3}], 0 offen", "ep"))
    ep.append((f"buffer_load_dword a{aSt+1}, v{vtmp}, s[{SST}:{SST+3}], s22 offen", "ep"))
    LW = FRE + 40
    for n in range(1, 4):
        A.I(f"s_add_u32 s20, s19, {n}")
        A.I("s_and_b32 s20, s20, 3")
        A.I("s_mul_i32 s20, s20, 15360")
        A.I(f"s_add_u32 s20, s20, {(n-1)*5120}")
        A.I(f"v_add_u32 v{LW+n-1}, s20, v2")
    A.I("s_mul_i32 s20, s19, 15360")
    A.I("v_add_u32 v1, s20, v2")
    YA = 32
    def accreg(s, idx):
        return vr(ACC + idx * 4, 4) if s < NG else vr(YA + idx * 4, 4, 'a')
    def mfmas(s, L, fill=(), order=None, post=None):
        b = stage(s)
        L = list(L); fill = list(fill)
        nf = (len(fill) + 19) // 20
        k = 0
        first = (s == 0 or s == NG)
        for rt in (order or range(4)):
            for dt in range(5):
                ac = accreg(s, rt * 5 + dt)
                A.I(f"v_mfma_f32_16x16x32_bf16 {ac}, {vr(b+16+4*dt,4)}, {vr(b+4*rt,4)}, {'0' if first else ac}")
                k += 1
                if L and k % 2 == 1:
                    t, g = L.pop(0); A.I(t, tag=g)
                    if t.startswith("s_") and L:
                        t, g = L.pop(0); A.I(t, tag=g)
                for _ in range(nf):
                    if fill: fill.pop(0)()
                if post: post(k)
        for t, g in L: A.I(t, tag=g)
        for f in fill: f()
    T = ACC + 20
    G = FRE
    BS = FRE + 20
    def I(t, tag=None): return lambda: A.I(t, tag=tag)
    gep = []
    for k in range(3):
        for dt in range(5):
            gep.append(I(f"ds_read_b128 {vr(ACC+20+(k*5+dt)*4,4)}, v1 offset:{k*5120+dt*1024}", f"rd{k}"))
    gep.append(I(f"s_mov_b32 s20, {NEG_LOG2E}"))
    gep.append(I("s_mov_b32 s21, 0xffff0000"))
    for k in range(10): gep.append(I(f"v_accvgpr_read_b32 v{G+k}, a{aB2+k}"))
    gep.append(lambda: A.wait_lg("rd1"))
    for e in range(20): gep.append(I(f"v_add_f32 v{ACC+e}, v{ACC+e}, v{ACC+20+e}"))
    gep.append(lambda: A.wait_lg("rd2"))
    for e in range(20): gep.append(I(f"v_add_f32 v{ACC+40+e}, v{ACC+40+e}, v{ACC+60+e}"))
    for e in range(20): gep.append(I(f"v_add_f32 v{ACC+e}, v{ACC+e}, v{ACC+40+e}"))
    for k in range(10):
        gep.append(I(f"v_lshlrev_b32 v{T+2*k}, 16, v{G+k}"))
        gep.append(I(f"v_and_b32 v{T+2*k+1}, s21, v{G+k}"))
    for e in range(20): gep.append(I(f"v_add_f32 v{ACC+e}, v{ACC+e}, v{T+e}"))
    for e in range(20): gep.append(I(f"v_mul_f32 v{T+e}, s20, v{ACC+e}"))
    for e in range(20): gep.append(I(f"v_exp_f32 v{T+e}, v{T+e}"))
    for e in range(20): gep.append(I(f"v_add_f32 v{T+e}, 1.0, v{T+e}"))
    for e in range(20): gep.append(I(f"v_rcp_f32 v{T+e}, v{T+e}"))
    for e in range(20): gep.append(I(f"v_mul_f32 v{G+e}, v{ACC+e}, v{T+e}"))
    for k in range(10): gep.append(I(f"v_accvgpr_read_b32 v{T+40+k}, a{aX+k}"))
    for k in range(10): gep.append(I(f"v_accvgpr_read_b32 v{T+50+k}, a{aDs+k}"))
    gep.append(I(f"v_accvgpr_read_b32 v{vT}, a{aSt}"))
    gep.append(I(f"v_accvgpr_read_b32 v{vPo}, a{aSt+1}"))
    for k in range(10):
        gep.append(I(f"v_lshlrev_b32 v{BS+2*k}, 16, v{T+40+k}"))
        gep.append(I(f"v_and_b32 v{BS+2*k+1}, s21, v{T+40+k}"))
        gep.append(I(f"v_lshlrev_b32 v{T+20+2*k}, 16, v{T+50+k}"))
        gep.append(I(f"v_and_b32 v{T+20+2*k+1}, s21, v{T+50+k}"))
    for e in range(20): gep.append(I(f"v_fma_f32 v{T+e}, v{BS+e}, v{vPo}, -v{vT}"))
    for e in range(20): gep.append(I(f"v_mul_f32 v{T+20+e}, v{T+20+e}, v{G+e}"))
    for e in range(20): gep.append(I(f"v_fmac_f32 v{BS+e}, v{T+e}, v{T+20+e}"))
    gdump = [I(f"ds_write_b128 v{LW+n-1}, {vr(ACC+(n*5+dt)*4,4)} offset:{dt*1024}", "gw") for n in range(1, 4) for dt in range(5)]
    F0, NF = NG + 1, 7
    per = (len(gep) + NF - 1) // NF
    for s in range(NS):
        A.wait_vm(f"st{s}")
        L = issue(s + D - 1) if s + D - 1 < NS else []
        if s == 2: L = L + ep
        if s in (0, 4, 8, 16): stamp()
        fill = []
        if s == NG: fill = gdump
        if s == F0:
            A.wait_lg()
            A.I("s_barrier")
            for n in range(3): A.I(f"v_add_u32 v{LW+n}, 61440, v{LW+n}")
        if F0 <= s < F0 + NF: fill = gep[(s - F0) * per:(s - F0 + 1) * per]
        if s == NS - 1:
            pend = []
            def post(k):
                if k >= 8 and k - 8 < 15:
                    j = k - 8
                    n, dt = 1 + j // 5, j % 5
                    A.I(f"ds_write_b128 v{LW+n-1}, {vr(YA+(n*5+dt)*4,4,'a')} offset:{dt*1024}", tag="yw")
            mfmas(s, L, fill, order=[1, 2, 3, 0], post=post)
            for j in range(13, 15):
                n, dt = 1 + j // 5, j % 5
                A.I(f"ds_write_b128 v{LW+n-1}, {vr(YA+(n*5+dt)*4,4,'a')} offset:{dt*1024}", tag="yw")
        else:
            mfmas(s, L, fill)
        if s == NG - 1 or s == NS - 1: stamp()
    A.I("v_add_u32 v1, 61440, v1")
    for e in range(20): A.I(f"v_accvgpr_read_b32 v{ACC+e}, a{YA+e}")
    A.wait_lg()
    A.I("s_barrier")
    stamp()
    RT = STG
    for dt in range(5):
        for k in range(3):
            A.I(f"ds_read_b128 {vr(RT+(dt*3+k)*4,4)}, v1 offset:{k*5120+dt*1024}", tag=f"y{dt}")
    for dt in range(5):
        A.wait_lg(f"y{dt}")
        for r in range(4):
            A.I(f"v_add_f32 v{ACC+4*dt+r}, v{ACC+4*dt+r}, v{RT+dt*12+r}")
        for r in range(4):
            A.I(f"v_add_f32 v{RT+dt*12+4+r}, v{RT+dt*12+4+r}, v{RT+dt*12+8+r}")
        for r in range(4):
            A.I(f"v_add_f32 v{ACC+4*dt+r}, v{ACC+4*dt+r}, v{RT+dt*12+4+r}")
        for r in range(4):
            A.I(f"v_fmac_f32 v{BS+4*dt+r}, v{ACC+4*dt+r}, v{G+4*dt+r}")
        A.I(f"buffer_store_dwordx4 {vr(BS+4*dt,4)}, v{vOo}, s[{SO}:{SO+3}], 0 offen offset:{64*dt}")
    stamp()
    if stamps:
        A.wait_all()
        stamp()
        A.I("s_memrealtime s[98:99]")
        A.wait_lg()
        A.I("s_lshl_b32 s20, s2, 2")
        A.I("s_add_u32 s20, s20, s19")
        A.I("s_lshl_b32 s20, s20, 7")
        A.I("s_add_u32 s20, s20, 0x2000000")
        A.I("s_add_u32 s24, s12, s20")
        A.I("s_addc_u32 s25, s13, 0")
        A.I("s_and_b32 s25, s25, 0xffff")
        A.I("s_mov_b32 s26, 128")
        A.I("v_mov_b32 v1, 0")
        for i in range(nst[0]):
            A.I(f"v_mov_b32 v2, s{64+2*i}")
            A.I(f"buffer_store_dword v2, v1, s[24:27], 0 offen offset:{4*i}")
        A.I("v_mov_b32 v2, s96")
        A.I("buffer_store_dword v2, v1, s[24:27], 0 offen offset:120")
        A.I("v_mov_b32 v2, s98")
        A.I("buffer_store_dword v2, v1, s[24:27], 0 offen offset:124")
    A.label(f"L_{name}_end")
    A.I("s_endpgm")
    desc = f""".section .rodata,"a"
.p2align 6
.amdhsa_kernel {name}
  .amdhsa_next_free_vgpr 368
  .amdhsa_next_free_sgpr 102
  .amdhsa_accum_offset 256
  .amdhsa_group_segment_fixed_size 0
  .amdhsa_kernarg_size 136
  .amdhsa_user_sgpr_count 2
  .amdhsa_user_sgpr_kernarg_segment_ptr 1
  .amdhsa_system_sgpr_workgroup_id_x 1
.end_amdhsa_kernel
.text"""
    return A.text() + "\n" + desc, A.nins
```

```python
from asmfw import *
from layout import *
import struct
def f2u(f): return struct.unpack("<I", struct.pack("<f", f))[0]
LOG2E = f2u(1.4426950408889634)
INV2PI = f2u(0.15915494309189535)
SLOT = 38912
BB_O = 16384
W1_O = 26624
MISC = 155648
SEG_L = MISC
CSW_L = MISC + 5120
CNT_L = CSW_L + 384
STATS_L = MISC + 5632
CSB_L = STATS_L + 1024
STG_L = 2 * SLOT
PAR_L = SEG_L
B1F_L = 139264
GR_L = 98304
TR_L = 0
Q_L = 24576
HS_L = 32768
TAG = 0x5a17c3e9
DPP = "row_ror:8 row_mask:0xf bank_mask:0xf"

def mk_srd(A, d, lo, hi, nbytes, off_s=None, off_imm=0):
    if off_s is None and off_imm == 0:
        A.I(f"s_mov_b32 s{d}, s{lo}")
        A.I(f"s_and_b32 s{d+1}, s{hi}, 0xffff")
    else:
        if off_s is not None:
            if off_imm: A.I(f"s_add_u32 s{off_s}, s{off_s}, {off_imm}")
            A.I(f"s_add_u32 s{d}, s{lo}, s{off_s}")
        else:
            A.I(f"s_add_u32 s{d}, s{lo}, {off_imm}")
        A.I(f"s_addc_u32 s{d+1}, s{hi}, 0")
        A.I(f"s_and_b32 s{d+1}, s{d+1}, 0xffff")
    A.I(f"s_mov_b32 s{d+2}, {nbytes}")
    A.I(f"s_mov_b32 s{d+3}, 0x00020000")

def bb_srd(X, d, ldsreg):
    X.I(f"s_lshl_b32 s{ldsreg}, s36, 10")
    X.I(f"s_add_u32 s{ldsreg}, s{ldsreg}, {BB_O}")
    X.I("s_and_b32 s39, s36, 1")
    X.I("s_cmp_eq_u32 s39, 0")
    X.I(f"s_cselect_b32 s{d}, s10, s12")
    X.I(f"s_cselect_b32 s{d+1}, s11, s13")
    X.I("s_lshr_b32 s36, s36, 1")
    X.I("s_lshl_b32 s36, s36, 3")
    X.I("s_mul_i32 s39, s33, 40")
    X.I("s_add_u32 s36, s36, s39")
    X.I("s_mul_i32 s36, s36, 1280")
    X.I(f"s_add_u32 s{d}, s{d}, s36")
    X.I(f"s_addc_u32 s{d+1}, s{d+1}, 0")
    X.I(f"s_and_b32 s{d+1}, s{d+1}, 0xffff")
    X.I(f"s_mov_b32 s{d+2}, 10240")
    X.I(f"s_mov_b32 s{d+3}, 0x00020000")

def put(X, item):
    t, g = item
    if t.endswith(":"): X.label(t[:-1])
    else: X.I(t, tag=g)
def emit(X, L):
    for grp in L:
        for it in grp: put(X, it)
def merge(X, main, side, frac=1.0):
    side = list(side)
    n = max(1, int(len(main) * frac))
    done = 0
    for k, m in enumerate(main):
        X.I(m)
        tgt = min(len(side), ((k + 1) * len(side) + n - 1) // n)
        while done < tgt:
            for it in side[done]: put(X, it)
            done += 1
    while done < len(side):
        for it in side[done]: put(X, it)
        done += 1
def mix(a, b):
    out = []; ia = ib = 0
    while ia < len(a) or ib < len(b):
        if ib >= len(b) or (ia < len(a) and ia * len(b) <= ib * len(a)):
            out.append(a[ia]); ia += 1
        else:
            out.append(b[ib]); ib += 1
    return out

def cnt_add(X, va, vt, addr):
    X.I(f"v_mov_b32 v{va}, {addr}")
    X.I(f"v_mov_b32 v{vt}, 1")
    X.I("s_mov_b64 exec, 1")
    X.I(f"ds_add_u32 v{va}, v{vt}")
    X.I("s_mov_b64 exec, -1")
def cnt_wait(X, lab, va, vt, addr, val):
    X.I(f"v_mov_b32 v{va}, {addr}")
    X.I("s_mov_b32 s39, 0")
    X.label(lab)
    X.I(f"ds_read_b32 v{vt}, v{va}")
    X.I("s_waitcnt lgkmcnt(0)")
    X.lg = []
    X.I(f"v_readfirstlane_b32 s36, v{vt}")
    X.I("s_add_u32 s39, s39, 1")
    X.I(f"s_cmp_eq_u32 s36, {val}")
    X.I(f"s_cbranch_scc1 {lab}d")
    X.I("s_sleep 1")
    X.I("s_cmp_lt_u32 s39, 0x400000")
    X.I(f"s_cbranch_scc1 {lab}")
    X.label(lab + "d")

def pr(idx):
    return f"v[{idx & ~1}:{(idx & ~1) + 1}]", idx & 1

def add_dry(X, name, tag, sreg, minlen=10, maxlen=48):
    lines = X.lines
    i0 = lines.index(";;DRYSTART")
    head, tail = lines[:i0], lines[i0 + 1:]
    def pure(l):
        t = l.strip()
        if t.startswith("v_"):
            return not (t.startswith("v_cmp") or t.startswith("v_readfirstlane") or t.startswith("v_mfma") or t.startswith("v_readlane") or "co_u32" in t)
        return t.startswith("s_nop")
    out = []; nb = 0; i = 0
    while i < len(tail):
        j = i
        while j < len(tail) and pure(tail[j]): j += 1
        if j - i >= minlen:
            k = i
            while k < j:
                e = min(j, k + maxlen)
                if j - e < minlen: e = j
                out.append(f"L_{name}_{tag}{nb}:")
                out += tail[k:e]
                out.append(f"    s_cbranch_execz L_{name}_{tag}disp")
                nb += 1; k = e
            i = j
        else:
            out += tail[i:max(j, i + 1)]; i = max(j, i + 1)
    drv = [f"    s_mov_b32 s{sreg}, s35", "    s_mov_b64 exec, 0", f"    s_branch L_{name}_{tag}go",
           f"L_{name}_{tag}disp:", f"    s_add_u32 s{sreg}, s{sreg}, 4", f"L_{name}_{tag}go:"]
    for b in range(nb):
        drv += [f"    s_cmp_eq_u32 s{sreg}, {b}", f"    s_cbranch_scc1 L_{name}_{tag}{b}"]
    drv += ["    s_mov_b64 exec, -1"]
    p = head.index(";;DRYPT")
    X.lines = head[:p] + drv + head[p + 1:] + out
    return nb

def gen_k1(name="k1_kernel", stamps=False, rot=True, dbg=""):
    A = Stream()
    A.raw(f".globl {name}\n.p2align 8\n.type {name},@function\n{name}:")
    A.I("s_cmp_ge_u32 s2, 256")
    A.I(f"s_cbranch_scc1 L_{name}_end")
    class St:
        n = 0
    def mkstamp(X):
        st = St()
        def stamp(ph=False):
            if not stamps: return
            if ("phst" in dbg) != ph: return
            assert st.n < 12
            X.I(f"s_memtime s[{74+2*st.n}:{75+2*st.n}]"); st.n += 1
        return stamp, st
    if stamps:
        A.I("s_memtime s[72:73]")
        A.I("s_memrealtime s[98:99]")
    A.I("s_load_dwordx16 s[4:19], s[0:1], 0")
    A.I("s_load_dwordx4 s[20:23], s[0:1], 80")
    A.I("s_load_dwordx2 s[24:25], s[0:1], 96")
    A.I("s_load_dwordx4 s[28:31], s[0:1], 120")
    A.I("s_and_b32 s36, s2, 7")
    A.I("s_lshr_b32 s37, s2, 3")
    if "map2" in dbg:
        A.I("s_and_b32 s32, s37, 15")
    else:
        A.I("s_and_b32 s32, s36, 1")
        A.I("s_lshl_b32 s32, s32, 3")
        A.I("s_and_b32 s38, s37, 7")
        A.I("s_add_u32 s32, s32, s38")
    if "map2" in dbg:
        A.I("s_lshl_b32 s33, s36, 1")
        A.I("s_lshr_b32 s38, s37, 4")
    else:
        A.I("s_lshr_b32 s33, s36, 1")
        A.I("s_lshl_b32 s33, s33, 2")
        A.I("s_lshr_b32 s38, s37, 3")
    A.I("s_add_u32 s33, s33, s38")
    import os
    rm = os.environ.get("ROTM", "full")
    if rot and rm == "full":
        A.I("s_and_b32 s26, s33, 3")
        A.I("s_mul_i32 s26, s26, 3")
        A.I("s_and_b32 s27, s32, 7")
        A.I("s_add_u32 s26, s26, s27")
        A.I("s_sub_u32 s27, s26, 10")
        A.I("s_cmp_ge_u32 s26, 10")
        A.I("s_cselect_b32 s26, s27, s26")
    elif rot and rm == "r4":
        A.I("s_add_u32 s26, s33, s32")
        A.I("s_and_b32 s26, s26, 3")
    elif rot and rm == "r2":
        A.I("s_add_u32 s26, s33, s32")
        A.I("s_and_b32 s26, s26, 1")
        A.I("s_lshl_b32 s26, s26, 1")
    elif rot and rm == "r4x2":
        A.I("s_add_u32 s26, s33, s32")
        A.I("s_and_b32 s26, s26, 3")
        A.I("s_lshl_b32 s26, s26, 1")
    else:
        A.I("s_mov_b32 s26, 0")
    A.I("v_lshrrev_b32 v1, 6, v0")
    A.I("v_and_b32 v0, 63, v0")
    A.I("v_readfirstlane_b32 s34, v1")
    A.I("s_and_b32 s35, s34, 3")
    A.I("s_cmp_ge_u32 s34, 4")
    A.wait_lg()
    A.I(f"s_cbranch_scc1 L_{name}_M")

    def final_stamps(X, st):
        if not stamps: return
        X.wait_all()
        X.I(f"s_memtime s[{74+2*st.n}:{75+2*st.n}]"); st.n += 1
        X.I("s_memrealtime s[100:101]")
        X.wait_lg()
        X.I("s_lshl_b32 s36, s2, 3")
        X.I("s_add_u32 s36, s36, s34")
        X.I("s_lshl_b32 s36, s36, 7")
        X.I("s_add_u32 s36, s36, 0x2000000")
        X.I("s_add_u32 s40, s30, s36")
        X.I("s_addc_u32 s41, s31, 0")
        X.I("s_and_b32 s41, s41, 0xffff")
        X.I("s_mov_b32 s42, 128")
        X.I("s_mov_b32 s43, 0x00020000")
        X.I("v_mov_b32 v1, 0")
        for i in range(st.n + 1):
            X.I(f"v_mov_b32 v2, s{72+2*i}")
            X.I(f"buffer_store_dword v2, v1, s[40:43], 0 offen offset:{4*i}")
        X.I("v_mov_b32 v2, s98")
        X.I("buffer_store_dword v2, v1, s[40:43], 0 offen offset:120")
        X.I("v_mov_b32 v2, s100")
        X.I("buffer_store_dword v2, v1, s[40:43], 0 offen offset:124")
    def side_issue(S, vG_, vC_, vBB, SJA, SJB, SWS, t1, t2, t3, vL, vA):
        mk_srd(S, SWS, 30, 31, STATS_OFF - W2F_OFF, None, W2F_OFF)
        S.I("s_lshl_b32 s26, s2, 2")
        S.I("s_add_u32 s26, s26, s35")
        if "nosj" in dbg: S.I("s_mov_b32 s26, 1000")
        S.I("s_lshl_b32 s27, s35, 12")
        S.I(f"s_add_u32 s27, s27, {STG_L}")
        S.I(f"v_lshlrev_b32 v{vL}, 4, v0")
        S.I(f"v_mov_b32 v{vA}, 0")
        S.I("s_mov_b32 s22, 0")
        S.I("s_mov_b32 s23, 0")
        savevm = list(S.vm)
        S.I("s_cmp_ge_u32 s26, 880")
        S.I(f"s_cbranch_scc1 L_{name}_sj0")
        S.I("s_cmp_ge_u32 s26, 480")
        S.I(f"s_cbranch_scc1 L_{name}_sjc")
        mk_srd(S, SJA, 24, 25, 1966080)
        S.I(f"s_mul_hi_u32 s36, s26, {(2**32 + 47)//48}")
        S.I("s_mul_i32 s39, s36, 48")
        S.I("s_sub_u32 s39, s26, s39")
        S.I(f"s_mul_i32 s22, s36, {4*H1F_RT}")
        S.I("s_lshl_b32 s23, s39, 10")
        S.I("s_add_u32 s22, s22, s23")
        S.I(f"s_mov_b32 s23, {H1F_RT}")
        S.I("s_mul_i32 s39, s39, 40960")
        S.I("s_lshl_b32 s36, s36, 7")
        S.I("s_add_u32 s36, s36, s39")
        S.I(f"v_lshrrev_b32 v{t1}, 3, v0")
        S.I(f"v_mul_u32_u24 v{t1}, 1280, v{t1}")
        S.I(f"v_and_b32 v{t2}, 7, v0")
        S.I(f"v_lshl_add_u32 v{t1}, v{t2}, 4, v{t1}")
        for e in range(4):
            S.I(f"s_add_u32 m0, s27, {1024*e}")
            S.I(f"buffer_load_dwordx4 v{t1}, s[{SJA}:{SJA+3}], s36 offen lds")
            if e < 3: S.I("s_add_u32 s36, s36, 10240")
        S.I(f"v_lshrrev_b32 v{t1}, 1, v{vG_}")
        S.I(f"v_lshlrev_b32 v{t1}, 11, v{t1}")
        S.I(f"v_and_b32 v{t2}, 1, v{vG_}")
        S.I(f"v_lshl_add_u32 v{t1}, v{t2}, 9, v{t1}")
        S.I(f"v_lshrrev_b32 v{t2}, 2, v{vC_}")
        S.I(f"v_lshl_add_u32 v{t1}, v{t2}, 7, v{t1}")
        S.I(f"v_and_b32 v{t2}, 3, v{vC_}")
        S.I(f"v_lshl_add_u32 v{t1}, v{t2}, 3, v{t1}")
        S.I(f"v_add_u32 v{vA}, s27, v{t1}")
        S.I(f"s_branch L_{name}_sj0")
        S.label(f"L_{name}_sjc")
        mk_srd(S, SJA, 14, 15, 819200)
        mk_srd(S, SJB, 16, 17, 819200)
        S.I("s_sub_u32 s39, s26, 480")
        S.I(f"s_mul_hi_u32 s36, s39, {(2**32 + 9)//10}")
        S.I("s_mul_i32 s22, s36, 10")
        S.I("s_sub_u32 s39, s39, s22")
        S.I(f"s_mul_i32 s22, s36, {HF_RT}")
        S.I("s_lshl_b32 s23, s39, 12")
        S.I("s_add_u32 s22, s22, s23")
        S.I(f"s_add_u32 s22, s22, {CF_OFF - W2F_OFF}")
        S.I("s_mov_b32 s23, 1024")
        S.I("s_mul_i32 s36, s36, 20480")
        S.I("s_lshl_b32 s39, s39, 7")
        S.I("s_add_u32 s36, s36, s39")
        S.I("s_add_u32 s39, s36, 10240")
        for (srd_, mo) in ((SJA, 0), (SJB, 2048)):
            S.I(f"s_add_u32 m0, s27, {mo}")
            S.I(f"buffer_load_dwordx4 v{vBB}, s[{srd_}:{srd_+3}], s36 offen lds")
            S.I(f"s_add_u32 m0, s27, {mo+1024}")
            S.I(f"buffer_load_dwordx4 v{vBB}, s[{srd_}:{srd_+3}], s39 offen lds")
        S.I(f"v_and_b32 v{t1}, 1, v{vG_}")
        S.I(f"v_lshlrev_b32 v{t1}, 11, v{t1}")
        S.I(f"v_lshl_add_u32 v{t1}, v{vC_}, 7, v{t1}")
        S.I(f"v_lshrrev_b32 v{t2}, 1, v{vG_}")
        S.I(f"v_and_b32 v{t3}, 7, v{vC_}")
        S.I(f"v_xor_b32 v{t2}, v{t2}, v{t3}")
        S.I(f"v_lshl_add_u32 v{t1}, v{t2}, 4, v{t1}")
        S.I(f"v_add_u32 v{vA}, s27, v{t1}")
        S.label(f"L_{name}_sj0")
        S.vm = savevm
    def adv():
        return [("s_add_u32 s26, s26, 1", None), ("s_cmp_eq_u32 s26, 10", None), ("s_cselect_b32 s26, 0, s26", None)]

    S = Stream(A)
    stamp, st = mkstamp(S)
    ACC = 16
    BUF = 56
    CA, CSB, CCO, CCX, CAS, CSBS = 168, 173, 178, 183, 188, 193
    A8, SB8, A128, SB128 = 198, 200, 202, 204
    SUM, SQ, ONE = 206, 214, 222
    MRV, RV = 226, 234
    DV = 246
    vG_, vC_, vSg = 1, 2, 3
    SX, SBBS = 40, 44
    if "early" in dbg: stamp()
    S.I(f"s_mul_i32 s36, s32, {128*1280}")
    mk_srd(S, SX, 4, 5, 128 * 1280, 36)
    S.I("v_lshrrev_b32 v4, 3, v0")
    S.I("v_and_b32 v5, 7, v0")
    S.I("v_and_b32 v6, 2, v4")
    S.I("v_lshrrev_b32 v7, 2, v4")
    S.I("v_or_b32 v6, v6, v7")
    S.I("v_xor_b32 v6, v6, v5")
    S.I("s_mul_i32 s36, s35, 40960")
    S.I("v_mul_u32_u24 v7, 1280, v4")
    S.I("v_add_u32 v8, s36, v7")
    for e in range(4):
        S.I(f"v_xor_b32 v9, {4 if e >= 2 else 0}, v6")
        S.I(f"v_lshl_add_u32 v{DV+e}, v9, 4, v8")
        if e: S.I(f"v_add_u32 v{DV+e}, {10240*e}, v{DV+e}")
    S.I("v_xor_b32 v9, v4, v5")
    S.I(f"v_lshl_add_u32 v{DV+4}, v9, 4, v7")
    S.I("s_lshl_b32 s37, s35, 12")
    S.I("s_mov_b32 s36, s35")
    bb_srd(S, SBBS, 27)
    def s_dma(p):
        q = p % 4
        L = []
        for e in range(4):
            g = [(f"s_add_u32 m0, s37, {q*SLOT + 1024*e}", None), (f"buffer_load_dwordx4 v{DV+e}, s[{SX}:{SX+3}], s38 offen lds", f"c{p}")]
            if e == 0: g = [("s_lshl_b32 s38, s26, 7", None)] + g
            L.append(g)
        L.append([(f"s_add_u32 m0, s27, {q*SLOT}", None), (f"buffer_load_dwordx4 v{DV+4}, s[{SBBS}:{SBBS+3}], s38 offen lds", f"c{p}")] + adv())
        return L
    S.I(f"v_lshrrev_b32 v{vG_}, 4, v0")
    S.I(f"v_and_b32 v{vC_}, 15, v0")
    if "early" in dbg: stamp()
    emit(S, s_dma(0))
    if "early" in dbg: stamp()
    def pslots(t):
        return (CCO + t, CCX + t, CAS + t) if t < 5 else (A128, SB128, A128 + 1)
    def par_issue():
        S.I("v_and_b32 v11, 7, v0")
        S.I("v_lshlrev_b32 v11, 1, v11")
        S.I(f"v_add_u32 v11, {PAR_L}, v11")
        S.I(f"v_lshlrev_b32 v12, 4, v{vG_}")
        S.I("v_add_u32 v12, v11, v12")
        for t in range(6):
            vo = "v11" if t < 5 else "v12"
            off = 16 * t if t < 5 else 0
            lre, lim, ldt = pslots(t)
            S.I(f"ds_read_u16 v{lre}, {vo} offset:{off}")
            S.I(f"ds_read_u16 v{lim}, {vo} offset:{off+128}")
            S.I(f"ds_read_u16 v{ldt}, {vo} offset:{off+256}")
    SJA, SJB, SWS = 56, 60, 64
    TT = BUF + 48
    S.I(f"v_lshrrev_b32 v{TT}, 2, v{vC_}")
    S.I(f"v_and_b32 v{TT+1}, 3, v{vC_}")
    S.I(f"v_lshlrev_b32 v{TT+2}, 3, v{TT}")
    S.I(f"v_add_u32 v{TT+2}, v{TT+2}, v{TT+1}")
    S.I("s_lshl_b32 s36, s35, 5")
    S.I(f"v_add_u32 v{TT+2}, s36, v{TT+2}")
    S.I(f"v_lshlrev_b32 v{TT+2}, 7, v{TT+2}")
    S.I(f"v_lshrrev_b32 v{TT+3}, 1, v{TT}")
    S.I(f"v_lshlrev_b32 v{TT+3}, 2, v{TT+3}")
    S.I(f"v_and_b32 v{TT+4}, 2, v{TT+1}")
    S.I(f"v_or_b32 v{TT+3}, v{TT+3}, v{TT+4}")
    S.I(f"v_xor_b32 v{TT+3}, v{TT+3}, v{vG_}")
    for T in range(2):
        for sp in range(2):
            d = 4 + 2 * T + sp
            S.I(f"v_xor_b32 v{TT+4}, {(4*sp) ^ T}, v{TT+3}")
            S.I(f"v_lshl_add_u32 v{d}, v{TT+4}, 4, v{TT+2}")
            if T: S.I(f"v_add_u32 v{d}, 512, v{d}")
    S.I(f"v_and_b32 v{TT}, 7, v{vC_}")
    S.I(f"v_xor_b32 v{TT}, v{TT}, v{vG_}")
    S.I(f"v_lshlrev_b32 v{TT+1}, 7, v{vC_}")
    for sp in range(2):
        S.I(f"v_xor_b32 v{TT+2}, {4*sp}, v{TT}")
        S.I(f"v_lshl_add_u32 v{8+sp}, v{TT+2}, 4, v{TT+1}")
        S.I(f"v_add_u32 v{8+sp}, {BB_O}, v{8+sp}")
    for k in range(4): S.I(f"v_mov_b32 v{ONE+k}, 0x3f803f80")
    S.I(f"v_mul_u32_u24 v10, 80, v{vG_}")
    S.I(f"v_lshrrev_b32 v{vSg}, 3, v{vC_}")
    S.I(f"v_cvt_f32_u32 v{vSg}, v{vSg}")
    S.I(f"v_fma_f32 v{vSg}, v{vSg}, 2.0, -1.0")
    S.I(f"s_mov_b32 s20, {LOG2E}")
    S.I(f"s_mov_b32 s21, {INV2PI}")
    def powr(ar, rev, n, da, dsb, t0):
        L = []
        if n is None:
            L.append(f"v_exp_f32 v{t0}, v{ar}")
            L.append(f"v_fract_f32 v{t0+1}, v{rev}")
        else:
            L.append(f"v_mul_f32 v{t0}, {n}, v{ar}")
            L.append(f"v_mul_f32 v{t0+1}, {n}, v{rev}")
            L.append(f"v_exp_f32 v{t0}, v{t0}")
            L.append(f"v_fract_f32 v{t0+1}, v{t0+1}")
        L.append(f"v_cos_f32 v{t0+2}, v{t0+1}")
        L.append(f"v_sin_f32 v{t0+3}, v{t0+1}")
        L.append(f"v_mul_f32 v{t0+3}, v{t0}, v{t0+3}")
        L.append(f"v_mul_f32 v{da}, v{t0}, v{t0+2}")
        L.append(f"v_mul_f32 v{dsb}, v{t0+3}, v{vSg}")
        return L
    def arrev(t):
        return (CAS + t, CSBS + t) if t < 5 else (A128, SB128)
    partA = ["s_lshl_b32 s36, s35, 2", f"v_add_u32 v245, s36, v{vG_}", "v_lshlrev_b32 v245, 3, v245", "v_cvt_f32_u32 v245, v245"]
    for t in range(6):
        lre, lim, ldt = pslots(t)
        ar, rev = 242, 243
        partA += [f"v_lshlrev_b32 v{lre}, 16, v{lre}", f"v_lshlrev_b32 v{lim}, 16, v{lim}", f"v_lshlrev_b32 v11, 16, v{ldt}",
                  "v_mul_f32 v11, s20, v11", "v_exp_f32 v11, v11", "v_cvt_pk_bf16_f32 v11, 0, v11",
                  f"v_mul_f32 v12, v11, v{lre}", f"v_mul_f32 v13, v11, v{lim}",
                  f"v_mul_f32 v{ar}, s20, v12", f"v_mul_f32 v{rev}, s21, v13"]
        if t < 5:
            partA += powr(ar, rev, None, CA + t, CSB + t, 11)
            partA += [f"v_add_f32 v11, -1.0, v{CA+t}", f"v_mul_f32 v12, v{lre}, v{lre}", f"v_fmac_f32 v12, v{lim}, v{lim}",
                      "v_rcp_f32 v12, v12", f"v_mul_f32 v13, v11, v{lre}", f"v_fmac_f32 v13, v14, v{lim}",
                      f"v_mul_f32 v244, v14, v{lre}", f"v_fma_f32 v244, -v11, v{lim}, v244", "v_mul_f32 v12, -2.0, v12",
                      f"v_mul_f32 v{CCX+t}, v244, v12", "v_mul_f32 v13, v13, v12", f"v_mul_f32 v{CCO+t}, v13, v{vSg}"]
            partA += powr(ar, rev, "v245", CAS + t, CSBS + t, 11)
        if t >= 4:
            k = 1 if t == 4 else 0
            partA += powr(ar, rev, f"{f2u(8.0)}", A8 + k, SB8 + k, 11)
            partA += powr(ar, rev, f"{f2u(128.0)}", 254 if t == 4 else A128, 255 if t == 4 else SB128, 11)
    partA += [f"v_mov_b32 v{A128+1}, v254", f"v_mov_b32 v{SB128+1}, v255"]
    SAG, SST = 48, 52
    S.I(f"s_mul_i32 s36, s33, {AGG_G}")
    mk_srd(S, SAG, 30, 31, AGG_G, 36, AGG_OFF)
    emit(S, s_dma(1))
    S.raw(";;DRYPT")
    stamp()
    def s_reads(p):
        b = BUF + (p & 1) * 56
        L = []
        for sp in range(2):
            for T in range(2):
                L.append([(f"ds_read_b128 {vr(b+(sp*2+T)*4,4)}, v{4+2*T+sp}", f"r{p}")])
            for j in range(5):
                L.append([(f"ds_read_b128 {vr(b+16+(sp*5+j)*4,4)}, v{8+sp} offset:{2048*j}", f"r{p}")])
        delta = SLOT if p % 4 != 3 else (-3 * SLOT) & 0xffffffff
        L.append([(f"v_add_u32 v{k}, {delta}, v{k}", None) for k in range(4, 10)])
        return L
    def s_stat(p):
        b = BUF + (p & 1) * 56
        L = []
        for sp in range(2):
            for T in range(2):
                x = vr(b + (sp * 2 + T) * 4, 4)
                z = (p == 0 and sp == 0)
                L.append(f"v_mfma_f32_16x16x32_bf16 {vr(SUM+4*T,4)}, {x}, {vr(ONE,4)}, {'0' if z else vr(SUM+4*T,4)}")
                L.append(f"v_mfma_f32_16x16x32_bf16 {vr(SQ+4*T,4)}, {x}, {x}, {'0' if z else vr(SQ+4*T,4)}")
        return L
    def s_mfma(p):
        b = BUF + (p & 1) * 56
        L = []
        for sp in range(2):
            for j in range(5):
                for T in range(2):
                    ac = ACC + 8 * j + 4 * T
                    c = "0" if (p == 0 and sp == 0) else vr(ac, 4)
                    L.append(f"v_mfma_f32_16x16x32_bf16 {vr(ac,4)}, {vr(b+(sp*2+T)*4,4)}, {vr(b+16+(sp*5+j)*4,4)}, {c}")
        return L
    for p in range(10):
        S.wait_vm(f"c{p}")
        S.I("s_barrier")
        stamp(True)
        if p in (0, 9): stamp()
        side = s_dma(p + 3) if p + 3 <= 9 else []
        if p == 0: side = s_dma(2)
        if p == 1: side = s_dma(3) + side
        rd = s_reads(p)
        if p == 2:
            par_issue()
        fill = []
        if 3 <= p <= 8:
            nper = (len(partA) + 5) // 6
            fill = [[(m, None)] for m in partA[(p - 3) * nper:(p - 2) * nper]]
        if p == 9:
            fill += [[("s_lshl_b32 s36, s32, 7", None), (f"s_add_u32 s36, s36, {GO_O}", None), ("v_mov_b32 v15, s36", None),
                      (f"buffer_load_dword v15, v15, s[{SAG}:{SAG+3}], 0 offen sc1", "clr")]]
        if "dmaonly" in dbg: emit(S, side)
        elif p == 0: emit(S, rd + side + fill)
        else: merge(S, s_stat(p - 1) + s_mfma(p - 1), mix(mix(rd, side), fill), 0.9)
        S.wait_lg()
    S.raw(";;DRYSTART")
    if "fine" in dbg: stamp()
    for m in s_stat(9): S.I(m)
    mm = s_mfma(9)
    CSV = BUF + 16
    S.I(f"v_lshlrev_b32 v12, 2, v{vC_}")
    for m in mm[:5]: S.I(m)
    for T in range(2):
        for r in range(4):
            S.I(f"ds_bpermute_b32 v{SQ+4*T+r}, v10, v{SQ+4*T+r} offset:{4*r}", tag="bp")
    for m in mm[5:9]: S.I(m)
    S.wait_lg("bp")
    if "fine" in dbg: stamp()
    fin = []
    K640 = f2u(1.0 / 640)
    for step in range(12):
        for k in range(8):
            su, sq = SUM + k, SQ + k
            fin.append([
                f"v_mul_f32 v{su}, {K640}, v{su}",
                f"v_mul_f32 v{sq}, {K640}, v{sq}",
                f"v_fma_f32 v{sq}, -v{su}, v{su}, v{sq}",
                f"v_max_f32 v{sq}, 0, v{sq}",
                f"v_cvt_pk_bf16_f32 v{su}, 0, v{su}",
                f"v_cvt_pk_bf16_f32 v{sq}, 0, v{sq}",
                f"v_add_f32 v{sq}, {f2u(1e-5)}, v{sq}",
                f"v_cvt_pk_bf16_f32 v{sq}, 0, v{sq}",
                f"v_sqrt_f32 v{sq}, v{sq}",
                f"v_cvt_pk_bf16_f32 v{sq}, 0, v{sq}",
                f"v_rcp_f32 v{RV+k}, v{sq}",
                f"v_mul_f32 v{MRV+k}, v{su}, v{RV+k}"][step])
    adds = ["s_lshl_b32 s36, s35, 7", f"v_lshlrev_b32 v13, 5, v{vG_}", "v_add_u32 v13, s36, v13", f"v_add_u32 v14, {STATS_L}, v13",
             "s_mul_i32 s36, s35, 1280", f"v_mul_u32_u24 v6, 320, v{vG_}", "v_add3_u32 v6, v6, v12, s36", f"v_add_u32 v7, {SEG_L}, v6",
             "v_lshlrev_b32 v8, 2, v0", f"v_add_u32 v9, {SEG_L}, v8", "v_mov_b32 v10, v12", f"v_add_u32 v11, {SEG_L+256}, v10",
             "s_lshl_b32 s38, s35, 2", f"s_add_u32 s38, s38, {CNT_L+16}", f"v_add_u32 v13, {CSB_L}, v12"]
    fin = fin[:40] + adds + fin[40:]
    merge(S, mm[9:], [[(m, None)] for m in fin], 1.0)
    stamp()
    cnt_wait(S, f"L_{name}_e0", 4, 5, CNT_L + 4, 4)
    if "noprio" not in dbg: S.I("s_setprio 3")
    if "f2" in dbg: stamp()
    for wv in range(4):
        for j in range(5):
            S.I(f"ds_read_b32 v{CSV+5*wv+j}, v13 offset:{320*wv+64*j}", tag="stt")
    S.I("s_mov_b32 exec_lo, 0x00010001")
    S.I("s_mov_b32 exec_hi, 0x00010001")
    for k in range(2):
        S.I(f"ds_write_b128 v14, {vr(MRV+4*k,4)} offset:{16*k}")
        S.I(f"ds_write_b128 v14, {vr(RV+4*k,4)} offset:{512+16*k}")
    cnt_add(S, 4, 5, "s38")
    for t2 in range(4):
        for j in range(5):
            a = ACC + 8 * j + 2 * t2
            S.I(f"v_mul_f32 v{a}, v{a}, v{RV+2*t2}")
            S.I(f"v_mul_f32 v{a+1}, v{a+1}, v{RV+2*t2+1}")
    S.wait_lg("stt")
    if "f2" in dbg: stamp()
    for j in range(5):
        S.I(f"v_add_f32 v{CSV+j}, v{CSV+j}, v{CSV+5+j}")
        S.I(f"v_add_f32 v{CSV+10+j}, v{CSV+10+j}, v{CSV+15+j}")
    for j in range(5):
        S.I(f"v_add_f32 v{CSV+j}, v{CSV+j}, v{CSV+10+j}")
    EA, EB = BUF + 40, BUF + 45
    cur = None
    for tl in range(8):
        for j in range(5):
            a = ACC + 8 * j + tl
            S.I(f"v_fma_f32 v{a}, -v{MRV+tl}, v{CSV+j}, v{a}")
        if tl == 0:
            cur = [ACC + 8 * j for j in range(5)]
        else:
            dst = EA if tl & 1 else EB
            for j in range(5):
                S.I(f"v_fma_f32 v{dst+j}, v{CA+j}, v{cur[j]}, v{ACC+8*j+tl}")
            for j in range(5):
                S.I(f"v_fmac_f32_dpp v{dst+j}, v{cur[j]}, v{CSB+j} {DPP}")
            cur = [dst + j for j in range(5)]
    if "f2" in dbg: stamp()
    for j in range(5):
        S.I(f"ds_write_b32 v7, v{cur[j]} offset:{64*j}")
    cnt_add(S, 4, 5, CNT_L)
    S.I("s_waitcnt vmcnt(0)")
    S.vm = []
    if "f2" in dbg: stamp()
    cnt_wait(S, f"L_{name}_x1", 4, 5, CNT_L, 4)
    stamp()
    EC = BUF + 56
    for s_ in range(16):
        S.I(f"ds_read_b32 v{EC+s_}, v9 offset:{320*s_}", tag=f"e{s_}")
        S.I(f"ds_read_b32 v{EC+16+s_}, v11 offset:{320*s_}", tag=f"e{s_}")
    S.I("v_lshlrev_b32 v4, 3, v0")
    S.I(f"v_lshlrev_b32 v5, 3, v{vC_}")
    PB = BUF + 90
    S.I(f"v_mov_b32 v{PB+1}, {TAG}")
    S.I(f"v_mov_b32 v{PB+3}, {TAG}")
    S.I("s_add_u32 s37, s32, 15")
    S.I("s_mul_i32 s37, s37, 640")
    for s_ in range(1, 16):
        S.wait_lg(f"e{s_}")
        for k in range(2):
            S.I(f"v_fmac_f32 v{EC+16*k+s_}, v{A8+k}, v{EC+16*k+s_-1}")
        for k in range(2):
            S.I(f"v_fmac_f32_dpp v{EC+16*k+s_}, v{EC+16*k+s_-1}, v{SB8+k} {DPP}")
    S.I("s_cmp_lg_u32 s35, 0")
    S.I(f"s_cbranch_scc1 L_{name}_nopub")
    S.I(f"v_mov_b32 v{PB}, v{EC+15}")
    S.I(f"v_mov_b32 v{PB+2}, v{EC+31}")
    S.I(f"buffer_store_dwordx2 {vr(PB,2)}, v4, s[{SAG}:{SAG+3}], s37 offen sc1")
    S.vm.pop()
    S.I(f"buffer_store_dwordx2 {vr(PB+2,2)}, v5, s[{SAG}:{SAG+3}], s37 offen offset:512 sc1")
    S.vm.pop()
    S.label(f"L_{name}_nopub")
    stamp()
    GL = BUF
    G0, G1 = 206, 221
    QV = BUF + 96
    S.I("v_lshlrev_b32 v252, 4, v0")
    S.I("s_mul_i32 s70, s32, 640")
    S.I("s_add_u32 s71, s70, 4096")
    S.I("s_add_u32 s69, s70, 8192")
    def gran_issue():
        for n in range(10):
            so = "s70" if n < 4 else ("s71" if n < 8 else "s69")
            S.I(f"buffer_load_dwordx4 {vr(GL+4*n,4)}, v252, s[{SAG}:{SAG+3}], {so} offen offset:{(n%4)*1024} sc1")
        S.vm = []
    def qstuff():
        S.I(f"v_add_u32 v9, {Q_L}, v8")
        S.I(f"v_add_u32 v11, {Q_L+256}, v10")
        S.I(f"v_mov_b32 v{PB}, 0")
        S.I(f"ds_write_b32 v9, v{PB}", tag="q")
        for s_ in range(15):
            S.I(f"ds_write_b32 v9, v{EC+s_} offset:{320*(s_+1)}", tag="q")
        S.I("s_mov_b64 exec, 0xffff")
        S.I(f"ds_write_b32 v11, v{PB}", tag="q")
        for s_ in range(15):
            S.I(f"ds_write_b32 v11, v{EC+16+s_} offset:{320*(s_+1)}", tag="q")
        S.I("s_mov_b64 exec, -1")
        S.I(f"v_add_u32 v7, {Q_L}, v6")
        for j in range(5):
            S.I(f"ds_read_b32 v{QV+j}, v7 offset:{64*j}", tag="qv")
    qstuff()
    S.I(f"v_add_u32 v9, {HS_L}, v8")
    S.I(f"v_add_u32 v11, {HS_L}, v10")
    S.I("s_cmp_lg_u32 s35, 0")
    S.I(f"s_cbranch_scc1 L_{name}_hw")
    S.I("s_cmp_eq_u32 s32, 0")
    S.I(f"s_cbranch_scc1 L_{name}_r0")
    S.I("s_mov_b32 s39, 0")
    S.I("s_lshl_b32 s38, s32, 7")
    S.I(f"s_add_u32 s38, s38, {GO_O}")
    S.I("v_mov_b32 v14, s38")
    S.label(f"L_{name}_cl")
    S.I("v_readfirstlane_b32 s38, v15")
    S.I("s_add_u32 s39, s39, 1")
    S.I(f"s_cmp_eq_u32 s38, {TAG}")
    S.I(f"s_cbranch_scc1 L_{name}_clok")
    S.I(f"buffer_load_dword v15, v14, s[{SAG}:{SAG+3}], 0 offen sc1")
    S.I("s_waitcnt vmcnt(0)")
    S.I("s_cmp_lt_u32 s39, 0x100000" if "nosync" not in dbg else "s_cmp_lt_u32 s39, 0")
    S.I(f"s_cbranch_scc1 L_{name}_cl")
    S.label(f"L_{name}_clok")
    gran_issue()
    S.I(f"v_mov_b32 v14, {TAG}")
    S.I(f"v_add_u32 v4, {GR_L}, v4")
    S.I(f"v_add_u32 v5, {GR_L}, v5")
    S.I(f"v_add_u32 v253, {GR_L}, v252")
    S.I("v_cmp_gt_u32 s[22:23], 24, v0")
    S.I("s_sub_u32 s38, 15, s32")
    S.I("s_mul_i32 s38, s38, 640")
    S.I("s_lshr_b32 s38, s38, 10")
    S.I("s_mov_b32 s39, 0")
    S.label(f"L_{name}_gp")
    S.I("s_waitcnt vmcnt(0)")
    S.I(f"v_cndmask_b32 v{GL+37}, v14, v{GL+37}, s[22:23]")
    S.I(f"v_cndmask_b32 v{GL+39}, v14, v{GL+39}, s[22:23]")
    S.I(f"v_and_b32 v12, v{GL+1}, v{GL+3}")
    S.I(f"v_or_b32 v13, v{GL+1}, v{GL+3}")
    for n in range(1, 10):
        S.I(f"v_and_b32 v15, v{GL+4*n+1}, v{GL+4*n+3}")
        S.I(f"v_or3_b32 v13, v13, v{GL+4*n+1}, v{GL+4*n+3}")
        S.I("v_and_b32 v12, v12, v15")
    S.I("v_cmp_eq_u32 vcc, v12, v14")
    S.I("v_cmp_eq_u32 s[24:25], v13, v14")
    S.I("s_and_b64 s[24:25], s[24:25], vcc")
    S.I("s_add_u32 s39, s39, 1")
    S.I("s_cmp_eq_u64 s[24:25], -1")
    S.I(f"s_cbranch_scc1 L_{name}_gpv")
    S.I("s_cmp_ge_u32 s39, 0x40000" if "nosync" not in dbg else "s_cmp_ge_u32 s39, 0")
    S.I(f"s_cbranch_scc1 L_{name}_gpv")
    for n in range(10):
        so = "s70" if n < 4 else ("s71" if n < 8 else "s69")
        if n < 9:
            S.I(f"s_cmp_gt_u32 s38, {n}")
            S.I(f"s_cbranch_scc1 L_{name}_gs{n}")
        S.I(f"buffer_load_dwordx4 {vr(GL+4*n,4)}, v252, s[{SAG}:{SAG+3}], {so} offen offset:{(n%4)*1024} sc1")
        if n < 9: S.label(f"L_{name}_gs{n}")
    S.I(f"s_branch L_{name}_gp")
    S.label(f"L_{name}_gpv")
    for n in range(10):
        S.I(f"ds_write_b128 v253, {vr(GL+4*n,4)} offset:{1024*n}")
    for d in range(15, 0, -1):
        o = (15 - d) * 640
        S.I(f"ds_read_b32 v{G0+d-1}, v4 offset:{o}")
        S.I(f"ds_read_b32 v{G1+d-1}, v5 offset:{o+512}")
    S.I("s_waitcnt lgkmcnt(0)")
    S.label(f"L_{name}_gpok")
    S.lg = []; S.vm = []
    for d in range(14, 0, -1):
        for (g_, k) in ((G0, 0), (G1, 1)):
            S.I(f"v_fmac_f32 v{g_+d-1}, v{A128+k}, v{g_+d}")
        for (g_, k) in ((G0, 0), (G1, 1)):
            S.I(f"v_fmac_f32_dpp v{g_+d-1}, v{g_+d}, v{SB128+k} {DPP}")
    S.I(f"s_branch L_{name}_hp")
    S.label(f"L_{name}_r0")
    S.I(f"v_mov_b32 v{G0}, 0")
    S.I(f"v_mov_b32 v{G1}, 0")
    S.label(f"L_{name}_hp")
    S.I(f"ds_write_b32 v9, v{G0}", tag="h")
    S.I(f"ds_write_b32 v11, v{G1} offset:256", tag="h")
    cnt_add(S, 12, 13, CNT_L + 12)
    S.label(f"L_{name}_hw")
    cnt_wait(S, f"L_{name}_hwl", 12, 13, CNT_L + 12, 1)
    stamp()
    HV = BUF + 32
    for j in range(5):
        S.I(f"ds_read_b32 v{HV+j}, v11 offset:{64*j}", tag="hv")
    S.I(f"v_mul_u32_u24 v9, 272, v{vC_}")
    S.I(f"v_lshlrev_b32 v12, 4, v{vG_}")
    S.I("s_lshl_b32 s36, s35, 6")
    S.I("v_add3_u32 v9, v9, v12, s36")
    S.wait_lg()
    for j in range(5):
        S.I(f"v_fmac_f32 v{QV+j}, v{CAS+j}, v{HV+j}")
    for j in range(5):
        S.I(f"v_fmac_f32_dpp v{QV+j}, v{HV+j}, v{CSBS+j} {DPP}")
    for tl in range(8):
        prev = [QV + j if tl == 0 else ACC + 8 * j + tl - 1 for j in range(5)]
        for j in range(5):
            S.I(f"v_fmac_f32 v{ACC+8*j+tl}, v{CA+j}, v{prev[j]}")
        for j in range(5):
            S.I(f"v_fmac_f32_dpp v{ACC+8*j+tl}, v{prev[j]}, v{CSB+j} {DPP}")
    OV = BUF + 40
    PK = BUF + 80
    for j in range(5):
        p_, sel = pr(CCO + j)
        for t2 in range(4):
            S.I(f"v_pk_mul_f32 {vr(OV+8*j+2*t2,2)}, {vr(ACC+8*j+2*t2,2)}, {p_} op_sel:[0,{sel}] op_sel_hi:[1,{sel}]")
        for tl in range(8):
            S.I(f"v_fmac_f32_dpp v{OV+8*j+tl}, v{ACC+8*j+tl}, v{CCX+j} {DPP}")
        for k in range(4):
            S.I(f"v_cvt_pk_bf16_f32 v{PK+4*j+k}, v{OV+8*j+2*k}, v{OV+8*j+2*k+1}")
        S.I(f"ds_write_b128 v9, {vr(PK+4*j,4)} offset:{16*272*j}", tag="tw")
    S.I(f"v_lshrrev_b32 v11, 2, v{vC_}")
    S.I("v_mul_u32_u24 v11, 272, v11")
    S.I(f"v_and_b32 v4, 3, v{vC_}")
    S.I("v_lshlrev_b32 v4, 4, v4")
    S.I("v_add3_u32 v11, v11, v4, s36")
    S.I(f"v_mul_u32_u24 v4, {8*272}, v{vG_}")
    S.I("v_add_u32 v4, v11, v4")
    S.I(f"v_and_b32 v5, 1, v{vG_}")
    S.I(f"v_mul_u32_u24 v5, {8*272}, v5")
    S.I(f"v_lshrrev_b32 v7, 1, v{vG_}")
    S.I("v_lshlrev_b32 v7, 3, v7")
    S.I("v_add3_u32 v5, v11, v5, v7")
    SHF = 40
    S.I("s_lshl_b32 s36, s32, 2")
    S.I("s_add_u32 s36, s36, s35")
    S.I(f"s_mul_i32 s36, s36, {2*HF_RT}")
    S.I("s_mul_i32 s37, s33, 2560")
    S.I("s_add_u32 s36, s36, s37")
    mk_srd(S, SHF, 30, 31, HF_RT + 2560, 36, HF_OFF)
    S.I("v_lshlrev_b32 v7, 4, v0")
    S.I(f"v_and_b32 v10, 1, v{vG_}")
    S.I("v_lshlrev_b32 v10, 8, v10")
    S.I(f"v_lshlrev_b32 v8, 4, v{vC_}")
    S.I("v_add_u32 v10, v10, v8")
    S.I(f"v_lshrrev_b32 v8, 1, v{vG_}")
    S.I(f"v_mul_u32_u24 v8, {HF_RT}, v8")
    S.I("v_add_u32 v10, v10, v8")
    S.I(f"s_mov_b32 s37, {HF_RT}")
    S.wait_lg()
    RD = BUF
    for n in range(5):
        for e in range(2):
            if n < 4:
                off = (n & 1) * 32 * 272 + e * 4 * 272 + (n >> 1) * 8
                S.I(f"ds_read_b64_tr_b16 {vr(RD+4*n+2*e,2)}, v4 offset:{off}", tag=f"t{n}")
            else:
                S.I(f"ds_read_b64_tr_b16 {vr(RD+4*n+2*e,2)}, v5 offset:{64*272+e*4*272}", tag=f"t{n}")
    for n in range(5):
        S.wait_lg(f"t{n}")
        if n < 4:
            so = "0" if n < 2 else "s37"
            S.I(f"buffer_store_dwordx4 {vr(RD+4*n,4)}, v7, s[{SHF}:{SHF+3}], {so} offen offset:{(n&1)*1024}", tag="st")
        else:
            S.I(f"buffer_store_dwordx4 {vr(RD+4*n,4)}, v10, s[{SHF}:{SHF+3}], 0 offen offset:2048", tag="st")
    final_stamps(S, st)
    S.I("s_endpgm")

    M = Stream(A)
    M.label(f"L_{name}_M")
    stamp, st = mkstamp(M)
    SBB, SW1, SB1, SH1, SDB, SAGM = 40, 48, 52, 56, 60, 64
    MACC, XB, WB, FR = 24, 72, 104, 200
    CBA, CBF, WA, MSK = FR, FR + 20, FR + 40, FR + 52
    lbl = [0]
    if "early" in dbg: stamp()
    M.I("s_cmp_lg_u32 s35, 3")
    M.I("s_cselect_b64 vcc, -1, 0")
    mk_srd(M, SW1, 20, 21, 1966080)
    M.I("s_mul_i32 s39, s33, 192")
    M.I("s_lshl_b32 s36, s35, 8")
    for e in range(4):
        M.I(f"v_add_u32 v22, {64*e}, v0")
        M.I("v_add_u32 v22, s36, v22")
        M.I("v_min_u32 v22, 767, v22")
        M.I("v_mul_u32_u24 v23, 43691, v22")
        M.I("v_lshrrev_b32 v23, 19, v23")
        M.I("v_mul_u32_u24 v9, 12, v23")
        M.I("v_sub_u32 v22, v22, v9")
        M.I("v_lshlrev_b32 v22, 4, v22")
        M.I("v_mul_u32_u24 v23, 3072, v23")
        M.I(f"v_add3_u32 v{1+e}, v22, v23, s39")
    M.I("s_lshl_b32 s68, s35, 12")
    M.I(f"s_add_u32 s68, s68, {W1_O}")
    M.I("s_lshl_b32 s36, s35, 1")
    M.I("s_add_u32 s36, s36, 4")
    M.I("s_min_u32 s36, s36, 8")
    bb_srd(M, SBB, 69)
    M.I("s_lshl_b32 s36, s35, 1")
    M.I("s_add_u32 s36, s36, 5")
    M.I("s_min_u32 s36, s36, 9")
    bb_srd(M, SBB + 4, 70)
    M.I("v_lshrrev_b32 v22, 3, v0")
    M.I("v_and_b32 v23, 7, v0")
    M.I("v_xor_b32 v13, v22, v23")
    M.I("v_mul_u32_u24 v5, 1280, v22")
    M.I("v_lshl_add_u32 v13, v13, 4, v5")
    def guard(g):
        lbl[0] += 1
        return [(f"s_cbranch_vccz L_{name}_g{lbl[0]}", None)] + g + [(f"L_{name}_g{lbl[0]}:", None)]
    def m_dma(p):
        q = p % 4
        L = []
        g = [("s_lshl_b32 s38, s26, 7", None)]
        for e in range(2):
            g += [(f"s_add_u32 m0, s{69+e}, {q*SLOT}", None), (f"buffer_load_dwordx4 v13, s[{SBB+4*e}:{SBB+4*e+3}], s38 offen lds", f"c{p}")]
        L.append(guard(g))
        for e2 in range(2):
            g = [("s_mul_i32 s71, s26, 196608", None)] if e2 == 0 else []
            for e in (2 * e2, 2 * e2 + 1):
                g += [(f"s_add_u32 m0, s68, {q*SLOT + 1024*e}", None), (f"buffer_load_dwordx4 v{1+e}, s[{SW1}:{SW1+3}], s71 offen lds", f"c{p}")]
            if e2 == 1: g += adv()
            L.append(guard(g))
        return L
    def m_wait(tag):
        lbl[0] += 1
        M.I(f"s_cbranch_vccz L_{name}_g{lbl[0]}")
        M.wait_vm(tag)
        M.label(f"L_{name}_g{lbl[0]}")
    M.vm = []
    if "early" in dbg: stamp()
    emit(M, m_dma(0))
    if "early" in dbg: stamp()
    mk_srd(M, SDB, 28, 29, 256)
    M.I(f"s_mul_i32 s36, s33, {AGG_G}")
    mk_srd(M, SAGM, 30, 31, AGG_G, 36, AGG_OFF)
    for k in range(2): M.I(f"v_mov_b32 v{14+k}, 0")
    for k in range(4): M.I(f"v_mov_b32 v{18+k}, 0x3f803f80")
    savevm = list(M.vm)
    M.I(f"s_cbranch_vccnz L_{name}_noclr")
    M.I("v_min_u32 v8, 19, v0")
    M.I("v_lshlrev_b32 v8, 2, v8")
    M.I("s_mul_i32 s36, s33, 80")
    M.I("v_add_u32 v8, s36, v8")
    M.I("global_load_dword v1, v8, s[6:7]")
    M.I("global_load_dword v2, v8, s[8:9]")
    M.I("global_load_dword v3, v8, s[18:19]")
    M.I("v_min_u32 v8, 47, v0")
    M.I("v_lshlrev_b32 v8, 2, v8")
    M.I("s_mul_i32 s36, s33, 192")
    M.I("v_add_u32 v8, s36, v8")
    M.I("global_load_dword v4, v8, s[22:23]")
    M.I("s_lshl_b32 s36, s2, 7")
    mk_srd(M, SB1, 30, 31, 16384, None, YF_OFF)
    M.I("v_mov_b32 v8, s36")
    M.I(f"buffer_store_dword v14, v8, s[{SB1}:{SB1+3}], 0 offen")
    M.I("v_lshlrev_b32 v8, 3, v0")
    M.I("v_and_b32 v10, 15, v0")
    M.I("v_lshlrev_b32 v10, 3, v10")
    M.I("s_add_u32 s37, s32, 15")
    M.I("s_mul_i32 s37, s37, 640")
    M.I(f"buffer_store_dwordx2 v[14:15], v8, s[{SAGM}:{SAGM+3}], s37 offen sc1")
    M.I(f"buffer_store_dwordx2 v[14:15], v10, s[{SAGM}:{SAGM+3}], s37 offen offset:512 sc1")
    M.I("s_lshl_b32 s37, s32, 7")
    M.I(f"s_add_u32 s37, s37, {GO_O}")
    M.I(f"buffer_store_dwordx2 v[14:15], v14, s[{SAGM}:{SAGM+3}], s37 offen sc1")
    M.I("s_cmp_lg_u32 s32, 0")
    M.I(f"s_cbranch_scc1 L_{name}_noclr")
    M.I("v_mov_b32 v10, 0")
    M.I(f"v_mov_b32 v11, {TAG}")
    M.I("s_mov_b32 s37, 0")
    for k in range(19):
        if k == 18:
            M.I("v_min_u32 v8, 376, v8")
        M.I(f"buffer_store_dwordx2 v[10:11], v8, s[{SAGM}:{SAGM+3}], s37 offen offset:{(k%8)*512} sc1")
        if k % 8 == 7: M.I("s_add_u32 s37, s37, 4096")
    M.label(f"L_{name}_noclr")
    M.vm = savevm
    stamp()
    M.I("v_and_b32 v22, 15, v0")
    M.I("v_bfe_u32 v23, v0, 4, 1")
    T1 = XB
    M.I(f"v_lshrrev_b32 v{T1}, 2, v22")
    M.I(f"v_and_b32 v{T1+1}, 3, v22")
    M.I(f"v_lshlrev_b32 v{T1+2}, 3, v{T1}")
    M.I(f"v_lshl_add_u32 v{T1+2}, v23, 2, v{T1+2}")
    M.I(f"v_add_u32 v{T1+2}, v{T1+2}, v{T1+1}")
    M.I("s_lshl_b32 s36, s35, 5")
    M.I(f"v_add_u32 v{T1+5}, s36, v{T1+2}")
    M.I(f"v_lshlrev_b32 v{T1+2}, 7, v{T1+5}")
    M.I(f"v_lshrrev_b32 v{T1+3}, 1, v{T1}")
    M.I(f"v_lshlrev_b32 v{T1+3}, 2, v{T1+3}")
    M.I(f"v_and_b32 v{T1+4}, 2, v{T1+1}")
    M.I(f"v_or3_b32 v{T1+3}, v{T1+3}, v{T1+4}, v23")
    M.I(f"v_lshrrev_b32 v{T1+4}, 5, v0")
    M.I(f"v_xor_b32 v{T1+3}, v{T1+3}, v{T1+4}")
    M.I(f"v_lshlrev_b32 v{T1+6}, 3, v{T1+4}")
    M.I(f"v_bfe_u32 v{T1+7}, v0, 2, 2")
    M.I(f"v_add_u32 v{T1+6}, v{T1+6}, v{T1+7}")
    M.I(f"v_mul_u32_u24 v{T1+6}, 192, v{T1+6}")
    M.I(f"v_lshl_add_u32 v{T1+6}, v23, 5, v{T1+6}")
    M.I(f"v_and_b32 v{T1+7}, 3, v0")
    M.I(f"v_lshl_add_u32 v{T1+6}, v{T1+7}, 3, v{T1+6}")
    M.I(f"v_add_u32 v{T1+6}, {W1_O}, v{T1+6}")
    M.I(f"v_xor_b32 v{T1+7}, v23, v0")
    M.I(f"v_and_b32 v{T1+7}, 1, v{T1+7}")
    M.I(f"v_add_u32 v{T1+7}, -1, v{T1+7}")
    M.I(f"v_and_b32 v{MSK}, 0x3f803f80, v{T1+7}")
    for k in range(1, 4): M.I(f"v_mov_b32 v{MSK+k}, v{MSK}")
    for u in range(4):
        M.I(f"v_xor_b32 v{T1+4}, {2*u}, v{T1+3}")
        M.I(f"v_lshl_add_u32 v{5+u}, v{T1+4}, 4, v{T1+2}")
    for j2 in range(3):
        M.I(f"s_add_u32 s36, s35, {j2}")
        M.I("s_sub_u32 s39, s36, 3")
        M.I("s_cmp_ge_u32 s36, 3")
        M.I(f"s_cselect_b32 s{4+j2}, s39, s36")
        M.I(f"s_lshl_b32 s39, s{4+j2}, 6")
        M.I(f"v_add_u32 v{9+j2}, s39, v{T1+6}")
    M.I(f"v_lshlrev_b32 v23, 3, v{T1+5}")
    mk_srd(M, SB1, 22, 23, 3072)
    M.I(f"v_lshrrev_b32 v{T1}, 4, v0")
    M.I("s_and_b32 s36, s35, 1")
    M.I("s_lshl_b32 s36, s36, 2")
    M.I(f"v_add_u32 v{T1}, s36, v{T1}")
    M.I(f"v_and_b32 v{T1+1}, 7, v0")
    M.I(f"v_xor_b32 v{T1}, v{T1}, v{T1+1}")
    M.I(f"v_lshlrev_b32 v{T1+1}, 7, v22")
    M.I(f"v_lshl_add_u32 v16, v{T1}, 4, v{T1+1}")
    M.I(f"v_add_u32 v16, {BB_O}, v16")
    M.I(f"v_lshlrev_b32 v{T1}, 3, v0")
    M.I(f"v_min_u32 v{T1}, 408, v{T1}")
    M.I(f"v_add_u32 v{T1}, {CSW_L}, v{T1}")
    M.I(f"ds_write_b64 v{T1}, v[14:15]")
    for k in range(20): M.I(f"v_mov_b32 v{CBA+k}, 0")
    M.I("s_lshr_b32 s37, s35, 1")
    emit(M, m_dma(1))
    M.raw(";;DRYPT")
    def m_reads(p):
        L = []
        for u in range(4):
            L.append([(f"ds_read_b128 {vr(XB+16*(p&1)+4*u,4)}, v{5+u}", f"r{p}")])
            for jt in range(3):
                L.append([(f"ds_read_b64_tr_b16 {vr(WB+48*(p&1)+12*u+4*jt+2*e,2)}, v{9+jt} offset:{u*3072+e*768}", f"r{p}") for e in range(2)])
        delta = SLOT if p % 4 != 3 else (-3 * SLOT) & 0xffffffff
        L.append([(f"v_add_u32 v{k}, {delta}, v{k}", None) for k in range(5, 12)])
        return L
    def m_mfma(p):
        L = []
        for u in range(4):
            c = "0" if (p == 0 and u < 2) else vr(WA + 4 * (u & 1), 4)
            L.append(f"v_mfma_f32_16x16x32_bf16 {vr(WA+4*(u&1),4)}, {vr(WB+48*(p&1)+12*u,4)}, {vr(MSK,4)}, {c}")
        for u in range(4):
            for jt in range(3):
                c = "0" if (p == 0 and u == 0) else vr(MACC + 16 * jt, 16)
                L.append(f"v_mfma_f32_32x32x16_bf16 {vr(MACC+16*jt,16)}, {vr(WB+48*(p&1)+12*u+4*jt,4)}, {vr(XB+16*(p&1)+4*u,4)}, {c}")
        return L
    B1V = WB + 24
    for p in range(10):
        m_wait(f"c{p}")
        if p == 1:
            M.I(f"s_cbranch_vccnz L_{name}_w7")
            M.I("s_waitcnt vmcnt(0)")
            M.I("v_min_u32 v17, 19, v0")
            M.I("v_lshlrev_b32 v17, 2, v17")
            M.I(f"v_add_u32 v17, {PAR_L}, v17")
            M.I("ds_write_b32 v17, v1")
            M.I("ds_write_b32 v17, v2 offset:128")
            M.I("ds_write_b32 v17, v3 offset:256")
            M.lg = []
            M.label(f"L_{name}_w7")
        if p == 0: M.wait_lg()
        M.I("s_barrier")
        stamp(True)
        if p in (0, 9): stamp()
        side = m_dma(p + 3) if p + 3 <= 9 else []
        if p == 0: side = m_dma(2)
        if p == 1: side = m_dma(3) + side
        rd = m_reads(p)
        M.I(f"s_cmp_lg_u32 s37, {p & 1}")
        M.I(f"s_cbranch_scc1 L_{name}_cs{p}a")
        for j in range(5):
            M.I(f"ds_read_b128 {vr(CBF+4*j,4)}, v16 offset:{2048*j}")
            M.lg.pop()
        M.label(f"L_{name}_cs{p}a")
        delta = SLOT if p % 4 != 3 else (-3 * SLOT) & 0xffffffff
        M.I(f"v_add_u32 v16, {delta}, v16")
        def cs_mfma():
            M.I(f"s_cmp_lg_u32 s37, {p & 1}")
            M.I(f"s_cbranch_scc1 L_{name}_cs{p}b")
            for j in range(5):
                M.I(f"v_mfma_f32_16x16x32_bf16 {vr(CBA+4*j,4)}, v[18:21], {vr(CBF+4*j,4)}, {vr(CBA+4*j,4)}")
            M.label(f"L_{name}_cs{p}b")
        if "dmaonly" in dbg: emit(M, side)
        elif p == 0: emit(M, rd + side)
        elif p == 9:
            mm8 = m_mfma(8)
            for m in mm8[:6]: M.I(m)
            M.I("s_waitcnt lgkmcnt(0)")
            cs_mfma()
            for m in mm8[6:8]: M.I(m)
            M.I("s_mul_i32 s36, s35, 320")
            M.I(f"s_add_u32 s36, s36, {CSB_L}")
            M.I("v_lshlrev_b32 v17, 2, v22")
            M.I("v_add_u32 v17, s36, v17")
            M.I("s_nop 3")
            M.I("s_mov_b64 exec, 0xffff")
            for j in range(5):
                M.I(f"ds_write_b32 v17, v{CBA+4*j} offset:{64*j}", tag="sw")
            cnt_add(M, 16, 17, CNT_L + 4)
            merge(M, mm8[8:], rd, 0.9)
            M.I(f"s_cbranch_vccnz L_{name}_nb1")
            M.I("v_min_u32 v17, 47, v0")
            M.I("v_lshlrev_b32 v17, 3, v17")
            M.I(f"v_add_u32 v17, {B1F_L}, v17")
            M.I("v_lshlrev_b32 v2, 16, v4")
            M.I("v_and_b32 v3, 0xffff0000, v4")
            M.I("ds_write_b64 v17, v[2:3]")
            M.label(f"L_{name}_nb1")
        else: merge(M, m_mfma(p - 1), mix(rd, side), 0.9)
        if p == 1:
            M.I(f"s_cbranch_vccnz L_{name}_na")
            M.I("s_waitcnt vmcnt(0)")
            M.I("s_lshl_b32 s36, s33, 4")
            M.I("v_mov_b32 v14, s36")
            M.I("v_mov_b32 v15, 1")
            M.I("s_mov_b64 exec, 1")
            M.I(f"buffer_atomic_add v15, v14, s[{SDB}:{SDB+3}], 0 offen sc0")
            M.vm.pop()
            M.I("s_mov_b64 exec, -1")
            M.label(f"L_{name}_na")
        if p == 6:
            M.I(f"s_cbranch_vccnz L_{name}_nb")
            M.I("s_waitcnt vmcnt(0)")
            M.I("v_readfirstlane_b32 s36, v15")
            M.I("s_cmp_lg_u32 s36, 15")
            M.I(f"s_cbranch_scc1 L_{name}_nb")
            M.I("v_lshlrev_b32 v14, 7, v22")
            M.I(f"v_add_u32 v14, {GO_O}, v14")
            M.I(f"v_mov_b32 v15, {TAG}")
            M.I("s_mov_b64 exec, 0xffff")
            M.I(f"buffer_store_dword v15, v14, s[{SAGM}:{SAGM+3}], 0 offen sc1")
            M.vm.pop()
            M.I("s_mov_b64 exec, -1")
            M.label(f"L_{name}_nb")
        M.I("s_waitcnt lgkmcnt(0)")
        M.lg = []
        if p < 9: cs_mfma()
    mm = m_mfma(9)
    M.raw(";;DRYSTART")
    M.I("v_lshrrev_b32 v1, 4, v0")
    side_issue(M, 1, 22, 13, 40, 44, 48, 2, 3, 4, 5, 6)
    M.I("s_lshl_b32 s38, s35, 2")
    M.I(f"s_add_u32 s38, s38, {CNT_L+16}")
    if "mdelay" in dbg: cnt_wait(M, f"L_{name}_mw2", 16, 17, "s38", 1)
    for m in mm[:4]: M.I(m)
    for m in mm[4:8]: M.I(m)
    for r in range(4): M.I(f"v_add_f32 v{WA+r}, v{WA+r}, v{WA+4+r}")
    M.I("v_and_b32 v16, 1, v0")
    M.I("v_lshlrev_b32 v16, 6, v16")
    M.I("v_lshrrev_b32 v17, 4, v0")
    M.I("v_lshl_add_u32 v16, v17, 4, v16")
    M.I("s_lshl_b32 s36, s4, 7")
    M.I(f"s_add_u32 s36, s36, {CSW_L}")
    M.I("v_add_u32 v16, s36, v16")
    M.I("s_mov_b32 exec_lo, 0x00030003")
    M.I("s_mov_b32 exec_hi, 0x00030003")
    M.I(f"ds_write_b128 v16, {vr(WA,4)}")
    cnt_add(M, 16, 17, CNT_L + 8)
    for m in mm[8:]: M.I(m)
    stamp()
    cnt_wait(M, f"L_{name}_mw1", 16, 17, CNT_L + 8, 4)
    if "mdelay" not in dbg: cnt_wait(M, f"L_{name}_mw2", 16, 17, "s38", 1)
    stamp()
    CSV = XB
    B1V = WB + 16
    M.I("v_lshrrev_b32 v10, 5, v0")
    M.I("v_lshlrev_b32 v11, 4, v10")
    M.I(f"v_add_u32 v12, {B1F_L}, v11")
    M.I(f"v_add_u32 v11, {CSW_L}, v11")
    M.I("v_lshrrev_b32 v23, 1, v23")
    M.I(f"v_add_u32 v23, {STATS_L}, v23")
    M.I("ds_read_b32 v14, v23")
    M.I("ds_read_b32 v15, v23 offset:512")
    for jt in range(3):
        M.I(f"s_lshl_b32 s36, s{4+jt}, 7")
        M.I("v_add_u32 v16, s36, v11")
        M.I("v_add_u32 v17, s36, v12")
        M.I(f"s_lshl_b32 s{4+jt}, s{4+jt}, 10")
        for q in range(4):
            M.I(f"ds_read_b128 {vr(CSV+(jt*4+q)*4,4)}, v16 offset:{32*q}", tag=f"cr{jt}")
            M.I(f"ds_read_b128 {vr(B1V+(jt*4+q)*4,4)}, v17 offset:{32*q}", tag=f"cr{jt}")
    M.I("s_lshl_b32 s36, s32, 2")
    M.I("s_add_u32 s36, s36, s35")
    M.I(f"s_mul_i32 s36, s36, {2*H1F_RT}")
    M.I("s_mul_i32 s39, s33, 3072")
    M.I("s_add_u32 s36, s36, s39")
    mk_srd(M, SH1, 30, 31, H1F_RT + 3072, 36, H1F_OFF)
    M.I("v_bfe_u32 v9, v0, 4, 1")
    M.I(f"v_mul_u32_u24 v9, {H1F_RT}, v9")
    M.I("v_lshl_add_u32 v9, v10, 8, v9")
    M.I("v_lshl_add_u32 v9, v22, 4, v9")
    C1 = -2.0 * 1.4426950408889634 * 0.7978845608028654
    C2 = C1 * 0.044715
    M.I(f"v_mov_b32 v16, {f2u(C2)}")
    M.I(f"v_mov_b32 v17, {f2u(C1)}")
    TM = FR
    for jt in range(3):
        M.wait_lg(f"cr{jt}")
        P = [MACC + 16 * jt + 2 * k for k in range(8)]
        cs = [CSV + jt * 16 + 2 * k for k in range(8)]
        b1 = [B1V + jt * 16 + 2 * k for k in range(8)]
        T_ = [TM + 2 * k for k in range(8)]
        for k in range(8):
            M.I(f"v_pk_fma_f32 {vr(b1[k],2)}, v[14:15], {vr(cs[k],2)}, {vr(b1[k],2)} op_sel:[0,0,0] op_sel_hi:[0,1,1] neg_lo:[1,0,0] neg_hi:[1,0,0]")
        for k in range(8):
            M.I(f"v_pk_fma_f32 {vr(P[k],2)}, {vr(P[k],2)}, v[14:15], {vr(b1[k],2)} op_sel:[0,1,0] op_sel_hi:[1,1,1]")
        for k in range(8):
            M.I(f"v_pk_mul_f32 {vr(T_[k],2)}, {vr(P[k],2)}, {vr(P[k],2)}")
        for k in range(8):
            M.I(f"v_pk_fma_f32 {vr(T_[k],2)}, {vr(T_[k],2)}, v[16:17], v[16:17] op_sel:[0,0,1] op_sel_hi:[1,0,1]")
        for k in range(8):
            M.I(f"v_pk_mul_f32 {vr(T_[k],2)}, {vr(T_[k],2)}, {vr(P[k],2)}")
        for k in range(16):
            M.I(f"v_exp_f32 v{TM+k}, v{TM+k}")
        for k in range(8):
            M.I(f"v_pk_add_f32 {vr(T_[k],2)}, {vr(T_[k],2)}, 1.0 op_sel_hi:[1,0]")
        for k in range(16):
            M.I(f"v_rcp_f32 v{TM+k}, v{TM+k}")
        for k in range(8):
            M.I(f"v_pk_mul_f32 {vr(P[k],2)}, {vr(P[k],2)}, {vr(T_[k],2)}")
        PKM = TM + 16 + 8 * (jt % 2)
        for k in range(8):
            M.I(f"v_cvt_pk_bf16_f32 v{PKM+k}, v{P[k]}, v{P[k]+1}")
        for AB in range(2):
            M.I(f"buffer_store_dwordx4 {vr(PKM+4*AB,4)}, v9, s[{SH1}:{SH1+3}], s{4+jt} offen offset:{512*AB}", tag="st")
    M.I("s_waitcnt vmcnt(6)")
    RJ = XB
    M.I("s_cmp_ge_u32 s26, 880")
    M.I(f"s_cbranch_scc1 L_{name}_sj1")
    M.I("s_cmp_ge_u32 s26, 480")
    M.I(f"s_cbranch_scc1 L_{name}_sj1c")
    for j in range(4):
        for e in range(2):
            M.I(f"ds_read_b64_tr_b16 {vr(RJ+4*j+2*e,2)}, v6 offset:{32*j+1024*e}")
    M.I(f"s_branch L_{name}_sj1s")
    M.label(f"L_{name}_sj1c")
    for j in range(4):
        M.I(f"v_xor_b32 v2, {32*j}, v6")
        M.I(f"ds_read_b128 {vr(RJ+4*j,4)}, v2")
    M.label(f"L_{name}_sj1s")
    M.I("s_waitcnt lgkmcnt(0)")
    for j in range(4):
        M.I(f"buffer_store_dwordx4 {vr(RJ+4*j,4)}, v5, s[48:51], s22 offen")
        if j < 3: M.I("s_add_u32 s22, s22, s23")
    M.label(f"L_{name}_sj1")
    M.I("s_cmp_lg_u32 s33, 0")
    M.I(f"s_cbranch_scc1 L_{name}_nostat")
    M.I("s_lshl_b32 s36, s32, 9")
    mk_srd(M, 40, 30, 31, 8192 + 512, 36, STATS_OFF)
    M.I(f"v_subrev_u32 v23, {STATS_L}, v23")
    M.I("s_mov_b32 s36, 8192")
    M.I("buffer_store_dword v14, v23, s[40:43], 0 offen")
    M.I("buffer_store_dword v15, v23, s[40:43], s36 offen")
    M.label(f"L_{name}_nostat")
    final_stamps(M, st)
    M.label(f"L_{name}_end")
    M.I("s_endpgm")
    if "dry" not in dbg:
        for X in (S, M): X.lines = [l for l in X.lines if not l.startswith(";;DRY")]
    else:
        print("dry blocks", add_dry(S, name, "ds", 39), add_dry(M, name, "dm", 39))
    desc = f""".section .rodata,"a"
.p2align 6
.amdhsa_kernel {name}
  .amdhsa_next_free_vgpr 256
  .amdhsa_next_free_sgpr 102
  .amdhsa_accum_offset 256
  .amdhsa_group_segment_fixed_size 0
  .amdhsa_kernarg_size 136
  .amdhsa_user_sgpr_count 2
  .amdhsa_user_sgpr_kernarg_segment_ptr 1
  .amdhsa_system_sgpr_workgroup_id_x 1
.end_amdhsa_kernel
.text"""
    return A.text() + "\n" + S.text() + "\n" + M.text() + "\n" + desc, (A.nins, S.nins, M.nins)
```

```python
from asmfw import *
from layout import *

NEG_LOG2E = 0xbfb8aa3b

def srd(A, d, lo, hi, nbytes):
    A.I(f"s_mov_b32 s{d}, {lo}")
    A.I(f"s_and_b32 s{d+1}, {hi}, 0xffff")
    A.I(f"s_mov_b32 s{d+2}, {nbytes}")
    A.I(f"s_mov_b32 s{d+3}, 0x00020000")

def gen_k2(name="k2_kernel", D=3, stamps=False, rot=0):
    import os
    STF = os.environ.get("STF2", "")
    A = Stream()
    nst = [0]
    def stamp():
        if not stamps: return
        A.I(f"s_memtime s[{64+2*nst[0]}:{65+2*nst[0]}]"); nst[0] += 1
    A.raw(f".globl {name}\n.p2align 8\n.type {name},@function\n{name}:")
    A.I("s_cmp_ge_u32 s2, 256")
    A.I(f"s_cbranch_scc1 L_{name}_end")
    stamp()
    if stamps: A.I("s_memrealtime s[96:97]")
    A.I("s_load_dwordx2 s[12:13], s[0:1], 128")
    A.I("s_load_dwordx2 s[4:5], s[0:1], 0")
    A.I("s_load_dwordx2 s[6:7], s[0:1], 64")
    A.I("s_load_dwordx4 s[8:11], s[0:1], 104")
    A.I("s_and_b32 s14, s2, 7")
    A.I("s_lshr_b32 s15, s2, 3")
    A.I("s_and_b32 s16, s14, 3")
    A.I("s_lshl_b32 s16, s16, 3")
    A.I("s_and_b32 s17, s15, 7")
    A.I("s_add_u32 s16, s16, s17")
    A.I("s_lshr_b32 s17, s14, 2")
    A.I("s_lshl_b32 s17, s17, 2")
    A.I("s_lshr_b32 s18, s15, 3")
    A.I("s_add_u32 s17, s17, s18")
    A.I("v_lshrrev_b32 v1, 6, v0")
    A.I("v_and_b32 v0, 63, v0")
    A.I("v_readfirstlane_b32 s19, v1")
    A.I("v_lshlrev_b32 v2, 4, v0")
    def set_voff(stride):
        for n in range(1, 5):
            A.I(f"v_add_u32 v{2+n}, {n*stride}, v2")
        for n in range(4):
            A.I(f"s_add_u32 s20, s19, {n}")
            A.I("s_and_b32 s20, s20, 3")
            A.I(f"s_mul_i32 s20, s20, {stride}")
            A.I(f"v_add_u32 v{7+n}, s20, v2")
    set_voff(H1F_RT)
    A.I("s_mul_i32 s60, s19, 12288")
    A.I("s_mul_i32 s61, s19, 10240")
    if rot:
        A.I("s_and_b32 s62, s17, 3")
        A.I(f"s_mul_i32 s62, s62, {rot // 10}")
        A.I("s_and_b32 s63, s16, 7")
        A.I(f"s_mul_i32 s63, s63, {rot % 10}")
        A.I("s_add_u32 s62, s62, s63")
        for _ in range(3):
            A.I("s_sub_u32 s63, s62, 10")
            A.I("s_cmp_ge_u32 s62, 10")
            A.I("s_cselect_b32 s62, s63, s62")
        A.I("s_mov_b32 s63, s62")
    A.wait_lg()
    def ws_srd(d, off, mul_s, mulc, nbytes):
        A.I(f"s_mul_i32 s20, s{mul_s}, {mulc}")
        if off: A.I(f"s_add_u32 s20, s20, {off}")
        A.I(f"s_add_u32 s{d}, s12, s20")
        A.I(f"s_addc_u32 s{d+1}, s13, 0")
        A.I(f"s_and_b32 s{d+1}, s{d+1}, 0xffff")
        A.I(f"s_mov_b32 s{d+2}, {nbytes}")
        A.I(f"s_mov_b32 s{d+3}, 0x00020000")
    SAG, SBG, SAY, SBY, SX, SO, SST, SB2, SDS = 24, 28, 32, 36, 40, 44, 48, 52, 56
    ws_srd(SAG, H1F_OFF, 16, 4 * H1F_RT, 4 * H1F_RT)
    ws_srd(SBG, W2F_OFF, 17, 5 * H1F_RT, 5 * H1F_RT)
    NG, NY = 12, 10
    NS = NG + NY
    ACC = 16
    STG = 96
    FRE = STG + D * 36
    assert FRE + 52 <= 256
    YV = FRE + 43
    def stage(s): return STG + (s % D) * 36
    def issue(s):
        L = []
        b = stage(s)
        if s < NG: sa, sb, va, vb, ks, sk = SAG, SBG, 7, 2, s, 60
        else: sa, sb, va, vb, ks, sk = SAY, SBY, YV + 5, YV, s - NG, 61
        pre = [(f"s_add_u32 s{sk}, s{sk}, 4096", None)] if (ks > 0 and ks % 4 == 0) else []
        io = (ks % 4) * 1024
        if rot:
            cn = 62 if s < NG else 63
            lim = NG if s < NG else NY
            pre = [(f"s_lshl_b32 s23, s{cn}, 10", None), (f"s_add_u32 s23, s23, s{sk}", None),
                   (f"s_add_u32 s{cn}, s{cn}, 1", None), (f"s_cmp_eq_u32 s{cn}, {lim}", None), (f"s_cselect_b32 s{cn}, 0, s{cn}", None)]
            io = 0; sk = 23
        for n in range(4):
            L.append((f"buffer_load_dwordx4 {vr(b+4*n,4)}, v{va+n}, s[{sa}:{sa+3}], s{sk} offen offset:{io}", f"st{s}"))
        for n in range(5):
            L.append((f"buffer_load_dwordx4 {vr(b+16+4*n,4)}, v{vb+n}, s[{sb}:{sb+3}], s{sk} offen offset:{io}", f"st{s}"))
        return pre + L
    for s in range(D - 1):
        for t, g in issue(s): A.I(t, tag=g)
    stamp()
    ws_srd(SAY, HF_OFF, 16, 4 * HF_RT, 4 * HF_RT)
    ws_srd(SBY, CF_OFF, 17, 5 * HF_RT, 5 * HF_RT)
    srd(A, SX, "s4", "s5", 2621440)
    srd(A, SO, "s10", "s11", 5242880)
    srd(A, SB2, "s8", "s9", 1280)
    srd(A, SDS, "s6", "s7", 1280)
    A.I(f"s_add_u32 s{SST}, s12, {STATS_OFF}")
    A.I(f"s_addc_u32 s{SST+1}, s13, 0")
    A.I(f"s_and_b32 s{SST+1}, s{SST+1}, 0xffff")
    A.I(f"s_mov_b32 s{SST+2}, 16384")
    A.I(f"s_mov_b32 s{SST+3}, 0x00020000")
    A.I(f"v_mov_b32 v{YV}, v2")
    for n in range(1, 5):
        A.I(f"v_add_u32 v{YV+n}, {n*HF_RT}, v2")
    for n in range(4):
        A.I(f"s_add_u32 s20, s19, {n}")
        A.I("s_and_b32 s20, s20, 3")
        A.I(f"s_mul_i32 s20, s20, {HF_RT}")
        A.I(f"v_add_u32 v{YV+5+n}, s20, v2")
    vT, vPo, vOo, vtmp = 11, 12, 13, 14
    A.I(f"v_and_b32 v{vtmp}, 15, v0")
    A.I(f"v_lshrrev_b32 v{vT}, 2, v{vtmp}")
    A.I(f"v_lshlrev_b32 v{vT}, 3, v{vT}")
    A.I(f"v_and_b32 v{vtmp}, 3, v{vtmp}")
    A.I(f"v_add_u32 v{vT}, v{vT}, v{vtmp}")
    A.I("s_lshl_b32 s20, s16, 6")
    A.I("s_lshr_b32 s21, s19, 1")
    A.I("s_lshl_b32 s21, s21, 5")
    A.I("s_add_u32 s20, s20, s21")
    A.I("s_and_b32 s21, s19, 1")
    A.I("s_lshl_b32 s21, s21, 2")
    A.I("s_add_u32 s20, s20, s21")
    A.I(f"v_add_u32 v{vT}, s20, v{vT}")
    A.I(f"v_lshrrev_b32 v{vtmp}, 4, v0")
    A.I(f"v_lshlrev_b32 v{vtmp}, 3, v{vtmp}")
    A.I("s_mul_i32 s20, s17, 160")
    A.I(f"v_add_u32 v{vPo}, s20, v{vtmp}")
    A.I(f"v_mul_u32_u24 v15, 1280, v{vT}")
    A.I(f"v_add_u32 v15, v15, v{vPo}")
    A.I(f"v_lshlrev_b32 v{vOo}, 1, v15")
    A.I(f"v_lshlrev_b32 v{vtmp}, 2, v{vT}")
    A.I("s_mov_b32 s22, 8192")
    A.I("s_lshl_b32 s62, s19, 12")
    A.I("s_add_u32 s62, s62, 122880")
    EV = ACC
    EV = FRE
    A.I("s_lshl_b32 s20, s16, 6")
    A.I("s_lshr_b32 s21, s19, 1")
    A.I("s_lshl_b32 s21, s21, 5")
    A.I("s_add_u32 s20, s20, s21")
    A.I("s_and_b32 s21, s19, 1")
    A.I("s_lshl_b32 s21, s21, 2")
    A.I("s_add_u32 s20, s20, s21")
    A.I("s_mul_i32 s63, s20, 1280")
    A.I("s_mul_i32 s18, s17, 160")
    A.I("s_add_u32 s63, s63, s18")
    A.I("s_lshl_b32 s23, s20, 2")
    for e in range(3):
        A.I(f"v_add_u32 v{EV+8}, {64*e}, v0")
        A.I(f"v_min_u32 v{EV+8}, 159, v{EV+8}")
        A.I(f"v_mul_u32_u24 v{EV+9}, 6554, v{EV+8}")
        A.I(f"v_lshrrev_b32 v{EV+9}, 16, v{EV+9}")
        A.I(f"v_mul_u32_u24 v{EV+10}, 10, v{EV+9}")
        A.I(f"v_sub_u32 v{EV+8}, v{EV+8}, v{EV+10}")
        A.I(f"v_lshrrev_b32 v{EV+10}, 2, v{EV+9}")
        A.I(f"v_lshl_add_u32 v{EV+9}, v{EV+10}, 2, v{EV+9}")
        A.I(f"v_mul_u32_u24 v{EV+9}, 1280, v{EV+9}")
        A.I(f"v_lshl_add_u32 v{EV+e}, v{EV+8}, 4, v{EV+9}")
    A.I(f"v_lshlrev_b32 v{EV+3}, 2, v0")
    A.I(f"v_min_u32 v{EV+3}, 156, v{EV+3}")
    A.I(f"v_and_b32 v{EV+4}, 31, v0")
    A.I(f"v_min_u32 v{EV+4}, 27, v{EV+4}")
    A.I(f"v_lshrrev_b32 v{EV+8}, 5, v0")
    A.I(f"v_lshlrev_b32 v{EV+8}, 13, v{EV+8}")
    A.I(f"v_lshl_add_u32 v{EV+4}, v{EV+4}, 2, v{EV+8}")
    ep = []
    for e in range(3):
        ep.append((f"s_add_u32 m0, s62, {1024*e}", None))
        ep.append((f"buffer_load_dwordx4 v{EV+e}, s[{SX}:{SX+3}], s63 offen lds", "ep"))
    ep.append(("s_add_u32 m0, s62, 3072", None))
    ep.append((f"buffer_load_dword v{EV+3}, s[{SB2}:{SB2+3}], s18 offen lds", "ep"))
    ep.append(("s_add_u32 m0, s62, 3328", None))
    ep.append((f"buffer_load_dword v{EV+3}, s[{SDS}:{SDS+3}], s18 offen lds", "ep"))
    ep.append(("s_add_u32 m0, s62, 3584", None))
    ep.append((f"buffer_load_dword v{EV+4}, s[{SST}:{SST+3}], s23 offen lds", "ep"))
    A.I(f"v_lshrrev_b32 v{vPo}, 4, v0")
    A.I(f"v_lshlrev_b32 v{vPo}, 3, v{vPo}")
    A.I(f"v_add_u32 v{vPo}, s62, v{vPo}")
    A.I("v_and_b32 v15, 15, v0")
    A.I("v_mul_u32_u24 v15, 160, v15")
    A.I(f"v_add_u32 v15, v15, v{vPo}")
    A.I(f"v_subrev_u32 v{vtmp}, s20, v{vT}")
    A.I(f"v_lshlrev_b32 v{vtmp}, 2, v{vtmp}")
    A.I(f"v_add_u32 v{vtmp}, s62, v{vtmp}")
    LW = FRE + 40
    for n in range(1, 4):
        A.I(f"s_add_u32 s20, s19, {n}")
        A.I("s_and_b32 s20, s20, 3")
        A.I("s_mul_i32 s20, s20, 15360")
        A.I(f"s_add_u32 s20, s20, {(n-1)*5120}")
        A.I(f"v_add_u32 v{LW+n-1}, s20, v2")
    A.I("s_mul_i32 s20, s19, 15360")
    A.I("v_add_u32 v1, s20, v2")
    YA = 0
    def accreg(s, idx):
        return vr(ACC + idx * 4, 4) if s < NG else vr(YA + idx * 4, 4, 'a')
    def mfmas(s, L, fill=(), order=None, post=None):
        b = stage(s)
        L = list(L); fill = list(fill)
        nf = (len(fill) + 19) // 20
        k = 0
        first = (s == 0 or s == NG)
        for rt in (order or range(4)):
            for dt in range(5):
                ac = accreg(s, rt * 5 + dt)
                A.I(f"v_mfma_f32_16x16x32_bf16 {ac}, {vr(b+16+4*dt,4)}, {vr(b+4*rt,4)}, {'0' if first else ac}")
                k += 1
                if L and k % 2 == 1:
                    t, g = L.pop(0); A.I(t, tag=g)
                    while t.startswith("s_") and L:
                        t, g = L.pop(0); A.I(t, tag=g)
                for _ in range(nf):
                    if fill: fill.pop(0)()
                if post: post(k)
        for t, g in L: A.I(t, tag=g)
        for f in fill: f()
    T = ACC + 20
    G = FRE
    BS = FRE + 20
    def I(t, tag=None): return lambda: A.I(t, tag=tag)
    gep = []
    for k in range(3):
        for dt in range(5):
            gep.append(I(f"ds_read_b128 {vr(ACC+20+(k*5+dt)*4,4)}, v1 offset:{k*5120+dt*1024}", f"rd{k}"))
    gep.append(I(f"s_mov_b32 s20, {NEG_LOG2E}"))
    gep.append(I("s_mov_b32 s21, 0xffff0000"))
    for dt in range(5): gep.append(I(f"ds_read_b64 {vr(G+2*dt,2)}, v{vPo} offset:{3072+32*dt}", "rd2"))
    gep.append(lambda: A.wait_lg("rd1"))
    for e in range(20): gep.append(I(f"v_add_f32 v{ACC+e}, v{ACC+e}, v{ACC+20+e}"))
    gep.append(lambda: A.wait_lg("rd2"))
    for e in range(20): gep.append(I(f"v_add_f32 v{ACC+40+e}, v{ACC+40+e}, v{ACC+60+e}"))
    for e in range(20): gep.append(I(f"v_add_f32 v{ACC+e}, v{ACC+e}, v{ACC+40+e}"))
    for dt in range(5):
        gep.append(I(f"ds_read_b64 {vr(T+40+2*dt,2)}, v15 offset:{32*dt}", "xr"))
        gep.append(I(f"ds_read_b64 {vr(T+50+2*dt,2)}, v{vPo} offset:{3328+32*dt}", "xr"))
    gep.append(I(f"ds_read_b32 v{vT}, v{vtmp} offset:3584", "xr"))
    gep.append(I(f"ds_read_b32 v{vPo}, v{vtmp} offset:{3584+128}", "xr"))
    for k in range(10):
        gep.append(I(f"v_lshlrev_b32 v{T+2*k}, 16, v{G+k}"))
        gep.append(I(f"v_and_b32 v{T+2*k+1}, s21, v{G+k}"))
    for e in range(20): gep.append(I(f"v_add_f32 v{ACC+e}, v{ACC+e}, v{T+e}"))
    for e in range(20): gep.append(I(f"v_mul_f32 v{T+e}, s20, v{ACC+e}"))
    for e in range(20): gep.append(I(f"v_exp_f32 v{T+e}, v{T+e}"))
    for e in range(20): gep.append(I(f"v_add_f32 v{T+e}, 1.0, v{T+e}"))
    for e in range(20): gep.append(I(f"v_rcp_f32 v{T+e}, v{T+e}"))
    for e in range(20): gep.append(I(f"v_mul_f32 v{G+e}, v{ACC+e}, v{T+e}"))
    gep.append(lambda: A.wait_lg())
    for k in range(10):
        gep.append(I(f"v_lshlrev_b32 v{BS+2*k}, 16, v{T+40+k}"))
        gep.append(I(f"v_and_b32 v{BS+2*k+1}, s21, v{T+40+k}"))
        gep.append(I(f"v_lshlrev_b32 v{T+20+2*k}, 16, v{T+50+k}"))
        gep.append(I(f"v_and_b32 v{T+20+2*k+1}, s21, v{T+50+k}"))
    for e in range(20): gep.append(I(f"v_fma_f32 v{T+e}, v{BS+e}, v{vPo}, -v{vT}"))
    for e in range(20): gep.append(I(f"v_mul_f32 v{T+20+e}, v{T+20+e}, v{G+e}"))
    for e in range(20): gep.append(I(f"v_fmac_f32 v{BS+e}, v{T+e}, v{T+20+e}"))
    gdump = [I(f"ds_write_b128 v{LW+n-1}, {vr(ACC+(n*5+dt)*4,4)} offset:{dt*1024}", "gw") for n in range(1, 4) for dt in range(5)]
    F0, NF = NG + 1, 7
    per = (len(gep) + NF - 1) // NF
    for s in range(NS):
        A.wait_vm(f"st{s}")
        L = issue(s + D - 1) if s + D - 1 < NS else []
        if s == 2: L = L + ep
        if s in (0, 2, 4, 8, 16): stamp()
        fill = []
        if s == NG: fill = gdump
        if s == F0:
            A.wait_lg()
            A.I("s_barrier")
            for n in range(3): A.I(f"v_add_u32 v{LW+n}, 61440, v{LW+n}")
        if F0 <= s < F0 + NF: fill = gep[(s - F0) * per:(s - F0 + 1) * per]
        if s == NS - 1:
            pend = []
            def post(k):
                if k >= 8 and k - 8 < 15:
                    j = k - 8
                    n, dt = 1 + j // 5, j % 5
                    A.I(f"ds_write_b128 v{LW+n-1}, {vr(YA+(n*5+dt)*4,4,'a')} offset:{dt*1024}", tag="yw")
            mfmas(s, L, fill, order=[1, 2, 3, 0], post=post)
            for j in range(13, 15):
                n, dt = 1 + j // 5, j % 5
                A.I(f"ds_write_b128 v{LW+n-1}, {vr(YA+(n*5+dt)*4,4,'a')} offset:{dt*1024}", tag="yw")
        else:
            mfmas(s, L, fill)
        if s == NG - 1 or s == NS - 1: stamp()
    A.I("v_add_u32 v1, 61440, v1")
    for e in range(20): A.I(f"v_accvgpr_read_b32 v{ACC+e}, a{YA+e}")
    A.wait_lg()
    A.I("s_barrier")
    stamp()
    RT = STG
    for dt in range(5):
        for k in range(3):
            A.I(f"ds_read_b128 {vr(RT+(dt*3+k)*4,4)}, v1 offset:{k*5120+dt*1024}", tag=f"y{dt}")
    for dt in range(5):
        A.wait_lg(f"y{dt}")
        for r in range(4):
            A.I(f"v_add_f32 v{ACC+4*dt+r}, v{ACC+4*dt+r}, v{RT+dt*12+r}")
        for r in range(4):
            A.I(f"v_add_f32 v{RT+dt*12+4+r}, v{RT+dt*12+4+r}, v{RT+dt*12+8+r}")
        for r in range(4):
            A.I(f"v_add_f32 v{ACC+4*dt+r}, v{ACC+4*dt+r}, v{RT+dt*12+4+r}")
        for r in range(4):
            A.I(f"v_fmac_f32 v{BS+4*dt+r}, v{ACC+4*dt+r}, v{G+4*dt+r}")
        A.I(f"buffer_store_dwordx4 {vr(BS+4*dt,4)}, v{vOo}, s[{SO}:{SO+3}], 0 offen offset:{64*dt}{STF}")
    stamp()
    if stamps:
        A.wait_all()
        stamp()
        A.I("s_memrealtime s[98:99]")
        A.wait_lg()
        A.I("s_lshl_b32 s20, s2, 2")
        A.I("s_add_u32 s20, s20, s19")
        A.I("s_lshl_b32 s20, s20, 7")
        A.I("s_add_u32 s20, s20, 0x2000000")
        A.I("s_add_u32 s24, s12, s20")
        A.I("s_addc_u32 s25, s13, 0")
        A.I("s_and_b32 s25, s25, 0xffff")
        A.I("s_mov_b32 s26, 128")
        A.I("v_mov_b32 v1, 0")
        for i in range(nst[0]):
            A.I(f"v_mov_b32 v2, s{64+2*i}")
            A.I(f"buffer_store_dword v2, v1, s[24:27], 0 offen offset:{4*i}")
        A.I("v_mov_b32 v2, s96")
        A.I("buffer_store_dword v2, v1, s[24:27], 0 offen offset:120")
        A.I("v_mov_b32 v2, s98")
        A.I("buffer_store_dword v2, v1, s[24:27], 0 offen offset:124")
    A.label(f"L_{name}_end")
    A.I("s_endpgm")
    desc = f""".section .rodata,"a"
.p2align 6
.amdhsa_kernel {name}
  .amdhsa_next_free_vgpr 336
  .amdhsa_next_free_sgpr 102
  .amdhsa_accum_offset 256
  .amdhsa_group_segment_fixed_size 0
  .amdhsa_kernarg_size 136
  .amdhsa_user_sgpr_count 2
  .amdhsa_user_sgpr_kernarg_segment_ptr 1
  .amdhsa_system_sgpr_workgroup_id_x 1
.end_amdhsa_kernel
.text"""
    return A.text() + "\n" + desc, A.nins
```

```python
from asmfw import *
from layout import *
import struct
def f2u(f): return struct.unpack("<I", struct.pack("<f", f))[0]
LOG2E = f2u(1.4426950408889634)
INV2PI = f2u(0.15915494309189535)
SLOT = 38912
BB_O = 16384
W1_O = 26624
MISC = 155648
SEG_L = MISC
CSW_L = MISC + 5120
CNT_L = CSW_L + 384
STATS_L = MISC + 5632
CSB_L = STATS_L + 1024
STG_L = 2 * SLOT
PAR_L = SEG_L
B1F_L = 139264
GR_L = 98304
TR_L = 0
Q_L = 24576
HS_L = 32768
TAG = 0x5a17c3e9
DPP = "row_ror:8 row_mask:0xf bank_mask:0xf"

def mk_srd(A, d, lo, hi, nbytes, off_s=None, off_imm=0):
    if off_s is None and off_imm == 0:
        A.I(f"s_mov_b32 s{d}, s{lo}")
        A.I(f"s_and_b32 s{d+1}, s{hi}, 0xffff")
    else:
        if off_s is not None:
            if off_imm: A.I(f"s_add_u32 s{off_s}, s{off_s}, {off_imm}")
            A.I(f"s_add_u32 s{d}, s{lo}, s{off_s}")
        else:
            A.I(f"s_add_u32 s{d}, s{lo}, {off_imm}")
        A.I(f"s_addc_u32 s{d+1}, s{hi}, 0")
        A.I(f"s_and_b32 s{d+1}, s{d+1}, 0xffff")
    A.I(f"s_mov_b32 s{d+2}, {nbytes}")
    A.I(f"s_mov_b32 s{d+3}, 0x00020000")

def bb_srd(X, d, ldsreg):
    X.I(f"s_lshl_b32 s{ldsreg}, s36, 10")
    X.I(f"s_add_u32 s{ldsreg}, s{ldsreg}, {BB_O}")
    X.I("s_and_b32 s39, s36, 1")
    X.I("s_cmp_eq_u32 s39, 0")
    X.I(f"s_cselect_b32 s{d}, s10, s12")
    X.I(f"s_cselect_b32 s{d+1}, s11, s13")
    X.I("s_lshr_b32 s36, s36, 1")
    X.I("s_lshl_b32 s36, s36, 3")
    X.I("s_mul_i32 s39, s33, 40")
    X.I("s_add_u32 s36, s36, s39")
    X.I("s_mul_i32 s36, s36, 1280")
    X.I(f"s_add_u32 s{d}, s{d}, s36")
    X.I(f"s_addc_u32 s{d+1}, s{d+1}, 0")
    X.I(f"s_and_b32 s{d+1}, s{d+1}, 0xffff")
    X.I(f"s_mov_b32 s{d+2}, 10240")
    X.I(f"s_mov_b32 s{d+3}, 0x00020000")

def put(X, item):
    t, g = item
    if t.endswith(":"): X.label(t[:-1])
    else: X.I(t, tag=g)
def emit(X, L):
    for grp in L:
        for it in grp: put(X, it)
def merge(X, main, side, frac=1.0):
    side = list(side)
    n = max(1, int(len(main) * frac))
    done = 0
    for k, m in enumerate(main):
        X.I(m)
        tgt = min(len(side), ((k + 1) * len(side) + n - 1) // n)
        while done < tgt:
            for it in side[done]: put(X, it)
            done += 1
    while done < len(side):
        for it in side[done]: put(X, it)
        done += 1
def mix(a, b):
    out = []; ia = ib = 0
    while ia < len(a) or ib < len(b):
        if ib >= len(b) or (ia < len(a) and ia * len(b) <= ib * len(a)):
            out.append(a[ia]); ia += 1
        else:
            out.append(b[ib]); ib += 1
    return out

def cnt_add(X, va, vt, addr):
    X.I(f"v_mov_b32 v{va}, {addr}")
    X.I(f"v_mov_b32 v{vt}, 1")
    X.I("s_mov_b64 exec, 1")
    X.I(f"ds_add_u32 v{va}, v{vt}")
    X.I("s_mov_b64 exec, -1")
def cnt_wait(X, lab, va, vt, addr, val):
    X.I(f"v_mov_b32 v{va}, {addr}")
    X.I("s_mov_b32 s39, 0")
    X.label(lab)
    X.I(f"ds_read_b32 v{vt}, v{va}")
    X.I("s_waitcnt lgkmcnt(0)")
    X.lg = []
    X.I(f"v_readfirstlane_b32 s36, v{vt}")
    X.I("s_add_u32 s39, s39, 1")
    X.I(f"s_cmp_eq_u32 s36, {val}")
    X.I(f"s_cbranch_scc1 {lab}d")
    X.I("s_sleep 1")
    X.I("s_cmp_lt_u32 s39, 0x400000")
    X.I(f"s_cbranch_scc1 {lab}")
    X.label(lab + "d")

def pr(idx):
    return f"v[{idx & ~1}:{(idx & ~1) + 1}]", idx & 1

def add_dry(X, name, tag, sreg, minlen=10, maxlen=48):
    lines = X.lines
    i0 = lines.index(";;DRYSTART")
    head, tail = lines[:i0], lines[i0 + 1:]
    def pure(l):
        t = l.strip()
        if t.startswith("v_"):
            return not (t.startswith("v_cmp") or t.startswith("v_readfirstlane") or t.startswith("v_mfma") or t.startswith("v_readlane") or "co_u32" in t)
        return t.startswith("s_nop")
    out = []; nb = 0; i = 0
    while i < len(tail):
        j = i
        while j < len(tail) and pure(tail[j]): j += 1
        if j - i >= minlen:
            k = i
            while k < j:
                e = min(j, k + maxlen)
                if j - e < minlen: e = j
                out.append(f"L_{name}_{tag}{nb}:")
                out += tail[k:e]
                out.append(f"    s_cbranch_execz L_{name}_{tag}disp")
                nb += 1; k = e
            i = j
        else:
            out += tail[i:max(j, i + 1)]; i = max(j, i + 1)
    drv = [f"    s_mov_b32 s{sreg}, s35", "    s_mov_b64 exec, 0", f"    s_branch L_{name}_{tag}go",
           f"L_{name}_{tag}disp:", f"    s_add_u32 s{sreg}, s{sreg}, 4", f"L_{name}_{tag}go:"]
    for b in range(nb):
        drv += [f"    s_cmp_eq_u32 s{sreg}, {b}", f"    s_cbranch_scc1 L_{name}_{tag}{b}"]
    drv += ["    s_mov_b64 exec, -1"]
    p = head.index(";;DRYPT")
    X.lines = head[:p] + drv + head[p + 1:] + out
    return nb

def gen_k1(name="k1_kernel", stamps=False, rot=True, dbg=""):
    import os
    STF = os.environ.get("STF1", "")
    A = Stream()
    A.raw(f".globl {name}\n.p2align 8\n.type {name},@function\n{name}:")
    A.I("s_cmp_ge_u32 s2, 256")
    A.I(f"s_cbranch_scc1 L_{name}_end")
    class St:
        n = 0
    def mkstamp(X):
        st = St()
        def stamp(ph=False):
            if not stamps: return
            if ("phst" in dbg) != ph: return
            assert st.n < 12
            X.I(f"s_memtime s[{74+2*st.n}:{75+2*st.n}]"); st.n += 1
        return stamp, st
    if stamps:
        A.I("s_memtime s[72:73]")
        A.I("s_memrealtime s[98:99]")
    A.I("s_load_dwordx16 s[4:19], s[0:1], 0")
    A.I("s_load_dwordx4 s[20:23], s[0:1], 80")
    A.I("s_load_dwordx2 s[24:25], s[0:1], 96")
    A.I("s_load_dwordx4 s[28:31], s[0:1], 120")
    A.I("s_and_b32 s36, s2, 7")
    A.I("s_lshr_b32 s37, s2, 3")
    if "map2" in dbg:
        A.I("s_and_b32 s32, s37, 15")
    else:
        A.I("s_and_b32 s32, s36, 1")
        A.I("s_lshl_b32 s32, s32, 3")
        A.I("s_and_b32 s38, s37, 7")
        A.I("s_add_u32 s32, s32, s38")
    if "map2" in dbg:
        A.I("s_lshl_b32 s33, s36, 1")
        A.I("s_lshr_b32 s38, s37, 4")
    else:
        A.I("s_lshr_b32 s33, s36, 1")
        A.I("s_lshl_b32 s33, s33, 2")
        A.I("s_lshr_b32 s38, s37, 3")
    A.I("s_add_u32 s33, s33, s38")
    import os
    rm = os.environ.get("ROTM", "full")
    if rot and rm == "full":
        A.I("s_and_b32 s26, s33, 3")
        A.I("s_mul_i32 s26, s26, 3")
        A.I("s_and_b32 s27, s32, 7")
        A.I("s_add_u32 s26, s26, s27")
        A.I("s_sub_u32 s27, s26, 10")
        A.I("s_cmp_ge_u32 s26, 10")
        A.I("s_cselect_b32 s26, s27, s26")
    elif rot and rm == "r4":
        A.I("s_add_u32 s26, s33, s32")
        A.I("s_and_b32 s26, s26, 3")
    elif rot and rm == "r2":
        A.I("s_add_u32 s26, s33, s32")
        A.I("s_and_b32 s26, s26, 1")
        A.I("s_lshl_b32 s26, s26, 1")
    elif rot and rm == "r4x2":
        A.I("s_add_u32 s26, s33, s32")
        A.I("s_and_b32 s26, s26, 3")
        A.I("s_lshl_b32 s26, s26, 1")
    else:
        A.I("s_mov_b32 s26, 0")
    A.I("v_lshrrev_b32 v1, 6, v0")
    A.I("v_and_b32 v0, 63, v0")
    A.I("v_readfirstlane_b32 s34, v1")
    A.I("s_and_b32 s35, s34, 3")
    A.I("s_cmp_ge_u32 s34, 4")
    A.wait_lg()
    A.I(f"s_cbranch_scc1 L_{name}_M")

    def final_stamps(X, st):
        if not stamps: return
        X.wait_all()
        X.I(f"s_memtime s[{74+2*st.n}:{75+2*st.n}]"); st.n += 1
        X.I("s_memrealtime s[100:101]")
        X.wait_lg()
        X.I("s_lshl_b32 s36, s2, 3")
        X.I("s_add_u32 s36, s36, s34")
        X.I("s_lshl_b32 s36, s36, 7")
        X.I("s_add_u32 s36, s36, 0x2000000")
        X.I("s_add_u32 s40, s30, s36")
        X.I("s_addc_u32 s41, s31, 0")
        X.I("s_and_b32 s41, s41, 0xffff")
        X.I("s_mov_b32 s42, 128")
        X.I("s_mov_b32 s43, 0x00020000")
        X.I("v_mov_b32 v1, 0")
        for i in range(st.n + 1):
            X.I(f"v_mov_b32 v2, s{72+2*i}")
            X.I(f"buffer_store_dword v2, v1, s[40:43], 0 offen offset:{4*i}")
        X.I("v_mov_b32 v2, s98")
        X.I("buffer_store_dword v2, v1, s[40:43], 0 offen offset:120")
        X.I("v_mov_b32 v2, s100")
        X.I("buffer_store_dword v2, v1, s[40:43], 0 offen offset:124")
    def side_issue(S, vG_, vC_, vBB, SJA, SJB, SWS, t1, t2, t3, vL, vA):
        mk_srd(S, SWS, 30, 31, STATS_OFF - W2F_OFF, None, W2F_OFF)
        S.I("s_lshl_b32 s26, s2, 2")
        S.I("s_add_u32 s26, s26, s35")
        if "nosj" in dbg: S.I("s_mov_b32 s26, 1000")
        S.I("s_lshl_b32 s27, s35, 12")
        S.I(f"s_add_u32 s27, s27, {STG_L}")
        S.I(f"v_lshlrev_b32 v{vL}, 4, v0")
        S.I(f"v_mov_b32 v{vA}, 0")
        S.I("s_mov_b32 s22, 0")
        S.I("s_mov_b32 s23, 0")
        savevm = list(S.vm)
        S.I("s_cmp_ge_u32 s26, 880")
        S.I(f"s_cbranch_scc1 L_{name}_sj0")
        S.I("s_cmp_ge_u32 s26, 480")
        S.I(f"s_cbranch_scc1 L_{name}_sjc")
        mk_srd(S, SJA, 24, 25, 1966080)
        S.I(f"s_mul_hi_u32 s36, s26, {(2**32 + 47)//48}")
        S.I("s_mul_i32 s39, s36, 48")
        S.I("s_sub_u32 s39, s26, s39")
        S.I(f"s_mul_i32 s22, s36, {4*H1F_RT}")
        S.I("s_lshl_b32 s23, s39, 10")
        S.I("s_add_u32 s22, s22, s23")
        S.I(f"s_mov_b32 s23, {H1F_RT}")
        S.I("s_mul_i32 s39, s39, 40960")
        S.I("s_lshl_b32 s36, s36, 7")
        S.I("s_add_u32 s36, s36, s39")
        S.I(f"v_lshrrev_b32 v{t1}, 3, v0")
        S.I(f"v_mul_u32_u24 v{t1}, 1280, v{t1}")
        S.I(f"v_and_b32 v{t2}, 7, v0")
        S.I(f"v_lshl_add_u32 v{t1}, v{t2}, 4, v{t1}")
        for e in range(4):
            S.I(f"s_add_u32 m0, s27, {1024*e}")
            S.I(f"buffer_load_dwordx4 v{t1}, s[{SJA}:{SJA+3}], s36 offen lds")
            if e < 3: S.I("s_add_u32 s36, s36, 10240")
        S.I(f"v_lshrrev_b32 v{t1}, 1, v{vG_}")
        S.I(f"v_lshlrev_b32 v{t1}, 11, v{t1}")
        S.I(f"v_and_b32 v{t2}, 1, v{vG_}")
        S.I(f"v_lshl_add_u32 v{t1}, v{t2}, 9, v{t1}")
        S.I(f"v_lshrrev_b32 v{t2}, 2, v{vC_}")
        S.I(f"v_lshl_add_u32 v{t1}, v{t2}, 7, v{t1}")
        S.I(f"v_and_b32 v{t2}, 3, v{vC_}")
        S.I(f"v_lshl_add_u32 v{t1}, v{t2}, 3, v{t1}")
        S.I(f"v_add_u32 v{vA}, s27, v{t1}")
        S.I(f"s_branch L_{name}_sj0")
        S.label(f"L_{name}_sjc")
        mk_srd(S, SJA, 14, 15, 819200)
        mk_srd(S, SJB, 16, 17, 819200)
        S.I("s_sub_u32 s39, s26, 480")
        S.I(f"s_mul_hi_u32 s36, s39, {(2**32 + 9)//10}")
        S.I("s_mul_i32 s22, s36, 10")
        S.I("s_sub_u32 s39, s39, s22")
        S.I(f"s_mul_i32 s22, s36, {HF_RT}")
        S.I("s_lshl_b32 s23, s39, 12")
        S.I("s_add_u32 s22, s22, s23")
        S.I(f"s_add_u32 s22, s22, {CF_OFF - W2F_OFF}")
        S.I("s_mov_b32 s23, 1024")
        S.I("s_mul_i32 s36, s36, 20480")
        S.I("s_lshl_b32 s39, s39, 7")
        S.I("s_add_u32 s36, s36, s39")
        S.I("s_add_u32 s39, s36, 10240")
        for (srd_, mo) in ((SJA, 0), (SJB, 2048)):
            S.I(f"s_add_u32 m0, s27, {mo}")
            S.I(f"buffer_load_dwordx4 v{vBB}, s[{srd_}:{srd_+3}], s36 offen lds")
            S.I(f"s_add_u32 m0, s27, {mo+1024}")
            S.I(f"buffer_load_dwordx4 v{vBB}, s[{srd_}:{srd_+3}], s39 offen lds")
        S.I(f"v_and_b32 v{t1}, 1, v{vG_}")
        S.I(f"v_lshlrev_b32 v{t1}, 11, v{t1}")
        S.I(f"v_lshl_add_u32 v{t1}, v{vC_}, 7, v{t1}")
        S.I(f"v_lshrrev_b32 v{t2}, 1, v{vG_}")
        S.I(f"v_and_b32 v{t3}, 7, v{vC_}")
        S.I(f"v_xor_b32 v{t2}, v{t2}, v{t3}")
        S.I(f"v_lshl_add_u32 v{t1}, v{t2}, 4, v{t1}")
        S.I(f"v_add_u32 v{vA}, s27, v{t1}")
        S.label(f"L_{name}_sj0")
        S.vm = savevm
    def adv():
        return [("s_add_u32 s26, s26, 1", None), ("s_cmp_eq_u32 s26, 10", None), ("s_cselect_b32 s26, 0, s26", None)]

    S = Stream(A)
    stamp, st = mkstamp(S)
    ACC = 16
    BUF = 56
    CA, CSB, CCO, CCX, CAS, CSBS = 168, 173, 178, 183, 188, 193
    A8, SB8, A128, SB128 = 198, 200, 202, 204
    SUM, SQ, ONE = 206, 214, 222
    MRV, RV = 226, 234
    DV = 246
    vG_, vC_, vSg = 1, 2, 3
    SX, SBBS = 40, 44
    if "early" in dbg: stamp()
    S.I(f"s_mul_i32 s36, s32, {128*1280}")
    mk_srd(S, SX, 4, 5, 128 * 1280, 36)
    S.I("v_lshrrev_b32 v4, 3, v0")
    S.I("v_and_b32 v5, 7, v0")
    S.I("v_and_b32 v6, 2, v4")
    S.I("v_lshrrev_b32 v7, 2, v4")
    S.I("v_or_b32 v6, v6, v7")
    S.I("v_xor_b32 v6, v6, v5")
    S.I("s_mul_i32 s36, s35, 40960")
    S.I("v_mul_u32_u24 v7, 1280, v4")
    S.I("v_add_u32 v8, s36, v7")
    for e in range(4):
        S.I(f"v_xor_b32 v9, {4 if e >= 2 else 0}, v6")
        S.I(f"v_lshl_add_u32 v{DV+e}, v9, 4, v8")
        if e: S.I(f"v_add_u32 v{DV+e}, {10240*e}, v{DV+e}")
    S.I("v_xor_b32 v9, v4, v5")
    S.I(f"v_lshl_add_u32 v{DV+4}, v9, 4, v7")
    S.I("s_lshl_b32 s37, s35, 12")
    S.I("s_mov_b32 s36, s35")
    bb_srd(S, SBBS, 27)
    def s_dma(p):
        q = p % 4
        L = []
        for e in range(4):
            g = [(f"s_add_u32 m0, s37, {q*SLOT + 1024*e}", None), (f"buffer_load_dwordx4 v{DV+e}, s[{SX}:{SX+3}], s38 offen lds", f"c{p}")]
            if e == 0: g = [("s_lshl_b32 s38, s26, 7", None)] + g
            L.append(g)
        L.append([(f"s_add_u32 m0, s27, {q*SLOT}", None), (f"buffer_load_dwordx4 v{DV+4}, s[{SBBS}:{SBBS+3}], s38 offen lds", f"c{p}")] + adv())
        return L
    S.I(f"v_lshrrev_b32 v{vG_}, 4, v0")
    S.I(f"v_and_b32 v{vC_}, 15, v0")
    if "early" in dbg: stamp()
    emit(S, s_dma(0))
    if "early" in dbg: stamp()
    def pslots(t):
        return (CCO + t, CCX + t, CAS + t) if t < 5 else (A128, SB128, A128 + 1)
    def par_issue():
        S.I("v_and_b32 v11, 7, v0")
        S.I("v_lshlrev_b32 v11, 1, v11")
        S.I(f"v_add_u32 v11, {PAR_L}, v11")
        S.I(f"v_lshlrev_b32 v12, 4, v{vG_}")
        S.I("v_add_u32 v12, v11, v12")
        for t in range(6):
            vo = "v11" if t < 5 else "v12"
            off = 16 * t if t < 5 else 0
            lre, lim, ldt = pslots(t)
            S.I(f"ds_read_u16 v{lre}, {vo} offset:{off}")
            S.I(f"ds_read_u16 v{lim}, {vo} offset:{off+128}")
            S.I(f"ds_read_u16 v{ldt}, {vo} offset:{off+256}")
    SJA, SJB, SWS = 56, 60, 64
    TT = BUF + 48
    S.I(f"v_lshrrev_b32 v{TT}, 2, v{vC_}")
    S.I(f"v_and_b32 v{TT+1}, 3, v{vC_}")
    S.I(f"v_lshlrev_b32 v{TT+2}, 3, v{TT}")
    S.I(f"v_add_u32 v{TT+2}, v{TT+2}, v{TT+1}")
    S.I("s_lshl_b32 s36, s35, 5")
    S.I(f"v_add_u32 v{TT+2}, s36, v{TT+2}")
    S.I(f"v_lshlrev_b32 v{TT+2}, 7, v{TT+2}")
    S.I(f"v_lshrrev_b32 v{TT+3}, 1, v{TT}")
    S.I(f"v_lshlrev_b32 v{TT+3}, 2, v{TT+3}")
    S.I(f"v_and_b32 v{TT+4}, 2, v{TT+1}")
    S.I(f"v_or_b32 v{TT+3}, v{TT+3}, v{TT+4}")
    S.I(f"v_xor_b32 v{TT+3}, v{TT+3}, v{vG_}")
    for T in range(2):
        for sp in range(2):
            d = 4 + 2 * T + sp
            S.I(f"v_xor_b32 v{TT+4}, {(4*sp) ^ T}, v{TT+3}")
            S.I(f"v_lshl_add_u32 v{d}, v{TT+4}, 4, v{TT+2}")
            if T: S.I(f"v_add_u32 v{d}, 512, v{d}")
    S.I(f"v_and_b32 v{TT}, 7, v{vC_}")
    S.I(f"v_xor_b32 v{TT}, v{TT}, v{vG_}")
    S.I(f"v_lshlrev_b32 v{TT+1}, 7, v{vC_}")
    for sp in range(2):
        S.I(f"v_xor_b32 v{TT+2}, {4*sp}, v{TT}")
        S.I(f"v_lshl_add_u32 v{8+sp}, v{TT+2}, 4, v{TT+1}")
        S.I(f"v_add_u32 v{8+sp}, {BB_O}, v{8+sp}")
    for k in range(4): S.I(f"v_mov_b32 v{ONE+k}, 0x3f803f80")
    S.I(f"v_mul_u32_u24 v10, 80, v{vG_}")
    S.I(f"v_lshrrev_b32 v{vSg}, 3, v{vC_}")
    S.I(f"v_cvt_f32_u32 v{vSg}, v{vSg}")
    S.I(f"v_fma_f32 v{vSg}, v{vSg}, 2.0, -1.0")
    S.I(f"s_mov_b32 s20, {LOG2E}")
    S.I(f"s_mov_b32 s21, {INV2PI}")
    def powr(ar, rev, n, da, dsb, t0):
        L = []
        if n is None:
            L.append(f"v_exp_f32 v{t0}, v{ar}")
            L.append(f"v_fract_f32 v{t0+1}, v{rev}")
        else:
            L.append(f"v_mul_f32 v{t0}, {n}, v{ar}")
            L.append(f"v_mul_f32 v{t0+1}, {n}, v{rev}")
            L.append(f"v_exp_f32 v{t0}, v{t0}")
            L.append(f"v_fract_f32 v{t0+1}, v{t0+1}")
        L.append(f"v_cos_f32 v{t0+2}, v{t0+1}")
        L.append(f"v_sin_f32 v{t0+3}, v{t0+1}")
        L.append(f"v_mul_f32 v{t0+3}, v{t0}, v{t0+3}")
        L.append(f"v_mul_f32 v{da}, v{t0}, v{t0+2}")
        L.append(f"v_mul_f32 v{dsb}, v{t0+3}, v{vSg}")
        return L
    def arrev(t):
        return (CAS + t, CSBS + t) if t < 5 else (A128, SB128)
    partA = ["s_lshl_b32 s36, s35, 2", f"v_add_u32 v245, s36, v{vG_}", "v_lshlrev_b32 v245, 3, v245", "v_cvt_f32_u32 v245, v245"]
    for t in range(6):
        lre, lim, ldt = pslots(t)
        ar, rev = 242, 243
        partA += [f"v_lshlrev_b32 v{lre}, 16, v{lre}", f"v_lshlrev_b32 v{lim}, 16, v{lim}", f"v_lshlrev_b32 v11, 16, v{ldt}",
                  "v_mul_f32 v11, s20, v11", "v_exp_f32 v11, v11", "v_cvt_pk_bf16_f32 v11, 0, v11",
                  f"v_mul_f32 v12, v11, v{lre}", f"v_mul_f32 v13, v11, v{lim}",
                  f"v_mul_f32 v{ar}, s20, v12", f"v_mul_f32 v{rev}, s21, v13"]
        if t < 5:
            partA += powr(ar, rev, None, CA + t, CSB + t, 11)
            partA += [f"v_add_f32 v11, -1.0, v{CA+t}", f"v_mul_f32 v12, v{lre}, v{lre}", f"v_fmac_f32 v12, v{lim}, v{lim}",
                      "v_rcp_f32 v12, v12", f"v_mul_f32 v13, v11, v{lre}", f"v_fmac_f32 v13, v14, v{lim}",
                      f"v_mul_f32 v244, v14, v{lre}", f"v_fma_f32 v244, -v11, v{lim}, v244", "v_mul_f32 v12, -2.0, v12",
                      f"v_mul_f32 v{CCX+t}, v244, v12", "v_mul_f32 v13, v13, v12", f"v_mul_f32 v{CCO+t}, v13, v{vSg}"]
            partA += powr(ar, rev, "v245", CAS + t, CSBS + t, 11)
        if t >= 4:
            k = 1 if t == 4 else 0
            partA += powr(ar, rev, f"{f2u(8.0)}", A8 + k, SB8 + k, 11)
            partA += powr(ar, rev, f"{f2u(128.0)}", 254 if t == 4 else A128, 255 if t == 4 else SB128, 11)
    partA += [f"v_mov_b32 v{A128+1}, v254", f"v_mov_b32 v{SB128+1}, v255"]
    SAG, SST = 48, 52
    S.I(f"s_mul_i32 s36, s33, {AGG_G}")
    mk_srd(S, SAG, 30, 31, AGG_G, 36, AGG_OFF)
    emit(S, s_dma(1))
    S.raw(";;DRYPT")
    stamp()
    def s_reads(p):
        b = BUF + (p & 1) * 56
        L = []
        for sp in range(2):
            for T in range(2):
                L.append([(f"ds_read_b128 {vr(b+(sp*2+T)*4,4)}, v{4+2*T+sp}", f"r{p}")])
            for j in range(5):
                L.append([(f"ds_read_b128 {vr(b+16+(sp*5+j)*4,4)}, v{8+sp} offset:{2048*j}", f"r{p}")])
        delta = SLOT if p % 4 != 3 else (-3 * SLOT) & 0xffffffff
        L.append([(f"v_add_u32 v{k}, {delta}, v{k}", None) for k in range(4, 10)])
        return L
    def s_stat(p):
        b = BUF + (p & 1) * 56
        L = []
        for sp in range(2):
            for T in range(2):
                x = vr(b + (sp * 2 + T) * 4, 4)
                z = (p == 0 and sp == 0)
                L.append(f"v_mfma_f32_16x16x32_bf16 {vr(SUM+4*T,4)}, {x}, {vr(ONE,4)}, {'0' if z else vr(SUM+4*T,4)}")
                L.append(f"v_mfma_f32_16x16x32_bf16 {vr(SQ+4*T,4)}, {x}, {x}, {'0' if z else vr(SQ+4*T,4)}")
        return L
    def s_mfma(p):
        b = BUF + (p & 1) * 56
        L = []
        for sp in range(2):
            for j in range(5):
                for T in range(2):
                    ac = ACC + 8 * j + 4 * T
                    c = "0" if (p == 0 and sp == 0) else vr(ac, 4)
                    L.append(f"v_mfma_f32_16x16x32_bf16 {vr(ac,4)}, {vr(b+(sp*2+T)*4,4)}, {vr(b+16+(sp*5+j)*4,4)}, {c}")
        return L
    for p in range(10):
        S.wait_vm(f"c{p}")
        S.I("s_barrier")
        stamp(True)
        if p in (0, 9): stamp()
        side = s_dma(p + 3) if p + 3 <= 9 else []
        if p == 0: side = s_dma(2)
        if p == 1: side = s_dma(3) + side
        rd = s_reads(p)
        if p == 2:
            par_issue()
        fill = []
        if 3 <= p <= 8:
            nper = (len(partA) + 5) // 6
            fill = [[(m, None)] for m in partA[(p - 3) * nper:(p - 2) * nper]]
        if p == 9:
            fill += [[("s_lshl_b32 s36, s32, 7", None), (f"s_add_u32 s36, s36, {GO_O}", None), ("v_mov_b32 v15, s36", None),
                      (f"buffer_load_dword v15, v15, s[{SAG}:{SAG+3}], 0 offen sc1", "clr")]]
        if "dmaonly" in dbg: emit(S, side)
        elif p == 0: emit(S, rd + side + fill)
        else: merge(S, s_stat(p - 1) + s_mfma(p - 1), mix(mix(rd, side), fill), 0.9)
        S.wait_lg()
    S.raw(";;DRYSTART")
    if "fine" in dbg: stamp()
    for m in s_stat(9): S.I(m)
    mm = s_mfma(9)
    CSV = BUF + 16
    S.I(f"v_lshlrev_b32 v12, 2, v{vC_}")
    for m in mm[:5]: S.I(m)
    for T in range(2):
        for r in range(4):
            S.I(f"ds_bpermute_b32 v{SQ+4*T+r}, v10, v{SQ+4*T+r} offset:{4*r}", tag="bp")
    for m in mm[5:9]: S.I(m)
    S.wait_lg("bp")
    if "fine" in dbg: stamp()
    fin = []
    K640 = f2u(1.0 / 640)
    for step in range(12):
        for k in range(8):
            su, sq = SUM + k, SQ + k
            fin.append([
                f"v_mul_f32 v{su}, {K640}, v{su}",
                f"v_mul_f32 v{sq}, {K640}, v{sq}",
                f"v_fma_f32 v{sq}, -v{su}, v{su}, v{sq}",
                f"v_max_f32 v{sq}, 0, v{sq}",
                f"v_cvt_pk_bf16_f32 v{su}, 0, v{su}",
                f"v_cvt_pk_bf16_f32 v{sq}, 0, v{sq}",
                f"v_add_f32 v{sq}, {f2u(1e-5)}, v{sq}",
                f"v_cvt_pk_bf16_f32 v{sq}, 0, v{sq}",
                f"v_sqrt_f32 v{sq}, v{sq}",
                f"v_cvt_pk_bf16_f32 v{sq}, 0, v{sq}",
                f"v_rcp_f32 v{RV+k}, v{sq}",
                f"v_mul_f32 v{MRV+k}, v{su}, v{RV+k}"][step])
    adds = ["s_lshl_b32 s36, s35, 7", f"v_lshlrev_b32 v13, 5, v{vG_}", "v_add_u32 v13, s36, v13", f"v_add_u32 v14, {STATS_L}, v13",
             "s_mul_i32 s36, s35, 1280", f"v_mul_u32_u24 v6, 320, v{vG_}", "v_add3_u32 v6, v6, v12, s36", f"v_add_u32 v7, {SEG_L}, v6",
             "v_lshlrev_b32 v8, 2, v0", f"v_add_u32 v9, {SEG_L}, v8", "v_mov_b32 v10, v12", f"v_add_u32 v11, {SEG_L+256}, v10",
             "s_lshl_b32 s38, s35, 2", f"s_add_u32 s38, s38, {CNT_L+16}", f"v_add_u32 v13, {CSB_L}, v12"]
    fin = fin[:40] + adds + fin[40:]
    merge(S, mm[9:], [[(m, None)] for m in fin], 1.0)
    stamp()
    cnt_wait(S, f"L_{name}_e0", 4, 5, CNT_L + 4, 4)
    if "noprio" not in dbg: S.I("s_setprio 3")
    if "f2" in dbg: stamp()
    for wv in range(4):
        for j in range(5):
            S.I(f"ds_read_b32 v{CSV+5*wv+j}, v13 offset:{320*wv+64*j}", tag="stt")
    S.I("s_mov_b32 exec_lo, 0x00010001")
    S.I("s_mov_b32 exec_hi, 0x00010001")
    for k in range(2):
        S.I(f"ds_write_b128 v14, {vr(MRV+4*k,4)} offset:{16*k}")
        S.I(f"ds_write_b128 v14, {vr(RV+4*k,4)} offset:{512+16*k}")
    cnt_add(S, 4, 5, "s38")
    for t2 in range(4):
        for j in range(5):
            a = ACC + 8 * j + 2 * t2
            S.I(f"v_mul_f32 v{a}, v{a}, v{RV+2*t2}")
            S.I(f"v_mul_f32 v{a+1}, v{a+1}, v{RV+2*t2+1}")
    S.wait_lg("stt")
    if "f2" in dbg: stamp()
    for j in range(5):
        S.I(f"v_add_f32 v{CSV+j}, v{CSV+j}, v{CSV+5+j}")
        S.I(f"v_add_f32 v{CSV+10+j}, v{CSV+10+j}, v{CSV+15+j}")
    for j in range(5):
        S.I(f"v_add_f32 v{CSV+j}, v{CSV+j}, v{CSV+10+j}")
    EA, EB = BUF + 40, BUF + 45
    cur = None
    for tl in range(8):
        for j in range(5):
            a = ACC + 8 * j + tl
            S.I(f"v_fma_f32 v{a}, -v{MRV+tl}, v{CSV+j}, v{a}")
        if tl == 0:
            cur = [ACC + 8 * j for j in range(5)]
        else:
            dst = EA if tl & 1 else EB
            for j in range(5):
                S.I(f"v_fma_f32 v{dst+j}, v{CA+j}, v{cur[j]}, v{ACC+8*j+tl}")
            for j in range(5):
                S.I(f"v_fmac_f32_dpp v{dst+j}, v{cur[j]}, v{CSB+j} {DPP}")
            cur = [dst + j for j in range(5)]
    if "f2" in dbg: stamp()
    for j in range(5):
        S.I(f"ds_write_b32 v7, v{cur[j]} offset:{64*j}")
    cnt_add(S, 4, 5, CNT_L)
    S.I("s_waitcnt vmcnt(0)")
    S.vm = []
    if "f2" in dbg: stamp()
    cnt_wait(S, f"L_{name}_x1", 4, 5, CNT_L, 4)
    stamp()
    EC = BUF + 56
    for s_ in range(16):
        S.I(f"ds_read_b32 v{EC+s_}, v9 offset:{320*s_}", tag=f"e{s_}")
        S.I(f"ds_read_b32 v{EC+16+s_}, v11 offset:{320*s_}", tag=f"e{s_}")
    S.I("v_lshlrev_b32 v4, 3, v0")
    S.I(f"v_lshlrev_b32 v5, 3, v{vC_}")
    PB = BUF + 90
    S.I(f"v_mov_b32 v{PB+1}, {TAG}")
    S.I(f"v_mov_b32 v{PB+3}, {TAG}")
    S.I("s_add_u32 s37, s32, 15")
    S.I("s_mul_i32 s37, s37, 640")
    for s_ in range(1, 16):
        S.wait_lg(f"e{s_}")
        for k in range(2):
            S.I(f"v_fmac_f32 v{EC+16*k+s_}, v{A8+k}, v{EC+16*k+s_-1}")
        for k in range(2):
            S.I(f"v_fmac_f32_dpp v{EC+16*k+s_}, v{EC+16*k+s_-1}, v{SB8+k} {DPP}")
    S.I("s_cmp_lg_u32 s35, 0")
    S.I(f"s_cbranch_scc1 L_{name}_nopub")
    S.I(f"v_mov_b32 v{PB}, v{EC+15}")
    S.I(f"v_mov_b32 v{PB+2}, v{EC+31}")
    S.I(f"buffer_store_dwordx2 {vr(PB,2)}, v4, s[{SAG}:{SAG+3}], s37 offen sc1")
    S.vm.pop()
    S.I(f"buffer_store_dwordx2 {vr(PB+2,2)}, v5, s[{SAG}:{SAG+3}], s37 offen offset:512 sc1")
    S.vm.pop()
    S.label(f"L_{name}_nopub")
    stamp()
    GL = BUF
    G0, G1 = 206, 221
    QV = BUF + 96
    S.I("v_lshlrev_b32 v252, 4, v0")
    S.I("s_mul_i32 s70, s32, 640")
    S.I("s_add_u32 s71, s70, 4096")
    S.I("s_add_u32 s69, s70, 8192")
    def gran_issue():
        for n in range(10):
            so = "s70" if n < 4 else ("s71" if n < 8 else "s69")
            S.I(f"buffer_load_dwordx4 {vr(GL+4*n,4)}, v252, s[{SAG}:{SAG+3}], {so} offen offset:{(n%4)*1024} sc1")
        S.vm = []
    def qstuff():
        S.I(f"v_add_u32 v9, {Q_L}, v8")
        S.I(f"v_add_u32 v11, {Q_L+256}, v10")
        S.I(f"v_mov_b32 v{PB}, 0")
        S.I(f"ds_write_b32 v9, v{PB}", tag="q")
        for s_ in range(15):
            S.I(f"ds_write_b32 v9, v{EC+s_} offset:{320*(s_+1)}", tag="q")
        S.I("s_mov_b64 exec, 0xffff")
        S.I(f"ds_write_b32 v11, v{PB}", tag="q")
        for s_ in range(15):
            S.I(f"ds_write_b32 v11, v{EC+16+s_} offset:{320*(s_+1)}", tag="q")
        S.I("s_mov_b64 exec, -1")
        S.I(f"v_add_u32 v7, {Q_L}, v6")
        for j in range(5):
            S.I(f"ds_read_b32 v{QV+j}, v7 offset:{64*j}", tag="qv")
    qstuff()
    S.I(f"v_add_u32 v9, {HS_L}, v8")
    S.I(f"v_add_u32 v11, {HS_L}, v10")
    S.I("s_cmp_lg_u32 s35, 0")
    S.I(f"s_cbranch_scc1 L_{name}_hw")
    S.I("s_cmp_eq_u32 s32, 0")
    S.I(f"s_cbranch_scc1 L_{name}_r0")
    S.I("s_mov_b32 s39, 0")
    S.I("s_lshl_b32 s38, s32, 7")
    S.I(f"s_add_u32 s38, s38, {GO_O}")
    S.I("v_mov_b32 v14, s38")
    S.label(f"L_{name}_cl")
    S.I("v_readfirstlane_b32 s38, v15")
    S.I("s_add_u32 s39, s39, 1")
    S.I(f"s_cmp_eq_u32 s38, {TAG}")
    S.I(f"s_cbranch_scc1 L_{name}_clok")
    S.I(f"buffer_load_dword v15, v14, s[{SAG}:{SAG+3}], 0 offen sc1")
    S.I("s_waitcnt vmcnt(0)")
    S.I("s_cmp_lt_u32 s39, 0x100000" if "nosync" not in dbg else "s_cmp_lt_u32 s39, 0")
    S.I(f"s_cbranch_scc1 L_{name}_cl")
    S.label(f"L_{name}_clok")
    gran_issue()
    S.I(f"v_mov_b32 v14, {TAG}")
    S.I(f"v_add_u32 v4, {GR_L}, v4")
    S.I(f"v_add_u32 v5, {GR_L}, v5")
    S.I(f"v_add_u32 v253, {GR_L}, v252")
    S.I("v_cmp_gt_u32 s[22:23], 24, v0")
    S.I("s_sub_u32 s38, 15, s32")
    S.I("s_mul_i32 s38, s38, 640")
    S.I("s_lshr_b32 s38, s38, 10")
    S.I("s_mov_b32 s39, 0")
    S.label(f"L_{name}_gp")
    S.I("s_waitcnt vmcnt(0)")
    S.I(f"v_cndmask_b32 v{GL+37}, v14, v{GL+37}, s[22:23]")
    S.I(f"v_cndmask_b32 v{GL+39}, v14, v{GL+39}, s[22:23]")
    S.I(f"v_and_b32 v12, v{GL+1}, v{GL+3}")
    S.I(f"v_or_b32 v13, v{GL+1}, v{GL+3}")
    for n in range(1, 10):
        S.I(f"v_and_b32 v15, v{GL+4*n+1}, v{GL+4*n+3}")
        S.I(f"v_or3_b32 v13, v13, v{GL+4*n+1}, v{GL+4*n+3}")
        S.I("v_and_b32 v12, v12, v15")
    S.I("v_cmp_eq_u32 vcc, v12, v14")
    S.I("v_cmp_eq_u32 s[24:25], v13, v14")
    S.I("s_and_b64 s[24:25], s[24:25], vcc")
    S.I("s_add_u32 s39, s39, 1")
    S.I("s_cmp_eq_u64 s[24:25], -1")
    S.I(f"s_cbranch_scc1 L_{name}_gpv")
    S.I("s_cmp_ge_u32 s39, 0x40000" if "nosync" not in dbg else "s_cmp_ge_u32 s39, 0")
    S.I(f"s_cbranch_scc1 L_{name}_gpv")
    for n in range(10):
        so = "s70" if n < 4 else ("s71" if n < 8 else "s69")
        if n < 9:
            S.I(f"s_cmp_gt_u32 s38, {n}")
            S.I(f"s_cbranch_scc1 L_{name}_gs{n}")
        S.I(f"buffer_load_dwordx4 {vr(GL+4*n,4)}, v252, s[{SAG}:{SAG+3}], {so} offen offset:{(n%4)*1024} sc1")
        if n < 9: S.label(f"L_{name}_gs{n}")
    S.I(f"s_branch L_{name}_gp")
    S.label(f"L_{name}_gpv")
    for n in range(10):
        S.I(f"ds_write_b128 v253, {vr(GL+4*n,4)} offset:{1024*n}")
    for d in range(15, 0, -1):
        o = (15 - d) * 640
        S.I(f"ds_read_b32 v{G0+d-1}, v4 offset:{o}")
        S.I(f"ds_read_b32 v{G1+d-1}, v5 offset:{o+512}")
    S.I("s_waitcnt lgkmcnt(0)")
    S.label(f"L_{name}_gpok")
    S.lg = []; S.vm = []
    for d in range(14, 0, -1):
        for (g_, k) in ((G0, 0), (G1, 1)):
            S.I(f"v_fmac_f32 v{g_+d-1}, v{A128+k}, v{g_+d}")
        for (g_, k) in ((G0, 0), (G1, 1)):
            S.I(f"v_fmac_f32_dpp v{g_+d-1}, v{g_+d}, v{SB128+k} {DPP}")
    S.I(f"s_branch L_{name}_hp")
    S.label(f"L_{name}_r0")
    S.I(f"v_mov_b32 v{G0}, 0")
    S.I(f"v_mov_b32 v{G1}, 0")
    S.label(f"L_{name}_hp")
    S.I(f"ds_write_b32 v9, v{G0}", tag="h")
    S.I(f"ds_write_b32 v11, v{G1} offset:256", tag="h")
    cnt_add(S, 12, 13, CNT_L + 12)
    S.label(f"L_{name}_hw")
    cnt_wait(S, f"L_{name}_hwl", 12, 13, CNT_L + 12, 1)
    stamp()
    HV = BUF + 32
    for j in range(5):
        S.I(f"ds_read_b32 v{HV+j}, v11 offset:{64*j}", tag="hv")
    S.I(f"v_mul_u32_u24 v9, 272, v{vC_}")
    S.I(f"v_lshlrev_b32 v12, 4, v{vG_}")
    S.I("s_lshl_b32 s36, s35, 6")
    S.I("v_add3_u32 v9, v9, v12, s36")
    S.wait_lg()
    for j in range(5):
        S.I(f"v_fmac_f32 v{QV+j}, v{CAS+j}, v{HV+j}")
    for j in range(5):
        S.I(f"v_fmac_f32_dpp v{QV+j}, v{HV+j}, v{CSBS+j} {DPP}")
    for tl in range(8):
        prev = [QV + j if tl == 0 else ACC + 8 * j + tl - 1 for j in range(5)]
        for j in range(5):
            S.I(f"v_fmac_f32 v{ACC+8*j+tl}, v{CA+j}, v{prev[j]}")
        for j in range(5):
            S.I(f"v_fmac_f32_dpp v{ACC+8*j+tl}, v{prev[j]}, v{CSB+j} {DPP}")
    OV = BUF + 40
    PK = BUF + 80
    for j in range(5):
        p_, sel = pr(CCO + j)
        for t2 in range(4):
            S.I(f"v_pk_mul_f32 {vr(OV+8*j+2*t2,2)}, {vr(ACC+8*j+2*t2,2)}, {p_} op_sel:[0,{sel}] op_sel_hi:[1,{sel}]")
        for tl in range(8):
            S.I(f"v_fmac_f32_dpp v{OV+8*j+tl}, v{ACC+8*j+tl}, v{CCX+j} {DPP}")
        for k in range(4):
            S.I(f"v_cvt_pk_bf16_f32 v{PK+4*j+k}, v{OV+8*j+2*k}, v{OV+8*j+2*k+1}")
        S.I(f"ds_write_b128 v9, {vr(PK+4*j,4)} offset:{16*272*j}", tag="tw")
    S.I(f"v_lshrrev_b32 v11, 2, v{vC_}")
    S.I("v_mul_u32_u24 v11, 272, v11")
    S.I(f"v_and_b32 v4, 3, v{vC_}")
    S.I("v_lshlrev_b32 v4, 4, v4")
    S.I("v_add3_u32 v11, v11, v4, s36")
    S.I(f"v_mul_u32_u24 v4, {8*272}, v{vG_}")
    S.I("v_add_u32 v4, v11, v4")
    S.I(f"v_and_b32 v5, 1, v{vG_}")
    S.I(f"v_mul_u32_u24 v5, {8*272}, v5")
    S.I(f"v_lshrrev_b32 v7, 1, v{vG_}")
    S.I("v_lshlrev_b32 v7, 3, v7")
    S.I("v_add3_u32 v5, v11, v5, v7")
    SHF = 40
    S.I("s_lshl_b32 s36, s32, 2")
    S.I("s_add_u32 s36, s36, s35")
    S.I(f"s_mul_i32 s36, s36, {2*HF_RT}")
    S.I("s_mul_i32 s37, s33, 2560")
    S.I("s_add_u32 s36, s36, s37")
    mk_srd(S, SHF, 30, 31, HF_RT + 2560, 36, HF_OFF)
    S.I("v_lshlrev_b32 v7, 4, v0")
    S.I(f"v_and_b32 v10, 1, v{vG_}")
    S.I("v_lshlrev_b32 v10, 8, v10")
    S.I(f"v_lshlrev_b32 v8, 4, v{vC_}")
    S.I("v_add_u32 v10, v10, v8")
    S.I(f"v_lshrrev_b32 v8, 1, v{vG_}")
    S.I(f"v_mul_u32_u24 v8, {HF_RT}, v8")
    S.I("v_add_u32 v10, v10, v8")
    S.I(f"s_mov_b32 s37, {HF_RT}")
    S.wait_lg()
    RD = BUF
    for n in range(5):
        for e in range(2):
            if n < 4:
                off = (n & 1) * 32 * 272 + e * 4 * 272 + (n >> 1) * 8
                S.I(f"ds_read_b64_tr_b16 {vr(RD+4*n+2*e,2)}, v4 offset:{off}", tag=f"t{n}")
            else:
                S.I(f"ds_read_b64_tr_b16 {vr(RD+4*n+2*e,2)}, v5 offset:{64*272+e*4*272}", tag=f"t{n}")
    for n in range(5):
        S.wait_lg(f"t{n}")
        if n < 4:
            so = "0" if n < 2 else "s37"
            S.I(f"buffer_store_dwordx4 {vr(RD+4*n,4)}, v7, s[{SHF}:{SHF+3}], {so} offen offset:{(n&1)*1024}{STF}", tag="st")
        else:
            S.I(f"buffer_store_dwordx4 {vr(RD+4*n,4)}, v10, s[{SHF}:{SHF+3}], 0 offen offset:2048{STF}", tag="st")
    final_stamps(S, st)
    S.I("s_endpgm")

    M = Stream(A)
    M.label(f"L_{name}_M")
    stamp, st = mkstamp(M)
    SBB, SW1, SB1, SH1, SDB, SAGM = 40, 48, 52, 56, 60, 64
    MACC, XB, WB, FR = 24, 72, 104, 200
    CBA, CBF, WA, MSK = FR, FR + 20, FR + 40, FR + 52
    lbl = [0]
    if "early" in dbg: stamp()
    M.I("s_cmp_lg_u32 s35, 3")
    M.I("s_cselect_b64 vcc, -1, 0")
    mk_srd(M, SW1, 20, 21, 1966080)
    M.I("s_mul_i32 s39, s33, 192")
    M.I("s_lshl_b32 s36, s35, 8")
    for e in range(4):
        M.I(f"v_add_u32 v22, {64*e}, v0")
        M.I("v_add_u32 v22, s36, v22")
        M.I("v_min_u32 v22, 767, v22")
        M.I("v_mul_u32_u24 v23, 43691, v22")
        M.I("v_lshrrev_b32 v23, 19, v23")
        M.I("v_mul_u32_u24 v9, 12, v23")
        M.I("v_sub_u32 v22, v22, v9")
        M.I("v_lshlrev_b32 v22, 4, v22")
        M.I("v_mul_u32_u24 v23, 3072, v23")
        M.I(f"v_add3_u32 v{1+e}, v22, v23, s39")
    M.I("s_lshl_b32 s68, s35, 12")
    M.I(f"s_add_u32 s68, s68, {W1_O}")
    M.I("s_lshl_b32 s36, s35, 1")
    M.I("s_add_u32 s36, s36, 4")
    M.I("s_min_u32 s36, s36, 8")
    bb_srd(M, SBB, 69)
    M.I("s_lshl_b32 s36, s35, 1")
    M.I("s_add_u32 s36, s36, 5")
    M.I("s_min_u32 s36, s36, 9")
    bb_srd(M, SBB + 4, 70)
    M.I("v_lshrrev_b32 v22, 3, v0")
    M.I("v_and_b32 v23, 7, v0")
    M.I("v_xor_b32 v13, v22, v23")
    M.I("v_mul_u32_u24 v5, 1280, v22")
    M.I("v_lshl_add_u32 v13, v13, 4, v5")
    def guard(g):
        lbl[0] += 1
        return [(f"s_cbranch_vccz L_{name}_g{lbl[0]}", None)] + g + [(f"L_{name}_g{lbl[0]}:", None)]
    def m_dma(p):
        q = p % 4
        L = []
        g = [("s_lshl_b32 s38, s26, 7", None)]
        for e in range(2):
            g += [(f"s_add_u32 m0, s{69+e}, {q*SLOT}", None), (f"buffer_load_dwordx4 v13, s[{SBB+4*e}:{SBB+4*e+3}], s38 offen lds", f"c{p}")]
        L.append(guard(g))
        for e2 in range(2):
            g = [("s_mul_i32 s71, s26, 196608", None)] if e2 == 0 else []
            for e in (2 * e2, 2 * e2 + 1):
                g += [(f"s_add_u32 m0, s68, {q*SLOT + 1024*e}", None), (f"buffer_load_dwordx4 v{1+e}, s[{SW1}:{SW1+3}], s71 offen lds", f"c{p}")]
            if e2 == 1: g += adv()
            L.append(guard(g))
        return L
    def m_wait(tag):
        lbl[0] += 1
        M.I(f"s_cbranch_vccz L_{name}_g{lbl[0]}")
        M.wait_vm(tag)
        M.label(f"L_{name}_g{lbl[0]}")
    M.vm = []
    if "early" in dbg: stamp()
    emit(M, m_dma(0))
    if "early" in dbg: stamp()
    mk_srd(M, SDB, 28, 29, 256)
    M.I(f"s_mul_i32 s36, s33, {AGG_G}")
    mk_srd(M, SAGM, 30, 31, AGG_G, 36, AGG_OFF)
    for k in range(2): M.I(f"v_mov_b32 v{14+k}, 0")
    for k in range(4): M.I(f"v_mov_b32 v{18+k}, 0x3f803f80")
    savevm = list(M.vm)
    M.I(f"s_cbranch_vccnz L_{name}_noclr")
    M.I("v_min_u32 v8, 19, v0")
    M.I("v_lshlrev_b32 v8, 2, v8")
    M.I("s_mul_i32 s36, s33, 80")
    M.I("v_add_u32 v8, s36, v8")
    M.I("global_load_dword v1, v8, s[6:7]")
    M.I("global_load_dword v2, v8, s[8:9]")
    M.I("global_load_dword v3, v8, s[18:19]")
    M.I("v_min_u32 v8, 47, v0")
    M.I("v_lshlrev_b32 v8, 2, v8")
    M.I("s_mul_i32 s36, s33, 192")
    M.I("v_add_u32 v8, s36, v8")
    M.I("global_load_dword v4, v8, s[22:23]")
    M.I("s_lshl_b32 s36, s2, 7")
    mk_srd(M, SB1, 30, 31, 16384, None, YF_OFF)
    M.I("v_mov_b32 v8, s36")
    M.I(f"buffer_store_dword v14, v8, s[{SB1}:{SB1+3}], 0 offen")
    M.I("v_lshlrev_b32 v8, 3, v0")
    M.I("v_and_b32 v10, 15, v0")
    M.I("v_lshlrev_b32 v10, 3, v10")
    M.I("s_add_u32 s37, s32, 15")
    M.I("s_mul_i32 s37, s37, 640")
    M.I(f"buffer_store_dwordx2 v[14:15], v8, s[{SAGM}:{SAGM+3}], s37 offen sc1")
    M.I(f"buffer_store_dwordx2 v[14:15], v10, s[{SAGM}:{SAGM+3}], s37 offen offset:512 sc1")
    M.I("s_lshl_b32 s37, s32, 7")
    M.I(f"s_add_u32 s37, s37, {GO_O}")
    M.I(f"buffer_store_dwordx2 v[14:15], v14, s[{SAGM}:{SAGM+3}], s37 offen sc1")
    M.I("s_cmp_lg_u32 s32, 0")
    M.I(f"s_cbranch_scc1 L_{name}_noclr")
    M.I("v_mov_b32 v10, 0")
    M.I(f"v_mov_b32 v11, {TAG}")
    M.I("s_mov_b32 s37, 0")
    for k in range(19):
        if k == 18:
            M.I("v_min_u32 v8, 376, v8")
        M.I(f"buffer_store_dwordx2 v[10:11], v8, s[{SAGM}:{SAGM+3}], s37 offen offset:{(k%8)*512} sc1")
        if k % 8 == 7: M.I("s_add_u32 s37, s37, 4096")
    M.label(f"L_{name}_noclr")
    M.vm = savevm
    stamp()
    M.I("v_and_b32 v22, 15, v0")
    M.I("v_bfe_u32 v23, v0, 4, 1")
    T1 = XB
    M.I(f"v_lshrrev_b32 v{T1}, 2, v22")
    M.I(f"v_and_b32 v{T1+1}, 3, v22")
    M.I(f"v_lshlrev_b32 v{T1+2}, 3, v{T1}")
    M.I(f"v_lshl_add_u32 v{T1+2}, v23, 2, v{T1+2}")
    M.I(f"v_add_u32 v{T1+2}, v{T1+2}, v{T1+1}")
    M.I("s_lshl_b32 s36, s35, 5")
    M.I(f"v_add_u32 v{T1+5}, s36, v{T1+2}")
    M.I(f"v_lshlrev_b32 v{T1+2}, 7, v{T1+5}")
    M.I(f"v_lshrrev_b32 v{T1+3}, 1, v{T1}")
    M.I(f"v_lshlrev_b32 v{T1+3}, 2, v{T1+3}")
    M.I(f"v_and_b32 v{T1+4}, 2, v{T1+1}")
    M.I(f"v_or3_b32 v{T1+3}, v{T1+3}, v{T1+4}, v23")
    M.I(f"v_lshrrev_b32 v{T1+4}, 5, v0")
    M.I(f"v_xor_b32 v{T1+3}, v{T1+3}, v{T1+4}")
    M.I(f"v_lshlrev_b32 v{T1+6}, 3, v{T1+4}")
    M.I(f"v_bfe_u32 v{T1+7}, v0, 2, 2")
    M.I(f"v_add_u32 v{T1+6}, v{T1+6}, v{T1+7}")
    M.I(f"v_mul_u32_u24 v{T1+6}, 192, v{T1+6}")
    M.I(f"v_lshl_add_u32 v{T1+6}, v23, 5, v{T1+6}")
    M.I(f"v_and_b32 v{T1+7}, 3, v0")
    M.I(f"v_lshl_add_u32 v{T1+6}, v{T1+7}, 3, v{T1+6}")
    M.I(f"v_add_u32 v{T1+6}, {W1_O}, v{T1+6}")
    M.I(f"v_xor_b32 v{T1+7}, v23, v0")
    M.I(f"v_and_b32 v{T1+7}, 1, v{T1+7}")
    M.I(f"v_add_u32 v{T1+7}, -1, v{T1+7}")
    M.I(f"v_and_b32 v{MSK}, 0x3f803f80, v{T1+7}")
    for k in range(1, 4): M.I(f"v_mov_b32 v{MSK+k}, v{MSK}")
    for u in range(4):
        M.I(f"v_xor_b32 v{T1+4}, {2*u}, v{T1+3}")
        M.I(f"v_lshl_add_u32 v{5+u}, v{T1+4}, 4, v{T1+2}")
    for j2 in range(3):
        M.I(f"s_add_u32 s36, s35, {j2}")
        M.I("s_sub_u32 s39, s36, 3")
        M.I("s_cmp_ge_u32 s36, 3")
        M.I(f"s_cselect_b32 s{4+j2}, s39, s36")
        M.I(f"s_lshl_b32 s39, s{4+j2}, 6")
        M.I(f"v_add_u32 v{9+j2}, s39, v{T1+6}")
    M.I(f"v_lshlrev_b32 v23, 3, v{T1+5}")
    mk_srd(M, SB1, 22, 23, 3072)
    M.I(f"v_lshrrev_b32 v{T1}, 4, v0")
    M.I("s_and_b32 s36, s35, 1")
    M.I("s_lshl_b32 s36, s36, 2")
    M.I(f"v_add_u32 v{T1}, s36, v{T1}")
    M.I(f"v_and_b32 v{T1+1}, 7, v0")
    M.I(f"v_xor_b32 v{T1}, v{T1}, v{T1+1}")
    M.I(f"v_lshlrev_b32 v{T1+1}, 7, v22")
    M.I(f"v_lshl_add_u32 v16, v{T1}, 4, v{T1+1}")
    M.I(f"v_add_u32 v16, {BB_O}, v16")
    M.I(f"v_lshlrev_b32 v{T1}, 3, v0")
    M.I(f"v_min_u32 v{T1}, 408, v{T1}")
    M.I(f"v_add_u32 v{T1}, {CSW_L}, v{T1}")
    M.I(f"ds_write_b64 v{T1}, v[14:15]")
    for k in range(20): M.I(f"v_mov_b32 v{CBA+k}, 0")
    M.I("s_lshr_b32 s37, s35, 1")
    emit(M, m_dma(1))
    M.raw(";;DRYPT")
    def m_reads(p):
        L = []
        for u in range(4):
            L.append([(f"ds_read_b128 {vr(XB+16*(p&1)+4*u,4)}, v{5+u}", f"r{p}")])
            for jt in range(3):
                L.append([(f"ds_read_b64_tr_b16 {vr(WB+48*(p&1)+12*u+4*jt+2*e,2)}, v{9+jt} offset:{u*3072+e*768}", f"r{p}") for e in range(2)])
        delta = SLOT if p % 4 != 3 else (-3 * SLOT) & 0xffffffff
        L.append([(f"v_add_u32 v{k}, {delta}, v{k}", None) for k in range(5, 12)])
        return L
    def m_mfma(p):
        L = []
        for u in range(4):
            c = "0" if (p == 0 and u < 2) else vr(WA + 4 * (u & 1), 4)
            L.append(f"v_mfma_f32_16x16x32_bf16 {vr(WA+4*(u&1),4)}, {vr(WB+48*(p&1)+12*u,4)}, {vr(MSK,4)}, {c}")
        for u in range(4):
            for jt in range(3):
                c = "0" if (p == 0 and u == 0) else vr(MACC + 16 * jt, 16)
                L.append(f"v_mfma_f32_32x32x16_bf16 {vr(MACC+16*jt,16)}, {vr(WB+48*(p&1)+12*u+4*jt,4)}, {vr(XB+16*(p&1)+4*u,4)}, {c}")
        return L
    B1V = WB + 24
    for p in range(10):
        m_wait(f"c{p}")
        if p == 1:
            M.I(f"s_cbranch_vccnz L_{name}_w7")
            M.I("s_waitcnt vmcnt(0)")
            M.I("v_min_u32 v17, 19, v0")
            M.I("v_lshlrev_b32 v17, 2, v17")
            M.I(f"v_add_u32 v17, {PAR_L}, v17")
            M.I("ds_write_b32 v17, v1")
            M.I("ds_write_b32 v17, v2 offset:128")
            M.I("ds_write_b32 v17, v3 offset:256")
            M.lg = []
            M.label(f"L_{name}_w7")
        if p == 0: M.wait_lg()
        M.I("s_barrier")
        stamp(True)
        if p in (0, 9): stamp()
        side = m_dma(p + 3) if p + 3 <= 9 else []
        if p == 0: side = m_dma(2)
        if p == 1: side = m_dma(3) + side
        rd = m_reads(p)
        M.I(f"s_cmp_lg_u32 s37, {p & 1}")
        M.I(f"s_cbranch_scc1 L_{name}_cs{p}a")
        for j in range(5):
            M.I(f"ds_read_b128 {vr(CBF+4*j,4)}, v16 offset:{2048*j}")
            M.lg.pop()
        M.label(f"L_{name}_cs{p}a")
        delta = SLOT if p % 4 != 3 else (-3 * SLOT) & 0xffffffff
        M.I(f"v_add_u32 v16, {delta}, v16")
        def cs_mfma():
            M.I(f"s_cmp_lg_u32 s37, {p & 1}")
            M.I(f"s_cbranch_scc1 L_{name}_cs{p}b")
            for j in range(5):
                M.I(f"v_mfma_f32_16x16x32_bf16 {vr(CBA+4*j,4)}, v[18:21], {vr(CBF+4*j,4)}, {vr(CBA+4*j,4)}")
            M.label(f"L_{name}_cs{p}b")
        if "dmaonly" in dbg: emit(M, side)
        elif p == 0: emit(M, rd + side)
        elif p == 9:
            mm8 = m_mfma(8)
            for m in mm8[:6]: M.I(m)
            M.I("s_waitcnt lgkmcnt(0)")
            cs_mfma()
            for m in mm8[6:8]: M.I(m)
            M.I("s_mul_i32 s36, s35, 320")
            M.I(f"s_add_u32 s36, s36, {CSB_L}")
            M.I("v_lshlrev_b32 v17, 2, v22")
            M.I("v_add_u32 v17, s36, v17")
            M.I("s_nop 3")
            M.I("s_mov_b64 exec, 0xffff")
            for j in range(5):
                M.I(f"ds_write_b32 v17, v{CBA+4*j} offset:{64*j}", tag="sw")
            cnt_add(M, 16, 17, CNT_L + 4)
            merge(M, mm8[8:], rd, 0.9)
            M.I(f"s_cbranch_vccnz L_{name}_nb1")
            M.I("v_min_u32 v17, 47, v0")
            M.I("v_lshlrev_b32 v17, 3, v17")
            M.I(f"v_add_u32 v17, {B1F_L}, v17")
            M.I("v_lshlrev_b32 v2, 16, v4")
            M.I("v_and_b32 v3, 0xffff0000, v4")
            M.I("ds_write_b64 v17, v[2:3]")
            M.label(f"L_{name}_nb1")
        else: merge(M, m_mfma(p - 1), mix(rd, side), 0.9)
        if p == 1:
            M.I(f"s_cbranch_vccnz L_{name}_na")
            M.I("s_waitcnt vmcnt(0)")
            M.I("s_lshl_b32 s36, s33, 4")
            M.I("v_mov_b32 v14, s36")
            M.I("v_mov_b32 v15, 1")
            M.I("s_mov_b64 exec, 1")
            M.I(f"buffer_atomic_add v15, v14, s[{SDB}:{SDB+3}], 0 offen sc0")
            M.vm.pop()
            M.I("s_mov_b64 exec, -1")
            M.label(f"L_{name}_na")
        if p == 6:
            M.I(f"s_cbranch_vccnz L_{name}_nb")
            M.I("s_waitcnt vmcnt(0)")
            M.I("v_readfirstlane_b32 s36, v15")
            M.I("s_cmp_lg_u32 s36, 15")
            M.I(f"s_cbranch_scc1 L_{name}_nb")
            M.I("v_lshlrev_b32 v14, 7, v22")
            M.I(f"v_add_u32 v14, {GO_O}, v14")
            M.I(f"v_mov_b32 v15, {TAG}")
            M.I("s_mov_b64 exec, 0xffff")
            M.I(f"buffer_store_dword v15, v14, s[{SAGM}:{SAGM+3}], 0 offen sc1")
            M.vm.pop()
            M.I("s_mov_b64 exec, -1")
            M.label(f"L_{name}_nb")
        M.I("s_waitcnt lgkmcnt(0)")
        M.lg = []
        if p < 9: cs_mfma()
    mm = m_mfma(9)
    M.raw(";;DRYSTART")
    M.I("v_lshrrev_b32 v1, 4, v0")
    side_issue(M, 1, 22, 13, 40, 44, 48, 2, 3, 4, 5, 6)
    M.I("s_lshl_b32 s38, s35, 2")
    M.I(f"s_add_u32 s38, s38, {CNT_L+16}")
    if "mdelay" in dbg: cnt_wait(M, f"L_{name}_mw2", 16, 17, "s38", 1)
    for m in mm[:4]: M.I(m)
    for m in mm[4:8]: M.I(m)
    for r in range(4): M.I(f"v_add_f32 v{WA+r}, v{WA+r}, v{WA+4+r}")
    M.I("v_and_b32 v16, 1, v0")
    M.I("v_lshlrev_b32 v16, 6, v16")
    M.I("v_lshrrev_b32 v17, 4, v0")
    M.I("v_lshl_add_u32 v16, v17, 4, v16")
    M.I("s_lshl_b32 s36, s4, 7")
    M.I(f"s_add_u32 s36, s36, {CSW_L}")
    M.I("v_add_u32 v16, s36, v16")
    M.I("s_mov_b32 exec_lo, 0x00030003")
    M.I("s_mov_b32 exec_hi, 0x00030003")
    M.I(f"ds_write_b128 v16, {vr(WA,4)}")
    cnt_add(M, 16, 17, CNT_L + 8)
    for m in mm[8:]: M.I(m)
    stamp()
    cnt_wait(M, f"L_{name}_mw1", 16, 17, CNT_L + 8, 4)
    if "mdelay" not in dbg: cnt_wait(M, f"L_{name}_mw2", 16, 17, "s38", 1)
    stamp()
    CSV = XB
    B1V = WB + 16
    M.I("v_lshrrev_b32 v10, 5, v0")
    M.I("v_lshlrev_b32 v11, 4, v10")
    M.I(f"v_add_u32 v12, {B1F_L}, v11")
    M.I(f"v_add_u32 v11, {CSW_L}, v11")
    M.I("v_lshrrev_b32 v23, 1, v23")
    M.I(f"v_add_u32 v23, {STATS_L}, v23")
    M.I("ds_read_b32 v14, v23")
    M.I("ds_read_b32 v15, v23 offset:512")
    for jt in range(3):
        M.I(f"s_lshl_b32 s36, s{4+jt}, 7")
        M.I("v_add_u32 v16, s36, v11")
        M.I("v_add_u32 v17, s36, v12")
        M.I(f"s_lshl_b32 s{4+jt}, s{4+jt}, 10")
        for q in range(4):
            M.I(f"ds_read_b128 {vr(CSV+(jt*4+q)*4,4)}, v16 offset:{32*q}", tag=f"cr{jt}")
            M.I(f"ds_read_b128 {vr(B1V+(jt*4+q)*4,4)}, v17 offset:{32*q}", tag=f"cr{jt}")
    M.I("s_lshl_b32 s36, s32, 2")
    M.I("s_add_u32 s36, s36, s35")
    M.I(f"s_mul_i32 s36, s36, {2*H1F_RT}")
    M.I("s_mul_i32 s39, s33, 3072")
    M.I("s_add_u32 s36, s36, s39")
    mk_srd(M, SH1, 30, 31, H1F_RT + 3072, 36, H1F_OFF)
    M.I("v_bfe_u32 v9, v0, 4, 1")
    M.I(f"v_mul_u32_u24 v9, {H1F_RT}, v9")
    M.I("v_lshl_add_u32 v9, v10, 8, v9")
    M.I("v_lshl_add_u32 v9, v22, 4, v9")
    C1 = -2.0 * 1.4426950408889634 * 0.7978845608028654
    C2 = C1 * 0.044715
    M.I(f"v_mov_b32 v16, {f2u(C2)}")
    M.I(f"v_mov_b32 v17, {f2u(C1)}")
    TM = FR
    for jt in range(3):
        M.wait_lg(f"cr{jt}")
        P = [MACC + 16 * jt + 2 * k for k in range(8)]
        cs = [CSV + jt * 16 + 2 * k for k in range(8)]
        b1 = [B1V + jt * 16 + 2 * k for k in range(8)]
        T_ = [TM + 2 * k for k in range(8)]
        for k in range(8):
            M.I(f"v_pk_fma_f32 {vr(b1[k],2)}, v[14:15], {vr(cs[k],2)}, {vr(b1[k],2)} op_sel:[0,0,0] op_sel_hi:[0,1,1] neg_lo:[1,0,0] neg_hi:[1,0,0]")
        for k in range(8):
            M.I(f"v_pk_fma_f32 {vr(P[k],2)}, {vr(P[k],2)}, v[14:15], {vr(b1[k],2)} op_sel:[0,1,0] op_sel_hi:[1,1,1]")
        for k in range(8):
            M.I(f"v_pk_mul_f32 {vr(T_[k],2)}, {vr(P[k],2)}, {vr(P[k],2)}")
        for k in range(8):
            M.I(f"v_pk_fma_f32 {vr(T_[k],2)}, {vr(T_[k],2)}, v[16:17], v[16:17] op_sel:[0,0,1] op_sel_hi:[1,0,1]")
        for k in range(8):
            M.I(f"v_pk_mul_f32 {vr(T_[k],2)}, {vr(T_[k],2)}, {vr(P[k],2)}")
        for k in range(16):
            M.I(f"v_exp_f32 v{TM+k}, v{TM+k}")
        for k in range(8):
            M.I(f"v_pk_add_f32 {vr(T_[k],2)}, {vr(T_[k],2)}, 1.0 op_sel_hi:[1,0]")
        for k in range(16):
            M.I(f"v_rcp_f32 v{TM+k}, v{TM+k}")
        for k in range(8):
            M.I(f"v_pk_mul_f32 {vr(P[k],2)}, {vr(P[k],2)}, {vr(T_[k],2)}")
        PKM = TM + 16 + 8 * (jt % 2)
        for k in range(8):
            M.I(f"v_cvt_pk_bf16_f32 v{PKM+k}, v{P[k]}, v{P[k]+1}")
        for AB in range(2):
            M.I(f"buffer_store_dwordx4 {vr(PKM+4*AB,4)}, v9, s[{SH1}:{SH1+3}], s{4+jt} offen offset:{512*AB}{STF}", tag="st")
    M.I("s_waitcnt vmcnt(6)")
    RJ = XB
    M.I("s_cmp_ge_u32 s26, 880")
    M.I(f"s_cbranch_scc1 L_{name}_sj1")
    M.I("s_cmp_ge_u32 s26, 480")
    M.I(f"s_cbranch_scc1 L_{name}_sj1c")
    for j in range(4):
        for e in range(2):
            M.I(f"ds_read_b64_tr_b16 {vr(RJ+4*j+2*e,2)}, v6 offset:{32*j+1024*e}")
    M.I(f"s_branch L_{name}_sj1s")
    M.label(f"L_{name}_sj1c")
    for j in range(4):
        M.I(f"v_xor_b32 v2, {32*j}, v6")
        M.I(f"ds_read_b128 {vr(RJ+4*j,4)}, v2")
    M.label(f"L_{name}_sj1s")
    M.I("s_waitcnt lgkmcnt(0)")
    for j in range(4):
        M.I(f"buffer_store_dwordx4 {vr(RJ+4*j,4)}, v5, s[48:51], s22 offen{STF}")
        if j < 3: M.I("s_add_u32 s22, s22, s23")
    M.label(f"L_{name}_sj1")
    M.I("s_cmp_lg_u32 s33, 0")
    M.I(f"s_cbranch_scc1 L_{name}_nostat")
    M.I("s_lshl_b32 s36, s32, 9")
    mk_srd(M, 40, 30, 31, 8192 + 512, 36, STATS_OFF)
    M.I(f"v_subrev_u32 v23, {STATS_L}, v23")
    M.I("s_mov_b32 s36, 8192")
    M.I("buffer_store_dword v14, v23, s[40:43], 0 offen")
    M.I("buffer_store_dword v15, v23, s[40:43], s36 offen")
    M.label(f"L_{name}_nostat")
    final_stamps(M, st)
    M.label(f"L_{name}_end")
    M.I("s_endpgm")
    if "dry" not in dbg:
        for X in (S, M): X.lines = [l for l in X.lines if not l.startswith(";;DRY")]
    else:
        print("dry blocks", add_dry(S, name, "ds", 39), add_dry(M, name, "dm", 39))
    desc = f""".section .rodata,"a"
.p2align 6
.amdhsa_kernel {name}
  .amdhsa_next_free_vgpr 256
  .amdhsa_next_free_sgpr 102
  .amdhsa_accum_offset 256
  .amdhsa_group_segment_fixed_size 0
  .amdhsa_kernarg_size 136
  .amdhsa_user_sgpr_count 2
  .amdhsa_user_sgpr_kernarg_segment_ptr 1
  .amdhsa_system_sgpr_workgroup_id_x 1
.end_amdhsa_kernel
.text"""
    return A.text() + "\n" + S.text() + "\n" + M.text() + "\n" + desc, (A.nins, S.nins, M.nins)
```

```python
from asmfw import *
from layout import *
import struct
def f2u(f): return struct.unpack("<I", struct.pack("<f", f))[0]
LOG2E = f2u(1.4426950408889634)
INV2PI = f2u(0.15915494309189535)
SLOT = 38912
BB_O = 16384
W1_O = 26624
MISC = 155648
SEG_L = MISC
CSW_L = MISC + 5120
CNT_L = CSW_L + 384
STATS_L = MISC + 5632
CSB_L = STATS_L + 1024
STG_L = 2 * SLOT
PAR_L = SEG_L
B1F_L = 139264
GR_L = 98304
TR_L = 0
Q_L = 24576
HS_L = 32768
TAG = 0x5a17c3e9
DPP = "row_ror:8 row_mask:0xf bank_mask:0xf"

def mk_srd(A, d, lo, hi, nbytes, off_s=None, off_imm=0):
    if off_s is None and off_imm == 0:
        A.I(f"s_mov_b32 s{d}, s{lo}")
        A.I(f"s_and_b32 s{d+1}, s{hi}, 0xffff")
    else:
        if off_s is not None:
            if off_imm: A.I(f"s_add_u32 s{off_s}, s{off_s}, {off_imm}")
            A.I(f"s_add_u32 s{d}, s{lo}, s{off_s}")
        else:
            A.I(f"s_add_u32 s{d}, s{lo}, {off_imm}")
        A.I(f"s_addc_u32 s{d+1}, s{hi}, 0")
        A.I(f"s_and_b32 s{d+1}, s{d+1}, 0xffff")
    A.I(f"s_mov_b32 s{d+2}, {nbytes}")
    A.I(f"s_mov_b32 s{d+3}, 0x00020000")

def bb_srd(X, d, ldsreg):
    X.I(f"s_lshl_b32 s{ldsreg}, s36, 10")
    X.I(f"s_add_u32 s{ldsreg}, s{ldsreg}, {BB_O}")
    X.I("s_and_b32 s39, s36, 1")
    X.I("s_cmp_eq_u32 s39, 0")
    X.I(f"s_cselect_b32 s{d}, s10, s12")
    X.I(f"s_cselect_b32 s{d+1}, s11, s13")
    X.I("s_lshr_b32 s36, s36, 1")
    X.I("s_lshl_b32 s36, s36, 3")
    X.I("s_mul_i32 s39, s33, 40")
    X.I("s_add_u32 s36, s36, s39")
    X.I("s_mul_i32 s36, s36, 1280")
    X.I(f"s_add_u32 s{d}, s{d}, s36")
    X.I(f"s_addc_u32 s{d+1}, s{d+1}, 0")
    X.I(f"s_and_b32 s{d+1}, s{d+1}, 0xffff")
    X.I(f"s_mov_b32 s{d+2}, 10240")
    X.I(f"s_mov_b32 s{d+3}, 0x00020000")

def put(X, item):
    t, g = item
    if t.endswith(":"): X.label(t[:-1])
    else: X.I(t, tag=g)
def emit(X, L):
    for grp in L:
        for it in grp: put(X, it)
def merge(X, main, side, frac=1.0):
    side = list(side)
    n = max(1, int(len(main) * frac))
    done = 0
    for k, m in enumerate(main):
        X.I(m)
        tgt = min(len(side), ((k + 1) * len(side) + n - 1) // n)
        while done < tgt:
            for it in side[done]: put(X, it)
            done += 1
    while done < len(side):
        for it in side[done]: put(X, it)
        done += 1
def mix(a, b):
    out = []; ia = ib = 0
    while ia < len(a) or ib < len(b):
        if ib >= len(b) or (ia < len(a) and ia * len(b) <= ib * len(a)):
            out.append(a[ia]); ia += 1
        else:
            out.append(b[ib]); ib += 1
    return out

def cnt_add(X, va, vt, addr):
    X.I(f"v_mov_b32 v{va}, {addr}")
    X.I(f"v_mov_b32 v{vt}, 1")
    X.I("s_mov_b64 exec, 1")
    X.I(f"ds_add_u32 v{va}, v{vt}")
    X.I("s_mov_b64 exec, -1")
def cnt_wait(X, lab, va, vt, addr, val):
    X.I(f"v_mov_b32 v{va}, {addr}")
    X.I("s_mov_b32 s39, 0")
    X.label(lab)
    X.I(f"ds_read_b32 v{vt}, v{va}")
    X.I("s_waitcnt lgkmcnt(0)")
    X.lg = []
    X.I(f"v_readfirstlane_b32 s36, v{vt}")
    X.I("s_add_u32 s39, s39, 1")
    X.I(f"s_cmp_eq_u32 s36, {val}")
    X.I(f"s_cbranch_scc1 {lab}d")
    X.I("s_sleep 1")
    X.I("s_cmp_lt_u32 s39, 0x400000")
    X.I(f"s_cbranch_scc1 {lab}")
    X.label(lab + "d")

def pr(idx):
    return f"v[{idx & ~1}:{(idx & ~1) + 1}]", idx & 1

def add_dry(X, name, tag, sreg, minlen=10, maxlen=48):
    lines = X.lines
    i0 = lines.index(";;DRYSTART")
    head, tail = lines[:i0], lines[i0 + 1:]
    def pure(l):
        t = l.strip()
        if t.startswith("v_"):
            return not (t.startswith("v_cmp") or t.startswith("v_readfirstlane") or t.startswith("v_mfma") or t.startswith("v_readlane") or "co_u32" in t)
        return t.startswith("s_nop")
    out = []; nb = 0; i = 0
    while i < len(tail):
        j = i
        while j < len(tail) and pure(tail[j]): j += 1
        if j - i >= minlen:
            k = i
            while k < j:
                e = min(j, k + maxlen)
                if j - e < minlen: e = j
                out.append(f"L_{name}_{tag}{nb}:")
                out += tail[k:e]
                out.append(f"    s_cbranch_execz L_{name}_{tag}disp")
                nb += 1; k = e
            i = j
        else:
            out += tail[i:max(j, i + 1)]; i = max(j, i + 1)
    drv = [f"    s_mov_b32 s{sreg}, s35", "    s_mov_b64 exec, 0", f"    s_branch L_{name}_{tag}go",
           f"L_{name}_{tag}disp:", f"    s_add_u32 s{sreg}, s{sreg}, 4", f"L_{name}_{tag}go:"]
    for b in range(nb):
        drv += [f"    s_cmp_eq_u32 s{sreg}, {b}", f"    s_cbranch_scc1 L_{name}_{tag}{b}"]
    drv += ["    s_mov_b64 exec, -1"]
    p = head.index(";;DRYPT")
    X.lines = head[:p] + drv + head[p + 1:] + out
    return nb

def gen_k1(name="k1_kernel", stamps=False, rot=True, dbg=""):
    import os
    STF = os.environ.get("STF1", "")
    STH = os.environ.get("STH", STF)
    A = Stream()
    A.raw(f".globl {name}\n.p2align 8\n.type {name},@function\n{name}:")
    A.I("s_cmp_ge_u32 s2, 256")
    A.I(f"s_cbranch_scc1 L_{name}_end")
    class St:
        n = 0
    def mkstamp(X):
        st = St()
        def stamp(ph=False):
            if not stamps: return
            if ("phst" in dbg) != ph: return
            assert st.n < 12
            X.I(f"s_memtime s[{74+2*st.n}:{75+2*st.n}]"); st.n += 1
        return stamp, st
    if stamps:
        A.I("s_memtime s[72:73]")
        A.I("s_memrealtime s[98:99]")
    A.I("s_load_dwordx16 s[4:19], s[0:1], 0")
    A.I("s_load_dwordx4 s[20:23], s[0:1], 80")
    A.I("s_load_dwordx2 s[24:25], s[0:1], 96")
    A.I("s_load_dwordx4 s[28:31], s[0:1], 120")
    A.I("s_and_b32 s36, s2, 7")
    A.I("s_lshr_b32 s37, s2, 3")
    if "map2" in dbg:
        A.I("s_and_b32 s32, s37, 15")
    else:
        A.I("s_and_b32 s32, s36, 1")
        A.I("s_lshl_b32 s32, s32, 3")
        A.I("s_and_b32 s38, s37, 7")
        A.I("s_add_u32 s32, s32, s38")
    if "map2" in dbg:
        A.I("s_lshl_b32 s33, s36, 1")
        A.I("s_lshr_b32 s38, s37, 4")
    else:
        A.I("s_lshr_b32 s33, s36, 1")
        A.I("s_lshl_b32 s33, s33, 2")
        A.I("s_lshr_b32 s38, s37, 3")
    A.I("s_add_u32 s33, s33, s38")
    import os
    rm = os.environ.get("ROTM", "full")
    if rot and rm == "full":
        A.I("s_and_b32 s26, s33, 3")
        A.I("s_mul_i32 s26, s26, 3")
        A.I("s_and_b32 s27, s32, 7")
        A.I("s_add_u32 s26, s26, s27")
        A.I("s_sub_u32 s27, s26, 10")
        A.I("s_cmp_ge_u32 s26, 10")
        A.I("s_cselect_b32 s26, s27, s26")
    elif rot and rm == "r4":
        A.I("s_add_u32 s26, s33, s32")
        A.I("s_and_b32 s26, s26, 3")
    elif rot and rm == "r2":
        A.I("s_add_u32 s26, s33, s32")
        A.I("s_and_b32 s26, s26, 1")
        A.I("s_lshl_b32 s26, s26, 1")
    elif rot and rm == "r4x2":
        A.I("s_add_u32 s26, s33, s32")
        A.I("s_and_b32 s26, s26, 3")
        A.I("s_lshl_b32 s26, s26, 1")
    else:
        A.I("s_mov_b32 s26, 0")
    A.I("v_lshrrev_b32 v1, 6, v0")
    A.I("v_and_b32 v0, 63, v0")
    A.I("v_readfirstlane_b32 s34, v1")
    A.I("s_and_b32 s35, s34, 3")
    A.I("s_cmp_ge_u32 s34, 4")
    A.wait_lg()
    if "notlb" not in dbg:
        A.I(f"s_mul_i32 s36, s32, {128*1280}")
        A.I("s_mul_i32 s37, s33, 51200")
        A.I("s_load_dword s3, s[4:5], s36")
        A.I("s_load_dword s3, s[10:11], s37")
        A.I("s_load_dword s3, s[12:13], s37")
        A.I("s_load_dword s3, s[20:21], 0")
        A.I("s_load_dword s3, s[20:21], 0xffffc")
        A.I("s_cmp_ge_u32 s34, 4")
    A.I(f"s_cbranch_scc1 L_{name}_M")

    def final_stamps(X, st):
        if not stamps: return
        X.wait_all()
        X.I(f"s_memtime s[{74+2*st.n}:{75+2*st.n}]"); st.n += 1
        X.I("s_memrealtime s[100:101]")
        X.wait_lg()
        X.I("s_lshl_b32 s36, s2, 3")
        X.I("s_add_u32 s36, s36, s34")
        X.I("s_lshl_b32 s36, s36, 7")
        X.I("s_add_u32 s36, s36, 0x2000000")
        X.I("s_add_u32 s40, s30, s36")
        X.I("s_addc_u32 s41, s31, 0")
        X.I("s_and_b32 s41, s41, 0xffff")
        X.I("s_mov_b32 s42, 128")
        X.I("s_mov_b32 s43, 0x00020000")
        X.I("v_mov_b32 v1, 0")
        for i in range(st.n + 1):
            X.I(f"v_mov_b32 v2, s{72+2*i}")
            X.I(f"buffer_store_dword v2, v1, s[40:43], 0 offen offset:{4*i}")
        X.I("v_mov_b32 v2, s98")
        X.I("buffer_store_dword v2, v1, s[40:43], 0 offen offset:120")
        X.I("v_mov_b32 v2, s100")
        X.I("buffer_store_dword v2, v1, s[40:43], 0 offen offset:124")
    def side_issue(S, vG_, vC_, vBB, SJA, SJB, SWS, t1, t2, t3, vL, vA):
        mk_srd(S, SWS, 30, 31, STATS_OFF - W2F_OFF, None, W2F_OFF)
        S.I("s_lshl_b32 s26, s2, 2")
        S.I("s_add_u32 s26, s26, s35")
        if "nosj" in dbg: S.I("s_mov_b32 s26, 1000")
        S.I("s_lshl_b32 s27, s35, 12")
        S.I(f"s_add_u32 s27, s27, {STG_L}")
        S.I(f"v_lshlrev_b32 v{vL}, 4, v0")
        S.I(f"v_mov_b32 v{vA}, 0")
        S.I("s_mov_b32 s22, 0")
        S.I("s_mov_b32 s23, 0")
        savevm = list(S.vm)
        S.I("s_cmp_ge_u32 s26, 880")
        S.I(f"s_cbranch_scc1 L_{name}_sj0")
        S.I("s_cmp_ge_u32 s26, 480")
        S.I(f"s_cbranch_scc1 L_{name}_sjc")
        mk_srd(S, SJA, 24, 25, 1966080)
        S.I(f"s_mul_hi_u32 s36, s26, {(2**32 + 47)//48}")
        S.I("s_mul_i32 s39, s36, 48")
        S.I("s_sub_u32 s39, s26, s39")
        S.I(f"s_mul_i32 s22, s36, {4*H1F_RT}")
        S.I("s_lshl_b32 s23, s39, 10")
        S.I("s_add_u32 s22, s22, s23")
        S.I(f"s_mov_b32 s23, {H1F_RT}")
        S.I("s_mul_i32 s39, s39, 40960")
        S.I("s_lshl_b32 s36, s36, 7")
        S.I("s_add_u32 s36, s36, s39")
        S.I(f"v_lshrrev_b32 v{t1}, 3, v0")
        S.I(f"v_mul_u32_u24 v{t1}, 1280, v{t1}")
        S.I(f"v_and_b32 v{t2}, 7, v0")
        S.I(f"v_lshl_add_u32 v{t1}, v{t2}, 4, v{t1}")
        for e in range(4):
            S.I(f"s_add_u32 m0, s27, {1024*e}")
            S.I(f"buffer_load_dwordx4 v{t1}, s[{SJA}:{SJA+3}], s36 offen lds")
            if e < 3: S.I("s_add_u32 s36, s36, 10240")
        S.I(f"v_lshrrev_b32 v{t1}, 1, v{vG_}")
        S.I(f"v_lshlrev_b32 v{t1}, 11, v{t1}")
        S.I(f"v_and_b32 v{t2}, 1, v{vG_}")
        S.I(f"v_lshl_add_u32 v{t1}, v{t2}, 9, v{t1}")
        S.I(f"v_lshrrev_b32 v{t2}, 2, v{vC_}")
        S.I(f"v_lshl_add_u32 v{t1}, v{t2}, 7, v{t1}")
        S.I(f"v_and_b32 v{t2}, 3, v{vC_}")
        S.I(f"v_lshl_add_u32 v{t1}, v{t2}, 3, v{t1}")
        S.I(f"v_add_u32 v{vA}, s27, v{t1}")
        S.I(f"s_branch L_{name}_sj0")
        S.label(f"L_{name}_sjc")
        mk_srd(S, SJA, 14, 15, 819200)
        mk_srd(S, SJB, 16, 17, 819200)
        S.I("s_sub_u32 s39, s26, 480")
        S.I(f"s_mul_hi_u32 s36, s39, {(2**32 + 9)//10}")
        S.I("s_mul_i32 s22, s36, 10")
        S.I("s_sub_u32 s39, s39, s22")
        S.I(f"s_mul_i32 s22, s36, {HF_RT}")
        S.I("s_lshl_b32 s23, s39, 12")
        S.I("s_add_u32 s22, s22, s23")
        S.I(f"s_add_u32 s22, s22, {CF_OFF - W2F_OFF}")
        S.I("s_mov_b32 s23, 1024")
        S.I("s_mul_i32 s36, s36, 20480")
        S.I("s_lshl_b32 s39, s39, 7")
        S.I("s_add_u32 s36, s36, s39")
        S.I("s_add_u32 s39, s36, 10240")
        for (srd_, mo) in ((SJA, 0), (SJB, 2048)):
            S.I(f"s_add_u32 m0, s27, {mo}")
            S.I(f"buffer_load_dwordx4 v{vBB}, s[{srd_}:{srd_+3}], s36 offen lds")
            S.I(f"s_add_u32 m0, s27, {mo+1024}")
            S.I(f"buffer_load_dwordx4 v{vBB}, s[{srd_}:{srd_+3}], s39 offen lds")
        S.I(f"v_and_b32 v{t1}, 1, v{vG_}")
        S.I(f"v_lshlrev_b32 v{t1}, 11, v{t1}")
        S.I(f"v_lshl_add_u32 v{t1}, v{vC_}, 7, v{t1}")
        S.I(f"v_lshrrev_b32 v{t2}, 1, v{vG_}")
        S.I(f"v_and_b32 v{t3}, 7, v{vC_}")
        S.I(f"v_xor_b32 v{t2}, v{t2}, v{t3}")
        S.I(f"v_lshl_add_u32 v{t1}, v{t2}, 4, v{t1}")
        S.I(f"v_add_u32 v{vA}, s27, v{t1}")
        S.label(f"L_{name}_sj0")
        S.vm = savevm
    def adv():
        return [("s_add_u32 s26, s26, 1", None), ("s_cmp_eq_u32 s26, 10", None), ("s_cselect_b32 s26, 0, s26", None)]

    S = Stream(A)
    stamp, st = mkstamp(S)
    ACC = 16
    BUF = 56
    CA, CSB, CCO, CCX, CAS, CSBS = 168, 173, 178, 183, 188, 193
    A8, SB8, A128, SB128 = 198, 200, 202, 204
    SUM, SQ, ONE = 206, 214, 222
    MRV, RV = 226, 234
    DV = 246
    vG_, vC_, vSg = 1, 2, 3
    SX, SBBS = 40, 44
    if "early" in dbg: stamp()
    S.I(f"s_mul_i32 s36, s32, {128*1280}")
    mk_srd(S, SX, 4, 5, 128 * 1280, 36)
    S.I("v_lshrrev_b32 v4, 3, v0")
    S.I("v_and_b32 v5, 7, v0")
    S.I("v_and_b32 v6, 2, v4")
    S.I("v_lshrrev_b32 v7, 2, v4")
    S.I("v_or_b32 v6, v6, v7")
    S.I("v_xor_b32 v6, v6, v5")
    S.I("s_mul_i32 s36, s35, 40960")
    S.I("v_mul_u32_u24 v7, 1280, v4")
    S.I("v_add_u32 v8, s36, v7")
    for e in range(4):
        S.I(f"v_xor_b32 v9, {4 if e >= 2 else 0}, v6")
        S.I(f"v_lshl_add_u32 v{DV+e}, v9, 4, v8")
        if e: S.I(f"v_add_u32 v{DV+e}, {10240*e}, v{DV+e}")
    S.I("v_xor_b32 v9, v4, v5")
    S.I(f"v_lshl_add_u32 v{DV+4}, v9, 4, v7")
    S.I("s_lshl_b32 s37, s35, 12")
    S.I("s_mov_b32 s36, s35")
    bb_srd(S, SBBS, 27)
    def s_dma(p):
        q = p % 4
        L = []
        for e in range(4):
            g = [(f"s_add_u32 m0, s37, {q*SLOT + 1024*e}", None), (f"buffer_load_dwordx4 v{DV+e}, s[{SX}:{SX+3}], s38 offen lds", f"c{p}")]
            if e == 0: g = [("s_lshl_b32 s38, s26, 7", None)] + g
            L.append(g)
        L.append([(f"s_add_u32 m0, s27, {q*SLOT}", None), (f"buffer_load_dwordx4 v{DV+4}, s[{SBBS}:{SBBS+3}], s38 offen lds", f"c{p}")] + adv())
        return L
    S.I(f"v_lshrrev_b32 v{vG_}, 4, v0")
    S.I(f"v_and_b32 v{vC_}, 15, v0")
    if "early" in dbg: stamp()
    emit(S, s_dma(0))
    if "early" in dbg: stamp()
    def pslots(t):
        return (CCO + t, CCX + t, CAS + t) if t < 5 else (A128, SB128, A128 + 1)
    def par_issue():
        S.I("v_and_b32 v11, 7, v0")
        S.I("v_lshlrev_b32 v11, 1, v11")
        S.I(f"v_add_u32 v11, {PAR_L}, v11")
        S.I(f"v_lshlrev_b32 v12, 4, v{vG_}")
        S.I("v_add_u32 v12, v11, v12")
        for t in range(6):
            vo = "v11" if t < 5 else "v12"
            off = 16 * t if t < 5 else 0
            lre, lim, ldt = pslots(t)
            S.I(f"ds_read_u16 v{lre}, {vo} offset:{off}")
            S.I(f"ds_read_u16 v{lim}, {vo} offset:{off+128}")
            S.I(f"ds_read_u16 v{ldt}, {vo} offset:{off+256}")
    SJA, SJB, SWS = 56, 60, 64
    TT = BUF + 48
    S.I(f"v_lshrrev_b32 v{TT}, 2, v{vC_}")
    S.I(f"v_and_b32 v{TT+1}, 3, v{vC_}")
    S.I(f"v_lshlrev_b32 v{TT+2}, 3, v{TT}")
    S.I(f"v_add_u32 v{TT+2}, v{TT+2}, v{TT+1}")
    S.I("s_lshl_b32 s36, s35, 5")
    S.I(f"v_add_u32 v{TT+2}, s36, v{TT+2}")
    S.I(f"v_lshlrev_b32 v{TT+2}, 7, v{TT+2}")
    S.I(f"v_lshrrev_b32 v{TT+3}, 1, v{TT}")
    S.I(f"v_lshlrev_b32 v{TT+3}, 2, v{TT+3}")
    S.I(f"v_and_b32 v{TT+4}, 2, v{TT+1}")
    S.I(f"v_or_b32 v{TT+3}, v{TT+3}, v{TT+4}")
    S.I(f"v_xor_b32 v{TT+3}, v{TT+3}, v{vG_}")
    for T in range(2):
        for sp in range(2):
            d = 4 + 2 * T + sp
            S.I(f"v_xor_b32 v{TT+4}, {(4*sp) ^ T}, v{TT+3}")
            S.I(f"v_lshl_add_u32 v{d}, v{TT+4}, 4, v{TT+2}")
            if T: S.I(f"v_add_u32 v{d}, 512, v{d}")
    S.I(f"v_and_b32 v{TT}, 7, v{vC_}")
    S.I(f"v_xor_b32 v{TT}, v{TT}, v{vG_}")
    S.I(f"v_lshlrev_b32 v{TT+1}, 7, v{vC_}")
    for sp in range(2):
        S.I(f"v_xor_b32 v{TT+2}, {4*sp}, v{TT}")
        S.I(f"v_lshl_add_u32 v{8+sp}, v{TT+2}, 4, v{TT+1}")
        S.I(f"v_add_u32 v{8+sp}, {BB_O}, v{8+sp}")
    for k in range(4): S.I(f"v_mov_b32 v{ONE+k}, 0x3f803f80")
    S.I(f"v_mul_u32_u24 v10, 80, v{vG_}")
    S.I(f"v_lshrrev_b32 v{vSg}, 3, v{vC_}")
    S.I(f"v_cvt_f32_u32 v{vSg}, v{vSg}")
    S.I(f"v_fma_f32 v{vSg}, v{vSg}, 2.0, -1.0")
    S.I(f"s_mov_b32 s20, {LOG2E}")
    S.I(f"s_mov_b32 s21, {INV2PI}")
    def powr(ar, rev, n, da, dsb, t0):
        L = []
        if n is None:
            L.append(f"v_exp_f32 v{t0}, v{ar}")
            L.append(f"v_fract_f32 v{t0+1}, v{rev}")
        else:
            L.append(f"v_mul_f32 v{t0}, {n}, v{ar}")
            L.append(f"v_mul_f32 v{t0+1}, {n}, v{rev}")
            L.append(f"v_exp_f32 v{t0}, v{t0}")
            L.append(f"v_fract_f32 v{t0+1}, v{t0+1}")
        L.append(f"v_cos_f32 v{t0+2}, v{t0+1}")
        L.append(f"v_sin_f32 v{t0+3}, v{t0+1}")
        L.append(f"v_mul_f32 v{t0+3}, v{t0}, v{t0+3}")
        L.append(f"v_mul_f32 v{da}, v{t0}, v{t0+2}")
        L.append(f"v_mul_f32 v{dsb}, v{t0+3}, v{vSg}")
        return L
    def arrev(t):
        return (CAS + t, CSBS + t) if t < 5 else (A128, SB128)
    partA = ["s_lshl_b32 s36, s35, 2", f"v_add_u32 v245, s36, v{vG_}", "v_lshlrev_b32 v245, 3, v245", "v_cvt_f32_u32 v245, v245"]
    for t in range(6):
        lre, lim, ldt = pslots(t)
        ar, rev = 242, 243
        partA += [f"v_lshlrev_b32 v{lre}, 16, v{lre}", f"v_lshlrev_b32 v{lim}, 16, v{lim}", f"v_lshlrev_b32 v11, 16, v{ldt}",
                  "v_mul_f32 v11, s20, v11", "v_exp_f32 v11, v11", "v_cvt_pk_bf16_f32 v11, 0, v11",
                  f"v_mul_f32 v12, v11, v{lre}", f"v_mul_f32 v13, v11, v{lim}",
                  f"v_mul_f32 v{ar}, s20, v12", f"v_mul_f32 v{rev}, s21, v13"]
        if t < 5:
            partA += powr(ar, rev, None, CA + t, CSB + t, 11)
            partA += [f"v_add_f32 v11, -1.0, v{CA+t}", f"v_mul_f32 v12, v{lre}, v{lre}", f"v_fmac_f32 v12, v{lim}, v{lim}",
                      "v_rcp_f32 v12, v12", f"v_mul_f32 v13, v11, v{lre}", f"v_fmac_f32 v13, v14, v{lim}",
                      f"v_mul_f32 v244, v14, v{lre}", f"v_fma_f32 v244, -v11, v{lim}, v244", "v_mul_f32 v12, -2.0, v12",
                      f"v_mul_f32 v{CCX+t}, v244, v12", "v_mul_f32 v13, v13, v12", f"v_mul_f32 v{CCO+t}, v13, v{vSg}"]
            partA += powr(ar, rev, "v245", CAS + t, CSBS + t, 11)
        if t >= 4:
            k = 1 if t == 4 else 0
            partA += powr(ar, rev, f"{f2u(8.0)}", A8 + k, SB8 + k, 11)
            partA += powr(ar, rev, f"{f2u(128.0)}", 254 if t == 4 else A128, 255 if t == 4 else SB128, 11)
    partA += [f"v_mov_b32 v{A128+1}, v254", f"v_mov_b32 v{SB128+1}, v255"]
    SAG, SST = 48, 52
    S.I(f"s_mul_i32 s36, s33, {AGG_G}")
    mk_srd(S, SAG, 30, 31, AGG_G, 36, AGG_OFF)
    emit(S, s_dma(1))
    S.raw(";;DRYPT")
    stamp()
    def s_reads(p):
        b = BUF + (p & 1) * 56
        L = []
        for sp in range(2):
            for T in range(2):
                L.append([(f"ds_read_b128 {vr(b+(sp*2+T)*4,4)}, v{4+2*T+sp}", f"r{p}")])
            for j in range(5):
                L.append([(f"ds_read_b128 {vr(b+16+(sp*5+j)*4,4)}, v{8+sp} offset:{2048*j}", f"r{p}")])
        delta = SLOT if p % 4 != 3 else (-3 * SLOT) & 0xffffffff
        L.append([(f"v_add_u32 v{k}, {delta}, v{k}", None) for k in range(4, 10)])
        return L
    def s_stat(p):
        b = BUF + (p & 1) * 56
        L = []
        for sp in range(2):
            for T in range(2):
                x = vr(b + (sp * 2 + T) * 4, 4)
                z = (p == 0 and sp == 0)
                L.append(f"v_mfma_f32_16x16x32_bf16 {vr(SUM+4*T,4)}, {x}, {vr(ONE,4)}, {'0' if z else vr(SUM+4*T,4)}")
                L.append(f"v_mfma_f32_16x16x32_bf16 {vr(SQ+4*T,4)}, {x}, {x}, {'0' if z else vr(SQ+4*T,4)}")
        return L
    def s_mfma(p):
        b = BUF + (p & 1) * 56
        L = []
        for sp in range(2):
            for j in range(5):
                for T in range(2):
                    ac = ACC + 8 * j + 4 * T
                    c = "0" if (p == 0 and sp == 0) else vr(ac, 4)
                    L.append(f"v_mfma_f32_16x16x32_bf16 {vr(ac,4)}, {vr(b+(sp*2+T)*4,4)}, {vr(b+16+(sp*5+j)*4,4)}, {c}")
        return L
    for p in range(10):
        S.wait_vm(f"c{p}")
        S.I("s_barrier")
        stamp(True)
        if p in (0, 9): stamp()
        side = s_dma(p + 3) if p + 3 <= 9 else []
        if p == 0: side = s_dma(2)
        if p == 1: side = s_dma(3) + side
        rd = s_reads(p)
        if p == 2:
            par_issue()
        fill = []
        if 3 <= p <= 8:
            nper = (len(partA) + 5) // 6
            fill = [[(m, None)] for m in partA[(p - 3) * nper:(p - 2) * nper]]
        if p == 9:
            fill += [[("s_lshl_b32 s36, s32, 7", None), (f"s_add_u32 s36, s36, {GO_O}", None), ("v_mov_b32 v15, s36", None),
                      (f"buffer_load_dword v15, v15, s[{SAG}:{SAG+3}], 0 offen sc1", "clr")]]
        if "dmaonly" in dbg: emit(S, side)
        elif p == 0: emit(S, rd + side + fill)
        else: merge(S, s_stat(p - 1) + s_mfma(p - 1), mix(mix(rd, side), fill), 0.9)
        S.wait_lg()
    S.raw(";;DRYSTART")
    if "fine" in dbg: stamp()
    for m in s_stat(9): S.I(m)
    mm = s_mfma(9)
    CSV = BUF + 16
    S.I(f"v_lshlrev_b32 v12, 2, v{vC_}")
    for m in mm[:5]: S.I(m)
    for T in range(2):
        for r in range(4):
            S.I(f"ds_bpermute_b32 v{SQ+4*T+r}, v10, v{SQ+4*T+r} offset:{4*r}", tag="bp")
    for m in mm[5:9]: S.I(m)
    S.wait_lg("bp")
    if "fine" in dbg: stamp()
    fin = []
    K640 = f2u(1.0 / 640)
    for step in range(12):
        for k in range(8):
            su, sq = SUM + k, SQ + k
            fin.append([
                f"v_mul_f32 v{su}, {K640}, v{su}",
                f"v_mul_f32 v{sq}, {K640}, v{sq}",
                f"v_fma_f32 v{sq}, -v{su}, v{su}, v{sq}",
                f"v_max_f32 v{sq}, 0, v{sq}",
                f"v_cvt_pk_bf16_f32 v{su}, 0, v{su}",
                f"v_cvt_pk_bf16_f32 v{sq}, 0, v{sq}",
                f"v_add_f32 v{sq}, {f2u(1e-5)}, v{sq}",
                f"v_cvt_pk_bf16_f32 v{sq}, 0, v{sq}",
                f"v_sqrt_f32 v{sq}, v{sq}",
                f"v_cvt_pk_bf16_f32 v{sq}, 0, v{sq}",
                f"v_rcp_f32 v{RV+k}, v{sq}",
                f"v_mul_f32 v{MRV+k}, v{su}, v{RV+k}"][step])
    adds = ["s_lshl_b32 s36, s35, 7", f"v_lshlrev_b32 v13, 5, v{vG_}", "v_add_u32 v13, s36, v13", f"v_add_u32 v14, {STATS_L}, v13",
             "s_mul_i32 s36, s35, 1280", f"v_mul_u32_u24 v6, 320, v{vG_}", "v_add3_u32 v6, v6, v12, s36", f"v_add_u32 v7, {SEG_L}, v6",
             "v_lshlrev_b32 v8, 2, v0", f"v_add_u32 v9, {SEG_L}, v8", "v_mov_b32 v10, v12", f"v_add_u32 v11, {SEG_L+256}, v10",
             "s_lshl_b32 s38, s35, 2", f"s_add_u32 s38, s38, {CNT_L+16}", f"v_add_u32 v13, {CSB_L}, v12"]
    fin = fin[:40] + adds + fin[40:]
    merge(S, mm[9:], [[(m, None)] for m in fin], 1.0)
    stamp()
    cnt_wait(S, f"L_{name}_e0", 4, 5, CNT_L + 4, 4)
    if "noprio" not in dbg: S.I("s_setprio 3")
    if "f2" in dbg: stamp()
    for wv in range(4):
        for j in range(5):
            S.I(f"ds_read_b32 v{CSV+5*wv+j}, v13 offset:{320*wv+64*j}", tag="stt")
    S.I("s_mov_b32 exec_lo, 0x00010001")
    S.I("s_mov_b32 exec_hi, 0x00010001")
    for k in range(2):
        S.I(f"ds_write_b128 v14, {vr(MRV+4*k,4)} offset:{16*k}")
        S.I(f"ds_write_b128 v14, {vr(RV+4*k,4)} offset:{512+16*k}")
    cnt_add(S, 4, 5, "s38")
    for t2 in range(4):
        for j in range(5):
            a = ACC + 8 * j + 2 * t2
            S.I(f"v_mul_f32 v{a}, v{a}, v{RV+2*t2}")
            S.I(f"v_mul_f32 v{a+1}, v{a+1}, v{RV+2*t2+1}")
    S.wait_lg("stt")
    if "f2" in dbg: stamp()
    for j in range(5):
        S.I(f"v_add_f32 v{CSV+j}, v{CSV+j}, v{CSV+5+j}")
        S.I(f"v_add_f32 v{CSV+10+j}, v{CSV+10+j}, v{CSV+15+j}")
    for j in range(5):
        S.I(f"v_add_f32 v{CSV+j}, v{CSV+j}, v{CSV+10+j}")
    EA, EB = BUF + 40, BUF + 45
    cur = None
    for tl in range(8):
        for j in range(5):
            a = ACC + 8 * j + tl
            S.I(f"v_fma_f32 v{a}, -v{MRV+tl}, v{CSV+j}, v{a}")
        if tl == 0:
            cur = [ACC + 8 * j for j in range(5)]
        else:
            dst = EA if tl & 1 else EB
            for j in range(5):
                S.I(f"v_fma_f32 v{dst+j}, v{CA+j}, v{cur[j]}, v{ACC+8*j+tl}")
            for j in range(5):
                S.I(f"v_fmac_f32_dpp v{dst+j}, v{cur[j]}, v{CSB+j} {DPP}")
            cur = [dst + j for j in range(5)]
    if "f2" in dbg: stamp()
    for j in range(5):
        S.I(f"ds_write_b32 v7, v{cur[j]} offset:{64*j}")
    cnt_add(S, 4, 5, CNT_L)
    S.I("s_waitcnt vmcnt(0)")
    S.vm = []
    if "f2" in dbg: stamp()
    cnt_wait(S, f"L_{name}_x1", 4, 5, CNT_L, 4)
    stamp()
    EC = BUF + 56
    for s_ in range(16):
        S.I(f"ds_read_b32 v{EC+s_}, v9 offset:{320*s_}", tag=f"e{s_}")
        S.I(f"ds_read_b32 v{EC+16+s_}, v11 offset:{320*s_}", tag=f"e{s_}")
    S.I("v_lshlrev_b32 v4, 3, v0")
    S.I(f"v_lshlrev_b32 v5, 3, v{vC_}")
    PB = BUF + 90
    S.I(f"v_mov_b32 v{PB+1}, {TAG}")
    S.I(f"v_mov_b32 v{PB+3}, {TAG}")
    S.I("s_add_u32 s37, s32, 15")
    S.I("s_mul_i32 s37, s37, 640")
    for s_ in range(1, 16):
        S.wait_lg(f"e{s_}")
        for k in range(2):
            S.I(f"v_fmac_f32 v{EC+16*k+s_}, v{A8+k}, v{EC+16*k+s_-1}")
        for k in range(2):
            S.I(f"v_fmac_f32_dpp v{EC+16*k+s_}, v{EC+16*k+s_-1}, v{SB8+k} {DPP}")
    S.I("s_cmp_lg_u32 s35, 0")
    S.I(f"s_cbranch_scc1 L_{name}_nopub")
    S.I(f"v_mov_b32 v{PB}, v{EC+15}")
    S.I(f"v_mov_b32 v{PB+2}, v{EC+31}")
    S.I(f"buffer_store_dwordx2 {vr(PB,2)}, v4, s[{SAG}:{SAG+3}], s37 offen sc1")
    S.vm.pop()
    S.I(f"buffer_store_dwordx2 {vr(PB+2,2)}, v5, s[{SAG}:{SAG+3}], s37 offen offset:512 sc1")
    S.vm.pop()
    S.label(f"L_{name}_nopub")
    stamp()
    GL = BUF
    G0, G1 = 206, 221
    QV = BUF + 96
    S.I("v_lshlrev_b32 v252, 4, v0")
    S.I("s_mul_i32 s70, s32, 640")
    S.I("s_add_u32 s71, s70, 4096")
    S.I("s_add_u32 s69, s70, 8192")
    def gran_issue():
        for n in range(10):
            so = "s70" if n < 4 else ("s71" if n < 8 else "s69")
            S.I(f"buffer_load_dwordx4 {vr(GL+4*n,4)}, v252, s[{SAG}:{SAG+3}], {so} offen offset:{(n%4)*1024} sc1")
        S.vm = []
    def qstuff():
        S.I(f"v_add_u32 v9, {Q_L}, v8")
        S.I(f"v_add_u32 v11, {Q_L+256}, v10")
        S.I(f"v_mov_b32 v{PB}, 0")
        S.I(f"ds_write_b32 v9, v{PB}", tag="q")
        for s_ in range(15):
            S.I(f"ds_write_b32 v9, v{EC+s_} offset:{320*(s_+1)}", tag="q")
        S.I("s_mov_b64 exec, 0xffff")
        S.I(f"ds_write_b32 v11, v{PB}", tag="q")
        for s_ in range(15):
            S.I(f"ds_write_b32 v11, v{EC+16+s_} offset:{320*(s_+1)}", tag="q")
        S.I("s_mov_b64 exec, -1")
        S.I(f"v_add_u32 v7, {Q_L}, v6")
        for j in range(5):
            S.I(f"ds_read_b32 v{QV+j}, v7 offset:{64*j}", tag="qv")
    qstuff()
    S.I(f"v_add_u32 v9, {HS_L}, v8")
    S.I(f"v_add_u32 v11, {HS_L}, v10")
    S.I("s_cmp_lg_u32 s35, 0")
    S.I(f"s_cbranch_scc1 L_{name}_hw")
    S.I("s_cmp_eq_u32 s32, 0")
    S.I(f"s_cbranch_scc1 L_{name}_r0")
    S.I("s_mov_b32 s39, 0")
    S.I("s_lshl_b32 s38, s32, 7")
    S.I(f"s_add_u32 s38, s38, {GO_O}")
    S.I("v_mov_b32 v14, s38")
    S.label(f"L_{name}_cl")
    S.I("v_readfirstlane_b32 s38, v15")
    S.I("s_add_u32 s39, s39, 1")
    S.I(f"s_cmp_eq_u32 s38, {TAG}")
    S.I(f"s_cbranch_scc1 L_{name}_clok")
    S.I(f"buffer_load_dword v15, v14, s[{SAG}:{SAG+3}], 0 offen sc1")
    S.I("s_waitcnt vmcnt(0)")
    S.I("s_cmp_lt_u32 s39, 0x100000" if "nosync" not in dbg else "s_cmp_lt_u32 s39, 0")
    S.I(f"s_cbranch_scc1 L_{name}_cl")
    S.label(f"L_{name}_clok")
    gran_issue()
    S.I(f"v_mov_b32 v14, {TAG}")
    S.I(f"v_add_u32 v4, {GR_L}, v4")
    S.I(f"v_add_u32 v5, {GR_L}, v5")
    S.I(f"v_add_u32 v253, {GR_L}, v252")
    S.I("v_cmp_gt_u32 s[22:23], 24, v0")
    S.I("s_sub_u32 s38, 15, s32")
    S.I("s_mul_i32 s38, s38, 640")
    S.I("s_lshr_b32 s38, s38, 10")
    S.I("s_mov_b32 s39, 0")
    S.label(f"L_{name}_gp")
    S.I("s_waitcnt vmcnt(0)")
    S.I(f"v_cndmask_b32 v{GL+37}, v14, v{GL+37}, s[22:23]")
    S.I(f"v_cndmask_b32 v{GL+39}, v14, v{GL+39}, s[22:23]")
    S.I(f"v_and_b32 v12, v{GL+1}, v{GL+3}")
    S.I(f"v_or_b32 v13, v{GL+1}, v{GL+3}")
    for n in range(1, 10):
        S.I(f"v_and_b32 v15, v{GL+4*n+1}, v{GL+4*n+3}")
        S.I(f"v_or3_b32 v13, v13, v{GL+4*n+1}, v{GL+4*n+3}")
        S.I("v_and_b32 v12, v12, v15")
    S.I("v_cmp_eq_u32 vcc, v12, v14")
    S.I("v_cmp_eq_u32 s[24:25], v13, v14")
    S.I("s_and_b64 s[24:25], s[24:25], vcc")
    S.I("s_add_u32 s39, s39, 1")
    S.I("s_cmp_eq_u64 s[24:25], -1")
    S.I(f"s_cbranch_scc1 L_{name}_gpv")
    S.I("s_cmp_ge_u32 s39, 0x40000" if "nosync" not in dbg else "s_cmp_ge_u32 s39, 0")
    S.I(f"s_cbranch_scc1 L_{name}_gpv")
    for n in range(10):
        so = "s70" if n < 4 else ("s71" if n < 8 else "s69")
        if n < 9:
            S.I(f"s_cmp_gt_u32 s38, {n}")
            S.I(f"s_cbranch_scc1 L_{name}_gs{n}")
        S.I(f"buffer_load_dwordx4 {vr(GL+4*n,4)}, v252, s[{SAG}:{SAG+3}], {so} offen offset:{(n%4)*1024} sc1")
        if n < 9: S.label(f"L_{name}_gs{n}")
    S.I(f"s_branch L_{name}_gp")
    S.label(f"L_{name}_gpv")
    for n in range(10):
        S.I(f"ds_write_b128 v253, {vr(GL+4*n,4)} offset:{1024*n}")
    for d in range(15, 0, -1):
        o = (15 - d) * 640
        S.I(f"ds_read_b32 v{G0+d-1}, v4 offset:{o}")
        S.I(f"ds_read_b32 v{G1+d-1}, v5 offset:{o+512}")
    S.I("s_waitcnt lgkmcnt(0)")
    S.label(f"L_{name}_gpok")
    S.lg = []; S.vm = []
    for d in range(14, 0, -1):
        for (g_, k) in ((G0, 0), (G1, 1)):
            S.I(f"v_fmac_f32 v{g_+d-1}, v{A128+k}, v{g_+d}")
        for (g_, k) in ((G0, 0), (G1, 1)):
            S.I(f"v_fmac_f32_dpp v{g_+d-1}, v{g_+d}, v{SB128+k} {DPP}")
    S.I(f"s_branch L_{name}_hp")
    S.label(f"L_{name}_r0")
    S.I(f"v_mov_b32 v{G0}, 0")
    S.I(f"v_mov_b32 v{G1}, 0")
    S.label(f"L_{name}_hp")
    S.I(f"ds_write_b32 v9, v{G0}", tag="h")
    S.I(f"ds_write_b32 v11, v{G1} offset:256", tag="h")
    cnt_add(S, 12, 13, CNT_L + 12)
    S.label(f"L_{name}_hw")
    cnt_wait(S, f"L_{name}_hwl", 12, 13, CNT_L + 12, 1)
    stamp()
    HV = BUF + 32
    for j in range(5):
        S.I(f"ds_read_b32 v{HV+j}, v11 offset:{64*j}", tag="hv")
    S.I(f"v_mul_u32_u24 v9, 272, v{vC_}")
    S.I(f"v_lshlrev_b32 v12, 4, v{vG_}")
    S.I("s_lshl_b32 s36, s35, 6")
    S.I("v_add3_u32 v9, v9, v12, s36")
    S.wait_lg()
    for j in range(5):
        S.I(f"v_fmac_f32 v{QV+j}, v{CAS+j}, v{HV+j}")
    for j in range(5):
        S.I(f"v_fmac_f32_dpp v{QV+j}, v{HV+j}, v{CSBS+j} {DPP}")
    for tl in range(8):
        prev = [QV + j if tl == 0 else ACC + 8 * j + tl - 1 for j in range(5)]
        for j in range(5):
            S.I(f"v_fmac_f32 v{ACC+8*j+tl}, v{CA+j}, v{prev[j]}")
        for j in range(5):
            S.I(f"v_fmac_f32_dpp v{ACC+8*j+tl}, v{prev[j]}, v{CSB+j} {DPP}")
    OV = BUF + 40
    PK = BUF + 80
    for j in range(5):
        p_, sel = pr(CCO + j)
        for t2 in range(4):
            S.I(f"v_pk_mul_f32 {vr(OV+8*j+2*t2,2)}, {vr(ACC+8*j+2*t2,2)}, {p_} op_sel:[0,{sel}] op_sel_hi:[1,{sel}]")
        for tl in range(8):
            S.I(f"v_fmac_f32_dpp v{OV+8*j+tl}, v{ACC+8*j+tl}, v{CCX+j} {DPP}")
        for k in range(4):
            S.I(f"v_cvt_pk_bf16_f32 v{PK+4*j+k}, v{OV+8*j+2*k}, v{OV+8*j+2*k+1}")
        S.I(f"ds_write_b128 v9, {vr(PK+4*j,4)} offset:{16*272*j}", tag="tw")
    S.I(f"v_lshrrev_b32 v11, 2, v{vC_}")
    S.I("v_mul_u32_u24 v11, 272, v11")
    S.I(f"v_and_b32 v4, 3, v{vC_}")
    S.I("v_lshlrev_b32 v4, 4, v4")
    S.I("v_add3_u32 v11, v11, v4, s36")
    S.I(f"v_mul_u32_u24 v4, {8*272}, v{vG_}")
    S.I("v_add_u32 v4, v11, v4")
    S.I(f"v_and_b32 v5, 1, v{vG_}")
    S.I(f"v_mul_u32_u24 v5, {8*272}, v5")
    S.I(f"v_lshrrev_b32 v7, 1, v{vG_}")
    S.I("v_lshlrev_b32 v7, 3, v7")
    S.I("v_add3_u32 v5, v11, v5, v7")
    SHF = 40
    S.I("s_lshl_b32 s36, s32, 2")
    S.I("s_add_u32 s36, s36, s35")
    S.I(f"s_mul_i32 s36, s36, {2*HF_RT}")
    S.I("s_mul_i32 s37, s33, 2560")
    S.I("s_add_u32 s36, s36, s37")
    mk_srd(S, SHF, 30, 31, HF_RT + 2560, 36, HF_OFF)
    S.I("v_lshlrev_b32 v7, 4, v0")
    S.I(f"v_and_b32 v10, 1, v{vG_}")
    S.I("v_lshlrev_b32 v10, 8, v10")
    S.I(f"v_lshlrev_b32 v8, 4, v{vC_}")
    S.I("v_add_u32 v10, v10, v8")
    S.I(f"v_lshrrev_b32 v8, 1, v{vG_}")
    S.I(f"v_mul_u32_u24 v8, {HF_RT}, v8")
    S.I("v_add_u32 v10, v10, v8")
    S.I(f"s_mov_b32 s37, {HF_RT}")
    S.wait_lg()
    RD = BUF
    for n in range(5):
        for e in range(2):
            if n < 4:
                off = (n & 1) * 32 * 272 + e * 4 * 272 + (n >> 1) * 8
                S.I(f"ds_read_b64_tr_b16 {vr(RD+4*n+2*e,2)}, v4 offset:{off}", tag=f"t{n}")
            else:
                S.I(f"ds_read_b64_tr_b16 {vr(RD+4*n+2*e,2)}, v5 offset:{64*272+e*4*272}", tag=f"t{n}")
    for n in range(5):
        S.wait_lg(f"t{n}")
        if n < 4:
            so = "0" if n < 2 else "s37"
            S.I(f"buffer_store_dwordx4 {vr(RD+4*n,4)}, v7, s[{SHF}:{SHF+3}], {so} offen offset:{(n&1)*1024}{STH}", tag="st")
        else:
            S.I(f"buffer_store_dwordx4 {vr(RD+4*n,4)}, v10, s[{SHF}:{SHF+3}], 0 offen offset:2048{STH}", tag="st")
    final_stamps(S, st)
    S.I("s_endpgm")

    M = Stream(A)
    M.label(f"L_{name}_M")
    stamp, st = mkstamp(M)
    SBB, SW1, SB1, SH1, SDB, SAGM = 40, 48, 52, 56, 60, 64
    MACC, XB, WB, FR = 24, 72, 104, 200
    CBA, CBF, WA, MSK = FR, FR + 20, FR + 40, FR + 52
    lbl = [0]
    if "early" in dbg: stamp()
    M.I("s_cmp_lg_u32 s35, 3")
    M.I("s_cselect_b64 vcc, -1, 0")
    mk_srd(M, SW1, 20, 21, 1966080)
    M.I("s_mul_i32 s39, s33, 192")
    M.I("s_lshl_b32 s36, s35, 8")
    for e in range(4):
        M.I(f"v_add_u32 v22, {64*e}, v0")
        M.I("v_add_u32 v22, s36, v22")
        M.I("v_min_u32 v22, 767, v22")
        M.I("v_mul_u32_u24 v23, 43691, v22")
        M.I("v_lshrrev_b32 v23, 19, v23")
        M.I("v_mul_u32_u24 v9, 12, v23")
        M.I("v_sub_u32 v22, v22, v9")
        M.I("v_lshlrev_b32 v22, 4, v22")
        M.I("v_mul_u32_u24 v23, 3072, v23")
        M.I(f"v_add3_u32 v{1+e}, v22, v23, s39")
    M.I("s_lshl_b32 s68, s35, 12")
    M.I(f"s_add_u32 s68, s68, {W1_O}")
    M.I("s_lshl_b32 s36, s35, 1")
    M.I("s_add_u32 s36, s36, 4")
    M.I("s_min_u32 s36, s36, 8")
    bb_srd(M, SBB, 69)
    M.I("s_lshl_b32 s36, s35, 1")
    M.I("s_add_u32 s36, s36, 5")
    M.I("s_min_u32 s36, s36, 9")
    bb_srd(M, SBB + 4, 70)
    M.I("v_lshrrev_b32 v22, 3, v0")
    M.I("v_and_b32 v23, 7, v0")
    M.I("v_xor_b32 v13, v22, v23")
    M.I("v_mul_u32_u24 v5, 1280, v22")
    M.I("v_lshl_add_u32 v13, v13, 4, v5")
    def guard(g):
        lbl[0] += 1
        return [(f"s_cbranch_vccz L_{name}_g{lbl[0]}", None)] + g + [(f"L_{name}_g{lbl[0]}:", None)]
    def m_dma(p):
        q = p % 4
        L = []
        g = [("s_lshl_b32 s38, s26, 7", None)]
        for e in range(2):
            g += [(f"s_add_u32 m0, s{69+e}, {q*SLOT}", None), (f"buffer_load_dwordx4 v13, s[{SBB+4*e}:{SBB+4*e+3}], s38 offen lds", f"c{p}")]
        L.append(guard(g))
        for e2 in range(2):
            g = [("s_mul_i32 s71, s26, 196608", None)] if e2 == 0 else []
            for e in (2 * e2, 2 * e2 + 1):
                g += [(f"s_add_u32 m0, s68, {q*SLOT + 1024*e}", None), (f"buffer_load_dwordx4 v{1+e}, s[{SW1}:{SW1+3}], s71 offen lds", f"c{p}")]
            if e2 == 1: g += adv()
            L.append(guard(g))
        return L
    def m_wait(tag):
        lbl[0] += 1
        M.I(f"s_cbranch_vccz L_{name}_g{lbl[0]}")
        M.wait_vm(tag)
        M.label(f"L_{name}_g{lbl[0]}")
    M.vm = []
    if "early" in dbg: stamp()
    emit(M, m_dma(0))
    if "early" in dbg: stamp()
    mk_srd(M, SDB, 28, 29, 256)
    M.I(f"s_mul_i32 s36, s33, {AGG_G}")
    mk_srd(M, SAGM, 30, 31, AGG_G, 36, AGG_OFF)
    for k in range(2): M.I(f"v_mov_b32 v{14+k}, 0")
    for k in range(4): M.I(f"v_mov_b32 v{18+k}, 0x3f803f80")
    savevm = list(M.vm)
    M.I(f"s_cbranch_vccnz L_{name}_noclr")
    M.I("v_min_u32 v8, 19, v0")
    M.I("v_lshlrev_b32 v8, 2, v8")
    M.I("s_mul_i32 s36, s33, 80")
    M.I("v_add_u32 v8, s36, v8")
    M.I("global_load_dword v1, v8, s[6:7]")
    M.I("global_load_dword v2, v8, s[8:9]")
    M.I("global_load_dword v3, v8, s[18:19]")
    M.I("v_min_u32 v8, 47, v0")
    M.I("v_lshlrev_b32 v8, 2, v8")
    M.I("s_mul_i32 s36, s33, 192")
    M.I("v_add_u32 v8, s36, v8")
    M.I("global_load_dword v4, v8, s[22:23]")
    M.I("s_lshl_b32 s36, s2, 7")
    mk_srd(M, SB1, 30, 31, 16384, None, YF_OFF)
    M.I("v_mov_b32 v8, s36")
    M.I(f"buffer_store_dword v14, v8, s[{SB1}:{SB1+3}], 0 offen")
    M.I("v_lshlrev_b32 v8, 3, v0")
    M.I("v_and_b32 v10, 15, v0")
    M.I("v_lshlrev_b32 v10, 3, v10")
    M.I("s_add_u32 s37, s32, 15")
    M.I("s_mul_i32 s37, s37, 640")
    M.I(f"buffer_store_dwordx2 v[14:15], v8, s[{SAGM}:{SAGM+3}], s37 offen sc1")
    M.I(f"buffer_store_dwordx2 v[14:15], v10, s[{SAGM}:{SAGM+3}], s37 offen offset:512 sc1")
    M.I("s_lshl_b32 s37, s32, 7")
    M.I(f"s_add_u32 s37, s37, {GO_O}")
    M.I(f"buffer_store_dwordx2 v[14:15], v14, s[{SAGM}:{SAGM+3}], s37 offen sc1")
    M.I("s_cmp_lg_u32 s32, 0")
    M.I(f"s_cbranch_scc1 L_{name}_noclr")
    M.I("v_mov_b32 v10, 0")
    M.I(f"v_mov_b32 v11, {TAG}")
    M.I("s_mov_b32 s37, 0")
    for k in range(19):
        if k == 18:
            M.I("v_min_u32 v8, 376, v8")
        M.I(f"buffer_store_dwordx2 v[10:11], v8, s[{SAGM}:{SAGM+3}], s37 offen offset:{(k%8)*512} sc1")
        if k % 8 == 7: M.I("s_add_u32 s37, s37, 4096")
    M.label(f"L_{name}_noclr")
    M.vm = savevm
    stamp()
    M.I("v_and_b32 v22, 15, v0")
    M.I("v_bfe_u32 v23, v0, 4, 1")
    T1 = XB
    M.I(f"v_lshrrev_b32 v{T1}, 2, v22")
    M.I(f"v_and_b32 v{T1+1}, 3, v22")
    M.I(f"v_lshlrev_b32 v{T1+2}, 3, v{T1}")
    M.I(f"v_lshl_add_u32 v{T1+2}, v23, 2, v{T1+2}")
    M.I(f"v_add_u32 v{T1+2}, v{T1+2}, v{T1+1}")
    M.I("s_lshl_b32 s36, s35, 5")
    M.I(f"v_add_u32 v{T1+5}, s36, v{T1+2}")
    M.I(f"v_lshlrev_b32 v{T1+2}, 7, v{T1+5}")
    M.I(f"v_lshrrev_b32 v{T1+3}, 1, v{T1}")
    M.I(f"v_lshlrev_b32 v{T1+3}, 2, v{T1+3}")
    M.I(f"v_and_b32 v{T1+4}, 2, v{T1+1}")
    M.I(f"v_or3_b32 v{T1+3}, v{T1+3}, v{T1+4}, v23")
    M.I(f"v_lshrrev_b32 v{T1+4}, 5, v0")
    M.I(f"v_xor_b32 v{T1+3}, v{T1+3}, v{T1+4}")
    M.I(f"v_lshlrev_b32 v{T1+6}, 3, v{T1+4}")
    M.I(f"v_bfe_u32 v{T1+7}, v0, 2, 2")
    M.I(f"v_add_u32 v{T1+6}, v{T1+6}, v{T1+7}")
    M.I(f"v_mul_u32_u24 v{T1+6}, 192, v{T1+6}")
    M.I(f"v_lshl_add_u32 v{T1+6}, v23, 5, v{T1+6}")
    M.I(f"v_and_b32 v{T1+7}, 3, v0")
    M.I(f"v_lshl_add_u32 v{T1+6}, v{T1+7}, 3, v{T1+6}")
    M.I(f"v_add_u32 v{T1+6}, {W1_O}, v{T1+6}")
    M.I(f"v_xor_b32 v{T1+7}, v23, v0")
    M.I(f"v_and_b32 v{T1+7}, 1, v{T1+7}")
    M.I(f"v_add_u32 v{T1+7}, -1, v{T1+7}")
    M.I(f"v_and_b32 v{MSK}, 0x3f803f80, v{T1+7}")
    for k in range(1, 4): M.I(f"v_mov_b32 v{MSK+k}, v{MSK}")
    for u in range(4):
        M.I(f"v_xor_b32 v{T1+4}, {2*u}, v{T1+3}")
        M.I(f"v_lshl_add_u32 v{5+u}, v{T1+4}, 4, v{T1+2}")
    for j2 in range(3):
        M.I(f"s_add_u32 s36, s35, {j2}")
        M.I("s_sub_u32 s39, s36, 3")
        M.I("s_cmp_ge_u32 s36, 3")
        M.I(f"s_cselect_b32 s{4+j2}, s39, s36")
        M.I(f"s_lshl_b32 s39, s{4+j2}, 6")
        M.I(f"v_add_u32 v{9+j2}, s39, v{T1+6}")
    M.I(f"v_lshlrev_b32 v23, 3, v{T1+5}")
    mk_srd(M, SB1, 22, 23, 3072)
    M.I(f"v_lshrrev_b32 v{T1}, 4, v0")
    M.I("s_and_b32 s36, s35, 1")
    M.I("s_lshl_b32 s36, s36, 2")
    M.I(f"v_add_u32 v{T1}, s36, v{T1}")
    M.I(f"v_and_b32 v{T1+1}, 7, v0")
    M.I(f"v_xor_b32 v{T1}, v{T1}, v{T1+1}")
    M.I(f"v_lshlrev_b32 v{T1+1}, 7, v22")
    M.I(f"v_lshl_add_u32 v16, v{T1}, 4, v{T1+1}")
    M.I(f"v_add_u32 v16, {BB_O}, v16")
    M.I(f"v_lshlrev_b32 v{T1}, 3, v0")
    M.I(f"v_min_u32 v{T1}, 408, v{T1}")
    M.I(f"v_add_u32 v{T1}, {CSW_L}, v{T1}")
    M.I(f"ds_write_b64 v{T1}, v[14:15]")
    for k in range(20): M.I(f"v_mov_b32 v{CBA+k}, 0")
    M.I("s_lshr_b32 s37, s35, 1")
    emit(M, m_dma(1))
    M.raw(";;DRYPT")
    def m_reads(p):
        L = []
        for u in range(4):
            L.append([(f"ds_read_b128 {vr(XB+16*(p&1)+4*u,4)}, v{5+u}", f"r{p}")])
            for jt in range(3):
                L.append([(f"ds_read_b64_tr_b16 {vr(WB+48*(p&1)+12*u+4*jt+2*e,2)}, v{9+jt} offset:{u*3072+e*768}", f"r{p}") for e in range(2)])
        delta = SLOT if p % 4 != 3 else (-3 * SLOT) & 0xffffffff
        L.append([(f"v_add_u32 v{k}, {delta}, v{k}", None) for k in range(5, 12)])
        return L
    def m_mfma(p):
        L = []
        for u in range(4):
            c = "0" if (p == 0 and u < 2) else vr(WA + 4 * (u & 1), 4)
            L.append(f"v_mfma_f32_16x16x32_bf16 {vr(WA+4*(u&1),4)}, {vr(WB+48*(p&1)+12*u,4)}, {vr(MSK,4)}, {c}")
        for u in range(4):
            for jt in range(3):
                c = "0" if (p == 0 and u == 0) else vr(MACC + 16 * jt, 16)
                L.append(f"v_mfma_f32_32x32x16_bf16 {vr(MACC+16*jt,16)}, {vr(WB+48*(p&1)+12*u+4*jt,4)}, {vr(XB+16*(p&1)+4*u,4)}, {c}")
        return L
    B1V = WB + 24
    for p in range(10):
        m_wait(f"c{p}")
        if p == 1:
            M.I(f"s_cbranch_vccnz L_{name}_w7")
            M.I("s_waitcnt vmcnt(0)")
            M.I("v_min_u32 v17, 19, v0")
            M.I("v_lshlrev_b32 v17, 2, v17")
            M.I(f"v_add_u32 v17, {PAR_L}, v17")
            M.I("ds_write_b32 v17, v1")
            M.I("ds_write_b32 v17, v2 offset:128")
            M.I("ds_write_b32 v17, v3 offset:256")
            M.lg = []
            M.label(f"L_{name}_w7")
        if p == 0: M.wait_lg()
        M.I("s_barrier")
        stamp(True)
        if p in (0, 9): stamp()
        side = m_dma(p + 3) if p + 3 <= 9 else []
        if p == 0: side = m_dma(2)
        if p == 1: side = m_dma(3) + side
        rd = m_reads(p)
        M.I(f"s_cmp_lg_u32 s37, {p & 1}")
        M.I(f"s_cbranch_scc1 L_{name}_cs{p}a")
        for j in range(5):
            M.I(f"ds_read_b128 {vr(CBF+4*j,4)}, v16 offset:{2048*j}")
            M.lg.pop()
        M.label(f"L_{name}_cs{p}a")
        delta = SLOT if p % 4 != 3 else (-3 * SLOT) & 0xffffffff
        M.I(f"v_add_u32 v16, {delta}, v16")
        def cs_mfma():
            M.I(f"s_cmp_lg_u32 s37, {p & 1}")
            M.I(f"s_cbranch_scc1 L_{name}_cs{p}b")
            for j in range(5):
                M.I(f"v_mfma_f32_16x16x32_bf16 {vr(CBA+4*j,4)}, v[18:21], {vr(CBF+4*j,4)}, {vr(CBA+4*j,4)}")
            M.label(f"L_{name}_cs{p}b")
        if "dmaonly" in dbg: emit(M, side)
        elif p == 0: emit(M, rd + side)
        elif p == 9:
            mm8 = m_mfma(8)
            for m in mm8[:6]: M.I(m)
            M.I("s_waitcnt lgkmcnt(0)")
            cs_mfma()
            for m in mm8[6:8]: M.I(m)
            M.I("s_mul_i32 s36, s35, 320")
            M.I(f"s_add_u32 s36, s36, {CSB_L}")
            M.I("v_lshlrev_b32 v17, 2, v22")
            M.I("v_add_u32 v17, s36, v17")
            M.I("s_nop 3")
            M.I("s_mov_b64 exec, 0xffff")
            for j in range(5):
                M.I(f"ds_write_b32 v17, v{CBA+4*j} offset:{64*j}", tag="sw")
            cnt_add(M, 16, 17, CNT_L + 4)
            merge(M, mm8[8:], rd, 0.9)
            M.I(f"s_cbranch_vccnz L_{name}_nb1")
            M.I("v_min_u32 v17, 47, v0")
            M.I("v_lshlrev_b32 v17, 3, v17")
            M.I(f"v_add_u32 v17, {B1F_L}, v17")
            M.I("v_lshlrev_b32 v2, 16, v4")
            M.I("v_and_b32 v3, 0xffff0000, v4")
            M.I("ds_write_b64 v17, v[2:3]")
            M.label(f"L_{name}_nb1")
        else: merge(M, m_mfma(p - 1), mix(rd, side), 0.9)
        if p == 1:
            M.I(f"s_cbranch_vccnz L_{name}_na")
            M.I("s_waitcnt vmcnt(0)")
            M.I("s_lshl_b32 s36, s33, 4")
            M.I("v_mov_b32 v14, s36")
            M.I("v_mov_b32 v15, 1")
            M.I("s_mov_b64 exec, 1")
            M.I(f"buffer_atomic_add v15, v14, s[{SDB}:{SDB+3}], 0 offen sc0")
            M.vm.pop()
            M.I("s_mov_b64 exec, -1")
            M.label(f"L_{name}_na")
        if p == 6:
            M.I(f"s_cbranch_vccnz L_{name}_nb")
            M.I("s_waitcnt vmcnt(0)")
            M.I("v_readfirstlane_b32 s36, v15")
            M.I("s_cmp_lg_u32 s36, 15")
            M.I(f"s_cbranch_scc1 L_{name}_nb")
            M.I("v_lshlrev_b32 v14, 7, v22")
            M.I(f"v_add_u32 v14, {GO_O}, v14")
            M.I(f"v_mov_b32 v15, {TAG}")
            M.I("s_mov_b64 exec, 0xffff")
            M.I(f"buffer_store_dword v15, v14, s[{SAGM}:{SAGM+3}], 0 offen sc1")
            M.vm.pop()
            M.I("s_mov_b64 exec, -1")
            M.label(f"L_{name}_nb")
        M.I("s_waitcnt lgkmcnt(0)")
        M.lg = []
        if p < 9: cs_mfma()
    mm = m_mfma(9)
    M.raw(";;DRYSTART")
    M.I("v_lshrrev_b32 v1, 4, v0")
    side_issue(M, 1, 22, 13, 40, 44, 48, 2, 3, 4, 5, 6)
    M.I("s_lshl_b32 s38, s35, 2")
    M.I(f"s_add_u32 s38, s38, {CNT_L+16}")
    if "mdelay" in dbg: cnt_wait(M, f"L_{name}_mw2", 16, 17, "s38", 1)
    for m in mm[:4]: M.I(m)
    for m in mm[4:8]: M.I(m)
    for r in range(4): M.I(f"v_add_f32 v{WA+r}, v{WA+r}, v{WA+4+r}")
    M.I("v_and_b32 v16, 1, v0")
    M.I("v_lshlrev_b32 v16, 6, v16")
    M.I("v_lshrrev_b32 v17, 4, v0")
    M.I("v_lshl_add_u32 v16, v17, 4, v16")
    M.I("s_lshl_b32 s36, s4, 7")
    M.I(f"s_add_u32 s36, s36, {CSW_L}")
    M.I("v_add_u32 v16, s36, v16")
    M.I("s_mov_b32 exec_lo, 0x00030003")
    M.I("s_mov_b32 exec_hi, 0x00030003")
    M.I(f"ds_write_b128 v16, {vr(WA,4)}")
    cnt_add(M, 16, 17, CNT_L + 8)
    for m in mm[8:]: M.I(m)
    stamp()
    cnt_wait(M, f"L_{name}_mw1", 16, 17, CNT_L + 8, 4)
    if "mdelay" not in dbg: cnt_wait(M, f"L_{name}_mw2", 16, 17, "s38", 1)
    stamp()
    CSV = XB
    B1V = WB + 16
    M.I("v_lshrrev_b32 v10, 5, v0")
    M.I("v_lshlrev_b32 v11, 4, v10")
    M.I(f"v_add_u32 v12, {B1F_L}, v11")
    M.I(f"v_add_u32 v11, {CSW_L}, v11")
    M.I("v_lshrrev_b32 v23, 1, v23")
    M.I(f"v_add_u32 v23, {STATS_L}, v23")
    M.I("ds_read_b32 v14, v23")
    M.I("ds_read_b32 v15, v23 offset:512")
    for jt in range(3):
        M.I(f"s_lshl_b32 s36, s{4+jt}, 7")
        M.I("v_add_u32 v16, s36, v11")
        M.I("v_add_u32 v17, s36, v12")
        M.I(f"s_lshl_b32 s{4+jt}, s{4+jt}, 10")
        for q in range(4):
            M.I(f"ds_read_b128 {vr(CSV+(jt*4+q)*4,4)}, v16 offset:{32*q}", tag=f"cr{jt}")
            M.I(f"ds_read_b128 {vr(B1V+(jt*4+q)*4,4)}, v17 offset:{32*q}", tag=f"cr{jt}")
    M.I("s_lshl_b32 s36, s32, 2")
    M.I("s_add_u32 s36, s36, s35")
    M.I(f"s_mul_i32 s36, s36, {2*H1F_RT}")
    M.I("s_mul_i32 s39, s33, 3072")
    M.I("s_add_u32 s36, s36, s39")
    mk_srd(M, SH1, 30, 31, H1F_RT + 3072, 36, H1F_OFF)
    M.I("v_bfe_u32 v9, v0, 4, 1")
    M.I(f"v_mul_u32_u24 v9, {H1F_RT}, v9")
    M.I("v_lshl_add_u32 v9, v10, 8, v9")
    M.I("v_lshl_add_u32 v9, v22, 4, v9")
    C1 = -2.0 * 1.4426950408889634 * 0.7978845608028654
    C2 = C1 * 0.044715
    M.I(f"v_mov_b32 v16, {f2u(C2)}")
    M.I(f"v_mov_b32 v17, {f2u(C1)}")
    TM = FR
    late = []
    for jt in range(3):
        M.wait_lg(f"cr{jt}")
        P = [MACC + 16 * jt + 2 * k for k in range(8)]
        cs = [CSV + jt * 16 + 2 * k for k in range(8)]
        b1 = [B1V + jt * 16 + 2 * k for k in range(8)]
        T_ = [TM + 2 * k for k in range(8)]
        for k in range(8):
            M.I(f"v_pk_fma_f32 {vr(b1[k],2)}, v[14:15], {vr(cs[k],2)}, {vr(b1[k],2)} op_sel:[0,0,0] op_sel_hi:[0,1,1] neg_lo:[1,0,0] neg_hi:[1,0,0]")
        for k in range(8):
            M.I(f"v_pk_fma_f32 {vr(P[k],2)}, {vr(P[k],2)}, v[14:15], {vr(b1[k],2)} op_sel:[0,1,0] op_sel_hi:[1,1,1]")
        for k in range(8):
            M.I(f"v_pk_mul_f32 {vr(T_[k],2)}, {vr(P[k],2)}, {vr(P[k],2)}")
        for k in range(8):
            M.I(f"v_pk_fma_f32 {vr(T_[k],2)}, {vr(T_[k],2)}, v[16:17], v[16:17] op_sel:[0,0,1] op_sel_hi:[1,0,1]")
        for k in range(8):
            M.I(f"v_pk_mul_f32 {vr(T_[k],2)}, {vr(T_[k],2)}, {vr(P[k],2)}")
        for k in range(16):
            M.I(f"v_exp_f32 v{TM+k}, v{TM+k}")
        for k in range(8):
            M.I(f"v_pk_add_f32 {vr(T_[k],2)}, {vr(T_[k],2)}, 1.0 op_sel_hi:[1,0]")
        for k in range(16):
            M.I(f"v_rcp_f32 v{TM+k}, v{TM+k}")
        for k in range(8):
            M.I(f"v_pk_mul_f32 {vr(P[k],2)}, {vr(P[k],2)}, {vr(T_[k],2)}")
        PKM = TM + 16 + 8 * jt
        for k in range(8):
            M.I(f"v_cvt_pk_bf16_f32 v{PKM+k}, v{P[k]}, v{P[k]+1}")
        def h1st(jt=jt, PKM=PKM):
            for AB in range(2):
                M.I(f"buffer_store_dwordx4 {vr(PKM+4*AB,4)}, v9, s[{SH1}:{SH1+3}], s{4+jt} offen offset:{512*AB}{STF}", tag="st")
        if "mst" in dbg: late.append(h1st)
        else: h1st()
    if "mst" in dbg:
        cnt_wait(M, f"L_{name}_mw3", 16, 17, CNT_L + 12, 1)
        for f in late: f()
    M.I("s_waitcnt vmcnt(6)")
    RJ = XB
    M.I("s_cmp_ge_u32 s26, 880")
    M.I(f"s_cbranch_scc1 L_{name}_sj1")
    M.I("s_cmp_ge_u32 s26, 480")
    M.I(f"s_cbranch_scc1 L_{name}_sj1c")
    for j in range(4):
        for e in range(2):
            M.I(f"ds_read_b64_tr_b16 {vr(RJ+4*j+2*e,2)}, v6 offset:{32*j+1024*e}")
    M.I(f"s_branch L_{name}_sj1s")
    M.label(f"L_{name}_sj1c")
    for j in range(4):
        M.I(f"v_xor_b32 v2, {32*j}, v6")
        M.I(f"ds_read_b128 {vr(RJ+4*j,4)}, v2")
    M.label(f"L_{name}_sj1s")
    M.I("s_waitcnt lgkmcnt(0)")
    for j in range(4):
        M.I(f"buffer_store_dwordx4 {vr(RJ+4*j,4)}, v5, s[48:51], s22 offen{STF}")
        if j < 3: M.I("s_add_u32 s22, s22, s23")
    M.label(f"L_{name}_sj1")
    M.I("s_cmp_lg_u32 s33, 0")
    M.I(f"s_cbranch_scc1 L_{name}_nostat")
    M.I("s_lshl_b32 s36, s32, 9")
    mk_srd(M, 40, 30, 31, 8192 + 512, 36, STATS_OFF)
    M.I(f"v_subrev_u32 v23, {STATS_L}, v23")
    M.I("s_mov_b32 s36, 8192")
    M.I("buffer_store_dword v14, v23, s[40:43], 0 offen")
    M.I("buffer_store_dword v15, v23, s[40:43], s36 offen")
    M.label(f"L_{name}_nostat")
    final_stamps(M, st)
    M.label(f"L_{name}_end")
    M.I("s_endpgm")
    if "dry" not in dbg:
        for X in (S, M): X.lines = [l for l in X.lines if not l.startswith(";;DRY")]
    else:
        print("dry blocks", add_dry(S, name, "ds", 39), add_dry(M, name, "dm", 39))
    desc = f""".section .rodata,"a"
.p2align 6
.amdhsa_kernel {name}
  .amdhsa_next_free_vgpr 256
  .amdhsa_next_free_sgpr 102
  .amdhsa_accum_offset 256
  .amdhsa_group_segment_fixed_size 0
  .amdhsa_kernarg_size 136
  .amdhsa_user_sgpr_count 2
  .amdhsa_user_sgpr_kernarg_segment_ptr 1
  .amdhsa_system_sgpr_workgroup_id_x 1
.end_amdhsa_kernel
.text"""
    return A.text() + "\n" + S.text() + "\n" + M.text() + "\n" + desc, (A.nins, S.nins, M.nins)
```

```python
from asmfw import *
from layout import *
import struct
def f2u(f): return struct.unpack("<I", struct.pack("<f", f))[0]
LOG2E = f2u(1.4426950408889634)
INV2PI = f2u(0.15915494309189535)
SLOT = 38912
BB_O = 16384
W1_O = 26624
MISC = 155648
SEG_L = MISC
CSW_L = MISC + 5120
CNT_L = CSW_L + 384
STATS_L = MISC + 5632
CSB_L = STATS_L + 1024
STG_L = 2 * SLOT
PAR_L = SEG_L
B1F_L = 34816
GR_L = 40960
TR_L = 0
Q_L = 24576
HS_L = 32768
TAG = 0x5a17c3e9
EP_L = 126976
MST_L = 0
NEG_LOG2E = 0xbfb8aa3b
DPP = "row_ror:8 row_mask:0xf bank_mask:0xf"

def mk_srd(A, d, lo, hi, nbytes, off_s=None, off_imm=0):
    if off_s is None and off_imm == 0:
        A.I(f"s_mov_b32 s{d}, s{lo}")
        A.I(f"s_and_b32 s{d+1}, s{hi}, 0xffff")
    else:
        if off_s is not None:
            if off_imm: A.I(f"s_add_u32 s{off_s}, s{off_s}, {off_imm}")
            A.I(f"s_add_u32 s{d}, s{lo}, s{off_s}")
        else:
            A.I(f"s_add_u32 s{d}, s{lo}, {off_imm}")
        A.I(f"s_addc_u32 s{d+1}, s{hi}, 0")
        A.I(f"s_and_b32 s{d+1}, s{d+1}, 0xffff")
    A.I(f"s_mov_b32 s{d+2}, {nbytes}")
    A.I(f"s_mov_b32 s{d+3}, 0x00020000")

def bb_srd(X, d, ldsreg):
    X.I(f"s_lshl_b32 s{ldsreg}, s36, 10")
    X.I(f"s_add_u32 s{ldsreg}, s{ldsreg}, {BB_O}")
    X.I("s_and_b32 s39, s36, 1")
    X.I("s_cmp_eq_u32 s39, 0")
    X.I(f"s_cselect_b32 s{d}, s10, s12")
    X.I(f"s_cselect_b32 s{d+1}, s11, s13")
    X.I("s_lshr_b32 s36, s36, 1")
    X.I("s_lshl_b32 s36, s36, 3")
    X.I("s_mul_i32 s39, s33, 40")
    X.I("s_add_u32 s36, s36, s39")
    X.I("s_mul_i32 s36, s36, 1280")
    X.I(f"s_add_u32 s{d}, s{d}, s36")
    X.I(f"s_addc_u32 s{d+1}, s{d+1}, 0")
    X.I(f"s_and_b32 s{d+1}, s{d+1}, 0xffff")
    X.I(f"s_mov_b32 s{d+2}, 10240")
    X.I(f"s_mov_b32 s{d+3}, 0x00020000")

def put(X, item):
    t, g = item
    if t.endswith(":"): X.label(t[:-1])
    else: X.I(t, tag=g)
def emit(X, L):
    for grp in L:
        for it in grp: put(X, it)
def merge(X, main, side, frac=1.0):
    side = list(side)
    n = max(1, int(len(main) * frac))
    done = 0
    for k, m in enumerate(main):
        X.I(m)
        tgt = min(len(side), ((k + 1) * len(side) + n - 1) // n)
        while done < tgt:
            for it in side[done]: put(X, it)
            done += 1
    while done < len(side):
        for it in side[done]: put(X, it)
        done += 1
def mix(a, b):
    out = []; ia = ib = 0
    while ia < len(a) or ib < len(b):
        if ib >= len(b) or (ia < len(a) and ia * len(b) <= ib * len(a)):
            out.append(a[ia]); ia += 1
        else:
            out.append(b[ib]); ib += 1
    return out

def cnt_add(X, va, vt, addr):
    X.I(f"v_mov_b32 v{va}, {addr}")
    X.I(f"v_mov_b32 v{vt}, 1")
    X.I("s_mov_b64 exec, 1")
    X.I(f"ds_add_u32 v{va}, v{vt}")
    X.I("s_mov_b64 exec, -1")
def cnt_wait(X, lab, va, vt, addr, val):
    X.I(f"v_mov_b32 v{va}, {addr}")
    X.I("s_mov_b32 s39, 0")
    X.label(lab)
    X.I(f"ds_read_b32 v{vt}, v{va}")
    X.I("s_waitcnt lgkmcnt(0)")
    X.lg = []
    X.I(f"v_readfirstlane_b32 s36, v{vt}")
    X.I("s_add_u32 s39, s39, 1")
    X.I(f"s_cmp_eq_u32 s36, {val}")
    X.I(f"s_cbranch_scc1 {lab}d")
    X.I("s_sleep 1")
    X.I("s_cmp_lt_u32 s39, 0x400000")
    X.I(f"s_cbranch_scc1 {lab}")
    X.label(lab + "d")

def pr(idx):
    return f"v[{idx & ~1}:{(idx & ~1) + 1}]", idx & 1

def add_dry(X, name, tag, sreg, minlen=10, maxlen=48):
    lines = X.lines
    i0 = lines.index(";;DRYSTART")
    head, tail = lines[:i0], lines[i0 + 1:]
    def pure(l):
        t = l.strip()
        if t.startswith("v_"):
            return not (t.startswith("v_cmp") or t.startswith("v_readfirstlane") or t.startswith("v_mfma") or t.startswith("v_readlane") or "co_u32" in t)
        return t.startswith("s_nop")
    out = []; nb = 0; i = 0
    while i < len(tail):
        j = i
        while j < len(tail) and pure(tail[j]): j += 1
        if j - i >= minlen:
            k = i
            while k < j:
                e = min(j, k + maxlen)
                if j - e < minlen: e = j
                out.append(f"L_{name}_{tag}{nb}:")
                out += tail[k:e]
                out.append(f"    s_cbranch_execz L_{name}_{tag}disp")
                nb += 1; k = e
            i = j
        else:
            out += tail[i:max(j, i + 1)]; i = max(j, i + 1)
    drv = [f"    s_mov_b32 s{sreg}, s35", "    s_mov_b64 exec, 0", f"    s_branch L_{name}_{tag}go",
           f"L_{name}_{tag}disp:", f"    s_add_u32 s{sreg}, s{sreg}, 4", f"L_{name}_{tag}go:"]
    for b in range(nb):
        drv += [f"    s_cmp_eq_u32 s{sreg}, {b}", f"    s_cbranch_scc1 L_{name}_{tag}{b}"]
    drv += ["    s_mov_b64 exec, -1"]
    p = head.index(";;DRYPT")
    X.lines = head[:p] + drv + head[p + 1:] + out
    return nb

def gen_kf(name="kf_kernel", stamps=False, rot=True, dbg=""):
    import os
    STF = os.environ.get("STF1", "")
    STH = os.environ.get("STH", STF)
    A = Stream()
    A.raw(f".globl {name}\n.p2align 8\n.type {name},@function\n{name}:")
    A.I("s_cmp_ge_u32 s2, 256")
    A.I(f"s_cbranch_scc1 L_{name}_end")
    class St:
        n = 0
    def mkstamp(X):
        st = St()
        def stamp(ph=False):
            if not stamps: return
            if ("phst" in dbg) != ph: return
            assert st.n < 12
            X.I(f"s_memtime s[{74+2*st.n}:{75+2*st.n}]"); st.n += 1
        return stamp, st
    if stamps:
        A.I("s_memtime s[72:73]")
        A.I("s_memrealtime s[98:99]")
    A.I("s_load_dwordx16 s[4:19], s[0:1], 0")
    A.I("s_load_dwordx4 s[20:23], s[0:1], 80")
    A.I("s_load_dwordx2 s[24:25], s[0:1], 96")
    A.I("s_load_dwordx4 s[28:31], s[0:1], 120")
    A.I("s_and_b32 s36, s2, 7")
    A.I("s_lshr_b32 s37, s2, 3")
    if "map2" in dbg:
        A.I("s_and_b32 s32, s37, 15")
    else:
        A.I("s_and_b32 s32, s36, 1")
        A.I("s_lshl_b32 s32, s32, 3")
        A.I("s_and_b32 s38, s37, 7")
        A.I("s_add_u32 s32, s32, s38")
    if "map2" in dbg:
        A.I("s_lshl_b32 s33, s36, 1")
        A.I("s_lshr_b32 s38, s37, 4")
    else:
        A.I("s_lshr_b32 s33, s36, 1")
        A.I("s_lshl_b32 s33, s33, 2")
        A.I("s_lshr_b32 s38, s37, 3")
    A.I("s_add_u32 s33, s33, s38")
    import os
    rm = os.environ.get("ROTM", "full")
    if rot and rm == "full":
        A.I("s_and_b32 s26, s33, 3")
        A.I("s_mul_i32 s26, s26, 3")
        A.I("s_and_b32 s27, s32, 7")
        A.I("s_add_u32 s26, s26, s27")
        A.I("s_sub_u32 s27, s26, 10")
        A.I("s_cmp_ge_u32 s26, 10")
        A.I("s_cselect_b32 s26, s27, s26")
    elif rot and rm == "r4":
        A.I("s_add_u32 s26, s33, s32")
        A.I("s_and_b32 s26, s26, 3")
    elif rot and rm == "r2":
        A.I("s_add_u32 s26, s33, s32")
        A.I("s_and_b32 s26, s26, 1")
        A.I("s_lshl_b32 s26, s26, 1")
    elif rot and rm == "r4x2":
        A.I("s_add_u32 s26, s33, s32")
        A.I("s_and_b32 s26, s26, 3")
        A.I("s_lshl_b32 s26, s26, 1")
    else:
        A.I("s_mov_b32 s26, 0")
    A.I("v_lshrrev_b32 v1, 6, v0")
    A.I("v_and_b32 v0, 63, v0")
    A.I("v_readfirstlane_b32 s34, v1")
    A.I("s_and_b32 s35, s34, 3")
    A.I("s_cmp_ge_u32 s34, 4")
    A.wait_lg()
    if "notlb" not in dbg:
        A.I(f"s_mul_i32 s36, s32, {128*1280}")
        A.I("s_mul_i32 s37, s33, 51200")
        A.I("s_load_dword s3, s[4:5], s36")
        A.I("s_load_dword s3, s[10:11], s37")
        A.I("s_load_dword s3, s[12:13], s37")
        A.I("s_load_dword s3, s[20:21], 0")
        A.I("s_load_dword s3, s[20:21], 0xffffc")
        A.I("s_cmp_ge_u32 s34, 4")
    A.I(f"s_cbranch_scc1 L_{name}_M")

    def final_stamps(X, st):
        if not stamps: return
        X.wait_all()
        X.I(f"s_memtime s[{74+2*st.n}:{75+2*st.n}]"); st.n += 1
        X.I("s_memrealtime s[100:101]")
        X.wait_lg()
        X.I("s_lshl_b32 s36, s2, 3")
        X.I("s_add_u32 s36, s36, s34")
        X.I("s_lshl_b32 s36, s36, 7")
        X.I("s_add_u32 s36, s36, 0x2000000")
        X.I("s_add_u32 s40, s30, s36")
        X.I("s_addc_u32 s41, s31, 0")
        X.I("s_and_b32 s41, s41, 0xffff")
        X.I("s_mov_b32 s42, 128")
        X.I("s_mov_b32 s43, 0x00020000")
        X.I("v_mov_b32 v1, 0")
        for i in range(st.n + 1):
            X.I(f"v_mov_b32 v2, s{72+2*i}")
            X.I(f"buffer_store_dword v2, v1, s[40:43], 0 offen offset:{4*i}")
        X.I("v_mov_b32 v2, s98")
        X.I("buffer_store_dword v2, v1, s[40:43], 0 offen offset:120")
        X.I("v_mov_b32 v2, s100")
        X.I("buffer_store_dword v2, v1, s[40:43], 0 offen offset:124")
    def side_issue(S, vG_, vC_, vBB, SJA, SJB, SWS, t1, t2, t3, vL, vA):
        mk_srd(S, SWS, 30, 31, STATS_OFF - W2F_OFF, None, W2F_OFF)
        S.I("s_lshl_b32 s26, s2, 2")
        S.I("s_add_u32 s26, s26, s35")
        if "nosj" in dbg: S.I("s_mov_b32 s26, 1000")
        S.I("s_lshl_b32 s27, s35, 12")
        S.I(f"s_add_u32 s27, s27, {STG_L}")
        S.I(f"v_lshlrev_b32 v{vL}, 4, v0")
        S.I(f"v_mov_b32 v{vA}, 0")
        S.I("s_mov_b32 s22, 0")
        S.I("s_mov_b32 s23, 0")
        savevm = list(S.vm)
        S.I("s_cmp_ge_u32 s26, 880")
        S.I(f"s_cbranch_scc1 L_{name}_sj0")
        S.I("s_cmp_ge_u32 s26, 480")
        S.I(f"s_cbranch_scc1 L_{name}_sjc")
        mk_srd(S, SJA, 24, 25, 1966080)
        S.I(f"s_mul_hi_u32 s36, s26, {(2**32 + 47)//48}")
        S.I("s_mul_i32 s39, s36, 48")
        S.I("s_sub_u32 s39, s26, s39")
        S.I(f"s_mul_i32 s22, s36, {4*H1F_RT}")
        S.I("s_lshl_b32 s23, s39, 10")
        S.I("s_add_u32 s22, s22, s23")
        S.I(f"s_mov_b32 s23, {H1F_RT}")
        S.I("s_mul_i32 s39, s39, 40960")
        S.I("s_lshl_b32 s36, s36, 7")
        S.I("s_add_u32 s36, s36, s39")
        S.I(f"v_lshrrev_b32 v{t1}, 3, v0")
        S.I(f"v_mul_u32_u24 v{t1}, 1280, v{t1}")
        S.I(f"v_and_b32 v{t2}, 7, v0")
        S.I(f"v_lshl_add_u32 v{t1}, v{t2}, 4, v{t1}")
        for e in range(4):
            S.I(f"s_add_u32 m0, s27, {1024*e}")
            S.I(f"buffer_load_dwordx4 v{t1}, s[{SJA}:{SJA+3}], s36 offen lds")
            if e < 3: S.I("s_add_u32 s36, s36, 10240")
        S.I(f"v_lshrrev_b32 v{t1}, 1, v{vG_}")
        S.I(f"v_lshlrev_b32 v{t1}, 11, v{t1}")
        S.I(f"v_and_b32 v{t2}, 1, v{vG_}")
        S.I(f"v_lshl_add_u32 v{t1}, v{t2}, 9, v{t1}")
        S.I(f"v_lshrrev_b32 v{t2}, 2, v{vC_}")
        S.I(f"v_lshl_add_u32 v{t1}, v{t2}, 7, v{t1}")
        S.I(f"v_and_b32 v{t2}, 3, v{vC_}")
        S.I(f"v_lshl_add_u32 v{t1}, v{t2}, 3, v{t1}")
        S.I(f"v_add_u32 v{vA}, s27, v{t1}")
        S.I(f"s_branch L_{name}_sj0")
        S.label(f"L_{name}_sjc")
        mk_srd(S, SJA, 14, 15, 819200)
        mk_srd(S, SJB, 16, 17, 819200)
        S.I("s_sub_u32 s39, s26, 480")
        S.I(f"s_mul_hi_u32 s36, s39, {(2**32 + 9)//10}")
        S.I("s_mul_i32 s22, s36, 10")
        S.I("s_sub_u32 s39, s39, s22")
        S.I(f"s_mul_i32 s22, s36, {HF_RT}")
        S.I("s_lshl_b32 s23, s39, 12")
        S.I("s_add_u32 s22, s22, s23")
        S.I(f"s_add_u32 s22, s22, {CF_OFF - W2F_OFF}")
        S.I("s_mov_b32 s23, 1024")
        S.I("s_mul_i32 s36, s36, 20480")
        S.I("s_lshl_b32 s39, s39, 7")
        S.I("s_add_u32 s36, s36, s39")
        S.I("s_add_u32 s39, s36, 10240")
        for (srd_, mo) in ((SJA, 0), (SJB, 2048)):
            S.I(f"s_add_u32 m0, s27, {mo}")
            S.I(f"buffer_load_dwordx4 v{vBB}, s[{srd_}:{srd_+3}], s36 offen lds")
            S.I(f"s_add_u32 m0, s27, {mo+1024}")
            S.I(f"buffer_load_dwordx4 v{vBB}, s[{srd_}:{srd_+3}], s39 offen lds")
        S.I(f"v_and_b32 v{t1}, 1, v{vG_}")
        S.I(f"v_lshlrev_b32 v{t1}, 11, v{t1}")
        S.I(f"v_lshl_add_u32 v{t1}, v{vC_}, 7, v{t1}")
        S.I(f"v_lshrrev_b32 v{t2}, 1, v{vG_}")
        S.I(f"v_and_b32 v{t3}, 7, v{vC_}")
        S.I(f"v_xor_b32 v{t2}, v{t2}, v{t3}")
        S.I(f"v_lshl_add_u32 v{t1}, v{t2}, 4, v{t1}")
        S.I(f"v_add_u32 v{vA}, s27, v{t1}")
        S.label(f"L_{name}_sj0")
        S.vm = savevm

    def phaseB(X, typ, stamp):
        L = f"L_{name}_{typ}"
        isG = typ == "G"
        RT = H1F_RT if isG else HF_RT
        NS = 12 if isG else 10
        D = 3
        ACC, STG = 16, 96
        VO = 204
        SA, SB0, SFL, SAGB = 40, 44, 52, 56
        PRIV = 15360
        BASE = 0 if isG else 61440 + 0
        BASE = 0 if isG else 0
        X.I("s_setprio 0" if not isG or "nogp" in dbg else "s_setprio 2")
        X.I("s_waitcnt vmcnt(0) lgkmcnt(0)")
        X.vm = []; X.lg = []
        cnt_add(X, 4, 5, CNT_L + (32 if isG else 44))
        cnt_add(X, 4, 5, CNT_L + 36)
        X.I("s_load_dwordx2 s[4:5], s[0:1], 0")
        X.I("s_load_dwordx2 s[6:7], s[0:1], 64")
        X.I("s_load_dwordx4 s[8:11], s[0:1], 104")
        mk_srd(X, SFL, 30, 31, 8192, None, FL_OFF)
        X.I("s_cmp_lg_u32 s35, 0")
        X.I(f"s_cbranch_scc1 {L}nf")
        cnt_wait(X, f"{L}w0", 4, 5, CNT_L + (32 if isG else 44), 4)
        X.I("s_lshl_b32 s36, s32, 7")
        X.I("s_lshl_b32 s39, s33, 2")
        X.I("s_add_u32 s36, s36, s39")
        if not isG: X.I("s_add_u32 s36, s36, 2048")
        X.I("v_mov_b32 v4, s36")
        X.I(f"v_mov_b32 v5, {TAG}")
        X.I("s_mov_b64 exec, 1")
        X.I(f"buffer_store_dword v5, v4, s[{SFL}:{SFL+3}], 0 offen sc1")
        X.I("s_mov_b64 exec, -1")
        X.label(f"{L}nf")
        X.vm = []
        stamp()
        X.I("s_and_b32 s36, s2, 7")
        X.I("s_lshr_b32 s37, s2, 3")
        X.I("s_and_b32 s60, s36, 3")
        X.I("s_lshl_b32 s60, s60, 3")
        X.I("s_and_b32 s38, s37, 7")
        X.I("s_add_u32 s60, s60, s38")
        X.I("s_lshr_b32 s61, s36, 2")
        X.I("s_lshl_b32 s61, s61, 2")
        X.I("s_lshr_b32 s38, s37, 3")
        X.I("s_add_u32 s61, s61, s38")
        X.I("v_lshlrev_b32 v2, 4, v0")
        X.I("v_lshrrev_b32 v1, 4, v0")
        X.I("v_and_b32 v3, 15, v0")
        for n in range(4):
            X.I(f"s_add_u32 s36, s35, {n}")
            X.I("s_and_b32 s36, s36, 3")
            X.I(f"s_mul_i32 s36, s36, {RT}")
            X.I(f"v_add_u32 v{VO+n}, s36, v2")
        for n in range(5):
            X.I(f"v_add_u32 v{VO+4+n}, {n*RT}, v2")
        X.I(f"s_mul_i32 s36, s60, {4*RT}")
        mk_srd(X, SA, 30, 31, 4 * RT, 36, H1F_OFF if isG else HF_OFF)
        X.I(f"s_mul_i32 s36, s61, {5*RT}")
        mk_srd(X, SB0, 30, 31, 5 * RT, 36, W2F_OFF if isG else CF_OFF)
        X.I(f"s_mul_i32 s63, s35, {NS*1024}")
        X.I("s_lshl_b32 s36, s60, 6")
        X.I("s_lshr_b32 s37, s35, 1")
        X.I("s_lshl_b32 s37, s37, 5")
        X.I("s_add_u32 s36, s36, s37")
        X.I("s_and_b32 s37, s35, 1")
        X.I("s_lshl_b32 s37, s37, 2")
        X.I("s_add_u32 s65, s36, s37")
        X.I("s_mul_i32 s66, s61, 160")
        X.I("s_waitcnt lgkmcnt(0)")
        X.lg = []
        EV = VO + 10
        if isG:
            SX, SP, SD = 48, 64 + 4, 20
            mk_srd(X, SX, 4, 5, 2621440)
            mk_srd(X, SP, 8, 9, 1280)
            mk_srd(X, SD, 6, 7, 1280)
            X.I("s_lshl_b32 s67, s35, 12")
            X.I(f"s_add_u32 s67, s67, {EP_L}")
            X.I("s_mul_i32 s37, s65, 1280")
            X.I("s_add_u32 s37, s37, s66")
            for e in range(3):
                X.I(f"v_add_u32 v4, {64*e}, v0")
                X.I("v_min_u32 v4, 159, v4")
                X.I("v_mul_u32_u24 v5, 6554, v4")
                X.I("v_lshrrev_b32 v5, 16, v5")
                X.I("v_mul_u32_u24 v6, 10, v5")
                X.I("v_sub_u32 v4, v4, v6")
                X.I("v_lshrrev_b32 v6, 2, v5")
                X.I("v_lshl_add_u32 v5, v6, 2, v5")
                X.I("v_mul_u32_u24 v5, 1280, v5")
                X.I("v_lshl_add_u32 v4, v4, 4, v5")
                X.I(f"s_add_u32 m0, s67, {1024*e}")
                X.I(f"buffer_load_dwordx4 v4, s[{SX}:{SX+3}], s37 offen lds")
            X.I("v_lshlrev_b32 v4, 2, v0")
            X.I("v_min_u32 v4, 156, v4")
            X.I("s_add_u32 m0, s67, 3072")
            X.I(f"buffer_load_dword v4, s[{SP}:{SP+3}], s66 offen lds")
            X.I("s_add_u32 m0, s67, 3328")
            X.I(f"buffer_load_dword v4, s[{SD}:{SD+3}], s66 offen lds")
        RC = CNT_L + (80 if isG else 84)
        X.I("s_cmp_lg_u32 s35, 0")
        X.I(f"s_cbranch_scc1 {L}pw")
        X.I(f"s_mul_i32 s36, s33, {AGG_G}")
        mk_srd(X, SAGB, 30, 31, AGG_G, 36, AGG_OFF)
        X.I("s_lshl_b32 s36, s32, 7")
        X.I(f"s_add_u32 s36, s36, {GO_O}")
        X.I("v_mov_b32 v4, s36")
        X.I("s_mov_b32 s39, 0")
        X.label(f"{L}go")
        X.I(f"buffer_load_dword v5, v4, s[{SAGB}:{SAGB+3}], 0 offen sc1")
        X.I("s_waitcnt vmcnt(0)")
        X.I("v_readfirstlane_b32 s36, v5")
        X.I("s_add_u32 s39, s39, 1")
        X.I(f"s_cmp_eq_u32 s36, {TAG}")
        X.I(f"s_cbranch_scc1 {L}god")
        X.I("s_cmp_lt_u32 s39, 0x100000")
        X.I(f"s_cbranch_scc1 {L}go")
        X.label(f"{L}god")
        X.I(f"v_mov_b32 v6, {TAG}")
        X.I("s_lshr_b32 s36, s60, 1")
        X.I("s_lshl_b32 s36, s36, 7")
        if not isG: X.I("s_add_u32 s36, s36, 2048")
        X.I("v_lshlrev_b32 v4, 2, v3")
        X.I("v_add_u32 v4, s36, v4")
        X.I("s_lshl_b32 s36, s61, 7")
        X.I("s_add_u32 s36, s36, 4096")
        X.I("v_lshlrev_b32 v5, 2, v0")
        X.I("v_add_u32 v5, s36, v5")
        X.I("v_cmp_gt_u32 vcc, 32, v0")
        X.I("v_cndmask_b32 v4, v4, v5, vcc")
        X.I("s_mov_b32 s39, 0")
        X.label(f"{L}fl")
        X.I(f"buffer_load_dword v5, v4, s[{SFL}:{SFL+3}], 0 offen sc1")
        X.I("s_waitcnt vmcnt(0)")
        X.I("v_cmp_eq_u32 vcc, v5, v6")
        X.I("s_add_u32 s39, s39, 1")
        X.I("s_cmp_eq_u64 vcc, -1")
        X.I(f"s_cbranch_scc1 {L}fld")
        X.I("s_sleep 2")
        X.I("s_cmp_lt_u32 s39, 0x100000")
        X.I(f"s_cbranch_scc1 {L}fl")
        X.label(f"{L}fld")
        cnt_add(X, 4, 5, RC)
        X.label(f"{L}pw")
        cnt_wait(X, f"{L}pwl", 4, 5, RC, 1)
        X.vm = []
        stamp()
        def stage(s): return STG + (s % D) * 36
        def issue(s):
            b = stage(s)
            Lx = []
            for n in range(4):
                Lx.append([(f"buffer_load_dwordx4 {vr(b+4*n,4)}, v{VO+n}, s[{SA}:{SA+3}], s63 offen offset:{(s%4)*1024} sc1", f"st{s}")])
            for n in range(5):
                Lx.append([(f"buffer_load_dwordx4 {vr(b+16+4*n,4)}, v{VO+4+n}, s[{SB0}:{SB0+3}], s63 offen offset:{(s%4)*1024} sc1", f"st{s}")])
            if s % 4 == 3: Lx[-1].append(("s_add_u32 s63, s63, 4096", None))
            return Lx
        for s in range(D - 1): emit(X, issue(s))
        if isG:
            mk_srd(X, SAGB, 30, 31, 16384, None, STATS_OFF)
            X.I("s_lshl_b32 s38, s65, 2")
            X.I("v_lshrrev_b32 v4, 2, v3")
            X.I("v_lshl_add_u32 v4, v4, 2, v3")
            X.I("v_lshlrev_b32 v4, 2, v4")
            X.I("v_add_u32 v5, 8192, v4")
            X.I(f"buffer_load_dword v{EV}, v4, s[{SAGB}:{SAGB+3}], s38 offen sc1", tag="ep")
            X.I(f"buffer_load_dword v{EV+1}, v5, s[{SAGB}:{SAGB+3}], s38 offen sc1", tag="ep")
        DB = 0 if isG else 61440
        X.I(f"s_mul_i32 s62, s35, {PRIV}")
        if DB: X.I(f"s_add_u32 s62, s62, {DB}")
        DW = EV + 2
        X.I(f"v_add_u32 v{DW}, s62, v2")
        for s in range(NS):
            X.wait_vm(f"st{s}")
            b = stage(s)
            side = issue(s + D - 1) if s + D - 1 < NS else []
            mm = []
            order = [1, 2, 3, 0] if s == NS - 1 else range(4)
            for n in order:
                for dt in range(5):
                    ac = vr(ACC + (n * 5 + dt) * 4, 4)
                    mm.append(f"v_mfma_f32_16x16x32_bf16 {ac}, {vr(b+16+4*dt,4)}, {vr(b+4*n,4)}, {'0' if s == 0 else ac}")
            if s == NS - 1:
                cnt_wait(X, f"{L}w1", 4, 5, CNT_L + 36, 8)
                for k, m in enumerate(mm):
                    X.I(m)
                    j = k - 7
                    if 0 <= j < 15: X.I(f"ds_write_b128 v{DW}, {vr(ACC+20+4*j,4)} offset:{1024*j}")
                for j in (13, 14): X.I(f"ds_write_b128 v{DW}, {vr(ACC+20+4*j,4)} offset:{1024*j}")
            else:
                merge(X, mm, side, 0.9)
        stamp()
        cnt_add(X, 4, 5, CNT_L + (48 if isG else 56))
        for k in range(1, 4):
            X.I(f"s_add_u32 s36, s35, {k}")
            X.I("s_and_b32 s36, s36, 3")
            X.I(f"s_mul_i32 s36, s36, {PRIV}")
            X.I(f"s_add_u32 s36, s36, {DB + (3 - k) * 5120}")
            X.I(f"v_add_u32 v{6+k}, s36, v2")
        cnt_wait(X, f"{L}w2", 4, 5, CNT_L + (48 if isG else 56), 4)
        RD = STG
        for dt in range(5):
            for k in range(3):
                X.I(f"ds_read_b128 {vr(RD+(dt*3+k)*4,4)}, v{7+k} offset:{1024*dt}", tag=f"p{dt}")
        if isG:
            T = ACC + 20; BS = ACC + 40; DS_ = ACC + 60
            X.I("v_lshlrev_b32 v10, 3, v1")
            X.I("v_add_u32 v10, s67, v10")
            X.I("v_mul_u32_u24 v11, 160, v3")
            X.I("v_add_u32 v11, v11, v10")
            for dt in range(5):
                X.I(f"ds_read_b64 {vr(T+4*dt+2,2)}, v10 offset:{3072+32*dt}", tag="e")
                X.I(f"ds_read_b64 {vr(DS_+4*dt+2,2)}, v10 offset:{3328+32*dt}", tag="e")
                X.I(f"ds_read_b64 {vr(BS+4*dt+2,2)}, v11 offset:{32*dt}", tag="e")
        for dt in range(5):
            X.wait_lg(f"p{dt}")
            a = ACC + 4 * dt; r0 = RD + dt * 12
            for r in range(4): X.I(f"v_add_f32 v{a+r}, v{a+r}, v{r0+r}")
            for r in range(4): X.I(f"v_add_f32 v{r0+4+r}, v{r0+4+r}, v{r0+8+r}")
            for r in range(4): X.I(f"v_add_f32 v{a+r}, v{a+r}, v{r0+4+r}")
        if isG:
            X.wait_lg()
            cnt_add(X, 4, 5, CNT_L + 52)
            X.I("s_mov_b32 s36, 0xffff0000")
            X.I(f"s_mov_b32 s37, {NEG_LOG2E}")
            for q in [T + 4 * dt for dt in range(5)] + [BS + 4 * dt for dt in range(5)] + [DS_ + 4 * dt for dt in range(5)]:
                X.I(f"v_lshlrev_b32 v{q}, 16, v{q+2}")
                X.I(f"v_and_b32 v{q+1}, s36, v{q+2}")
                X.I(f"v_lshlrev_b32 v{q+2}, 16, v{q+3}")
                X.I(f"v_and_b32 v{q+3}, s36, v{q+3}")
            for e in range(20): X.I(f"v_add_f32 v{ACC+e}, v{ACC+e}, v{T+e}")
            for e in range(20): X.I(f"v_mul_f32 v{T+e}, s37, v{ACC+e}")
            for e in range(20): X.I(f"v_exp_f32 v{T+e}, v{T+e}")
            for e in range(20): X.I(f"v_add_f32 v{T+e}, 1.0, v{T+e}")
            for e in range(20): X.I(f"v_rcp_f32 v{T+e}, v{T+e}")
            for e in range(20): X.I(f"v_mul_f32 v{ACC+e}, v{ACC+e}, v{T+e}")
            for e in range(20): X.I(f"v_fma_f32 v{T+e}, v{BS+e}, v{EV+1}, -v{EV}")
            for e in range(20): X.I(f"v_mul_f32 v{DS_+e}, v{DS_+e}, v{ACC+e}")
            for e in range(20): X.I(f"v_fmac_f32 v{BS+e}, v{T+e}, v{DS_+e}")
            cnt_wait(X, f"{L}w3", 4, 5, CNT_L + 52, 4)
            for dt in range(5):
                X.I(f"ds_write_b128 v{DW}, {vr(ACC+4*dt,4)} offset:{1024*dt}")
                X.I(f"ds_write_b128 v{DW}, {vr(BS+4*dt,4)} offset:{5120+1024*dt}")
            X.I("s_lshl_b32 s38, s35, 2")
            X.I(f"s_add_u32 s38, s38, {CNT_L+64}")
            cnt_add(X, 4, 5, "s38")
            X.wait_lg()
        else:
            SO = 48
            mk_srd(X, SO, 10, 11, 5242880)
            X.I("v_lshrrev_b32 v4, 2, v3")
            X.I("v_lshl_add_u32 v4, v4, 2, v3")
            X.I("v_add_u32 v4, s65, v4")
            X.I("v_mul_u32_u24 v10, 2560, v4")
            X.I("v_lshl_add_u32 v10, v1, 4, v10")
            X.I("s_lshl_b32 s66, s66, 1")
            X.I("s_mul_i32 s36, s35, 15360")
            X.I("v_add_u32 v11, s36, v2")
            X.I("s_lshl_b32 s38, s35, 2")
            X.I(f"s_add_u32 s38, s38, {CNT_L+64}")
            cnt_wait(X, f"{L}w3", 4, 5, "s38", 1)
            GQ = ACC + 20; BQ = ACC + 40
            for dt in range(5):
                X.I(f"ds_read_b128 {vr(GQ+4*dt,4)}, v11 offset:{1024*dt}", tag=f"g{dt}")
                X.I(f"ds_read_b128 {vr(BQ+4*dt,4)}, v11 offset:{5120+1024*dt}", tag=f"g{dt}")
            for dt in range(5):
                X.wait_lg(f"g{dt}")
                for r in range(4): X.I(f"v_fmac_f32 v{BQ+4*dt+r}, v{ACC+4*dt+r}, v{GQ+4*dt+r}")
                X.I(f"buffer_store_dwordx4 {vr(BQ+4*dt,4)}, v10, s[{SO}:{SO+3}], s66 offen offset:{64*dt}{os.environ.get('STF2','')}")
    def adv():
        return [("s_add_u32 s26, s26, 1", None), ("s_cmp_eq_u32 s26, 10", None), ("s_cselect_b32 s26, 0, s26", None)]

    S = Stream(A)
    stamp, st = mkstamp(S)
    ACC = 16
    BUF = 56
    CA, CSB, CCO, CCX, CAS, CSBS = 168, 173, 178, 183, 188, 193
    A8, SB8, A128, SB128 = 198, 200, 202, 204
    SUM, SQ, ONE = 206, 214, 222
    MRV, RV = 226, 234
    DV = 246
    vG_, vC_, vSg = 1, 2, 3
    SX, SBBS = 40, 44
    if "early" in dbg: stamp()
    S.I(f"s_mul_i32 s36, s32, {128*1280}")
    mk_srd(S, SX, 4, 5, 128 * 1280, 36)
    S.I("v_lshrrev_b32 v4, 3, v0")
    S.I("v_and_b32 v5, 7, v0")
    S.I("v_and_b32 v6, 2, v4")
    S.I("v_lshrrev_b32 v7, 2, v4")
    S.I("v_or_b32 v6, v6, v7")
    S.I("v_xor_b32 v6, v6, v5")
    S.I("s_mul_i32 s36, s35, 40960")
    S.I("v_mul_u32_u24 v7, 1280, v4")
    S.I("v_add_u32 v8, s36, v7")
    for e in range(4):
        S.I(f"v_xor_b32 v9, {4 if e >= 2 else 0}, v6")
        S.I(f"v_lshl_add_u32 v{DV+e}, v9, 4, v8")
        if e: S.I(f"v_add_u32 v{DV+e}, {10240*e}, v{DV+e}")
    S.I("v_xor_b32 v9, v4, v5")
    S.I(f"v_lshl_add_u32 v{DV+4}, v9, 4, v7")
    S.I("s_lshl_b32 s37, s35, 12")
    S.I("s_mov_b32 s36, s35")
    bb_srd(S, SBBS, 27)
    def s_dma(p):
        q = p % 4
        L = []
        for e in range(4):
            g = [(f"s_add_u32 m0, s37, {q*SLOT + 1024*e}", None), (f"buffer_load_dwordx4 v{DV+e}, s[{SX}:{SX+3}], s38 offen lds", f"c{p}")]
            if e == 0: g = [("s_lshl_b32 s38, s26, 7", None)] + g
            L.append(g)
        L.append([(f"s_add_u32 m0, s27, {q*SLOT}", None), (f"buffer_load_dwordx4 v{DV+4}, s[{SBBS}:{SBBS+3}], s38 offen lds", f"c{p}")] + adv())
        return L
    S.I(f"v_lshrrev_b32 v{vG_}, 4, v0")
    S.I(f"v_and_b32 v{vC_}, 15, v0")
    if "early" in dbg: stamp()
    emit(S, s_dma(0))
    if "early" in dbg: stamp()
    def pslots(t):
        return (CCO + t, CCX + t, CAS + t) if t < 5 else (A128, SB128, A128 + 1)
    def par_issue():
        S.I("v_and_b32 v11, 7, v0")
        S.I("v_lshlrev_b32 v11, 1, v11")
        S.I(f"v_add_u32 v11, {PAR_L}, v11")
        S.I(f"v_lshlrev_b32 v12, 4, v{vG_}")
        S.I("v_add_u32 v12, v11, v12")
        for t in range(6):
            vo = "v11" if t < 5 else "v12"
            off = 16 * t if t < 5 else 0
            lre, lim, ldt = pslots(t)
            S.I(f"ds_read_u16 v{lre}, {vo} offset:{off}")
            S.I(f"ds_read_u16 v{lim}, {vo} offset:{off+128}")
            S.I(f"ds_read_u16 v{ldt}, {vo} offset:{off+256}")
    SJA, SJB, SWS = 56, 60, 64
    TT = BUF + 48
    S.I(f"v_lshrrev_b32 v{TT}, 2, v{vC_}")
    S.I(f"v_and_b32 v{TT+1}, 3, v{vC_}")
    S.I(f"v_lshlrev_b32 v{TT+2}, 3, v{TT}")
    S.I(f"v_add_u32 v{TT+2}, v{TT+2}, v{TT+1}")
    S.I("s_lshl_b32 s36, s35, 5")
    S.I(f"v_add_u32 v{TT+2}, s36, v{TT+2}")
    S.I(f"v_lshlrev_b32 v{TT+2}, 7, v{TT+2}")
    S.I(f"v_lshrrev_b32 v{TT+3}, 1, v{TT}")
    S.I(f"v_lshlrev_b32 v{TT+3}, 2, v{TT+3}")
    S.I(f"v_and_b32 v{TT+4}, 2, v{TT+1}")
    S.I(f"v_or_b32 v{TT+3}, v{TT+3}, v{TT+4}")
    S.I(f"v_xor_b32 v{TT+3}, v{TT+3}, v{vG_}")
    for T in range(2):
        for sp in range(2):
            d = 4 + 2 * T + sp
            S.I(f"v_xor_b32 v{TT+4}, {(4*sp) ^ T}, v{TT+3}")
            S.I(f"v_lshl_add_u32 v{d}, v{TT+4}, 4, v{TT+2}")
            if T: S.I(f"v_add_u32 v{d}, 512, v{d}")
    S.I(f"v_and_b32 v{TT}, 7, v{vC_}")
    S.I(f"v_xor_b32 v{TT}, v{TT}, v{vG_}")
    S.I(f"v_lshlrev_b32 v{TT+1}, 7, v{vC_}")
    for sp in range(2):
        S.I(f"v_xor_b32 v{TT+2}, {4*sp}, v{TT}")
        S.I(f"v_lshl_add_u32 v{8+sp}, v{TT+2}, 4, v{TT+1}")
        S.I(f"v_add_u32 v{8+sp}, {BB_O}, v{8+sp}")
    for k in range(4): S.I(f"v_mov_b32 v{ONE+k}, 0x3f803f80")
    S.I(f"v_mul_u32_u24 v10, 80, v{vG_}")
    S.I(f"v_lshrrev_b32 v{vSg}, 3, v{vC_}")
    S.I(f"v_cvt_f32_u32 v{vSg}, v{vSg}")
    S.I(f"v_fma_f32 v{vSg}, v{vSg}, 2.0, -1.0")
    S.I(f"s_mov_b32 s20, {LOG2E}")
    S.I(f"s_mov_b32 s21, {INV2PI}")
    def powr(ar, rev, n, da, dsb, t0):
        L = []
        if n is None:
            L.append(f"v_exp_f32 v{t0}, v{ar}")
            L.append(f"v_fract_f32 v{t0+1}, v{rev}")
        else:
            L.append(f"v_mul_f32 v{t0}, {n}, v{ar}")
            L.append(f"v_mul_f32 v{t0+1}, {n}, v{rev}")
            L.append(f"v_exp_f32 v{t0}, v{t0}")
            L.append(f"v_fract_f32 v{t0+1}, v{t0+1}")
        L.append(f"v_cos_f32 v{t0+2}, v{t0+1}")
        L.append(f"v_sin_f32 v{t0+3}, v{t0+1}")
        L.append(f"v_mul_f32 v{t0+3}, v{t0}, v{t0+3}")
        L.append(f"v_mul_f32 v{da}, v{t0}, v{t0+2}")
        L.append(f"v_mul_f32 v{dsb}, v{t0+3}, v{vSg}")
        return L
    def arrev(t):
        return (CAS + t, CSBS + t) if t < 5 else (A128, SB128)
    partA = ["s_lshl_b32 s36, s35, 2", f"v_add_u32 v245, s36, v{vG_}", "v_lshlrev_b32 v245, 3, v245", "v_cvt_f32_u32 v245, v245"]
    for t in range(6):
        lre, lim, ldt = pslots(t)
        ar, rev = 242, 243
        partA += [f"v_lshlrev_b32 v{lre}, 16, v{lre}", f"v_lshlrev_b32 v{lim}, 16, v{lim}", f"v_lshlrev_b32 v11, 16, v{ldt}",
                  "v_mul_f32 v11, s20, v11", "v_exp_f32 v11, v11", "v_cvt_pk_bf16_f32 v11, 0, v11",
                  f"v_mul_f32 v12, v11, v{lre}", f"v_mul_f32 v13, v11, v{lim}",
                  f"v_mul_f32 v{ar}, s20, v12", f"v_mul_f32 v{rev}, s21, v13"]
        if t < 5:
            partA += powr(ar, rev, None, CA + t, CSB + t, 11)
            partA += [f"v_add_f32 v11, -1.0, v{CA+t}", f"v_mul_f32 v12, v{lre}, v{lre}", f"v_fmac_f32 v12, v{lim}, v{lim}",
                      "v_rcp_f32 v12, v12", f"v_mul_f32 v13, v11, v{lre}", f"v_fmac_f32 v13, v14, v{lim}",
                      f"v_mul_f32 v244, v14, v{lre}", f"v_fma_f32 v244, -v11, v{lim}, v244", "v_mul_f32 v12, -2.0, v12",
                      f"v_mul_f32 v{CCX+t}, v244, v12", "v_mul_f32 v13, v13, v12", f"v_mul_f32 v{CCO+t}, v13, v{vSg}"]
            partA += powr(ar, rev, "v245", CAS + t, CSBS + t, 11)
        if t >= 4:
            k = 1 if t == 4 else 0
            partA += powr(ar, rev, f"{f2u(8.0)}", A8 + k, SB8 + k, 11)
            partA += powr(ar, rev, f"{f2u(128.0)}", 254 if t == 4 else A128, 255 if t == 4 else SB128, 11)
    partA += [f"v_mov_b32 v{A128+1}, v254", f"v_mov_b32 v{SB128+1}, v255"]
    SAG, SST = 48, 52
    S.I(f"s_mul_i32 s36, s33, {AGG_G}")
    mk_srd(S, SAG, 30, 31, AGG_G, 36, AGG_OFF)
    emit(S, s_dma(1))
    S.raw(";;DRYPT")
    stamp()
    def s_reads(p):
        b = BUF + (p & 1) * 56
        L = []
        for sp in range(2):
            for T in range(2):
                L.append([(f"ds_read_b128 {vr(b+(sp*2+T)*4,4)}, v{4+2*T+sp}", f"r{p}")])
            for j in range(5):
                L.append([(f"ds_read_b128 {vr(b+16+(sp*5+j)*4,4)}, v{8+sp} offset:{2048*j}", f"r{p}")])
        delta = SLOT if p % 4 != 3 else (-3 * SLOT) & 0xffffffff
        L.append([(f"v_add_u32 v{k}, {delta}, v{k}", None) for k in range(4, 10)])
        return L
    def s_stat(p):
        b = BUF + (p & 1) * 56
        L = []
        for sp in range(2):
            for T in range(2):
                x = vr(b + (sp * 2 + T) * 4, 4)
                z = (p == 0 and sp == 0)
                L.append(f"v_mfma_f32_16x16x32_bf16 {vr(SUM+4*T,4)}, {x}, {vr(ONE,4)}, {'0' if z else vr(SUM+4*T,4)}")
                L.append(f"v_mfma_f32_16x16x32_bf16 {vr(SQ+4*T,4)}, {x}, {x}, {'0' if z else vr(SQ+4*T,4)}")
        return L
    def s_mfma(p):
        b = BUF + (p & 1) * 56
        L = []
        for sp in range(2):
            for j in range(5):
                for T in range(2):
                    ac = ACC + 8 * j + 4 * T
                    c = "0" if (p == 0 and sp == 0) else vr(ac, 4)
                    L.append(f"v_mfma_f32_16x16x32_bf16 {vr(ac,4)}, {vr(b+(sp*2+T)*4,4)}, {vr(b+16+(sp*5+j)*4,4)}, {c}")
        return L
    for p in range(10):
        S.wait_vm(f"c{p}")
        S.I("s_barrier")
        stamp(True)
        if p in (0, 9): stamp()
        side = s_dma(p + 3) if p + 3 <= 9 else []
        if p == 0: side = s_dma(2)
        if p == 1: side = s_dma(3) + side
        rd = s_reads(p)
        if p == 2:
            par_issue()
        fill = []
        if 3 <= p <= 8:
            nper = (len(partA) + 5) // 6
            fill = [[(m, None)] for m in partA[(p - 3) * nper:(p - 2) * nper]]
        if p == 9:
            fill += [[("s_lshl_b32 s36, s32, 7", None), (f"s_add_u32 s36, s36, {GO_O}", None), ("v_mov_b32 v15, s36", None),
                      (f"buffer_load_dword v15, v15, s[{SAG}:{SAG+3}], 0 offen sc1", "clr")]]
        if "dmaonly" in dbg: emit(S, side)
        elif p == 0: emit(S, rd + side + fill)
        else: merge(S, s_stat(p - 1) + s_mfma(p - 1), mix(mix(rd, side), fill), 0.9)
        S.wait_lg()
    S.raw(";;DRYSTART")
    if "fine" in dbg: stamp()
    for m in s_stat(9): S.I(m)
    mm = s_mfma(9)
    CSV = BUF + 16
    S.I(f"v_lshlrev_b32 v12, 2, v{vC_}")
    for m in mm[:5]: S.I(m)
    for T in range(2):
        for r in range(4):
            S.I(f"ds_bpermute_b32 v{SQ+4*T+r}, v10, v{SQ+4*T+r} offset:{4*r}", tag="bp")
    for m in mm[5:9]: S.I(m)
    S.wait_lg("bp")
    if "fine" in dbg: stamp()
    fin = []
    K640 = f2u(1.0 / 640)
    for step in range(12):
        for k in range(8):
            su, sq = SUM + k, SQ + k
            fin.append([
                f"v_mul_f32 v{su}, {K640}, v{su}",
                f"v_mul_f32 v{sq}, {K640}, v{sq}",
                f"v_fma_f32 v{sq}, -v{su}, v{su}, v{sq}",
                f"v_max_f32 v{sq}, 0, v{sq}",
                f"v_cvt_pk_bf16_f32 v{su}, 0, v{su}",
                f"v_cvt_pk_bf16_f32 v{sq}, 0, v{sq}",
                f"v_add_f32 v{sq}, {f2u(1e-5)}, v{sq}",
                f"v_cvt_pk_bf16_f32 v{sq}, 0, v{sq}",
                f"v_sqrt_f32 v{sq}, v{sq}",
                f"v_cvt_pk_bf16_f32 v{sq}, 0, v{sq}",
                f"v_rcp_f32 v{RV+k}, v{sq}",
                f"v_mul_f32 v{MRV+k}, v{su}, v{RV+k}"][step])
    adds = ["s_lshl_b32 s36, s35, 7", f"v_lshlrev_b32 v13, 5, v{vG_}", "v_add_u32 v13, s36, v13", f"v_add_u32 v14, {STATS_L}, v13",
             "s_mul_i32 s36, s35, 1280", f"v_mul_u32_u24 v6, 320, v{vG_}", "v_add3_u32 v6, v6, v12, s36", f"v_add_u32 v7, {SEG_L}, v6",
             "v_lshlrev_b32 v8, 2, v0", f"v_add_u32 v9, {SEG_L}, v8", "v_mov_b32 v10, v12", f"v_add_u32 v11, {SEG_L+256}, v10",
             "s_lshl_b32 s38, s35, 2", f"s_add_u32 s38, s38, {CNT_L+16}", f"v_add_u32 v13, {CSB_L}, v12"]
    fin = fin[:40] + adds + fin[40:]
    merge(S, mm[9:], [[(m, None)] for m in fin], 1.0)
    stamp()
    cnt_wait(S, f"L_{name}_e0", 4, 5, CNT_L + 4, 4)
    if "noprio" not in dbg: S.I("s_setprio 3")
    if "f2" in dbg: stamp()
    for wv in range(4):
        for j in range(5):
            S.I(f"ds_read_b32 v{CSV+5*wv+j}, v13 offset:{320*wv+64*j}", tag="stt")
    S.I("s_mov_b32 exec_lo, 0x00010001")
    S.I("s_mov_b32 exec_hi, 0x00010001")
    for k in range(2):
        S.I(f"ds_write_b128 v14, {vr(MRV+4*k,4)} offset:{16*k}")
        S.I(f"ds_write_b128 v14, {vr(RV+4*k,4)} offset:{512+16*k}")
    cnt_add(S, 4, 5, "s38")
    for t2 in range(4):
        for j in range(5):
            a = ACC + 8 * j + 2 * t2
            S.I(f"v_mul_f32 v{a}, v{a}, v{RV+2*t2}")
            S.I(f"v_mul_f32 v{a+1}, v{a+1}, v{RV+2*t2+1}")
    S.wait_lg("stt")
    if "f2" in dbg: stamp()
    for j in range(5):
        S.I(f"v_add_f32 v{CSV+j}, v{CSV+j}, v{CSV+5+j}")
        S.I(f"v_add_f32 v{CSV+10+j}, v{CSV+10+j}, v{CSV+15+j}")
    for j in range(5):
        S.I(f"v_add_f32 v{CSV+j}, v{CSV+j}, v{CSV+10+j}")
    EA, EB = BUF + 40, BUF + 45
    cur = None
    for tl in range(8):
        for j in range(5):
            a = ACC + 8 * j + tl
            S.I(f"v_fma_f32 v{a}, -v{MRV+tl}, v{CSV+j}, v{a}")
        if tl == 0:
            cur = [ACC + 8 * j for j in range(5)]
        else:
            dst = EA if tl & 1 else EB
            for j in range(5):
                S.I(f"v_fma_f32 v{dst+j}, v{CA+j}, v{cur[j]}, v{ACC+8*j+tl}")
            for j in range(5):
                S.I(f"v_fmac_f32_dpp v{dst+j}, v{cur[j]}, v{CSB+j} {DPP}")
            cur = [dst + j for j in range(5)]
    if "f2" in dbg: stamp()
    for j in range(5):
        S.I(f"ds_write_b32 v7, v{cur[j]} offset:{64*j}")
    cnt_add(S, 4, 5, CNT_L)
    S.I("s_waitcnt vmcnt(0)")
    S.vm = []
    if "f2" in dbg: stamp()
    cnt_wait(S, f"L_{name}_x1", 4, 5, CNT_L, 4)
    stamp()
    EC = BUF + 56
    for s_ in range(16):
        S.I(f"ds_read_b32 v{EC+s_}, v9 offset:{320*s_}", tag=f"e{s_}")
        S.I(f"ds_read_b32 v{EC+16+s_}, v11 offset:{320*s_}", tag=f"e{s_}")
    S.I("v_lshlrev_b32 v4, 3, v0")
    S.I(f"v_lshlrev_b32 v5, 3, v{vC_}")
    PB = BUF + 90
    S.I(f"v_mov_b32 v{PB+1}, {TAG}")
    S.I(f"v_mov_b32 v{PB+3}, {TAG}")
    S.I("s_add_u32 s37, s32, 15")
    S.I("s_mul_i32 s37, s37, 640")
    for s_ in range(1, 16):
        S.wait_lg(f"e{s_}")
        for k in range(2):
            S.I(f"v_fmac_f32 v{EC+16*k+s_}, v{A8+k}, v{EC+16*k+s_-1}")
        for k in range(2):
            S.I(f"v_fmac_f32_dpp v{EC+16*k+s_}, v{EC+16*k+s_-1}, v{SB8+k} {DPP}")
    S.I("s_cmp_lg_u32 s35, 0")
    S.I(f"s_cbranch_scc1 L_{name}_nopub")
    S.I(f"v_mov_b32 v{PB}, v{EC+15}")
    S.I(f"v_mov_b32 v{PB+2}, v{EC+31}")
    S.I(f"buffer_store_dwordx2 {vr(PB,2)}, v4, s[{SAG}:{SAG+3}], s37 offen sc1")
    S.vm.pop()
    S.I(f"buffer_store_dwordx2 {vr(PB+2,2)}, v5, s[{SAG}:{SAG+3}], s37 offen offset:512 sc1")
    S.vm.pop()
    S.label(f"L_{name}_nopub")
    cnt_add(S, 12, 13, CNT_L + 40)
    stamp()
    GL = BUF
    G0, G1 = 206, 221
    QV = BUF + 96
    S.I("v_lshlrev_b32 v252, 4, v0")
    S.I("s_mul_i32 s70, s32, 640")
    S.I("s_add_u32 s71, s70, 4096")
    S.I("s_add_u32 s69, s70, 8192")
    def gran_issue():
        for n in range(10):
            so = "s70" if n < 4 else ("s71" if n < 8 else "s69")
            S.I(f"buffer_load_dwordx4 {vr(GL+4*n,4)}, v252, s[{SAG}:{SAG+3}], {so} offen offset:{(n%4)*1024} sc1")
        S.vm = []
    def qstuff():
        S.I(f"v_add_u32 v9, {Q_L}, v8")
        S.I(f"v_add_u32 v11, {Q_L+256}, v10")
        S.I(f"v_mov_b32 v{PB}, 0")
        S.I(f"ds_write_b32 v9, v{PB}", tag="q")
        for s_ in range(15):
            S.I(f"ds_write_b32 v9, v{EC+s_} offset:{320*(s_+1)}", tag="q")
        S.I("s_mov_b64 exec, 0xffff")
        S.I(f"ds_write_b32 v11, v{PB}", tag="q")
        for s_ in range(15):
            S.I(f"ds_write_b32 v11, v{EC+16+s_} offset:{320*(s_+1)}", tag="q")
        S.I("s_mov_b64 exec, -1")
        S.I(f"v_add_u32 v7, {Q_L}, v6")
        for j in range(5):
            S.I(f"ds_read_b32 v{QV+j}, v7 offset:{64*j}", tag="qv")
    qstuff()
    S.I(f"v_add_u32 v9, {HS_L}, v8")
    S.I(f"v_add_u32 v11, {HS_L}, v10")
    S.I("s_cmp_lg_u32 s35, 0")
    S.I(f"s_cbranch_scc1 L_{name}_hw")
    S.I("s_cmp_eq_u32 s32, 0")
    S.I(f"s_cbranch_scc1 L_{name}_r0")
    S.I("s_mov_b32 s39, 0")
    S.I("s_lshl_b32 s38, s32, 7")
    S.I(f"s_add_u32 s38, s38, {GO_O}")
    S.I("v_mov_b32 v14, s38")
    S.label(f"L_{name}_cl")
    S.I("v_readfirstlane_b32 s38, v15")
    S.I("s_add_u32 s39, s39, 1")
    S.I(f"s_cmp_eq_u32 s38, {TAG}")
    S.I(f"s_cbranch_scc1 L_{name}_clok")
    S.I(f"buffer_load_dword v15, v14, s[{SAG}:{SAG+3}], 0 offen sc1")
    S.I("s_waitcnt vmcnt(0)")
    S.I("s_cmp_lt_u32 s39, 0x100000" if "nosync" not in dbg else "s_cmp_lt_u32 s39, 0")
    S.I(f"s_cbranch_scc1 L_{name}_cl")
    S.label(f"L_{name}_clok")
    gran_issue()
    cnt_wait(S, f"L_{name}_m9", 12, 13, CNT_L + 8, 4)
    S.I(f"v_mov_b32 v14, {TAG}")
    S.I(f"v_add_u32 v4, {GR_L}, v4")
    S.I(f"v_add_u32 v5, {GR_L}, v5")
    S.I(f"v_add_u32 v253, {GR_L}, v252")
    S.I("v_cmp_gt_u32 s[22:23], 24, v0")
    S.I("s_sub_u32 s38, 15, s32")
    S.I("s_mul_i32 s38, s38, 640")
    S.I("s_lshr_b32 s38, s38, 10")
    S.I("s_mov_b32 s39, 0")
    S.label(f"L_{name}_gp")
    S.I("s_waitcnt vmcnt(0)")
    S.I(f"v_cndmask_b32 v{GL+37}, v14, v{GL+37}, s[22:23]")
    S.I(f"v_cndmask_b32 v{GL+39}, v14, v{GL+39}, s[22:23]")
    S.I(f"v_and_b32 v12, v{GL+1}, v{GL+3}")
    S.I(f"v_or_b32 v13, v{GL+1}, v{GL+3}")
    for n in range(1, 10):
        S.I(f"v_and_b32 v15, v{GL+4*n+1}, v{GL+4*n+3}")
        S.I(f"v_or3_b32 v13, v13, v{GL+4*n+1}, v{GL+4*n+3}")
        S.I("v_and_b32 v12, v12, v15")
    S.I("v_cmp_eq_u32 vcc, v12, v14")
    S.I("v_cmp_eq_u32 s[24:25], v13, v14")
    S.I("s_and_b64 s[24:25], s[24:25], vcc")
    S.I("s_add_u32 s39, s39, 1")
    S.I("s_cmp_eq_u64 s[24:25], -1")
    S.I(f"s_cbranch_scc1 L_{name}_gpv")
    S.I("s_cmp_ge_u32 s39, 0x40000" if "nosync" not in dbg else "s_cmp_ge_u32 s39, 0")
    S.I(f"s_cbranch_scc1 L_{name}_gpv")
    for n in range(10):
        so = "s70" if n < 4 else ("s71" if n < 8 else "s69")
        if n < 9:
            S.I(f"s_cmp_gt_u32 s38, {n}")
            S.I(f"s_cbranch_scc1 L_{name}_gs{n}")
        S.I(f"buffer_load_dwordx4 {vr(GL+4*n,4)}, v252, s[{SAG}:{SAG+3}], {so} offen offset:{(n%4)*1024} sc1")
        if n < 9: S.label(f"L_{name}_gs{n}")
    S.I(f"s_branch L_{name}_gp")
    S.label(f"L_{name}_gpv")
    for n in range(10):
        S.I(f"ds_write_b128 v253, {vr(GL+4*n,4)} offset:{1024*n}")
    for d in range(15, 0, -1):
        o = (15 - d) * 640
        S.I(f"ds_read_b32 v{G0+d-1}, v4 offset:{o}")
        S.I(f"ds_read_b32 v{G1+d-1}, v5 offset:{o+512}")
    S.I("s_waitcnt lgkmcnt(0)")
    S.label(f"L_{name}_gpok")
    S.lg = []; S.vm = []
    for d in range(14, 0, -1):
        for (g_, k) in ((G0, 0), (G1, 1)):
            S.I(f"v_fmac_f32 v{g_+d-1}, v{A128+k}, v{g_+d}")
        for (g_, k) in ((G0, 0), (G1, 1)):
            S.I(f"v_fmac_f32_dpp v{g_+d-1}, v{g_+d}, v{SB128+k} {DPP}")
    S.I(f"s_branch L_{name}_hp")
    S.label(f"L_{name}_r0")
    S.I(f"v_mov_b32 v{G0}, 0")
    S.I(f"v_mov_b32 v{G1}, 0")
    S.label(f"L_{name}_hp")
    S.I(f"ds_write_b32 v9, v{G0}", tag="h")
    S.I(f"ds_write_b32 v11, v{G1} offset:256", tag="h")
    cnt_add(S, 12, 13, CNT_L + 12)
    S.label(f"L_{name}_hw")
    cnt_wait(S, f"L_{name}_hwl", 12, 13, CNT_L + 12, 1)
    stamp()
    HV = BUF + 32
    for j in range(5):
        S.I(f"ds_read_b32 v{HV+j}, v11 offset:{64*j}", tag="hv")
    S.I(f"v_mul_u32_u24 v9, 272, v{vC_}")
    S.I(f"v_lshlrev_b32 v12, 4, v{vG_}")
    S.I("s_lshl_b32 s36, s35, 6")
    S.I("v_add3_u32 v9, v9, v12, s36")
    S.wait_lg()
    for j in range(5):
        S.I(f"v_fmac_f32 v{QV+j}, v{CAS+j}, v{HV+j}")
    for j in range(5):
        S.I(f"v_fmac_f32_dpp v{QV+j}, v{HV+j}, v{CSBS+j} {DPP}")
    for tl in range(8):
        prev = [QV + j if tl == 0 else ACC + 8 * j + tl - 1 for j in range(5)]
        for j in range(5):
            S.I(f"v_fmac_f32 v{ACC+8*j+tl}, v{CA+j}, v{prev[j]}")
        for j in range(5):
            S.I(f"v_fmac_f32_dpp v{ACC+8*j+tl}, v{prev[j]}, v{CSB+j} {DPP}")
    OV = BUF + 40
    PK = BUF + 80
    for j in range(5):
        p_, sel = pr(CCO + j)
        for t2 in range(4):
            S.I(f"v_pk_mul_f32 {vr(OV+8*j+2*t2,2)}, {vr(ACC+8*j+2*t2,2)}, {p_} op_sel:[0,{sel}] op_sel_hi:[1,{sel}]")
        for tl in range(8):
            S.I(f"v_fmac_f32_dpp v{OV+8*j+tl}, v{ACC+8*j+tl}, v{CCX+j} {DPP}")
        for k in range(4):
            S.I(f"v_cvt_pk_bf16_f32 v{PK+4*j+k}, v{OV+8*j+2*k}, v{OV+8*j+2*k+1}")
        S.I(f"ds_write_b128 v9, {vr(PK+4*j,4)} offset:{16*272*j}", tag="tw")
    S.I(f"v_lshrrev_b32 v11, 2, v{vC_}")
    S.I("v_mul_u32_u24 v11, 272, v11")
    S.I(f"v_and_b32 v4, 3, v{vC_}")
    S.I("v_lshlrev_b32 v4, 4, v4")
    S.I("v_add3_u32 v11, v11, v4, s36")
    S.I(f"v_mul_u32_u24 v4, {8*272}, v{vG_}")
    S.I("v_add_u32 v4, v11, v4")
    S.I(f"v_and_b32 v5, 1, v{vG_}")
    S.I(f"v_mul_u32_u24 v5, {8*272}, v5")
    S.I(f"v_lshrrev_b32 v7, 1, v{vG_}")
    S.I("v_lshlrev_b32 v7, 3, v7")
    S.I("v_add3_u32 v5, v11, v5, v7")
    SHF = 40
    S.I("s_lshl_b32 s36, s32, 2")
    S.I("s_add_u32 s36, s36, s35")
    S.I(f"s_mul_i32 s36, s36, {2*HF_RT}")
    S.I("s_mul_i32 s37, s33, 2560")
    S.I("s_add_u32 s36, s36, s37")
    mk_srd(S, SHF, 30, 31, HF_RT + 2560, 36, HF_OFF)
    S.I("v_lshlrev_b32 v7, 4, v0")
    S.I(f"v_and_b32 v10, 1, v{vG_}")
    S.I("v_lshlrev_b32 v10, 8, v10")
    S.I(f"v_lshlrev_b32 v8, 4, v{vC_}")
    S.I("v_add_u32 v10, v10, v8")
    S.I(f"v_lshrrev_b32 v8, 1, v{vG_}")
    S.I(f"v_mul_u32_u24 v8, {HF_RT}, v8")
    S.I("v_add_u32 v10, v10, v8")
    S.I(f"s_mov_b32 s37, {HF_RT}")
    S.wait_lg()
    RD = BUF
    for n in range(5):
        for e in range(2):
            if n < 4:
                off = (n & 1) * 32 * 272 + e * 4 * 272 + (n >> 1) * 8
                S.I(f"ds_read_b64_tr_b16 {vr(RD+4*n+2*e,2)}, v4 offset:{off}", tag=f"t{n}")
            else:
                S.I(f"ds_read_b64_tr_b16 {vr(RD+4*n+2*e,2)}, v5 offset:{64*272+e*4*272}", tag=f"t{n}")
    for n in range(5):
        S.wait_lg(f"t{n}")
        if n < 4:
            so = "0" if n < 2 else "s37"
            S.I(f"buffer_store_dwordx4 {vr(RD+4*n,4)}, v7, s[{SHF}:{SHF+3}], {so} offen offset:{(n&1)*1024}{STH}", tag="st")
        else:
            S.I(f"buffer_store_dwordx4 {vr(RD+4*n,4)}, v10, s[{SHF}:{SHF+3}], 0 offen offset:2048{STH}", tag="st")
    phaseB(S, "Y", stamp)
    final_stamps(S, st)
    S.I("s_endpgm")

    M = Stream(A)
    M.label(f"L_{name}_M")
    stamp, st = mkstamp(M)
    SBB, SW1, SB1, SH1, SDB, SAGM = 40, 48, 52, 56, 60, 64
    MACC, XB, WB, FR = 24, 72, 104, 200
    CBA, CBF, WA, MSK = FR, FR + 20, FR + 40, FR + 52
    lbl = [0]
    if "early" in dbg: stamp()
    M.I("s_cmp_lg_u32 s35, 3")
    M.I("s_cselect_b64 vcc, -1, 0")
    mk_srd(M, SW1, 20, 21, 1966080)
    M.I("s_mul_i32 s39, s33, 192")
    M.I("s_lshl_b32 s36, s35, 8")
    for e in range(4):
        M.I(f"v_add_u32 v22, {64*e}, v0")
        M.I("v_add_u32 v22, s36, v22")
        M.I("v_min_u32 v22, 767, v22")
        M.I("v_mul_u32_u24 v23, 43691, v22")
        M.I("v_lshrrev_b32 v23, 19, v23")
        M.I("v_mul_u32_u24 v9, 12, v23")
        M.I("v_sub_u32 v22, v22, v9")
        M.I("v_lshlrev_b32 v22, 4, v22")
        M.I("v_mul_u32_u24 v23, 3072, v23")
        M.I(f"v_add3_u32 v{1+e}, v22, v23, s39")
    M.I("s_lshl_b32 s68, s35, 12")
    M.I(f"s_add_u32 s68, s68, {W1_O}")
    M.I("s_lshl_b32 s36, s35, 1")
    M.I("s_add_u32 s36, s36, 4")
    M.I("s_min_u32 s36, s36, 8")
    bb_srd(M, SBB, 69)
    M.I("s_lshl_b32 s36, s35, 1")
    M.I("s_add_u32 s36, s36, 5")
    M.I("s_min_u32 s36, s36, 9")
    bb_srd(M, SBB + 4, 70)
    M.I("v_lshrrev_b32 v22, 3, v0")
    M.I("v_and_b32 v23, 7, v0")
    M.I("v_xor_b32 v13, v22, v23")
    M.I("v_mul_u32_u24 v5, 1280, v22")
    M.I("v_lshl_add_u32 v13, v13, 4, v5")
    def guard(g):
        lbl[0] += 1
        return [(f"s_cbranch_vccz L_{name}_g{lbl[0]}", None)] + g + [(f"L_{name}_g{lbl[0]}:", None)]
    def m_dma(p):
        q = p % 4
        L = []
        g = [("s_lshl_b32 s38, s26, 7", None)]
        for e in range(2):
            g += [(f"s_add_u32 m0, s{69+e}, {q*SLOT}", None), (f"buffer_load_dwordx4 v13, s[{SBB+4*e}:{SBB+4*e+3}], s38 offen lds", f"c{p}")]
        L.append(guard(g))
        for e2 in range(2):
            g = [("s_mul_i32 s71, s26, 196608", None)] if e2 == 0 else []
            for e in (2 * e2, 2 * e2 + 1):
                g += [(f"s_add_u32 m0, s68, {q*SLOT + 1024*e}", None), (f"buffer_load_dwordx4 v{1+e}, s[{SW1}:{SW1+3}], s71 offen lds", f"c{p}")]
            if e2 == 1: g += adv()
            L.append(guard(g))
        return L
    def m_wait(tag):
        lbl[0] += 1
        M.I(f"s_cbranch_vccz L_{name}_g{lbl[0]}")
        M.wait_vm(tag)
        M.label(f"L_{name}_g{lbl[0]}")
    M.vm = []
    if "early" in dbg: stamp()
    emit(M, m_dma(0))
    if "early" in dbg: stamp()
    mk_srd(M, SDB, 28, 29, 256)
    M.I(f"s_mul_i32 s36, s33, {AGG_G}")
    mk_srd(M, SAGM, 30, 31, AGG_G, 36, AGG_OFF)
    for k in range(2): M.I(f"v_mov_b32 v{14+k}, 0")
    for k in range(4): M.I(f"v_mov_b32 v{18+k}, 0x3f803f80")
    savevm = list(M.vm)
    M.I(f"s_cbranch_vccnz L_{name}_noclr")
    M.I("v_min_u32 v8, 19, v0")
    M.I("v_lshlrev_b32 v8, 2, v8")
    M.I("s_mul_i32 s36, s33, 80")
    M.I("v_add_u32 v8, s36, v8")
    M.I("global_load_dword v1, v8, s[6:7]")
    M.I("global_load_dword v2, v8, s[8:9]")
    M.I("global_load_dword v3, v8, s[18:19]")
    M.I("v_min_u32 v8, 47, v0")
    M.I("v_lshlrev_b32 v8, 2, v8")
    M.I("s_mul_i32 s36, s33, 192")
    M.I("v_add_u32 v8, s36, v8")
    M.I("global_load_dword v4, v8, s[22:23]")
    mk_srd(M, SB1, 30, 31, 8192, None, FL_OFF)
    M.I("s_lshl_b32 s36, s32, 7")
    M.I("s_lshl_b32 s39, s33, 2")
    M.I("s_add_u32 s36, s36, s39")
    M.I("v_and_b32 v8, 1, v0")
    M.I("v_lshlrev_b32 v8, 11, v8")
    M.I("v_add_u32 v8, s36, v8")
    M.I("s_and_b32 s36, s2, 7")
    M.I("s_lshr_b32 s39, s2, 3")
    M.I("s_and_b32 s26, s36, 3")
    M.I("s_lshl_b32 s26, s26, 3")
    M.I("s_and_b32 s27, s39, 7")
    M.I("s_add_u32 s26, s26, s27")
    M.I("s_lshr_b32 s27, s36, 2")
    M.I("s_lshl_b32 s27, s27, 2")
    M.I("s_lshr_b32 s39, s39, 3")
    M.I("s_add_u32 s27, s27, s39")
    M.I("s_lshl_b32 s36, s27, 7")
    M.I("s_lshl_b32 s39, s26, 2")
    M.I("s_add_u32 s36, s36, s39")
    M.I("s_add_u32 s36, s36, 4096")
    M.I("v_writelane_b32 v8, s36, 2")
    M.I("s_mov_b64 exec, 7")
    M.I(f"buffer_store_dword v14, v8, s[{SB1}:{SB1+3}], 0 offen sc1")
    M.I("s_mov_b64 exec, -1")
    M.I("v_lshlrev_b32 v8, 3, v0")
    M.I("v_and_b32 v10, 15, v0")
    M.I("v_lshlrev_b32 v10, 3, v10")
    M.I("s_add_u32 s37, s32, 15")
    M.I("s_mul_i32 s37, s37, 640")
    M.I(f"buffer_store_dwordx2 v[14:15], v8, s[{SAGM}:{SAGM+3}], s37 offen sc1")
    M.I(f"buffer_store_dwordx2 v[14:15], v10, s[{SAGM}:{SAGM+3}], s37 offen offset:512 sc1")
    M.I("s_lshl_b32 s37, s32, 7")
    M.I(f"s_add_u32 s37, s37, {GO_O}")
    M.I(f"buffer_store_dwordx2 v[14:15], v14, s[{SAGM}:{SAGM+3}], s37 offen sc1")
    M.I("s_cmp_lg_u32 s32, 0")
    M.I(f"s_cbranch_scc1 L_{name}_noclr")
    M.I("v_mov_b32 v10, 0")
    M.I(f"v_mov_b32 v11, {TAG}")
    M.I("s_mov_b32 s37, 0")
    for k in range(19):
        if k == 18:
            M.I("v_min_u32 v8, 376, v8")
        M.I(f"buffer_store_dwordx2 v[10:11], v8, s[{SAGM}:{SAGM+3}], s37 offen offset:{(k%8)*512} sc1")
        if k % 8 == 7: M.I("s_add_u32 s37, s37, 4096")
    M.label(f"L_{name}_noclr")
    M.vm = savevm
    stamp()
    M.I("v_and_b32 v22, 15, v0")
    M.I("v_bfe_u32 v23, v0, 4, 1")
    T1 = XB
    M.I(f"v_lshrrev_b32 v{T1}, 2, v22")
    M.I(f"v_and_b32 v{T1+1}, 3, v22")
    M.I(f"v_lshlrev_b32 v{T1+2}, 3, v{T1}")
    M.I(f"v_lshl_add_u32 v{T1+2}, v23, 2, v{T1+2}")
    M.I(f"v_add_u32 v{T1+2}, v{T1+2}, v{T1+1}")
    M.I("s_lshl_b32 s36, s35, 5")
    M.I(f"v_add_u32 v{T1+5}, s36, v{T1+2}")
    M.I(f"v_lshlrev_b32 v{T1+2}, 7, v{T1+5}")
    M.I(f"v_lshrrev_b32 v{T1+3}, 1, v{T1}")
    M.I(f"v_lshlrev_b32 v{T1+3}, 2, v{T1+3}")
    M.I(f"v_and_b32 v{T1+4}, 2, v{T1+1}")
    M.I(f"v_or3_b32 v{T1+3}, v{T1+3}, v{T1+4}, v23")
    M.I(f"v_lshrrev_b32 v{T1+4}, 5, v0")
    M.I(f"v_xor_b32 v{T1+3}, v{T1+3}, v{T1+4}")
    M.I(f"v_lshlrev_b32 v{T1+6}, 3, v{T1+4}")
    M.I(f"v_bfe_u32 v{T1+7}, v0, 2, 2")
    M.I(f"v_add_u32 v{T1+6}, v{T1+6}, v{T1+7}")
    M.I(f"v_mul_u32_u24 v{T1+6}, 192, v{T1+6}")
    M.I(f"v_lshl_add_u32 v{T1+6}, v23, 5, v{T1+6}")
    M.I(f"v_and_b32 v{T1+7}, 3, v0")
    M.I(f"v_lshl_add_u32 v{T1+6}, v{T1+7}, 3, v{T1+6}")
    M.I(f"v_add_u32 v{T1+6}, {W1_O}, v{T1+6}")
    M.I(f"v_xor_b32 v{T1+7}, v23, v0")
    M.I(f"v_and_b32 v{T1+7}, 1, v{T1+7}")
    M.I(f"v_add_u32 v{T1+7}, -1, v{T1+7}")
    M.I(f"v_and_b32 v{MSK}, 0x3f803f80, v{T1+7}")
    for k in range(1, 4): M.I(f"v_mov_b32 v{MSK+k}, v{MSK}")
    for u in range(4):
        M.I(f"v_xor_b32 v{T1+4}, {2*u}, v{T1+3}")
        M.I(f"v_lshl_add_u32 v{5+u}, v{T1+4}, 4, v{T1+2}")
    for j2 in range(3):
        M.I(f"s_add_u32 s36, s35, {j2}")
        M.I("s_sub_u32 s39, s36, 3")
        M.I("s_cmp_ge_u32 s36, 3")
        M.I(f"s_cselect_b32 s{4+j2}, s39, s36")
        M.I(f"s_lshl_b32 s39, s{4+j2}, 6")
        M.I(f"v_add_u32 v{9+j2}, s39, v{T1+6}")
    M.I(f"v_lshlrev_b32 v23, 3, v{T1+5}")
    mk_srd(M, SB1, 22, 23, 3072)
    M.I(f"v_lshrrev_b32 v{T1}, 4, v0")
    M.I("s_and_b32 s36, s35, 1")
    M.I("s_lshl_b32 s36, s36, 2")
    M.I(f"v_add_u32 v{T1}, s36, v{T1}")
    M.I(f"v_and_b32 v{T1+1}, 7, v0")
    M.I(f"v_xor_b32 v{T1}, v{T1}, v{T1+1}")
    M.I(f"v_lshlrev_b32 v{T1+1}, 7, v22")
    M.I(f"v_lshl_add_u32 v16, v{T1}, 4, v{T1+1}")
    M.I(f"v_add_u32 v16, {BB_O}, v16")
    M.I(f"v_lshlrev_b32 v{T1}, 3, v0")
    M.I(f"v_add_u32 v{T1}, {CSW_L}, v{T1}")
    M.I(f"ds_write_b64 v{T1}, v[14:15]")
    for k in range(20): M.I(f"v_mov_b32 v{CBA+k}, 0")
    M.I("s_lshr_b32 s37, s35, 1")
    emit(M, m_dma(1))
    M.raw(";;DRYPT")
    def m_reads(p):
        L = []
        for u in range(4):
            L.append([(f"ds_read_b128 {vr(XB+16*(p&1)+4*u,4)}, v{5+u}", f"r{p}")])
            for jt in range(3):
                L.append([(f"ds_read_b64_tr_b16 {vr(WB+48*(p&1)+12*u+4*jt+2*e,2)}, v{9+jt} offset:{u*3072+e*768}", f"r{p}") for e in range(2)])
        delta = SLOT if p % 4 != 3 else (-3 * SLOT) & 0xffffffff
        L.append([(f"v_add_u32 v{k}, {delta}, v{k}", None) for k in range(5, 12)])
        return L
    def m_mfma(p):
        L = []
        for u in range(4):
            c = "0" if (p == 0 and u < 2) else vr(WA + 4 * (u & 1), 4)
            L.append(f"v_mfma_f32_16x16x32_bf16 {vr(WA+4*(u&1),4)}, {vr(WB+48*(p&1)+12*u,4)}, {vr(MSK,4)}, {c}")
        for u in range(4):
            for jt in range(3):
                c = "0" if (p == 0 and u == 0) else vr(MACC + 16 * jt, 16)
                L.append(f"v_mfma_f32_32x32x16_bf16 {vr(MACC+16*jt,16)}, {vr(WB+48*(p&1)+12*u+4*jt,4)}, {vr(XB+16*(p&1)+4*u,4)}, {c}")
        return L
    SJL = 2 * SLOT
    def sj_ids():
        M.I("s_and_b32 s36, s2, 7")
        M.I("s_lshr_b32 s39, s2, 3")
        M.I("s_and_b32 s26, s36, 3")
        M.I("s_lshl_b32 s26, s26, 3")
        M.I("s_and_b32 s27, s39, 7")
        M.I("s_add_u32 s26, s26, s27")
        M.I("s_lshr_b32 s27, s36, 2")
        M.I("s_lshl_b32 s27, s27, 2")
        M.I("s_lshr_b32 s39, s39, 3")
        M.I("s_add_u32 s27, s27, s39")
    def sj_issue_w():
        mk_srd(M, 40, 24, 25, 1966080)
        for jk in range(2):
            M.I(f"s_add_u32 s39, s26, {32*jk}")
            M.I("s_min_u32 s39, s39, 47")
            M.I(f"s_mul_i32 s{68+jk}, s27, {5*H1F_RT}")
            M.I("s_lshl_b32 s36, s39, 10")
            M.I(f"s_add_u32 s{68+jk}, s{68+jk}, s36")
            M.I("s_mul_i32 s39, s39, 40960")
            M.I("s_mul_i32 s36, s27, 160")
            M.I(f"s_add_u32 s{22+jk}, s36, s39")
        for e in range(5):
            M.I(f"v_add_u32 v1, {64*e}, v0")
            M.I("v_mul_u32_u24 v2, 6554, v1")
            M.I("v_lshrrev_b32 v2, 16, v2")
            M.I("v_mul_u32_u24 v3, 10, v2")
            M.I("v_sub_u32 v1, v1, v3")
            M.I("v_mul_u32_u24 v2, 1280, v2")
            M.I("v_lshl_add_u32 v1, v1, 4, v2")
            for jk in range(2):
                M.I(f"s_mov_b32 m0, {SJL + 5120*jk + 1024*e}")
                M.I(f"buffer_load_dwordx4 v1, s[40:43], s{22+jk} offen lds")
    def sj_issue_c():
        mk_srd(M, 44, 14, 15, 819200)
        mk_srd(M, 48, 16, 17, 819200)
        for jk in range(2):
            M.I(f"s_add_u32 s38, s26, {32*jk}")
            M.I("s_min_u32 s38, s38, 49")
            M.I(f"s_mul_hi_u32 s36, s38, {(2**32 + 9)//10}")
            M.I("s_mul_i32 s39, s36, 10")
            M.I("s_sub_u32 s39, s38, s39")
            M.I("s_mul_i32 s38, s27, 5")
            M.I("s_add_u32 s36, s36, s38")
            M.I(f"s_mul_i32 s{70+jk}, s36, {HF_RT}")
            M.I("s_lshl_b32 s38, s39, 12")
            M.I(f"s_add_u32 s{70+jk}, s{70+jk}, s38")
            M.I(f"s_add_u32 s{70+jk}, s{70+jk}, {CF_OFF - W2F_OFF}")
            M.I("s_mul_i32 s36, s36, 20480")
            M.I("s_lshl_b32 s39, s39, 7")
            M.I("s_add_u32 s36, s36, s39")
            M.I("s_add_u32 s39, s36, 10240")
            for (sr, mo) in ((44, 0), (48, 2048)):
                M.I(f"s_mov_b32 m0, {SJL + 10240 + 4096*jk + mo}")
                M.I(f"buffer_load_dwordx4 v13, s[{sr}:{sr+3}], s36 offen lds")
                M.I(f"s_mov_b32 m0, {SJL + 10240 + 4096*jk + mo + 1024}")
                M.I(f"buffer_load_dwordx4 v13, s[{sr}:{sr+3}], s39 offen lds")
    def sj_finish():
        mk_srd(M, 40, 30, 31, STATS_OFF - W2F_OFF, None, W2F_OFF)
        M.I("v_lshrrev_b32 v1, 4, v0")
        M.I("v_lshrrev_b32 v2, 1, v1")
        M.I("v_lshlrev_b32 v12, 4, v2")
        M.I("v_and_b32 v3, 1, v1")
        M.I("v_lshl_add_u32 v12, v3, 2, v12")
        M.I("v_lshrrev_b32 v17, 2, v22")
        M.I("v_add_u32 v12, v12, v17")
        M.I("v_mul_u32_u24 v12, 160, v12")
        M.I("v_and_b32 v17, 3, v22")
        M.I("v_lshl_add_u32 v12, v17, 3, v12")
        M.I(f"v_add_u32 v12, {SJL}, v12")
        M.I("v_lshlrev_b32 v3, 11, v3")
        M.I("v_lshl_add_u32 v3, v22, 7, v3")
        M.I("v_and_b32 v17, 7, v22")
        M.I("v_xor_b32 v2, v2, v17")
        M.I("v_lshl_add_u32 v3, v2, 4, v3")
        M.I(f"v_add_u32 v3, {SJL + 10240}, v3")
        M.I("v_lshlrev_b32 v1, 4, v0")
        RW = [WB, WB + 20]; RC_ = [CBF, CBA]
        for jk in range(2):
            for j in range(5):
                for e in range(2):
                    M.I(f"ds_read_b64_tr_b16 {vr(RW[jk]+4*j+2*e,2)}, v12 offset:{5120*jk+32*j+1280*e}")
        for j in range(4):
            M.I(f"v_xor_b32 v2, {32*j}, v3")
            for jk in range(2):
                M.I(f"ds_read_b128 {vr(RC_[jk]+4*j,4)}, v2 offset:{4096*jk}")
        M.I("s_waitcnt lgkmcnt(0)")
        for jk in range(2):
            for j in range(5):
                M.I(f"buffer_store_dwordx4 {vr(RW[jk]+4*j,4)}, v1, s[40:43], s{68+jk} offen sc1")
                M.vm.pop()
                if j < 4: M.I(f"s_add_u32 s{68+jk}, s{68+jk}, {H1F_RT}")
        for jk in range(2):
            for j in range(4):
                M.I(f"buffer_store_dwordx4 {vr(RC_[jk]+4*j,4)}, v1, s[40:43], s{70+jk} offen offset:{1024*j} sc1")
                M.vm.pop()
    B1V = WB + 24
    for p in range(10):
        m_wait(f"c{p}")
        if p == 1:
            M.I(f"s_cbranch_vccnz L_{name}_w7")
            M.I("s_waitcnt vmcnt(0)")
            M.I("v_min_u32 v17, 19, v0")
            M.I("v_lshlrev_b32 v17, 2, v17")
            M.I(f"v_add_u32 v17, {PAR_L}, v17")
            M.I("ds_write_b32 v17, v1")
            M.I("ds_write_b32 v17, v2 offset:128")
            M.I("ds_write_b32 v17, v3 offset:256")
            M.lg = []
            M.label(f"L_{name}_w7")
        if p == 0: M.wait_lg()
        M.I("s_barrier")
        stamp(True)
        if p in (0, 9): stamp()
        side = m_dma(p + 3) if p + 3 <= 9 else []
        if p == 0: side = m_dma(2)
        if p == 1: side = m_dma(3) + side
        rd = m_reads(p)
        M.I(f"s_cmp_lg_u32 s37, {p & 1}")
        M.I(f"s_cbranch_scc1 L_{name}_cs{p}a")
        for j in range(5):
            M.I(f"ds_read_b128 {vr(CBF+4*j,4)}, v16 offset:{2048*j}")
            M.lg.pop()
        M.label(f"L_{name}_cs{p}a")
        delta = SLOT if p % 4 != 3 else (-3 * SLOT) & 0xffffffff
        M.I(f"v_add_u32 v16, {delta}, v16")
        def cs_mfma():
            M.I(f"s_cmp_lg_u32 s37, {p & 1}")
            M.I(f"s_cbranch_scc1 L_{name}_cs{p}b")
            for j in range(5):
                M.I(f"v_mfma_f32_16x16x32_bf16 {vr(CBA+4*j,4)}, v[18:21], {vr(CBF+4*j,4)}, {vr(CBA+4*j,4)}")
            M.label(f"L_{name}_cs{p}b")
        if "dmaonly" in dbg: emit(M, side)
        elif p == 0: emit(M, rd + side)
        elif p == 9:
            mm8 = m_mfma(8)
            for m in mm8[:6]: M.I(m)
            M.I("s_waitcnt lgkmcnt(0)")
            cs_mfma()
            for m in mm8[6:8]: M.I(m)
            M.I("s_mul_i32 s36, s35, 320")
            M.I(f"s_add_u32 s36, s36, {CSB_L}")
            M.I("v_lshlrev_b32 v17, 2, v22")
            M.I("v_add_u32 v17, s36, v17")
            M.I("s_nop 3")
            M.I("s_mov_b64 exec, 0xffff")
            for j in range(5):
                M.I(f"ds_write_b32 v17, v{CBA+4*j} offset:{64*j}", tag="sw")
            cnt_add(M, 16, 17, CNT_L + 4)
            merge(M, mm8[8:], rd, 0.9)
            M.I(f"s_cbranch_vccnz L_{name}_nb1")
            M.I("v_min_u32 v17, 47, v0")
            M.I("v_lshlrev_b32 v17, 3, v17")
            M.I(f"v_add_u32 v17, {B1F_L}, v17")
            M.I("v_lshlrev_b32 v2, 16, v4")
            M.I("v_and_b32 v3, 0xffff0000, v4")
            M.I("ds_write_b64 v17, v[2:3]")
            M.I("s_waitcnt vmcnt(0)")
            M.I("v_readfirstlane_b32 s36, v15")
            M.I("s_cmp_lg_u32 s36, 255")
            M.I(f"s_cbranch_scc1 L_{name}_nb")
            mk_srd(M, SB1, 30, 31, 16 * AGG_G, None, AGG_OFF)
            M.I("v_lshlrev_b32 v14, 7, v22")
            M.I("v_lshrrev_b32 v15, 4, v0")
            M.I(f"v_mul_u32_u24 v15, {AGG_G}, v15")
            M.I(f"v_add3_u32 v14, v14, v15, {0}") if False else M.I("v_add_u32 v14, v14, v15")
            M.I(f"v_add_u32 v14, {GO_O}, v14")
            M.I(f"v_mov_b32 v15, {TAG}")
            for n in range(4):
                M.I(f"s_mov_b32 s36, {4*n*AGG_G}")
                M.I(f"buffer_store_dword v15, v14, s[{SB1}:{SB1+3}], s36 offen sc1")
                M.vm.pop()
            M.label(f"L_{name}_nb")
            sj_finish()
            M.label(f"L_{name}_nb1")
        else: merge(M, m_mfma(p - 1), mix(rd, side), 0.9)
        if p in (7, 8):
            svm = list(M.vm)
            M.I(f"s_cbranch_vccnz L_{name}_si{p}")
            if p == 7:
                sj_ids(); sj_issue_w()
            else: sj_issue_c()
            M.label(f"L_{name}_si{p}")
            M.vm = svm
        if p == 1:
            M.I(f"s_cbranch_vccnz L_{name}_na")
            M.I("s_waitcnt vmcnt(0)")
            M.I("v_mov_b32 v14, 0")
            M.I("v_mov_b32 v15, 1")
            M.I("s_mov_b64 exec, 1")
            M.I(f"buffer_atomic_add v15, v14, s[{SDB}:{SDB+3}], 0 offen sc0")
            M.vm.pop()
            M.I("s_mov_b64 exec, -1")
            M.label(f"L_{name}_na")
        M.I("s_waitcnt lgkmcnt(0)")
        M.lg = []
        if p < 9: cs_mfma()
    mm = m_mfma(9)
    M.raw(";;DRYSTART")
    M.I("s_lshl_b32 s38, s35, 2")
    M.I(f"s_add_u32 s38, s38, {CNT_L+16}")
    if "mdelay" in dbg: cnt_wait(M, f"L_{name}_mw2", 16, 17, "s38", 1)
    for m in mm[:4]: M.I(m)
    for m in mm[4:8]: M.I(m)
    for r in range(4): M.I(f"v_add_f32 v{WA+r}, v{WA+r}, v{WA+4+r}")
    M.I("v_and_b32 v16, 1, v0")
    M.I("v_lshlrev_b32 v16, 6, v16")
    M.I("v_lshrrev_b32 v17, 4, v0")
    M.I("v_lshl_add_u32 v16, v17, 4, v16")
    M.I("s_lshl_b32 s36, s4, 7")
    M.I(f"s_add_u32 s36, s36, {CSW_L}")
    M.I("v_add_u32 v16, s36, v16")
    M.I("s_mov_b32 exec_lo, 0x00030003")
    M.I("s_mov_b32 exec_hi, 0x00030003")
    M.I(f"ds_write_b128 v16, {vr(WA,4)}")
    cnt_add(M, 16, 17, CNT_L + 8)
    for m in mm[8:]: M.I(m)
    stamp()
    cnt_wait(M, f"L_{name}_mw1", 16, 17, CNT_L + 8, 4)
    if "mdelay" not in dbg: cnt_wait(M, f"L_{name}_mw2", 16, 17, "s38", 1)
    stamp()
    CSV = XB
    B1V = WB + 16
    M.I("v_lshrrev_b32 v10, 5, v0")
    M.I("v_lshlrev_b32 v11, 4, v10")
    M.I(f"v_add_u32 v12, {B1F_L}, v11")
    M.I(f"v_add_u32 v11, {CSW_L}, v11")
    M.I("v_lshrrev_b32 v23, 1, v23")
    M.I(f"v_add_u32 v23, {STATS_L}, v23")
    M.I("ds_read_b32 v14, v23")
    M.I("ds_read_b32 v15, v23 offset:512")
    for jt in range(3):
        M.I(f"s_lshl_b32 s36, s{4+jt}, 7")
        M.I("v_add_u32 v16, s36, v11")
        M.I("v_add_u32 v17, s36, v12")
        M.I(f"s_lshl_b32 s{4+jt}, s{4+jt}, 10")
        for q in range(4):
            M.I(f"ds_read_b128 {vr(CSV+(jt*4+q)*4,4)}, v16 offset:{32*q}", tag=f"cr{jt}")
            M.I(f"ds_read_b128 {vr(B1V+(jt*4+q)*4,4)}, v17 offset:{32*q}", tag=f"cr{jt}")
    M.I("s_lshl_b32 s36, s32, 2")
    M.I("s_add_u32 s36, s36, s35")
    M.I(f"s_mul_i32 s36, s36, {2*H1F_RT}")
    M.I("s_mul_i32 s39, s33, 3072")
    M.I("s_add_u32 s36, s36, s39")
    mk_srd(M, SH1, 30, 31, H1F_RT + 3072, 36, H1F_OFF)
    M.I("v_bfe_u32 v9, v0, 4, 1")
    M.I(f"v_mul_u32_u24 v9, {H1F_RT}, v9")
    M.I("v_lshl_add_u32 v9, v10, 8, v9")
    M.I("v_lshl_add_u32 v9, v22, 4, v9")
    C1 = -2.0 * 1.4426950408889634 * 0.7978845608028654
    C2 = C1 * 0.044715
    M.I(f"v_mov_b32 v16, {f2u(C2)}")
    M.I(f"v_mov_b32 v17, {f2u(C1)}")
    TM = FR
    late = []
    for jt in range(3):
        M.wait_lg(f"cr{jt}")
        P = [MACC + 16 * jt + 2 * k for k in range(8)]
        cs = [CSV + jt * 16 + 2 * k for k in range(8)]
        b1 = [B1V + jt * 16 + 2 * k for k in range(8)]
        T_ = [TM + 2 * k for k in range(8)]
        for k in range(8):
            M.I(f"v_pk_fma_f32 {vr(b1[k],2)}, v[14:15], {vr(cs[k],2)}, {vr(b1[k],2)} op_sel:[0,0,0] op_sel_hi:[0,1,1] neg_lo:[1,0,0] neg_hi:[1,0,0]")
        for k in range(8):
            M.I(f"v_pk_fma_f32 {vr(P[k],2)}, {vr(P[k],2)}, v[14:15], {vr(b1[k],2)} op_sel:[0,1,0] op_sel_hi:[1,1,1]")
        for k in range(8):
            M.I(f"v_pk_mul_f32 {vr(T_[k],2)}, {vr(P[k],2)}, {vr(P[k],2)}")
        for k in range(8):
            M.I(f"v_pk_fma_f32 {vr(T_[k],2)}, {vr(T_[k],2)}, v[16:17], v[16:17] op_sel:[0,0,1] op_sel_hi:[1,0,1]")
        for k in range(8):
            M.I(f"v_pk_mul_f32 {vr(T_[k],2)}, {vr(T_[k],2)}, {vr(P[k],2)}")
        for k in range(16):
            M.I(f"v_exp_f32 v{TM+k}, v{TM+k}")
        for k in range(8):
            M.I(f"v_pk_add_f32 {vr(T_[k],2)}, {vr(T_[k],2)}, 1.0 op_sel_hi:[1,0]")
        for k in range(16):
            M.I(f"v_rcp_f32 v{TM+k}, v{TM+k}")
        for k in range(8):
            M.I(f"v_pk_mul_f32 {vr(P[k],2)}, {vr(P[k],2)}, {vr(T_[k],2)}")
        PKM = TM + 16 + 8 * jt
        for k in range(8):
            M.I(f"v_cvt_pk_bf16_f32 v{PKM+k}, v{P[k]}, v{P[k]+1}")
        def h1st(jt=jt, PKM=PKM):
            for AB in range(2):
                M.I(f"buffer_store_dwordx4 {vr(PKM+4*AB,4)}, v9, s[{SH1}:{SH1+3}], s{4+jt} offen offset:{512*AB}{STF}", tag="st")
        if jt == 1:
            M.I(f"s_cbranch_vccnz L_{name}_a2")
            M.I("s_waitcnt vmcnt(2)")
            mk_srd(M, 44, 30, 31, 8192, None, FL_OFF)
            M.I("s_lshl_b32 s36, s27, 7")
            M.I("s_lshl_b32 s39, s26, 2")
            M.I("s_add_u32 s36, s36, s39")
            M.I("s_add_u32 s36, s36, 4096")
            M.I("v_mov_b32 v1, s36")
            M.I(f"v_mov_b32 v2, {TAG}")
            M.I("s_mov_b64 exec, 1")
            M.I("buffer_store_dword v2, v1, s[44:47], 0 offen sc1")
            M.vm.pop()
            M.I("s_mov_b64 exec, -1")
            M.label(f"L_{name}_a2")
        if "mst" in dbg: late.append(h1st)
        else: h1st()
    if "mst" in dbg:
        cnt_wait(M, f"L_{name}_mw3", 16, 17, CNT_L + 12, 1)
        for f in late: f()
    M.I("s_cmp_lg_u32 s33, 0")
    M.I(f"s_cbranch_scc1 L_{name}_nostat")
    M.I("s_lshl_b32 s36, s32, 9")
    mk_srd(M, 40, 30, 31, 8192 + 512, 36, STATS_OFF)
    M.I(f"v_subrev_u32 v23, {STATS_L}, v23")
    M.I("s_mov_b32 s36, 8192")
    M.I("buffer_store_dword v14, v23, s[40:43], 0 offen sc1")
    M.I("buffer_store_dword v15, v23, s[40:43], s36 offen sc1")
    M.label(f"L_{name}_nostat")
    phaseB(M, "G", stamp)
    final_stamps(M, st)
    M.label(f"L_{name}_end")
    M.I("s_endpgm")
    if "dry" not in dbg:
        for X in (S, M): X.lines = [l for l in X.lines if not l.startswith(";;DRY")]
    else:
        print("dry blocks", add_dry(S, name, "ds", 39), add_dry(M, name, "dm", 39))
    desc = f""".section .rodata,"a"
.p2align 6
.amdhsa_kernel {name}
  .amdhsa_next_free_vgpr 256
  .amdhsa_next_free_sgpr 102
  .amdhsa_accum_offset 256
  .amdhsa_group_segment_fixed_size 0
  .amdhsa_kernarg_size 136
  .amdhsa_user_sgpr_count 2
  .amdhsa_user_sgpr_kernarg_segment_ptr 1
  .amdhsa_system_sgpr_workgroup_id_x 1
.end_amdhsa_kernel
.text"""
    return A.text() + "\n" + S.text() + "\n" + M.text() + "\n" + desc, (A.nins, S.nins, M.nins)
```

```python
import sys, os
from build import build
from kf import gen_kf
st = sys.argv[1] if len(sys.argv) > 1 else ""
t1, n1 = gen_kf(stamps=("1" in st), dbg=os.environ.get("K1DBG", ""), rot=(os.environ.get("NOROT") is None))
out = sys.argv[2] if len(sys.argv) > 2 else "fused.s"
open(out, "w").write(build([t1], [("kf_kernel", 256, 512, 163840)]))
print("kf instrs", n1)
```

```python
from asmfw import *
from layout import *
import struct
def f2u(f): return struct.unpack("<I", struct.pack("<f", f))[0]
LOG2E = f2u(1.4426950408889634)
INV2PI = f2u(0.15915494309189535)
SLOT = 38912
BB_O = 16384
W1_O = 26624
MISC = 155648
SEG_L = MISC
CSW_L = MISC + 5120
CNT_L = CSW_L + 384
STATS_L = MISC + 5632
CSB_L = STATS_L + 1024
STG_L = 2 * SLOT
PAR_L = SEG_L
B1F_L = 34816
GR_L = 40960
TR_L = 0
Q_L = 24576
HS_L = 32768
TAG = 0x5a17c3e9
EP_L = 126976
MST_L = 0
NEG_LOG2E = 0xbfb8aa3b
DPP = "row_ror:8 row_mask:0xf bank_mask:0xf"

def mk_srd(A, d, lo, hi, nbytes, off_s=None, off_imm=0):
    if off_s is None and off_imm == 0:
        A.I(f"s_mov_b32 s{d}, s{lo}")
        A.I(f"s_and_b32 s{d+1}, s{hi}, 0xffff")
    else:
        if off_s is not None:
            if off_imm: A.I(f"s_add_u32 s{off_s}, s{off_s}, {off_imm}")
            A.I(f"s_add_u32 s{d}, s{lo}, s{off_s}")
        else:
            A.I(f"s_add_u32 s{d}, s{lo}, {off_imm}")
        A.I(f"s_addc_u32 s{d+1}, s{hi}, 0")
        A.I(f"s_and_b32 s{d+1}, s{d+1}, 0xffff")
    A.I(f"s_mov_b32 s{d+2}, {nbytes}")
    A.I(f"s_mov_b32 s{d+3}, 0x00020000")

def bb_srd(X, d, ldsreg):
    X.I(f"s_lshl_b32 s{ldsreg}, s36, 10")
    X.I(f"s_add_u32 s{ldsreg}, s{ldsreg}, {BB_O}")
    X.I("s_and_b32 s39, s36, 1")
    X.I("s_cmp_eq_u32 s39, 0")
    X.I(f"s_cselect_b32 s{d}, s10, s12")
    X.I(f"s_cselect_b32 s{d+1}, s11, s13")
    X.I("s_lshr_b32 s36, s36, 1")
    X.I("s_lshl_b32 s36, s36, 3")
    X.I("s_mul_i32 s39, s33, 40")
    X.I("s_add_u32 s36, s36, s39")
    X.I("s_mul_i32 s36, s36, 1280")
    X.I(f"s_add_u32 s{d}, s{d}, s36")
    X.I(f"s_addc_u32 s{d+1}, s{d+1}, 0")
    X.I(f"s_and_b32 s{d+1}, s{d+1}, 0xffff")
    X.I(f"s_mov_b32 s{d+2}, 10240")
    X.I(f"s_mov_b32 s{d+3}, 0x00020000")

def put(X, item):
    t, g = item
    if t.endswith(":"): X.label(t[:-1])
    else: X.I(t, tag=g)
def emit(X, L):
    for grp in L:
        for it in grp: put(X, it)
def merge(X, main, side, frac=1.0):
    side = list(side)
    n = max(1, int(len(main) * frac))
    done = 0
    for k, m in enumerate(main):
        X.I(m)
        tgt = min(len(side), ((k + 1) * len(side) + n - 1) // n)
        while done < tgt:
            for it in side[done]: put(X, it)
            done += 1
    while done < len(side):
        for it in side[done]: put(X, it)
        done += 1
def mix(a, b):
    out = []; ia = ib = 0
    while ia < len(a) or ib < len(b):
        if ib >= len(b) or (ia < len(a) and ia * len(b) <= ib * len(a)):
            out.append(a[ia]); ia += 1
        else:
            out.append(b[ib]); ib += 1
    return out

def cnt_add(X, va, vt, addr):
    X.I(f"v_mov_b32 v{va}, {addr}")
    X.I(f"v_mov_b32 v{vt}, 1")
    X.I("s_mov_b64 exec, 1")
    X.I(f"ds_add_u32 v{va}, v{vt}")
    X.I("s_mov_b64 exec, -1")
def cnt_wait(X, lab, va, vt, addr, val):
    X.I(f"v_mov_b32 v{va}, {addr}")
    X.I("s_mov_b32 s39, 0")
    X.label(lab)
    X.I(f"ds_read_b32 v{vt}, v{va}")
    X.I("s_waitcnt lgkmcnt(0)")
    X.lg = []
    X.I(f"v_readfirstlane_b32 s36, v{vt}")
    X.I("s_add_u32 s39, s39, 1")
    X.I(f"s_cmp_eq_u32 s36, {val}")
    X.I(f"s_cbranch_scc1 {lab}d")
    X.I("s_sleep 1")
    X.I("s_cmp_lt_u32 s39, 0x400000")
    X.I(f"s_cbranch_scc1 {lab}")
    X.label(lab + "d")

def pr(idx):
    return f"v[{idx & ~1}:{(idx & ~1) + 1}]", idx & 1

def add_dry(X, name, tag, sreg, minlen=10, maxlen=48):
    lines = X.lines
    i0 = lines.index(";;DRYSTART")
    head, tail = lines[:i0], lines[i0 + 1:]
    def pure(l):
        t = l.strip()
        if t.startswith("v_"):
            return not (t.startswith("v_cmp") or t.startswith("v_readfirstlane") or t.startswith("v_mfma") or t.startswith("v_readlane") or "co_u32" in t)
        return t.startswith("s_nop")
    out = []; nb = 0; i = 0
    while i < len(tail):
        j = i
        while j < len(tail) and pure(tail[j]): j += 1
        if j - i >= minlen:
            k = i
            while k < j:
                e = min(j, k + maxlen)
                if j - e < minlen: e = j
                out.append(f"L_{name}_{tag}{nb}:")
                out += tail[k:e]
                out.append(f"    s_cbranch_execz L_{name}_{tag}disp")
                nb += 1; k = e
            i = j
        else:
            out += tail[i:max(j, i + 1)]; i = max(j, i + 1)
    drv = [f"    s_mov_b32 s{sreg}, s35", "    s_mov_b64 exec, 0", f"    s_branch L_{name}_{tag}go",
           f"L_{name}_{tag}disp:", f"    s_add_u32 s{sreg}, s{sreg}, 4", f"L_{name}_{tag}go:"]
    for b in range(nb):
        drv += [f"    s_cmp_eq_u32 s{sreg}, {b}", f"    s_cbranch_scc1 L_{name}_{tag}{b}"]
    drv += ["    s_mov_b64 exec, -1"]
    p = head.index(";;DRYPT")
    X.lines = head[:p] + drv + head[p + 1:] + out
    return nb

def gen_kf(name="kf_kernel", stamps=False, rot=True, dbg=""):
    import os
    STF = os.environ.get("STF1", "")
    STH = os.environ.get("STH", STF)
    A = Stream()
    A.raw(f".globl {name}\n.p2align 8\n.type {name},@function\n{name}:")
    A.I("s_cmp_ge_u32 s2, 256")
    A.I(f"s_cbranch_scc1 L_{name}_end")
    class St:
        n = 0
    def mkstamp(X):
        st = St()
        def stamp(ph=False):
            if not stamps: return
            if ("phst" in dbg) != ph: return
            assert st.n < 12
            X.I(f"s_memtime s[{74+2*st.n}:{75+2*st.n}]"); st.n += 1
        return stamp, st
    if stamps:
        A.I("s_memtime s[72:73]")
        A.I("s_memrealtime s[98:99]")
    A.I("s_load_dwordx16 s[4:19], s[0:1], 0")
    A.I("s_load_dwordx4 s[20:23], s[0:1], 80")
    A.I("s_load_dwordx2 s[24:25], s[0:1], 96")
    A.I("s_load_dwordx4 s[28:31], s[0:1], 120")
    A.I("s_and_b32 s36, s2, 7")
    A.I("s_lshr_b32 s37, s2, 3")
    if "map2" in dbg:
        A.I("s_and_b32 s32, s37, 15")
    else:
        A.I("s_and_b32 s32, s36, 1")
        A.I("s_lshl_b32 s32, s32, 3")
        A.I("s_and_b32 s38, s37, 7")
        A.I("s_add_u32 s32, s32, s38")
    if "map2" in dbg:
        A.I("s_lshl_b32 s33, s36, 1")
        A.I("s_lshr_b32 s38, s37, 4")
    else:
        A.I("s_lshr_b32 s33, s36, 1")
        A.I("s_lshl_b32 s33, s33, 2")
        A.I("s_lshr_b32 s38, s37, 3")
    A.I("s_add_u32 s33, s33, s38")
    import os
    rm = os.environ.get("ROTM", "full")
    if rot and rm == "full":
        A.I("s_and_b32 s26, s33, 3")
        A.I("s_mul_i32 s26, s26, 3")
        A.I("s_and_b32 s27, s32, 7")
        A.I("s_add_u32 s26, s26, s27")
        A.I("s_sub_u32 s27, s26, 10")
        A.I("s_cmp_ge_u32 s26, 10")
        A.I("s_cselect_b32 s26, s27, s26")
    elif rot and rm == "r4":
        A.I("s_add_u32 s26, s33, s32")
        A.I("s_and_b32 s26, s26, 3")
    elif rot and rm == "r2":
        A.I("s_add_u32 s26, s33, s32")
        A.I("s_and_b32 s26, s26, 1")
        A.I("s_lshl_b32 s26, s26, 1")
    elif rot and rm == "r4x2":
        A.I("s_add_u32 s26, s33, s32")
        A.I("s_and_b32 s26, s26, 3")
        A.I("s_lshl_b32 s26, s26, 1")
    else:
        A.I("s_mov_b32 s26, 0")
    A.I("v_lshrrev_b32 v1, 6, v0")
    A.I("v_and_b32 v0, 63, v0")
    A.I("v_readfirstlane_b32 s34, v1")
    A.I("s_and_b32 s35, s34, 3")
    A.I("s_cmp_ge_u32 s34, 4")
    A.wait_lg()
    if "notlb" not in dbg:
        A.I(f"s_mul_i32 s36, s32, {128*1280}")
        A.I("s_mul_i32 s37, s33, 51200")
        A.I("s_load_dword s3, s[4:5], s36")
        A.I("s_load_dword s3, s[10:11], s37")
        A.I("s_load_dword s3, s[12:13], s37")
        A.I("s_load_dword s3, s[20:21], 0")
        A.I("s_load_dword s3, s[20:21], 0xffffc")
        A.I("s_cmp_ge_u32 s34, 4")
    A.I(f"s_cbranch_scc1 L_{name}_M")

    def final_stamps(X, st):
        if not stamps: return
        X.wait_all()
        X.I(f"s_memtime s[{74+2*st.n}:{75+2*st.n}]"); st.n += 1
        X.I("s_memrealtime s[100:101]")
        X.wait_lg()
        X.I("s_lshl_b32 s36, s2, 3")
        X.I("s_add_u32 s36, s36, s34")
        X.I("s_lshl_b32 s36, s36, 7")
        X.I("s_add_u32 s36, s36, 0x2000000")
        X.I("s_add_u32 s40, s30, s36")
        X.I("s_addc_u32 s41, s31, 0")
        X.I("s_and_b32 s41, s41, 0xffff")
        X.I("s_mov_b32 s42, 128")
        X.I("s_mov_b32 s43, 0x00020000")
        X.I("v_mov_b32 v1, 0")
        for i in range(st.n + 1):
            X.I(f"v_mov_b32 v2, s{72+2*i}")
            X.I(f"buffer_store_dword v2, v1, s[40:43], 0 offen offset:{4*i}")
        X.I("v_mov_b32 v2, s98")
        X.I("buffer_store_dword v2, v1, s[40:43], 0 offen offset:120")
        X.I("v_mov_b32 v2, s100")
        X.I("buffer_store_dword v2, v1, s[40:43], 0 offen offset:124")
    def side_issue(S, vG_, vC_, vBB, SJA, SJB, SWS, t1, t2, t3, vL, vA):
        mk_srd(S, SWS, 30, 31, STATS_OFF - W2F_OFF, None, W2F_OFF)
        S.I("s_lshl_b32 s26, s2, 2")
        S.I("s_add_u32 s26, s26, s35")
        if "nosj" in dbg: S.I("s_mov_b32 s26, 1000")
        S.I("s_lshl_b32 s27, s35, 12")
        S.I(f"s_add_u32 s27, s27, {STG_L}")
        S.I(f"v_lshlrev_b32 v{vL}, 4, v0")
        S.I(f"v_mov_b32 v{vA}, 0")
        S.I("s_mov_b32 s22, 0")
        S.I("s_mov_b32 s23, 0")
        savevm = list(S.vm)
        S.I("s_cmp_ge_u32 s26, 880")
        S.I(f"s_cbranch_scc1 L_{name}_sj0")
        S.I("s_cmp_ge_u32 s26, 480")
        S.I(f"s_cbranch_scc1 L_{name}_sjc")
        mk_srd(S, SJA, 24, 25, 1966080)
        S.I(f"s_mul_hi_u32 s36, s26, {(2**32 + 47)//48}")
        S.I("s_mul_i32 s39, s36, 48")
        S.I("s_sub_u32 s39, s26, s39")
        S.I(f"s_mul_i32 s22, s36, {4*H1F_RT}")
        S.I("s_lshl_b32 s23, s39, 10")
        S.I("s_add_u32 s22, s22, s23")
        S.I(f"s_mov_b32 s23, {H1F_RT}")
        S.I("s_mul_i32 s39, s39, 40960")
        S.I("s_lshl_b32 s36, s36, 7")
        S.I("s_add_u32 s36, s36, s39")
        S.I(f"v_lshrrev_b32 v{t1}, 3, v0")
        S.I(f"v_mul_u32_u24 v{t1}, 1280, v{t1}")
        S.I(f"v_and_b32 v{t2}, 7, v0")
        S.I(f"v_lshl_add_u32 v{t1}, v{t2}, 4, v{t1}")
        for e in range(4):
            S.I(f"s_add_u32 m0, s27, {1024*e}")
            S.I(f"buffer_load_dwordx4 v{t1}, s[{SJA}:{SJA+3}], s36 offen lds")
            if e < 3: S.I("s_add_u32 s36, s36, 10240")
        S.I(f"v_lshrrev_b32 v{t1}, 1, v{vG_}")
        S.I(f"v_lshlrev_b32 v{t1}, 11, v{t1}")
        S.I(f"v_and_b32 v{t2}, 1, v{vG_}")
        S.I(f"v_lshl_add_u32 v{t1}, v{t2}, 9, v{t1}")
        S.I(f"v_lshrrev_b32 v{t2}, 2, v{vC_}")
        S.I(f"v_lshl_add_u32 v{t1}, v{t2}, 7, v{t1}")
        S.I(f"v_and_b32 v{t2}, 3, v{vC_}")
        S.I(f"v_lshl_add_u32 v{t1}, v{t2}, 3, v{t1}")
        S.I(f"v_add_u32 v{vA}, s27, v{t1}")
        S.I(f"s_branch L_{name}_sj0")
        S.label(f"L_{name}_sjc")
        mk_srd(S, SJA, 14, 15, 819200)
        mk_srd(S, SJB, 16, 17, 819200)
        S.I("s_sub_u32 s39, s26, 480")
        S.I(f"s_mul_hi_u32 s36, s39, {(2**32 + 9)//10}")
        S.I("s_mul_i32 s22, s36, 10")
        S.I("s_sub_u32 s39, s39, s22")
        S.I(f"s_mul_i32 s22, s36, {HF_RT}")
        S.I("s_lshl_b32 s23, s39, 12")
        S.I("s_add_u32 s22, s22, s23")
        S.I(f"s_add_u32 s22, s22, {CF_OFF - W2F_OFF}")
        S.I("s_mov_b32 s23, 1024")
        S.I("s_mul_i32 s36, s36, 20480")
        S.I("s_lshl_b32 s39, s39, 7")
        S.I("s_add_u32 s36, s36, s39")
        S.I("s_add_u32 s39, s36, 10240")
        for (srd_, mo) in ((SJA, 0), (SJB, 2048)):
            S.I(f"s_add_u32 m0, s27, {mo}")
            S.I(f"buffer_load_dwordx4 v{vBB}, s[{srd_}:{srd_+3}], s36 offen lds")
            S.I(f"s_add_u32 m0, s27, {mo+1024}")
            S.I(f"buffer_load_dwordx4 v{vBB}, s[{srd_}:{srd_+3}], s39 offen lds")
        S.I(f"v_and_b32 v{t1}, 1, v{vG_}")
        S.I(f"v_lshlrev_b32 v{t1}, 11, v{t1}")
        S.I(f"v_lshl_add_u32 v{t1}, v{vC_}, 7, v{t1}")
        S.I(f"v_lshrrev_b32 v{t2}, 1, v{vG_}")
        S.I(f"v_and_b32 v{t3}, 7, v{vC_}")
        S.I(f"v_xor_b32 v{t2}, v{t2}, v{t3}")
        S.I(f"v_lshl_add_u32 v{t1}, v{t2}, 4, v{t1}")
        S.I(f"v_add_u32 v{vA}, s27, v{t1}")
        S.label(f"L_{name}_sj0")
        S.vm = savevm

    def phaseB(X, typ, stamp):
        L = f"L_{name}_{typ}"
        isG = typ == "G"
        RT = H1F_RT if isG else HF_RT
        NS = 12 if isG else 10
        D = int(os.environ.get("FD", "3"))
        LDF = os.environ.get("LDF", " sc1")
        ACC, STG = 16, 96
        VO = STG + 36 * D
        SA, SB0, SFL, SAGB = 40, 44, 52, 56
        PRIV = 15360
        BASE = 0 if isG else 61440 + 0
        BASE = 0 if isG else 0
        X.I("s_setprio 0" if not isG or "nogp" in dbg else "s_setprio 2")
        X.I("s_waitcnt vmcnt(0) lgkmcnt(0)")
        X.vm = []; X.lg = []
        if not isG: X.I("v_mov_b32 v15, v254")
        cnt_add(X, 4, 5, CNT_L + (32 if isG else 44))
        cnt_add(X, 4, 5, CNT_L + 36)
        X.I("s_load_dwordx2 s[4:5], s[0:1], 0")
        X.I("s_load_dwordx2 s[6:7], s[0:1], 64")
        X.I("s_load_dwordx4 s[8:11], s[0:1], 104")
        mk_srd(X, SFL, 30, 31, 8192, None, FL_OFF)
        X.I("s_cmp_lg_u32 s35, 0")
        X.I(f"s_cbranch_scc1 {L}nf")
        cnt_wait(X, f"{L}w0", 4, 5, CNT_L + (32 if isG else 44), 4)
        X.I("s_lshl_b32 s36, s32, 7")
        X.I("s_lshl_b32 s39, s33, 2")
        X.I("s_add_u32 s36, s36, s39")
        if not isG: X.I("s_add_u32 s36, s36, 2048")
        X.I("v_mov_b32 v4, s36")
        X.I(f"v_mov_b32 v5, {TAG}")
        X.I("s_mov_b64 exec, 1")
        X.I(f"buffer_store_dword v5, v4, s[{SFL}:{SFL+3}], 0 offen sc1")
        X.I("s_mov_b64 exec, -1")
        X.label(f"{L}nf")
        X.vm = []
        stamp()
        X.I("s_and_b32 s36, s2, 7")
        X.I("s_lshr_b32 s37, s2, 3")
        X.I("s_and_b32 s60, s36, 3")
        X.I("s_lshl_b32 s60, s60, 3")
        X.I("s_and_b32 s38, s37, 7")
        X.I("s_add_u32 s60, s60, s38")
        X.I("s_lshr_b32 s61, s36, 2")
        X.I("s_lshl_b32 s61, s61, 2")
        X.I("s_lshr_b32 s38, s37, 3")
        X.I("s_add_u32 s61, s61, s38")
        X.I("v_lshlrev_b32 v2, 4, v0")
        X.I("v_lshrrev_b32 v1, 4, v0")
        X.I("v_and_b32 v3, 15, v0")
        for n in range(4):
            X.I(f"s_add_u32 s36, s35, {n}")
            X.I("s_and_b32 s36, s36, 3")
            X.I(f"s_mul_i32 s36, s36, {RT}")
            X.I(f"v_add_u32 v{VO+n}, s36, v2")
        for n in range(5):
            X.I(f"v_add_u32 v{VO+4+n}, {n*RT}, v2")
        X.I(f"s_mul_i32 s36, s60, {4*RT}")
        mk_srd(X, SA, 30, 31, 4 * RT, 36, H1F_OFF if isG else HF_OFF)
        X.I(f"s_mul_i32 s36, s61, {5*RT}")
        mk_srd(X, SB0, 30, 31, 5 * RT, 36, W2F_OFF if isG else CF_OFF)
        X.I(f"s_mul_i32 s63, s35, {NS*1024}")
        X.I("s_lshl_b32 s36, s60, 6")
        X.I("s_lshr_b32 s37, s35, 1")
        X.I("s_lshl_b32 s37, s37, 5")
        X.I("s_add_u32 s36, s36, s37")
        X.I("s_and_b32 s37, s35, 1")
        X.I("s_lshl_b32 s37, s37, 2")
        X.I("s_add_u32 s65, s36, s37")
        X.I("s_mul_i32 s66, s61, 160")
        X.I("s_waitcnt lgkmcnt(0)")
        X.lg = []
        EV = VO + 10
        if isG:
            SX, SP, SD = 48, 64 + 4, 20
            mk_srd(X, SX, 4, 5, 2621440)
            mk_srd(X, SP, 8, 9, 1280)
            mk_srd(X, SD, 6, 7, 1280)
            X.I("s_lshl_b32 s67, s35, 12")
            X.I(f"s_add_u32 s67, s67, {EP_L}")
            X.I("s_mul_i32 s37, s65, 1280")
            X.I("s_add_u32 s37, s37, s66")
            for e in range(3):
                X.I(f"v_add_u32 v4, {64*e}, v0")
                X.I("v_min_u32 v4, 159, v4")
                X.I("v_mul_u32_u24 v5, 6554, v4")
                X.I("v_lshrrev_b32 v5, 16, v5")
                X.I("v_mul_u32_u24 v6, 10, v5")
                X.I("v_sub_u32 v4, v4, v6")
                X.I("v_lshrrev_b32 v6, 2, v5")
                X.I("v_lshl_add_u32 v5, v6, 2, v5")
                X.I("v_mul_u32_u24 v5, 1280, v5")
                X.I("v_lshl_add_u32 v4, v4, 4, v5")
                X.I(f"s_add_u32 m0, s67, {1024*e}")
                X.I(f"buffer_load_dwordx4 v4, s[{SX}:{SX+3}], s37 offen lds")
            X.I("v_lshlrev_b32 v4, 2, v0")
            X.I("v_min_u32 v4, 156, v4")
            X.I("s_add_u32 m0, s67, 3072")
            X.I(f"buffer_load_dword v4, s[{SP}:{SP+3}], s66 offen lds")
            X.I("s_add_u32 m0, s67, 3328")
            X.I(f"buffer_load_dword v4, s[{SD}:{SD+3}], s66 offen lds")
        RC = CNT_L + (80 if isG else 84)
        X.I("s_cmp_lg_u32 s35, 0")
        X.I(f"s_cbranch_scc1 {L}pw")
        X.I(f"s_mul_i32 s36, s33, {AGG_G}")
        mk_srd(X, SAGB, 30, 31, AGG_G, 36, AGG_OFF)
        X.I("s_lshl_b32 s36, s32, 7")
        X.I(f"s_add_u32 s36, s36, {GO_O}")
        X.I("v_mov_b32 v4, s36")
        X.I("s_mov_b32 s39, 0")
        if not isG: X.I("v_mov_b32 v7, 0") if False else None
        X.label(f"{L}go")
        X.I(f"v_readfirstlane_b32 s36, v{7 if isG else 15}")
        X.I("s_add_u32 s39, s39, 1")
        X.I(f"s_cmp_eq_u32 s36, {TAG}")
        X.I(f"s_cbranch_scc1 {L}god")
        X.I(f"buffer_load_dword v{7 if isG else 15}, v4, s[{SAGB}:{SAGB+3}], 0 offen sc1")
        X.I("s_waitcnt vmcnt(0)")
        X.I("s_cmp_lt_u32 s39, 0x100000")
        X.I(f"s_cbranch_scc1 {L}go")
        X.label(f"{L}god")
        X.I(f"v_mov_b32 v6, {TAG}")
        X.I("s_lshr_b32 s36, s60, 1")
        X.I("s_lshl_b32 s36, s36, 7")
        if not isG: X.I("s_add_u32 s36, s36, 2048")
        X.I("v_lshlrev_b32 v4, 2, v3")
        X.I("v_add_u32 v4, s36, v4")
        X.I("s_lshl_b32 s36, s61, 7")
        X.I("s_add_u32 s36, s36, 4096")
        X.I("v_lshlrev_b32 v5, 2, v0")
        X.I("v_add_u32 v5, s36, v5")
        X.I("v_cmp_gt_u32 vcc, 32, v0")
        X.I("v_cndmask_b32 v4, v4, v5, vcc")
        X.I("s_mov_b32 s39, 0")
        X.label(f"{L}fl")
        X.I(f"buffer_load_dword v5, v4, s[{SFL}:{SFL+3}], 0 offen sc1")
        X.I("s_waitcnt vmcnt(0)")
        X.I("v_cmp_eq_u32 vcc, v5, v6")
        X.I("s_add_u32 s39, s39, 1")
        X.I("s_cmp_eq_u64 vcc, -1")
        X.I(f"s_cbranch_scc1 {L}fld")
        X.I("s_sleep 2")
        X.I("s_cmp_lt_u32 s39, 0x100000")
        X.I(f"s_cbranch_scc1 {L}fl")
        X.label(f"{L}fld")
        if LDF == "":
            X.raw("    buffer_inv sc1")
            X.I("s_waitcnt vmcnt(0)")
        cnt_add(X, 4, 5, RC)
        X.label(f"{L}pw")
        cnt_wait(X, f"{L}pwl", 4, 5, RC, 1)
        X.vm = []
        stamp()
        def stage(s): return STG + (s % D) * 36
        def issue(s):
            b = stage(s)
            Lx = []
            for n in range(4):
                Lx.append([(f"buffer_load_dwordx4 {vr(b+4*n,4)}, v{VO+n}, s[{SA}:{SA+3}], s63 offen offset:{(s%4)*1024}{LDF}", f"st{s}")])
            for n in range(5):
                Lx.append([(f"buffer_load_dwordx4 {vr(b+16+4*n,4)}, v{VO+4+n}, s[{SB0}:{SB0+3}], s63 offen offset:{(s%4)*1024}{LDF}", f"st{s}")])
            if s % 4 == 3: Lx[-1].append(("s_add_u32 s63, s63, 4096", None))
            return Lx
        for s in range(D - 1): emit(X, issue(s))
        if isG:
            mk_srd(X, SAGB, 30, 31, 16384, None, STATS_OFF)
            X.I("s_lshl_b32 s38, s65, 2")
            X.I("v_lshrrev_b32 v4, 2, v3")
            X.I("v_lshl_add_u32 v4, v4, 2, v3")
            X.I("v_lshlrev_b32 v4, 2, v4")
            X.I("v_add_u32 v5, 8192, v4")
            X.I(f"buffer_load_dword v{EV}, v4, s[{SAGB}:{SAGB+3}], s38 offen sc1", tag="ep")
            X.I(f"buffer_load_dword v{EV+1}, v5, s[{SAGB}:{SAGB+3}], s38 offen sc1", tag="ep")
        DB = 0 if isG else 61440
        X.I(f"s_mul_i32 s62, s35, {PRIV}")
        if DB: X.I(f"s_add_u32 s62, s62, {DB}")
        DW = EV + 2
        X.I(f"v_add_u32 v{DW}, s62, v2")
        for s in range(NS):
            X.wait_vm(f"st{s}")
            b = stage(s)
            side = issue(s + D - 1) if s + D - 1 < NS else []
            mm = []
            order = [1, 2, 3, 0] if s == NS - 1 else range(4)
            for n in order:
                for dt in range(5):
                    ac = vr(ACC + (n * 5 + dt) * 4, 4)
                    mm.append(f"v_mfma_f32_16x16x32_bf16 {ac}, {vr(b+16+4*dt,4)}, {vr(b+4*n,4)}, {'0' if s == 0 else ac}")
            if s == NS - 1:
                cnt_wait(X, f"{L}w1", 4, 5, CNT_L + 36, 8)
                for k, m in enumerate(mm):
                    X.I(m)
                    j = k - 7
                    if 0 <= j < 15: X.I(f"ds_write_b128 v{DW}, {vr(ACC+20+4*j,4)} offset:{1024*j}")
                for j in (13, 14): X.I(f"ds_write_b128 v{DW}, {vr(ACC+20+4*j,4)} offset:{1024*j}")
            else:
                merge(X, mm, side, 0.9)
        stamp()
        cnt_add(X, 4, 5, CNT_L + (48 if isG else 56))
        for k in range(1, 4):
            X.I(f"s_add_u32 s36, s35, {k}")
            X.I("s_and_b32 s36, s36, 3")
            X.I(f"s_mul_i32 s36, s36, {PRIV}")
            X.I(f"s_add_u32 s36, s36, {DB + (3 - k) * 5120}")
            X.I(f"v_add_u32 v{6+k}, s36, v2")
        cnt_wait(X, f"{L}w2", 4, 5, CNT_L + (48 if isG else 56), 4)
        RD = STG
        for dt in range(5):
            for k in range(3):
                X.I(f"ds_read_b128 {vr(RD+(dt*3+k)*4,4)}, v{7+k} offset:{1024*dt}", tag=f"p{dt}")
        if isG:
            T = ACC + 20; BS = ACC + 40; DS_ = ACC + 60
            X.I("v_lshlrev_b32 v10, 3, v1")
            X.I("v_add_u32 v10, s67, v10")
            X.I("v_mul_u32_u24 v11, 160, v3")
            X.I("v_add_u32 v11, v11, v10")
            for dt in range(5):
                X.I(f"ds_read_b64 {vr(T+4*dt+2,2)}, v10 offset:{3072+32*dt}", tag="e")
                X.I(f"ds_read_b64 {vr(DS_+4*dt+2,2)}, v10 offset:{3328+32*dt}", tag="e")
                X.I(f"ds_read_b64 {vr(BS+4*dt+2,2)}, v11 offset:{32*dt}", tag="e")
        for dt in range(5):
            X.wait_lg(f"p{dt}")
            a = ACC + 4 * dt; r0 = RD + dt * 12
            for r in range(4): X.I(f"v_add_f32 v{a+r}, v{a+r}, v{r0+r}")
            for r in range(4): X.I(f"v_add_f32 v{r0+4+r}, v{r0+4+r}, v{r0+8+r}")
            for r in range(4): X.I(f"v_add_f32 v{a+r}, v{a+r}, v{r0+4+r}")
        if isG:
            X.wait_lg()
            cnt_add(X, 4, 5, CNT_L + 52)
            X.I("s_mov_b32 s36, 0xffff0000")
            X.I(f"s_mov_b32 s37, {NEG_LOG2E}")
            for q in [T + 4 * dt for dt in range(5)] + [BS + 4 * dt for dt in range(5)] + [DS_ + 4 * dt for dt in range(5)]:
                X.I(f"v_lshlrev_b32 v{q}, 16, v{q+2}")
                X.I(f"v_and_b32 v{q+1}, s36, v{q+2}")
                X.I(f"v_lshlrev_b32 v{q+2}, 16, v{q+3}")
                X.I(f"v_and_b32 v{q+3}, s36, v{q+3}")
            for e in range(20): X.I(f"v_add_f32 v{ACC+e}, v{ACC+e}, v{T+e}")
            for e in range(20): X.I(f"v_mul_f32 v{T+e}, s37, v{ACC+e}")
            for e in range(20): X.I(f"v_exp_f32 v{T+e}, v{T+e}")
            for e in range(20): X.I(f"v_add_f32 v{T+e}, 1.0, v{T+e}")
            for e in range(20): X.I(f"v_rcp_f32 v{T+e}, v{T+e}")
            for e in range(20): X.I(f"v_mul_f32 v{ACC+e}, v{ACC+e}, v{T+e}")
            for e in range(20): X.I(f"v_fma_f32 v{T+e}, v{BS+e}, v{EV+1}, -v{EV}")
            for e in range(20): X.I(f"v_mul_f32 v{DS_+e}, v{DS_+e}, v{ACC+e}")
            for e in range(20): X.I(f"v_fmac_f32 v{BS+e}, v{T+e}, v{DS_+e}")
            cnt_wait(X, f"{L}w3", 4, 5, CNT_L + 52, 4)
            for dt in range(5):
                X.I(f"ds_write_b128 v{DW}, {vr(ACC+4*dt,4)} offset:{1024*dt}")
                X.I(f"ds_write_b128 v{DW}, {vr(BS+4*dt,4)} offset:{5120+1024*dt}")
            X.I("s_lshl_b32 s38, s35, 2")
            X.I(f"s_add_u32 s38, s38, {CNT_L+64}")
            cnt_add(X, 4, 5, "s38")
            X.wait_lg()
        else:
            SO = 48
            mk_srd(X, SO, 10, 11, 5242880)
            X.I("v_lshrrev_b32 v4, 2, v3")
            X.I("v_lshl_add_u32 v4, v4, 2, v3")
            X.I("v_add_u32 v4, s65, v4")
            X.I("v_mul_u32_u24 v10, 2560, v4")
            X.I("v_lshl_add_u32 v10, v1, 4, v10")
            X.I("s_lshl_b32 s66, s66, 1")
            X.I("s_mul_i32 s36, s35, 15360")
            X.I("v_add_u32 v11, s36, v2")
            X.I("s_lshl_b32 s38, s35, 2")
            X.I(f"s_add_u32 s38, s38, {CNT_L+64}")
            cnt_wait(X, f"{L}w3", 4, 5, "s38", 1)
            GQ = ACC + 20; BQ = ACC + 40
            for dt in range(5):
                X.I(f"ds_read_b128 {vr(GQ+4*dt,4)}, v11 offset:{1024*dt}", tag=f"g{dt}")
                X.I(f"ds_read_b128 {vr(BQ+4*dt,4)}, v11 offset:{5120+1024*dt}", tag=f"g{dt}")
            for dt in range(5):
                X.wait_lg(f"g{dt}")
                for r in range(4): X.I(f"v_fmac_f32 v{BQ+4*dt+r}, v{ACC+4*dt+r}, v{GQ+4*dt+r}")
                X.I(f"buffer_store_dwordx4 {vr(BQ+4*dt,4)}, v10, s[{SO}:{SO+3}], s66 offen offset:{64*dt}{os.environ.get('STF2','')}")
    def adv():
        return [("s_add_u32 s26, s26, 1", None), ("s_cmp_eq_u32 s26, 10", None), ("s_cselect_b32 s26, 0, s26", None)]

    S = Stream(A)
    stamp, st = mkstamp(S)
    ACC = 16
    BUF = 56
    CA, CSB, CCO, CCX, CAS, CSBS = 168, 173, 178, 183, 188, 193
    A8, SB8, A128, SB128 = 198, 200, 202, 204
    SUM, SQ, ONE = 206, 214, 222
    MRV, RV = 226, 234
    DV = 246
    vG_, vC_, vSg = 1, 2, 3
    SX, SBBS = 40, 44
    if "early" in dbg: stamp()
    S.I(f"s_mul_i32 s36, s32, {128*1280}")
    mk_srd(S, SX, 4, 5, 128 * 1280, 36)
    S.I("v_lshrrev_b32 v4, 3, v0")
    S.I("v_and_b32 v5, 7, v0")
    S.I("v_and_b32 v6, 2, v4")
    S.I("v_lshrrev_b32 v7, 2, v4")
    S.I("v_or_b32 v6, v6, v7")
    S.I("v_xor_b32 v6, v6, v5")
    S.I("s_mul_i32 s36, s35, 40960")
    S.I("v_mul_u32_u24 v7, 1280, v4")
    S.I("v_add_u32 v8, s36, v7")
    for e in range(4):
        S.I(f"v_xor_b32 v9, {4 if e >= 2 else 0}, v6")
        S.I(f"v_lshl_add_u32 v{DV+e}, v9, 4, v8")
        if e: S.I(f"v_add_u32 v{DV+e}, {10240*e}, v{DV+e}")
    S.I("v_xor_b32 v9, v4, v5")
    S.I(f"v_lshl_add_u32 v{DV+4}, v9, 4, v7")
    S.I("s_lshl_b32 s37, s35, 12")
    S.I("s_mov_b32 s36, s35")
    bb_srd(S, SBBS, 27)
    def s_dma(p):
        q = p % 4
        L = []
        for e in range(4):
            g = [(f"s_add_u32 m0, s37, {q*SLOT + 1024*e}", None), (f"buffer_load_dwordx4 v{DV+e}, s[{SX}:{SX+3}], s38 offen lds", f"c{p}")]
            if e == 0: g = [("s_lshl_b32 s38, s26, 7", None)] + g
            L.append(g)
        L.append([(f"s_add_u32 m0, s27, {q*SLOT}", None), (f"buffer_load_dwordx4 v{DV+4}, s[{SBBS}:{SBBS+3}], s38 offen lds", f"c{p}")] + adv())
        return L
    S.I(f"v_lshrrev_b32 v{vG_}, 4, v0")
    S.I(f"v_and_b32 v{vC_}, 15, v0")
    if "early" in dbg: stamp()
    emit(S, s_dma(0))
    if "early" in dbg: stamp()
    def pslots(t):
        return (CCO + t, CCX + t, CAS + t) if t < 5 else (A128, SB128, A128 + 1)
    def par_issue():
        S.I("v_and_b32 v11, 7, v0")
        S.I("v_lshlrev_b32 v11, 1, v11")
        S.I(f"v_add_u32 v11, {PAR_L}, v11")
        S.I(f"v_lshlrev_b32 v12, 4, v{vG_}")
        S.I("v_add_u32 v12, v11, v12")
        for t in range(6):
            vo = "v11" if t < 5 else "v12"
            off = 16 * t if t < 5 else 0
            lre, lim, ldt = pslots(t)
            S.I(f"ds_read_u16 v{lre}, {vo} offset:{off}")
            S.I(f"ds_read_u16 v{lim}, {vo} offset:{off+128}")
            S.I(f"ds_read_u16 v{ldt}, {vo} offset:{off+256}")
    SJA, SJB, SWS = 56, 60, 64
    TT = BUF + 48
    S.I(f"v_lshrrev_b32 v{TT}, 2, v{vC_}")
    S.I(f"v_and_b32 v{TT+1}, 3, v{vC_}")
    S.I(f"v_lshlrev_b32 v{TT+2}, 3, v{TT}")
    S.I(f"v_add_u32 v{TT+2}, v{TT+2}, v{TT+1}")
    S.I("s_lshl_b32 s36, s35, 5")
    S.I(f"v_add_u32 v{TT+2}, s36, v{TT+2}")
    S.I(f"v_lshlrev_b32 v{TT+2}, 7, v{TT+2}")
    S.I(f"v_lshrrev_b32 v{TT+3}, 1, v{TT}")
    S.I(f"v_lshlrev_b32 v{TT+3}, 2, v{TT+3}")
    S.I(f"v_and_b32 v{TT+4}, 2, v{TT+1}")
    S.I(f"v_or_b32 v{TT+3}, v{TT+3}, v{TT+4}")
    S.I(f"v_xor_b32 v{TT+3}, v{TT+3}, v{vG_}")
    for T in range(2):
        for sp in range(2):
            d = 4 + 2 * T + sp
            S.I(f"v_xor_b32 v{TT+4}, {(4*sp) ^ T}, v{TT+3}")
            S.I(f"v_lshl_add_u32 v{d}, v{TT+4}, 4, v{TT+2}")
            if T: S.I(f"v_add_u32 v{d}, 512, v{d}")
    S.I(f"v_and_b32 v{TT}, 7, v{vC_}")
    S.I(f"v_xor_b32 v{TT}, v{TT}, v{vG_}")
    S.I(f"v_lshlrev_b32 v{TT+1}, 7, v{vC_}")
    for sp in range(2):
        S.I(f"v_xor_b32 v{TT+2}, {4*sp}, v{TT}")
        S.I(f"v_lshl_add_u32 v{8+sp}, v{TT+2}, 4, v{TT+1}")
        S.I(f"v_add_u32 v{8+sp}, {BB_O}, v{8+sp}")
    for k in range(4): S.I(f"v_mov_b32 v{ONE+k}, 0x3f803f80")
    S.I(f"v_mul_u32_u24 v10, 80, v{vG_}")
    S.I(f"v_lshrrev_b32 v{vSg}, 3, v{vC_}")
    S.I(f"v_cvt_f32_u32 v{vSg}, v{vSg}")
    S.I(f"v_fma_f32 v{vSg}, v{vSg}, 2.0, -1.0")
    S.I(f"s_mov_b32 s20, {LOG2E}")
    S.I(f"s_mov_b32 s21, {INV2PI}")
    def powr(ar, rev, n, da, dsb, t0):
        L = []
        if n is None:
            L.append(f"v_exp_f32 v{t0}, v{ar}")
            L.append(f"v_fract_f32 v{t0+1}, v{rev}")
        else:
            L.append(f"v_mul_f32 v{t0}, {n}, v{ar}")
            L.append(f"v_mul_f32 v{t0+1}, {n}, v{rev}")
            L.append(f"v_exp_f32 v{t0}, v{t0}")
            L.append(f"v_fract_f32 v{t0+1}, v{t0+1}")
        L.append(f"v_cos_f32 v{t0+2}, v{t0+1}")
        L.append(f"v_sin_f32 v{t0+3}, v{t0+1}")
        L.append(f"v_mul_f32 v{t0+3}, v{t0}, v{t0+3}")
        L.append(f"v_mul_f32 v{da}, v{t0}, v{t0+2}")
        L.append(f"v_mul_f32 v{dsb}, v{t0+3}, v{vSg}")
        return L
    def arrev(t):
        return (CAS + t, CSBS + t) if t < 5 else (A128, SB128)
    partA = ["s_lshl_b32 s36, s35, 2", f"v_add_u32 v245, s36, v{vG_}", "v_lshlrev_b32 v245, 3, v245", "v_cvt_f32_u32 v245, v245"]
    for t in range(6):
        lre, lim, ldt = pslots(t)
        ar, rev = 242, 243
        partA += [f"v_lshlrev_b32 v{lre}, 16, v{lre}", f"v_lshlrev_b32 v{lim}, 16, v{lim}", f"v_lshlrev_b32 v11, 16, v{ldt}",
                  "v_mul_f32 v11, s20, v11", "v_exp_f32 v11, v11", "v_cvt_pk_bf16_f32 v11, 0, v11",
                  f"v_mul_f32 v12, v11, v{lre}", f"v_mul_f32 v13, v11, v{lim}",
                  f"v_mul_f32 v{ar}, s20, v12", f"v_mul_f32 v{rev}, s21, v13"]
        if t < 5:
            partA += powr(ar, rev, None, CA + t, CSB + t, 11)
            partA += [f"v_add_f32 v11, -1.0, v{CA+t}", f"v_mul_f32 v12, v{lre}, v{lre}", f"v_fmac_f32 v12, v{lim}, v{lim}",
                      "v_rcp_f32 v12, v12", f"v_mul_f32 v13, v11, v{lre}", f"v_fmac_f32 v13, v14, v{lim}",
                      f"v_mul_f32 v244, v14, v{lre}", f"v_fma_f32 v244, -v11, v{lim}, v244", "v_mul_f32 v12, -2.0, v12",
                      f"v_mul_f32 v{CCX+t}, v244, v12", "v_mul_f32 v13, v13, v12", f"v_mul_f32 v{CCO+t}, v13, v{vSg}"]
            partA += powr(ar, rev, "v245", CAS + t, CSBS + t, 11)
        if t >= 4:
            k = 1 if t == 4 else 0
            partA += powr(ar, rev, f"{f2u(8.0)}", A8 + k, SB8 + k, 11)
            partA += powr(ar, rev, f"{f2u(128.0)}", 254 if t == 4 else A128, 255 if t == 4 else SB128, 11)
    partA += [f"v_mov_b32 v{A128+1}, v254", f"v_mov_b32 v{SB128+1}, v255"]
    SAG, SST = 48, 52
    S.I(f"s_mul_i32 s36, s33, {AGG_G}")
    mk_srd(S, SAG, 30, 31, AGG_G, 36, AGG_OFF)
    emit(S, s_dma(1))
    S.raw(";;DRYPT")
    stamp()
    def s_reads(p):
        b = BUF + (p & 1) * 56
        L = []
        for sp in range(2):
            for T in range(2):
                L.append([(f"ds_read_b128 {vr(b+(sp*2+T)*4,4)}, v{4+2*T+sp}", f"r{p}")])
            for j in range(5):
                L.append([(f"ds_read_b128 {vr(b+16+(sp*5+j)*4,4)}, v{8+sp} offset:{2048*j}", f"r{p}")])
        delta = SLOT if p % 4 != 3 else (-3 * SLOT) & 0xffffffff
        L.append([(f"v_add_u32 v{k}, {delta}, v{k}", None) for k in range(4, 10)])
        return L
    def s_stat(p):
        b = BUF + (p & 1) * 56
        L = []
        for sp in range(2):
            for T in range(2):
                x = vr(b + (sp * 2 + T) * 4, 4)
                z = (p == 0 and sp == 0)
                L.append(f"v_mfma_f32_16x16x32_bf16 {vr(SUM+4*T,4)}, {x}, {vr(ONE,4)}, {'0' if z else vr(SUM+4*T,4)}")
                L.append(f"v_mfma_f32_16x16x32_bf16 {vr(SQ+4*T,4)}, {x}, {x}, {'0' if z else vr(SQ+4*T,4)}")
        return L
    def s_mfma(p):
        b = BUF + (p & 1) * 56
        L = []
        for sp in range(2):
            for j in range(5):
                for T in range(2):
                    ac = ACC + 8 * j + 4 * T
                    c = "0" if (p == 0 and sp == 0) else vr(ac, 4)
                    L.append(f"v_mfma_f32_16x16x32_bf16 {vr(ac,4)}, {vr(b+(sp*2+T)*4,4)}, {vr(b+16+(sp*5+j)*4,4)}, {c}")
        return L
    for p in range(10):
        S.wait_vm(f"c{p}")
        S.I("s_barrier")
        stamp(True)
        if p in (0, 9): stamp()
        side = s_dma(p + 3) if p + 3 <= 9 else []
        if p == 0: side = s_dma(2)
        if p == 1: side = s_dma(3) + side
        rd = s_reads(p)
        if p == 2:
            par_issue()
        fill = []
        if 3 <= p <= 8:
            nper = (len(partA) + 5) // 6
            fill = [[(m, None)] for m in partA[(p - 3) * nper:(p - 2) * nper]]
        if p == 9:
            fill += [[("s_lshl_b32 s36, s32, 7", None), (f"s_add_u32 s36, s36, {GO_O}", None), ("v_mov_b32 v15, s36", None),
                      (f"buffer_load_dword v15, v15, s[{SAG}:{SAG+3}], 0 offen sc1", "clr")]]
        if "dmaonly" in dbg: emit(S, side)
        elif p == 0: emit(S, rd + side + fill)
        else: merge(S, s_stat(p - 1) + s_mfma(p - 1), mix(mix(rd, side), fill), 0.9)
        S.wait_lg()
    S.raw(";;DRYSTART")
    if "fine" in dbg: stamp()
    for m in s_stat(9): S.I(m)
    mm = s_mfma(9)
    CSV = BUF + 16
    S.I(f"v_lshlrev_b32 v12, 2, v{vC_}")
    for m in mm[:5]: S.I(m)
    for T in range(2):
        for r in range(4):
            S.I(f"ds_bpermute_b32 v{SQ+4*T+r}, v10, v{SQ+4*T+r} offset:{4*r}", tag="bp")
    for m in mm[5:9]: S.I(m)
    S.wait_lg("bp")
    if "fine" in dbg: stamp()
    fin = []
    K640 = f2u(1.0 / 640)
    for step in range(12):
        for k in range(8):
            su, sq = SUM + k, SQ + k
            fin.append([
                f"v_mul_f32 v{su}, {K640}, v{su}",
                f"v_mul_f32 v{sq}, {K640}, v{sq}",
                f"v_fma_f32 v{sq}, -v{su}, v{su}, v{sq}",
                f"v_max_f32 v{sq}, 0, v{sq}",
                f"v_cvt_pk_bf16_f32 v{su}, 0, v{su}",
                f"v_cvt_pk_bf16_f32 v{sq}, 0, v{sq}",
                f"v_add_f32 v{sq}, {f2u(1e-5)}, v{sq}",
                f"v_cvt_pk_bf16_f32 v{sq}, 0, v{sq}",
                f"v_sqrt_f32 v{sq}, v{sq}",
                f"v_cvt_pk_bf16_f32 v{sq}, 0, v{sq}",
                f"v_rcp_f32 v{RV+k}, v{sq}",
                f"v_mul_f32 v{MRV+k}, v{su}, v{RV+k}"][step])
    adds = ["s_lshl_b32 s36, s35, 7", f"v_lshlrev_b32 v13, 5, v{vG_}", "v_add_u32 v13, s36, v13", f"v_add_u32 v14, {STATS_L}, v13",
             "s_mul_i32 s36, s35, 1280", f"v_mul_u32_u24 v6, 320, v{vG_}", "v_add3_u32 v6, v6, v12, s36", f"v_add_u32 v7, {SEG_L}, v6",
             "v_lshlrev_b32 v8, 2, v0", f"v_add_u32 v9, {SEG_L}, v8", "v_mov_b32 v10, v12", f"v_add_u32 v11, {SEG_L+256}, v10",
             "s_lshl_b32 s38, s35, 2", f"s_add_u32 s38, s38, {CNT_L+16}", f"v_add_u32 v13, {CSB_L}, v12"]
    fin = fin[:40] + adds + fin[40:]
    merge(S, mm[9:], [[(m, None)] for m in fin], 1.0)
    stamp()
    cnt_wait(S, f"L_{name}_e0", 4, 5, CNT_L + 4, 4)
    if "noprio" not in dbg: S.I("s_setprio 3")
    if "f2" in dbg: stamp()
    for wv in range(4):
        for j in range(5):
            S.I(f"ds_read_b32 v{CSV+5*wv+j}, v13 offset:{320*wv+64*j}", tag="stt")
    S.I("s_mov_b32 exec_lo, 0x00010001")
    S.I("s_mov_b32 exec_hi, 0x00010001")
    for k in range(2):
        S.I(f"ds_write_b128 v14, {vr(MRV+4*k,4)} offset:{16*k}")
        S.I(f"ds_write_b128 v14, {vr(RV+4*k,4)} offset:{512+16*k}")
    cnt_add(S, 4, 5, "s38")
    for t2 in range(4):
        for j in range(5):
            a = ACC + 8 * j + 2 * t2
            S.I(f"v_mul_f32 v{a}, v{a}, v{RV+2*t2}")
            S.I(f"v_mul_f32 v{a+1}, v{a+1}, v{RV+2*t2+1}")
    S.wait_lg("stt")
    if "f2" in dbg: stamp()
    for j in range(5):
        S.I(f"v_add_f32 v{CSV+j}, v{CSV+j}, v{CSV+5+j}")
        S.I(f"v_add_f32 v{CSV+10+j}, v{CSV+10+j}, v{CSV+15+j}")
    for j in range(5):
        S.I(f"v_add_f32 v{CSV+j}, v{CSV+j}, v{CSV+10+j}")
    EA, EB = BUF + 40, BUF + 45
    cur = None
    for tl in range(8):
        for j in range(5):
            a = ACC + 8 * j + tl
            S.I(f"v_fma_f32 v{a}, -v{MRV+tl}, v{CSV+j}, v{a}")
        if tl == 0:
            cur = [ACC + 8 * j for j in range(5)]
        else:
            dst = EA if tl & 1 else EB
            for j in range(5):
                S.I(f"v_fma_f32 v{dst+j}, v{CA+j}, v{cur[j]}, v{ACC+8*j+tl}")
            for j in range(5):
                S.I(f"v_fmac_f32_dpp v{dst+j}, v{cur[j]}, v{CSB+j} {DPP}")
            cur = [dst + j for j in range(5)]
    if "f2" in dbg: stamp()
    for j in range(5):
        S.I(f"ds_write_b32 v7, v{cur[j]} offset:{64*j}")
    cnt_add(S, 4, 5, CNT_L)
    S.I("s_waitcnt vmcnt(0)")
    S.vm = []
    if "f2" in dbg: stamp()
    cnt_wait(S, f"L_{name}_x1", 4, 5, CNT_L, 4)
    stamp()
    EC = BUF + 56
    for s_ in range(16):
        S.I(f"ds_read_b32 v{EC+s_}, v9 offset:{320*s_}", tag=f"e{s_}")
        S.I(f"ds_read_b32 v{EC+16+s_}, v11 offset:{320*s_}", tag=f"e{s_}")
    S.I("v_lshlrev_b32 v4, 3, v0")
    S.I(f"v_lshlrev_b32 v5, 3, v{vC_}")
    PB = BUF + 90
    S.I(f"v_mov_b32 v{PB+1}, {TAG}")
    S.I(f"v_mov_b32 v{PB+3}, {TAG}")
    S.I("s_add_u32 s37, s32, 15")
    S.I("s_mul_i32 s37, s37, 640")
    for s_ in range(1, 16):
        S.wait_lg(f"e{s_}")
        for k in range(2):
            S.I(f"v_fmac_f32 v{EC+16*k+s_}, v{A8+k}, v{EC+16*k+s_-1}")
        for k in range(2):
            S.I(f"v_fmac_f32_dpp v{EC+16*k+s_}, v{EC+16*k+s_-1}, v{SB8+k} {DPP}")
    S.I("s_cmp_lg_u32 s35, 0")
    S.I(f"s_cbranch_scc1 L_{name}_nopub")
    S.I(f"v_mov_b32 v{PB}, v{EC+15}")
    S.I(f"v_mov_b32 v{PB+2}, v{EC+31}")
    S.I(f"buffer_store_dwordx2 {vr(PB,2)}, v4, s[{SAG}:{SAG+3}], s37 offen sc1")
    S.vm.pop()
    S.I(f"buffer_store_dwordx2 {vr(PB+2,2)}, v5, s[{SAG}:{SAG+3}], s37 offen offset:512 sc1")
    S.vm.pop()
    S.label(f"L_{name}_nopub")
    S.I("v_mov_b32 v254, v15")
    stamp()
    GL = BUF
    G0, G1 = 206, 221
    QV = BUF + 96
    S.I("v_lshlrev_b32 v252, 4, v0")
    S.I("s_mul_i32 s70, s32, 640")
    S.I("s_add_u32 s71, s70, 4096")
    S.I("s_add_u32 s69, s70, 8192")
    def gran_issue():
        for n in range(10):
            so = "s70" if n < 4 else ("s71" if n < 8 else "s69")
            S.I(f"buffer_load_dwordx4 {vr(GL+4*n,4)}, v252, s[{SAG}:{SAG+3}], {so} offen offset:{(n%4)*1024} sc1")
        S.vm = []
    def qstuff():
        S.I(f"v_add_u32 v9, {Q_L}, v8")
        S.I(f"v_add_u32 v11, {Q_L+256}, v10")
        S.I(f"v_mov_b32 v{PB}, 0")
        S.I(f"ds_write_b32 v9, v{PB}", tag="q")
        for s_ in range(15):
            S.I(f"ds_write_b32 v9, v{EC+s_} offset:{320*(s_+1)}", tag="q")
        S.I("s_mov_b64 exec, 0xffff")
        S.I(f"ds_write_b32 v11, v{PB}", tag="q")
        for s_ in range(15):
            S.I(f"ds_write_b32 v11, v{EC+16+s_} offset:{320*(s_+1)}", tag="q")
        S.I("s_mov_b64 exec, -1")
        S.I(f"v_add_u32 v7, {Q_L}, v6")
        for j in range(5):
            S.I(f"ds_read_b32 v{QV+j}, v7 offset:{64*j}", tag="qv")
    qstuff()
    S.I(f"v_add_u32 v9, {HS_L}, v8")
    S.I(f"v_add_u32 v11, {HS_L}, v10")
    S.I("s_cmp_lg_u32 s35, 0")
    S.I(f"s_cbranch_scc1 L_{name}_hw")
    S.I("s_cmp_eq_u32 s32, 0")
    S.I(f"s_cbranch_scc1 L_{name}_r0")
    S.I("s_mov_b32 s39, 0")
    S.I("s_lshl_b32 s38, s32, 7")
    S.I(f"s_add_u32 s38, s38, {GO_O}")
    S.I("v_mov_b32 v14, s38")
    S.label(f"L_{name}_cl")
    S.I("v_readfirstlane_b32 s38, v15")
    S.I("s_add_u32 s39, s39, 1")
    S.I(f"s_cmp_eq_u32 s38, {TAG}")
    S.I(f"s_cbranch_scc1 L_{name}_clok")
    S.I(f"buffer_load_dword v15, v14, s[{SAG}:{SAG+3}], 0 offen sc1")
    S.I("s_waitcnt vmcnt(0)")
    S.I("s_cmp_lt_u32 s39, 0x100000" if "nosync" not in dbg else "s_cmp_lt_u32 s39, 0")
    S.I(f"s_cbranch_scc1 L_{name}_cl")
    S.label(f"L_{name}_clok")
    S.I("v_mov_b32 v254, v15")
    gran_issue()
    cnt_wait(S, f"L_{name}_m9", 12, 13, CNT_L + 8, 4)
    S.I(f"v_mov_b32 v14, {TAG}")
    S.I(f"v_add_u32 v4, {GR_L}, v4")
    S.I(f"v_add_u32 v5, {GR_L}, v5")
    S.I(f"v_add_u32 v253, {GR_L}, v252")
    S.I("v_cmp_gt_u32 s[22:23], 24, v0")
    S.I("s_sub_u32 s38, 15, s32")
    S.I("s_mul_i32 s38, s38, 640")
    S.I("s_lshr_b32 s38, s38, 10")
    S.I("s_mov_b32 s39, 0")
    S.label(f"L_{name}_gp")
    S.I("s_waitcnt vmcnt(0)")
    S.I(f"v_cndmask_b32 v{GL+37}, v14, v{GL+37}, s[22:23]")
    S.I(f"v_cndmask_b32 v{GL+39}, v14, v{GL+39}, s[22:23]")
    S.I(f"v_and_b32 v12, v{GL+1}, v{GL+3}")
    S.I(f"v_or_b32 v13, v{GL+1}, v{GL+3}")
    for n in range(1, 10):
        S.I(f"v_and_b32 v15, v{GL+4*n+1}, v{GL+4*n+3}")
        S.I(f"v_or3_b32 v13, v13, v{GL+4*n+1}, v{GL+4*n+3}")
        S.I("v_and_b32 v12, v12, v15")
    S.I("v_cmp_eq_u32 vcc, v12, v14")
    S.I("v_cmp_eq_u32 s[24:25], v13, v14")
    S.I("s_and_b64 s[24:25], s[24:25], vcc")
    S.I("s_add_u32 s39, s39, 1")
    S.I("s_cmp_eq_u64 s[24:25], -1")
    S.I(f"s_cbranch_scc1 L_{name}_gpv")
    S.I("s_cmp_ge_u32 s39, 0x40000" if "nosync" not in dbg else "s_cmp_ge_u32 s39, 0")
    S.I(f"s_cbranch_scc1 L_{name}_gpv")
    for n in range(10):
        so = "s70" if n < 4 else ("s71" if n < 8 else "s69")
        if n < 9:
            S.I(f"s_cmp_gt_u32 s38, {n}")
            S.I(f"s_cbranch_scc1 L_{name}_gs{n}")
        S.I(f"buffer_load_dwordx4 {vr(GL+4*n,4)}, v252, s[{SAG}:{SAG+3}], {so} offen offset:{(n%4)*1024} sc1")
        if n < 9: S.label(f"L_{name}_gs{n}")
    S.I(f"s_branch L_{name}_gp")
    S.label(f"L_{name}_gpv")
    for n in range(10):
        S.I(f"ds_write_b128 v253, {vr(GL+4*n,4)} offset:{1024*n}")
    for d in range(15, 0, -1):
        o = (15 - d) * 640
        S.I(f"ds_read_b32 v{G0+d-1}, v4 offset:{o}")
        S.I(f"ds_read_b32 v{G1+d-1}, v5 offset:{o+512}")
    S.I("s_waitcnt lgkmcnt(0)")
    S.label(f"L_{name}_gpok")
    S.lg = []; S.vm = []
    for d in range(14, 0, -1):
        for (g_, k) in ((G0, 0), (G1, 1)):
            S.I(f"v_fmac_f32 v{g_+d-1}, v{A128+k}, v{g_+d}")
        for (g_, k) in ((G0, 0), (G1, 1)):
            S.I(f"v_fmac_f32_dpp v{g_+d-1}, v{g_+d}, v{SB128+k} {DPP}")
    S.I(f"s_branch L_{name}_hp")
    S.label(f"L_{name}_r0")
    S.I(f"v_mov_b32 v{G0}, 0")
    S.I(f"v_mov_b32 v{G1}, 0")
    S.label(f"L_{name}_hp")
    S.I(f"ds_write_b32 v9, v{G0}", tag="h")
    S.I(f"ds_write_b32 v11, v{G1} offset:256", tag="h")
    cnt_add(S, 12, 13, CNT_L + 12)
    S.label(f"L_{name}_hw")
    cnt_wait(S, f"L_{name}_hwl", 12, 13, CNT_L + 12, 1)
    stamp()
    HV = BUF + 32
    for j in range(5):
        S.I(f"ds_read_b32 v{HV+j}, v11 offset:{64*j}", tag="hv")
    S.I(f"v_mul_u32_u24 v9, 272, v{vC_}")
    S.I(f"v_lshlrev_b32 v12, 4, v{vG_}")
    S.I("s_lshl_b32 s36, s35, 6")
    S.I("v_add3_u32 v9, v9, v12, s36")
    S.wait_lg()
    for j in range(5):
        S.I(f"v_fmac_f32 v{QV+j}, v{CAS+j}, v{HV+j}")
    for j in range(5):
        S.I(f"v_fmac_f32_dpp v{QV+j}, v{HV+j}, v{CSBS+j} {DPP}")
    for tl in range(8):
        prev = [QV + j if tl == 0 else ACC + 8 * j + tl - 1 for j in range(5)]
        for j in range(5):
            S.I(f"v_fmac_f32 v{ACC+8*j+tl}, v{CA+j}, v{prev[j]}")
        for j in range(5):
            S.I(f"v_fmac_f32_dpp v{ACC+8*j+tl}, v{prev[j]}, v{CSB+j} {DPP}")
    OV = BUF + 40
    PK = BUF + 80
    for j in range(5):
        p_, sel = pr(CCO + j)
        for t2 in range(4):
            S.I(f"v_pk_mul_f32 {vr(OV+8*j+2*t2,2)}, {vr(ACC+8*j+2*t2,2)}, {p_} op_sel:[0,{sel}] op_sel_hi:[1,{sel}]")
        for tl in range(8):
            S.I(f"v_fmac_f32_dpp v{OV+8*j+tl}, v{ACC+8*j+tl}, v{CCX+j} {DPP}")
        for k in range(4):
            S.I(f"v_cvt_pk_bf16_f32 v{PK+4*j+k}, v{OV+8*j+2*k}, v{OV+8*j+2*k+1}")
        S.I(f"ds_write_b128 v9, {vr(PK+4*j,4)} offset:{16*272*j}", tag="tw")
    S.I(f"v_lshrrev_b32 v11, 2, v{vC_}")
    S.I("v_mul_u32_u24 v11, 272, v11")
    S.I(f"v_and_b32 v4, 3, v{vC_}")
    S.I("v_lshlrev_b32 v4, 4, v4")
    S.I("v_add3_u32 v11, v11, v4, s36")
    S.I(f"v_mul_u32_u24 v4, {8*272}, v{vG_}")
    S.I("v_add_u32 v4, v11, v4")
    S.I(f"v_and_b32 v5, 1, v{vG_}")
    S.I(f"v_mul_u32_u24 v5, {8*272}, v5")
    S.I(f"v_lshrrev_b32 v7, 1, v{vG_}")
    S.I("v_lshlrev_b32 v7, 3, v7")
    S.I("v_add3_u32 v5, v11, v5, v7")
    SHF = 40
    S.I("s_lshl_b32 s36, s32, 2")
    S.I("s_add_u32 s36, s36, s35")
    S.I(f"s_mul_i32 s36, s36, {2*HF_RT}")
    S.I("s_mul_i32 s37, s33, 2560")
    S.I("s_add_u32 s36, s36, s37")
    mk_srd(S, SHF, 30, 31, HF_RT + 2560, 36, HF_OFF)
    S.I("v_lshlrev_b32 v7, 4, v0")
    S.I(f"v_and_b32 v10, 1, v{vG_}")
    S.I("v_lshlrev_b32 v10, 8, v10")
    S.I(f"v_lshlrev_b32 v8, 4, v{vC_}")
    S.I("v_add_u32 v10, v10, v8")
    S.I(f"v_lshrrev_b32 v8, 1, v{vG_}")
    S.I(f"v_mul_u32_u24 v8, {HF_RT}, v8")
    S.I("v_add_u32 v10, v10, v8")
    S.I(f"s_mov_b32 s37, {HF_RT}")
    S.wait_lg()
    RD = BUF
    for n in range(5):
        for e in range(2):
            if n < 4:
                off = (n & 1) * 32 * 272 + e * 4 * 272 + (n >> 1) * 8
                S.I(f"ds_read_b64_tr_b16 {vr(RD+4*n+2*e,2)}, v4 offset:{off}", tag=f"t{n}")
            else:
                S.I(f"ds_read_b64_tr_b16 {vr(RD+4*n+2*e,2)}, v5 offset:{64*272+e*4*272}", tag=f"t{n}")
    for n in range(5):
        S.wait_lg(f"t{n}")
        if n < 4:
            so = "0" if n < 2 else "s37"
            S.I(f"buffer_store_dwordx4 {vr(RD+4*n,4)}, v7, s[{SHF}:{SHF+3}], {so} offen offset:{(n&1)*1024}{STH}", tag="st")
        else:
            S.I(f"buffer_store_dwordx4 {vr(RD+4*n,4)}, v10, s[{SHF}:{SHF+3}], 0 offen offset:2048{STH}", tag="st")
    phaseB(S, "Y", stamp)
    final_stamps(S, st)
    S.I("s_endpgm")

    M = Stream(A)
    M.label(f"L_{name}_M")
    stamp, st = mkstamp(M)
    SBB, SW1, SB1, SH1, SDB, SAGM = 40, 48, 52, 56, 60, 64
    MACC, XB, WB, FR = 24, 72, 104, 200
    CBA, CBF, WA, MSK = FR, FR + 20, FR + 40, FR + 52
    lbl = [0]
    if "early" in dbg: stamp()
    M.I("s_cmp_lg_u32 s35, 3")
    M.I("s_cselect_b64 vcc, -1, 0")
    mk_srd(M, SW1, 20, 21, 1966080)
    M.I("s_mul_i32 s39, s33, 192")
    M.I("s_lshl_b32 s36, s35, 8")
    for e in range(4):
        M.I(f"v_add_u32 v22, {64*e}, v0")
        M.I("v_add_u32 v22, s36, v22")
        M.I("v_min_u32 v22, 767, v22")
        M.I("v_mul_u32_u24 v23, 43691, v22")
        M.I("v_lshrrev_b32 v23, 19, v23")
        M.I("v_mul_u32_u24 v9, 12, v23")
        M.I("v_sub_u32 v22, v22, v9")
        M.I("v_lshlrev_b32 v22, 4, v22")
        M.I("v_mul_u32_u24 v23, 3072, v23")
        M.I(f"v_add3_u32 v{1+e}, v22, v23, s39")
    M.I("s_lshl_b32 s68, s35, 12")
    M.I(f"s_add_u32 s68, s68, {W1_O}")
    M.I("s_lshl_b32 s36, s35, 1")
    M.I("s_add_u32 s36, s36, 4")
    M.I("s_min_u32 s36, s36, 8")
    bb_srd(M, SBB, 69)
    M.I("s_lshl_b32 s36, s35, 1")
    M.I("s_add_u32 s36, s36, 5")
    M.I("s_min_u32 s36, s36, 9")
    bb_srd(M, SBB + 4, 70)
    M.I("v_lshrrev_b32 v22, 3, v0")
    M.I("v_and_b32 v23, 7, v0")
    M.I("v_xor_b32 v13, v22, v23")
    M.I("v_mul_u32_u24 v5, 1280, v22")
    M.I("v_lshl_add_u32 v13, v13, 4, v5")
    def guard(g):
        lbl[0] += 1
        return [(f"s_cbranch_vccz L_{name}_g{lbl[0]}", None)] + g + [(f"L_{name}_g{lbl[0]}:", None)]
    def m_dma(p):
        q = p % 4
        L = []
        g = [("s_lshl_b32 s38, s26, 7", None)]
        for e in range(2):
            g += [(f"s_add_u32 m0, s{69+e}, {q*SLOT}", None), (f"buffer_load_dwordx4 v13, s[{SBB+4*e}:{SBB+4*e+3}], s38 offen lds", f"c{p}")]
        L.append(guard(g))
        for e2 in range(2):
            g = [("s_mul_i32 s71, s26, 196608", None)] if e2 == 0 else []
            for e in (2 * e2, 2 * e2 + 1):
                g += [(f"s_add_u32 m0, s68, {q*SLOT + 1024*e}", None), (f"buffer_load_dwordx4 v{1+e}, s[{SW1}:{SW1+3}], s71 offen lds", f"c{p}")]
            if e2 == 1: g += adv()
            L.append(guard(g))
        return L
    def m_wait(tag):
        lbl[0] += 1
        M.I(f"s_cbranch_vccz L_{name}_g{lbl[0]}")
        M.wait_vm(tag)
        M.label(f"L_{name}_g{lbl[0]}")
    M.vm = []
    if "early" in dbg: stamp()
    emit(M, m_dma(0))
    if "early" in dbg: stamp()
    mk_srd(M, SDB, 28, 29, 256)
    M.I(f"s_mul_i32 s36, s33, {AGG_G}")
    mk_srd(M, SAGM, 30, 31, AGG_G, 36, AGG_OFF)
    for k in range(2): M.I(f"v_mov_b32 v{14+k}, 0")
    for k in range(4): M.I(f"v_mov_b32 v{18+k}, 0x3f803f80")
    savevm = list(M.vm)
    M.I(f"s_cbranch_vccnz L_{name}_noclr")
    M.I("v_min_u32 v8, 19, v0")
    M.I("v_lshlrev_b32 v8, 2, v8")
    M.I("s_mul_i32 s36, s33, 80")
    M.I("v_add_u32 v8, s36, v8")
    M.I("global_load_dword v1, v8, s[6:7]")
    M.I("global_load_dword v2, v8, s[8:9]")
    M.I("global_load_dword v3, v8, s[18:19]")
    M.I("v_min_u32 v8, 47, v0")
    M.I("v_lshlrev_b32 v8, 2, v8")
    M.I("s_mul_i32 s36, s33, 192")
    M.I("v_add_u32 v8, s36, v8")
    M.I("global_load_dword v4, v8, s[22:23]")
    mk_srd(M, SB1, 30, 31, 8192, None, FL_OFF)
    M.I("s_lshl_b32 s36, s32, 7")
    M.I("s_lshl_b32 s39, s33, 2")
    M.I("s_add_u32 s36, s36, s39")
    M.I("v_and_b32 v8, 1, v0")
    M.I("v_lshlrev_b32 v8, 11, v8")
    M.I("v_add_u32 v8, s36, v8")
    M.I("s_and_b32 s36, s2, 7")
    M.I("s_lshr_b32 s39, s2, 3")
    M.I("s_and_b32 s26, s36, 3")
    M.I("s_lshl_b32 s26, s26, 3")
    M.I("s_and_b32 s27, s39, 7")
    M.I("s_add_u32 s26, s26, s27")
    M.I("s_lshr_b32 s27, s36, 2")
    M.I("s_lshl_b32 s27, s27, 2")
    M.I("s_lshr_b32 s39, s39, 3")
    M.I("s_add_u32 s27, s27, s39")
    M.I("s_lshl_b32 s36, s27, 7")
    M.I("s_lshl_b32 s39, s26, 2")
    M.I("s_add_u32 s36, s36, s39")
    M.I("s_add_u32 s36, s36, 4096")
    M.I("v_writelane_b32 v8, s36, 2")
    M.I("s_mov_b64 exec, 7")
    M.I(f"buffer_store_dword v14, v8, s[{SB1}:{SB1+3}], 0 offen sc1")
    M.I("s_mov_b64 exec, -1")
    M.I("v_lshlrev_b32 v8, 3, v0")
    M.I("v_and_b32 v10, 15, v0")
    M.I("v_lshlrev_b32 v10, 3, v10")
    M.I("s_add_u32 s37, s32, 15")
    M.I("s_mul_i32 s37, s37, 640")
    M.I(f"buffer_store_dwordx2 v[14:15], v8, s[{SAGM}:{SAGM+3}], s37 offen sc1")
    M.I(f"buffer_store_dwordx2 v[14:15], v10, s[{SAGM}:{SAGM+3}], s37 offen offset:512 sc1")
    M.I("s_lshl_b32 s37, s32, 7")
    M.I(f"s_add_u32 s37, s37, {GO_O}")
    M.I(f"buffer_store_dwordx2 v[14:15], v14, s[{SAGM}:{SAGM+3}], s37 offen sc1")
    M.I("s_cmp_lg_u32 s32, 0")
    M.I(f"s_cbranch_scc1 L_{name}_noclr")
    M.I("v_mov_b32 v10, 0")
    M.I(f"v_mov_b32 v11, {TAG}")
    M.I("s_mov_b32 s37, 0")
    for k in range(19):
        if k == 18:
            M.I("v_min_u32 v8, 376, v8")
        M.I(f"buffer_store_dwordx2 v[10:11], v8, s[{SAGM}:{SAGM+3}], s37 offen offset:{(k%8)*512} sc1")
        if k % 8 == 7: M.I("s_add_u32 s37, s37, 4096")
    M.label(f"L_{name}_noclr")
    M.vm = savevm
    stamp()
    M.I("v_and_b32 v22, 15, v0")
    M.I("v_bfe_u32 v23, v0, 4, 1")
    T1 = XB
    M.I(f"v_lshrrev_b32 v{T1}, 2, v22")
    M.I(f"v_and_b32 v{T1+1}, 3, v22")
    M.I(f"v_lshlrev_b32 v{T1+2}, 3, v{T1}")
    M.I(f"v_lshl_add_u32 v{T1+2}, v23, 2, v{T1+2}")
    M.I(f"v_add_u32 v{T1+2}, v{T1+2}, v{T1+1}")
    M.I("s_lshl_b32 s36, s35, 5")
    M.I(f"v_add_u32 v{T1+5}, s36, v{T1+2}")
    M.I(f"v_lshlrev_b32 v{T1+2}, 7, v{T1+5}")
    M.I(f"v_lshrrev_b32 v{T1+3}, 1, v{T1}")
    M.I(f"v_lshlrev_b32 v{T1+3}, 2, v{T1+3}")
    M.I(f"v_and_b32 v{T1+4}, 2, v{T1+1}")
    M.I(f"v_or3_b32 v{T1+3}, v{T1+3}, v{T1+4}, v23")
    M.I(f"v_lshrrev_b32 v{T1+4}, 5, v0")
    M.I(f"v_xor_b32 v{T1+3}, v{T1+3}, v{T1+4}")
    M.I(f"v_lshlrev_b32 v{T1+6}, 3, v{T1+4}")
    M.I(f"v_bfe_u32 v{T1+7}, v0, 2, 2")
    M.I(f"v_add_u32 v{T1+6}, v{T1+6}, v{T1+7}")
    M.I(f"v_mul_u32_u24 v{T1+6}, 192, v{T1+6}")
    M.I(f"v_lshl_add_u32 v{T1+6}, v23, 5, v{T1+6}")
    M.I(f"v_and_b32 v{T1+7}, 3, v0")
    M.I(f"v_lshl_add_u32 v{T1+6}, v{T1+7}, 3, v{T1+6}")
    M.I(f"v_add_u32 v{T1+6}, {W1_O}, v{T1+6}")
    M.I(f"v_xor_b32 v{T1+7}, v23, v0")
    M.I(f"v_and_b32 v{T1+7}, 1, v{T1+7}")
    M.I(f"v_add_u32 v{T1+7}, -1, v{T1+7}")
    M.I(f"v_and_b32 v{MSK}, 0x3f803f80, v{T1+7}")
    for k in range(1, 4): M.I(f"v_mov_b32 v{MSK+k}, v{MSK}")
    for u in range(4):
        M.I(f"v_xor_b32 v{T1+4}, {2*u}, v{T1+3}")
        M.I(f"v_lshl_add_u32 v{5+u}, v{T1+4}, 4, v{T1+2}")
    for j2 in range(3):
        M.I(f"s_add_u32 s36, s35, {j2}")
        M.I("s_sub_u32 s39, s36, 3")
        M.I("s_cmp_ge_u32 s36, 3")
        M.I(f"s_cselect_b32 s{4+j2}, s39, s36")
        M.I(f"s_lshl_b32 s39, s{4+j2}, 6")
        M.I(f"v_add_u32 v{9+j2}, s39, v{T1+6}")
    M.I(f"v_lshlrev_b32 v23, 3, v{T1+5}")
    mk_srd(M, SB1, 22, 23, 3072)
    M.I(f"v_lshrrev_b32 v{T1}, 4, v0")
    M.I("s_and_b32 s36, s35, 1")
    M.I("s_lshl_b32 s36, s36, 2")
    M.I(f"v_add_u32 v{T1}, s36, v{T1}")
    M.I(f"v_and_b32 v{T1+1}, 7, v0")
    M.I(f"v_xor_b32 v{T1}, v{T1}, v{T1+1}")
    M.I(f"v_lshlrev_b32 v{T1+1}, 7, v22")
    M.I(f"v_lshl_add_u32 v16, v{T1}, 4, v{T1+1}")
    M.I(f"v_add_u32 v16, {BB_O}, v16")
    M.I(f"v_lshlrev_b32 v{T1}, 3, v0")
    M.I(f"v_add_u32 v{T1}, {CSW_L}, v{T1}")
    M.I(f"ds_write_b64 v{T1}, v[14:15]")
    for k in range(20): M.I(f"v_mov_b32 v{CBA+k}, 0")
    M.I("s_lshr_b32 s37, s35, 1")
    emit(M, m_dma(1))
    M.raw(";;DRYPT")
    def m_reads(p):
        L = []
        for u in range(4):
            L.append([(f"ds_read_b128 {vr(XB+16*(p&1)+4*u,4)}, v{5+u}", f"r{p}")])
            for jt in range(3):
                L.append([(f"ds_read_b64_tr_b16 {vr(WB+48*(p&1)+12*u+4*jt+2*e,2)}, v{9+jt} offset:{u*3072+e*768}", f"r{p}") for e in range(2)])
        delta = SLOT if p % 4 != 3 else (-3 * SLOT) & 0xffffffff
        L.append([(f"v_add_u32 v{k}, {delta}, v{k}", None) for k in range(5, 12)])
        return L
    def m_mfma(p):
        L = []
        for u in range(4):
            c = "0" if (p == 0 and u < 2) else vr(WA + 4 * (u & 1), 4)
            L.append(f"v_mfma_f32_16x16x32_bf16 {vr(WA+4*(u&1),4)}, {vr(WB+48*(p&1)+12*u,4)}, {vr(MSK,4)}, {c}")
        for u in range(4):
            for jt in range(3):
                c = "0" if (p == 0 and u == 0) else vr(MACC + 16 * jt, 16)
                L.append(f"v_mfma_f32_32x32x16_bf16 {vr(MACC+16*jt,16)}, {vr(WB+48*(p&1)+12*u+4*jt,4)}, {vr(XB+16*(p&1)+4*u,4)}, {c}")
        return L
    SJL = 2 * SLOT
    def sj_ids():
        M.I("s_and_b32 s36, s2, 7")
        M.I("s_lshr_b32 s39, s2, 3")
        M.I("s_and_b32 s26, s36, 3")
        M.I("s_lshl_b32 s26, s26, 3")
        M.I("s_and_b32 s27, s39, 7")
        M.I("s_add_u32 s26, s26, s27")
        M.I("s_lshr_b32 s27, s36, 2")
        M.I("s_lshl_b32 s27, s27, 2")
        M.I("s_lshr_b32 s39, s39, 3")
        M.I("s_add_u32 s27, s27, s39")
    def sj_issue_w():
        mk_srd(M, 40, 24, 25, 1966080)
        for jk in range(2):
            M.I(f"s_add_u32 s39, s26, {32*jk}")
            M.I("s_min_u32 s39, s39, 47")
            M.I(f"s_mul_i32 s{68+jk}, s27, {5*H1F_RT}")
            M.I("s_lshl_b32 s36, s39, 10")
            M.I(f"s_add_u32 s{68+jk}, s{68+jk}, s36")
            M.I("s_mul_i32 s39, s39, 40960")
            M.I("s_mul_i32 s36, s27, 160")
            M.I(f"s_add_u32 s{22+jk}, s36, s39")
        for e in range(5):
            M.I(f"v_add_u32 v1, {64*e}, v0")
            M.I("v_mul_u32_u24 v2, 6554, v1")
            M.I("v_lshrrev_b32 v2, 16, v2")
            M.I("v_mul_u32_u24 v3, 10, v2")
            M.I("v_sub_u32 v1, v1, v3")
            M.I("v_mul_u32_u24 v2, 1280, v2")
            M.I("v_lshl_add_u32 v1, v1, 4, v2")
            for jk in range(2):
                M.I(f"s_mov_b32 m0, {SJL + 5120*jk + 1024*e}")
                M.I(f"buffer_load_dwordx4 v1, s[40:43], s{22+jk} offen lds")
    def sj_issue_c():
        mk_srd(M, 44, 14, 15, 819200)
        mk_srd(M, 48, 16, 17, 819200)
        for jk in range(2):
            M.I(f"s_add_u32 s38, s26, {32*jk}")
            M.I("s_min_u32 s38, s38, 49")
            M.I(f"s_mul_hi_u32 s36, s38, {(2**32 + 9)//10}")
            M.I("s_mul_i32 s39, s36, 10")
            M.I("s_sub_u32 s39, s38, s39")
            M.I("s_mul_i32 s38, s27, 5")
            M.I("s_add_u32 s36, s36, s38")
            M.I(f"s_mul_i32 s{70+jk}, s36, {HF_RT}")
            M.I("s_lshl_b32 s38, s39, 12")
            M.I(f"s_add_u32 s{70+jk}, s{70+jk}, s38")
            M.I(f"s_add_u32 s{70+jk}, s{70+jk}, {CF_OFF - W2F_OFF}")
            M.I("s_mul_i32 s36, s36, 20480")
            M.I("s_lshl_b32 s39, s39, 7")
            M.I("s_add_u32 s36, s36, s39")
            M.I("s_add_u32 s39, s36, 10240")
            for (sr, mo) in ((44, 0), (48, 2048)):
                M.I(f"s_mov_b32 m0, {SJL + 10240 + 4096*jk + mo}")
                M.I(f"buffer_load_dwordx4 v13, s[{sr}:{sr+3}], s36 offen lds")
                M.I(f"s_mov_b32 m0, {SJL + 10240 + 4096*jk + mo + 1024}")
                M.I(f"buffer_load_dwordx4 v13, s[{sr}:{sr+3}], s39 offen lds")
    def sj_finish():
        mk_srd(M, 40, 30, 31, STATS_OFF - W2F_OFF, None, W2F_OFF)
        M.I("v_lshrrev_b32 v1, 4, v0")
        M.I("v_lshrrev_b32 v2, 1, v1")
        M.I("v_lshlrev_b32 v12, 4, v2")
        M.I("v_and_b32 v3, 1, v1")
        M.I("v_lshl_add_u32 v12, v3, 2, v12")
        M.I("v_lshrrev_b32 v17, 2, v22")
        M.I("v_add_u32 v12, v12, v17")
        M.I("v_mul_u32_u24 v12, 160, v12")
        M.I("v_and_b32 v17, 3, v22")
        M.I("v_lshl_add_u32 v12, v17, 3, v12")
        M.I(f"v_add_u32 v12, {SJL}, v12")
        M.I("v_lshlrev_b32 v3, 11, v3")
        M.I("v_lshl_add_u32 v3, v22, 7, v3")
        M.I("v_and_b32 v17, 7, v22")
        M.I("v_xor_b32 v2, v2, v17")
        M.I("v_lshl_add_u32 v3, v2, 4, v3")
        M.I(f"v_add_u32 v3, {SJL + 10240}, v3")
        M.I("v_lshlrev_b32 v1, 4, v0")
        RW = [WB, WB + 20]; RC_ = [CBF, CBA]
        for jk in range(2):
            for j in range(5):
                for e in range(2):
                    M.I(f"ds_read_b64_tr_b16 {vr(RW[jk]+4*j+2*e,2)}, v12 offset:{5120*jk+32*j+1280*e}")
        for j in range(4):
            M.I(f"v_xor_b32 v2, {32*j}, v3")
            for jk in range(2):
                M.I(f"ds_read_b128 {vr(RC_[jk]+4*j,4)}, v2 offset:{4096*jk}")
        M.I("s_waitcnt lgkmcnt(0)")
        for jk in range(2):
            for j in range(5):
                M.I(f"buffer_store_dwordx4 {vr(RW[jk]+4*j,4)}, v1, s[40:43], s{68+jk} offen sc1")
                M.vm.pop()
                if j < 4: M.I(f"s_add_u32 s{68+jk}, s{68+jk}, {H1F_RT}")
        for jk in range(2):
            for j in range(4):
                M.I(f"buffer_store_dwordx4 {vr(RC_[jk]+4*j,4)}, v1, s[40:43], s{70+jk} offen offset:{1024*j} sc1")
                M.vm.pop()
    B1V = WB + 24
    for p in range(10):
        m_wait(f"c{p}")
        if p == 1:
            M.I(f"s_cbranch_vccnz L_{name}_w7")
            M.I("s_waitcnt vmcnt(0)")
            M.I("v_min_u32 v17, 19, v0")
            M.I("v_lshlrev_b32 v17, 2, v17")
            M.I(f"v_add_u32 v17, {PAR_L}, v17")
            M.I("ds_write_b32 v17, v1")
            M.I("ds_write_b32 v17, v2 offset:128")
            M.I("ds_write_b32 v17, v3 offset:256")
            M.lg = []
            M.label(f"L_{name}_w7")
        if p == 0: M.wait_lg()
        M.I("s_barrier")
        stamp(True)
        if p in (0, 9): stamp()
        side = m_dma(p + 3) if p + 3 <= 9 else []
        if p == 0: side = m_dma(2)
        if p == 1: side = m_dma(3) + side
        rd = m_reads(p)
        M.I(f"s_cmp_lg_u32 s37, {p & 1}")
        M.I(f"s_cbranch_scc1 L_{name}_cs{p}a")
        for j in range(5):
            M.I(f"ds_read_b128 {vr(CBF+4*j,4)}, v16 offset:{2048*j}")
            M.lg.pop()
        M.label(f"L_{name}_cs{p}a")
        delta = SLOT if p % 4 != 3 else (-3 * SLOT) & 0xffffffff
        M.I(f"v_add_u32 v16, {delta}, v16")
        def cs_mfma():
            M.I(f"s_cmp_lg_u32 s37, {p & 1}")
            M.I(f"s_cbranch_scc1 L_{name}_cs{p}b")
            for j in range(5):
                M.I(f"v_mfma_f32_16x16x32_bf16 {vr(CBA+4*j,4)}, v[18:21], {vr(CBF+4*j,4)}, {vr(CBA+4*j,4)}")
            M.label(f"L_{name}_cs{p}b")
        if "dmaonly" in dbg: emit(M, side)
        elif p == 0: emit(M, rd + side)
        elif p == 9:
            mm8 = m_mfma(8)
            for m in mm8[:6]: M.I(m)
            M.I("s_waitcnt lgkmcnt(0)")
            cs_mfma()
            for m in mm8[6:8]: M.I(m)
            M.I("s_mul_i32 s36, s35, 320")
            M.I(f"s_add_u32 s36, s36, {CSB_L}")
            M.I("v_lshlrev_b32 v17, 2, v22")
            M.I("v_add_u32 v17, s36, v17")
            M.I("s_nop 3")
            M.I("s_mov_b64 exec, 0xffff")
            for j in range(5):
                M.I(f"ds_write_b32 v17, v{CBA+4*j} offset:{64*j}", tag="sw")
            cnt_add(M, 16, 17, CNT_L + 4)
            merge(M, mm8[8:], rd, 0.9)
            M.I(f"s_cbranch_vccnz L_{name}_nb1")
            M.I("v_min_u32 v17, 47, v0")
            M.I("v_lshlrev_b32 v17, 3, v17")
            M.I(f"v_add_u32 v17, {B1F_L}, v17")
            M.I("v_lshlrev_b32 v2, 16, v4")
            M.I("v_and_b32 v3, 0xffff0000, v4")
            M.I("ds_write_b64 v17, v[2:3]")
            M.label(f"L_{name}_nb1")
        else: merge(M, m_mfma(p - 1), mix(rd, side), 0.9)
        if p in (7, 8):
            svm = list(M.vm)
            M.I(f"s_cbranch_vccnz L_{name}_si{p}")
            if p == 7:
                M.I("s_waitcnt vmcnt(0)")
                M.I("v_readfirstlane_b32 s36, v15")
                M.I("s_cmp_lg_u32 s36, 15")
                M.I(f"s_cbranch_scc1 L_{name}_nb")
                mk_srd(M, SB1, 30, 31, 16 * AGG_G, None, AGG_OFF)
                M.I("v_lshlrev_b32 v14, 7, v22")
                M.I("v_lshrrev_b32 v15, 4, v0")
                M.I(f"v_mul_u32_u24 v15, {AGG_G}, v15")
                M.I(f"v_add3_u32 v14, v14, v15, {0}") if False else M.I("v_add_u32 v14, v14, v15")
                M.I(f"v_add_u32 v14, {GO_O}, v14")
                M.I(f"v_mov_b32 v15, {TAG}")
                for n in range(4):
                    M.I(f"s_mov_b32 s36, {4*n*AGG_G}")
                    M.I(f"buffer_store_dword v15, v14, s[{SB1}:{SB1+3}], s36 offen sc1")
                    M.vm.pop()
                M.label(f"L_{name}_nb")
                sj_ids(); sj_issue_w()
            else: sj_issue_c()
            M.label(f"L_{name}_si{p}")
            M.vm = svm
        if p == 1:
            M.I(f"s_cbranch_vccnz L_{name}_na")
            M.I("s_waitcnt vmcnt(0)")
            M.I("s_lshl_b32 s36, s33, 4")
            M.I("v_mov_b32 v14, s36")
            M.I("v_mov_b32 v15, 1")
            M.I("s_mov_b64 exec, 1")
            M.I(f"buffer_atomic_add v15, v14, s[{SDB}:{SDB+3}], 0 offen sc0")
            M.vm.pop()
            M.I("s_mov_b64 exec, -1")
            M.label(f"L_{name}_na")
        if p == 5:
            M.I(f"s_cbranch_vccnz L_{name}_n2")
            M.I("s_waitcnt vmcnt(0)")
            M.I("v_readfirstlane_b32 s36, v15")
            M.I("v_mov_b32 v15, 0")
            M.I("s_cmp_lg_u32 s36, 15")
            M.I(f"s_cbranch_scc1 L_{name}_n2")
            M.I("v_mov_b32 v14, 4")
            M.I("v_mov_b32 v15, 1")
            M.I("s_mov_b64 exec, 1")
            M.I(f"buffer_atomic_add v15, v14, s[{SDB}:{SDB+3}], 0 offen sc0")
            M.vm.pop()
            M.I("s_mov_b64 exec, -1")
            M.label(f"L_{name}_n2")
        M.I("s_waitcnt lgkmcnt(0)")
        M.lg = []
        if p < 9: cs_mfma()
    mm = m_mfma(9)
    M.raw(";;DRYSTART")
    M.I("s_lshl_b32 s38, s35, 2")
    M.I(f"s_add_u32 s38, s38, {CNT_L+16}")
    if "mdelay" in dbg: cnt_wait(M, f"L_{name}_mw2", 16, 17, "s38", 1)
    for m in mm[:4]: M.I(m)
    for m in mm[4:8]: M.I(m)
    for r in range(4): M.I(f"v_add_f32 v{WA+r}, v{WA+r}, v{WA+4+r}")
    M.I("v_and_b32 v16, 1, v0")
    M.I("v_lshlrev_b32 v16, 6, v16")
    M.I("v_lshrrev_b32 v17, 4, v0")
    M.I("v_lshl_add_u32 v16, v17, 4, v16")
    M.I("s_lshl_b32 s36, s4, 7")
    M.I(f"s_add_u32 s36, s36, {CSW_L}")
    M.I("v_add_u32 v16, s36, v16")
    M.I("s_mov_b32 exec_lo, 0x00030003")
    M.I("s_mov_b32 exec_hi, 0x00030003")
    M.I(f"ds_write_b128 v16, {vr(WA,4)}")
    cnt_add(M, 16, 17, CNT_L + 8)
    for m in mm[8:]: M.I(m)
    svm, slg = list(M.vm), list(M.lg)
    M.I(f"s_cbranch_vccnz L_{name}_sjl")
    M.I("s_waitcnt vmcnt(0)")
    sj_finish()
    M.label(f"L_{name}_sjl")
    M.vm, M.lg = svm, slg
    stamp()
    cnt_wait(M, f"L_{name}_mw1", 16, 17, CNT_L + 8, 4)
    if "mdelay" not in dbg: cnt_wait(M, f"L_{name}_mw2", 16, 17, "s38", 1)
    stamp()
    M.I("s_lshl_b32 s36, s32, 7")
    M.I(f"s_add_u32 s36, s36, {GO_O}")
    M.I("v_mov_b32 v7, s36")
    M.I(f"buffer_load_dword v7, v7, s[{SAGM}:{SAGM+3}], 0 offen sc1")
    M.vm.pop()
    CSV = XB
    B1V = WB + 16
    M.I("v_lshrrev_b32 v10, 5, v0")
    M.I("v_lshlrev_b32 v11, 4, v10")
    M.I(f"v_add_u32 v12, {B1F_L}, v11")
    M.I(f"v_add_u32 v11, {CSW_L}, v11")
    M.I("v_lshrrev_b32 v23, 1, v23")
    M.I(f"v_add_u32 v23, {STATS_L}, v23")
    M.I("ds_read_b32 v14, v23")
    M.I("ds_read_b32 v15, v23 offset:512")
    for jt in range(3):
        M.I(f"s_lshl_b32 s36, s{4+jt}, 7")
        M.I("v_add_u32 v16, s36, v11")
        M.I("v_add_u32 v17, s36, v12")
        M.I(f"s_lshl_b32 s{4+jt}, s{4+jt}, 10")
        for q in range(4):
            M.I(f"ds_read_b128 {vr(CSV+(jt*4+q)*4,4)}, v16 offset:{32*q}", tag=f"cr{jt}")
            M.I(f"ds_read_b128 {vr(B1V+(jt*4+q)*4,4)}, v17 offset:{32*q}", tag=f"cr{jt}")
    M.I("s_lshl_b32 s36, s32, 2")
    M.I("s_add_u32 s36, s36, s35")
    M.I(f"s_mul_i32 s36, s36, {2*H1F_RT}")
    M.I("s_mul_i32 s39, s33, 3072")
    M.I("s_add_u32 s36, s36, s39")
    mk_srd(M, SH1, 30, 31, H1F_RT + 3072, 36, H1F_OFF)
    M.I("v_bfe_u32 v9, v0, 4, 1")
    M.I(f"v_mul_u32_u24 v9, {H1F_RT}, v9")
    M.I("v_lshl_add_u32 v9, v10, 8, v9")
    M.I("v_lshl_add_u32 v9, v22, 4, v9")
    C1 = -2.0 * 1.4426950408889634 * 0.7978845608028654
    C2 = C1 * 0.044715
    M.I(f"v_mov_b32 v16, {f2u(C2)}")
    M.I(f"v_mov_b32 v17, {f2u(C1)}")
    TM = FR
    late = []
    for jt in range(3):
        M.wait_lg(f"cr{jt}")
        P = [MACC + 16 * jt + 2 * k for k in range(8)]
        cs = [CSV + jt * 16 + 2 * k for k in range(8)]
        b1 = [B1V + jt * 16 + 2 * k for k in range(8)]
        T_ = [TM + 2 * k for k in range(8)]
        for k in range(8):
            M.I(f"v_pk_fma_f32 {vr(b1[k],2)}, v[14:15], {vr(cs[k],2)}, {vr(b1[k],2)} op_sel:[0,0,0] op_sel_hi:[0,1,1] neg_lo:[1,0,0] neg_hi:[1,0,0]")
        for k in range(8):
            M.I(f"v_pk_fma_f32 {vr(P[k],2)}, {vr(P[k],2)}, v[14:15], {vr(b1[k],2)} op_sel:[0,1,0] op_sel_hi:[1,1,1]")
        for k in range(8):
            M.I(f"v_pk_mul_f32 {vr(T_[k],2)}, {vr(P[k],2)}, {vr(P[k],2)}")
        for k in range(8):
            M.I(f"v_pk_fma_f32 {vr(T_[k],2)}, {vr(T_[k],2)}, v[16:17], v[16:17] op_sel:[0,0,1] op_sel_hi:[1,0,1]")
        for k in range(8):
            M.I(f"v_pk_mul_f32 {vr(T_[k],2)}, {vr(T_[k],2)}, {vr(P[k],2)}")
        for k in range(16):
            M.I(f"v_exp_f32 v{TM+k}, v{TM+k}")
        for k in range(8):
            M.I(f"v_pk_add_f32 {vr(T_[k],2)}, {vr(T_[k],2)}, 1.0 op_sel_hi:[1,0]")
        for k in range(16):
            M.I(f"v_rcp_f32 v{TM+k}, v{TM+k}")
        for k in range(8):
            M.I(f"v_pk_mul_f32 {vr(P[k],2)}, {vr(P[k],2)}, {vr(T_[k],2)}")
        PKM = TM + 16 + 8 * jt
        for k in range(8):
            M.I(f"v_cvt_pk_bf16_f32 v{PKM+k}, v{P[k]}, v{P[k]+1}")
        def h1st(jt=jt, PKM=PKM):
            for AB in range(2):
                M.I(f"buffer_store_dwordx4 {vr(PKM+4*AB,4)}, v9, s[{SH1}:{SH1+3}], s{4+jt} offen offset:{512*AB}{STF}", tag="st")
        if jt == 1:
            M.I(f"s_cbranch_vccnz L_{name}_a2")
            M.I("s_waitcnt vmcnt(3)")
            mk_srd(M, 44, 30, 31, 8192, None, FL_OFF)
            M.I("s_lshl_b32 s36, s27, 7")
            M.I("s_lshl_b32 s39, s26, 2")
            M.I("s_add_u32 s36, s36, s39")
            M.I("s_add_u32 s36, s36, 4096")
            M.I("v_mov_b32 v1, s36")
            M.I(f"v_mov_b32 v2, {TAG}")
            M.I("s_mov_b64 exec, 1")
            M.I("buffer_store_dword v2, v1, s[44:47], 0 offen sc1")
            M.vm.pop()
            M.I("s_mov_b64 exec, -1")
            M.label(f"L_{name}_a2")
        if "mst" in dbg: late.append(h1st)
        else: h1st()
    if "mst" in dbg:
        cnt_wait(M, f"L_{name}_mw3", 16, 17, CNT_L + 12, 1)
        for f in late: f()
    M.I("s_cmp_lg_u32 s33, 0")
    M.I(f"s_cbranch_scc1 L_{name}_nostat")
    M.I("s_lshl_b32 s36, s32, 9")
    mk_srd(M, 40, 30, 31, 8192 + 512, 36, STATS_OFF)
    M.I(f"v_subrev_u32 v23, {STATS_L}, v23")
    M.I("s_mov_b32 s36, 8192")
    M.I("buffer_store_dword v14, v23, s[40:43], 0 offen sc1")
    M.I("buffer_store_dword v15, v23, s[40:43], s36 offen sc1")
    M.label(f"L_{name}_nostat")
    phaseB(M, "G", stamp)
    final_stamps(M, st)
    M.label(f"L_{name}_end")
    M.I("s_endpgm")
    if "dry" not in dbg:
        for X in (S, M): X.lines = [l for l in X.lines if not l.startswith(";;DRY")]
    else:
        print("dry blocks", add_dry(S, name, "ds", 39), add_dry(M, name, "dm", 39))
    desc = f""".section .rodata,"a"
.p2align 6
.amdhsa_kernel {name}
  .amdhsa_next_free_vgpr 256
  .amdhsa_next_free_sgpr 102
  .amdhsa_accum_offset 256
  .amdhsa_group_segment_fixed_size 0
  .amdhsa_kernarg_size 136
  .amdhsa_user_sgpr_count 2
  .amdhsa_user_sgpr_kernarg_segment_ptr 1
  .amdhsa_system_sgpr_workgroup_id_x 1
.end_amdhsa_kernel
.text"""
    return A.text() + "\n" + S.text() + "\n" + M.text() + "\n" + desc, (A.nins, S.nins, M.nins)
```

```python
from asmfw import *
from layout import *
import struct
def f2u(f): return struct.unpack("<I", struct.pack("<f", f))[0]
LOG2E = f2u(1.4426950408889634)
INV2PI = f2u(0.15915494309189535)
SLOT = 38912
BB_O = 16384
W1_O = 26624
MISC = 155648
SEG_L = MISC
CSW_L = MISC + 5120
CNT_L = CSW_L + 384
STATS_L = MISC + 5632
CSB_L = STATS_L + 1024
STG_L = 2 * SLOT
PAR_L = SEG_L
B1F_L = 34816
GR_L = 40960
TR_L = 0
Q_L = 24576
HS_L = 32768
TAG = 0x5a17c3e9
EP_L = 126976
MST_L = 0
NEG_LOG2E = 0xbfb8aa3b
DPP = "row_ror:8 row_mask:0xf bank_mask:0xf"

def mk_srd(A, d, lo, hi, nbytes, off_s=None, off_imm=0):
    if off_s is None and off_imm == 0:
        A.I(f"s_mov_b32 s{d}, s{lo}")
        A.I(f"s_and_b32 s{d+1}, s{hi}, 0xffff")
    else:
        if off_s is not None:
            if off_imm: A.I(f"s_add_u32 s{off_s}, s{off_s}, {off_imm}")
            A.I(f"s_add_u32 s{d}, s{lo}, s{off_s}")
        else:
            A.I(f"s_add_u32 s{d}, s{lo}, {off_imm}")
        A.I(f"s_addc_u32 s{d+1}, s{hi}, 0")
        A.I(f"s_and_b32 s{d+1}, s{d+1}, 0xffff")
    A.I(f"s_mov_b32 s{d+2}, {nbytes}")
    A.I(f"s_mov_b32 s{d+3}, 0x00020000")

def bb_srd(X, d, ldsreg):
    X.I(f"s_lshl_b32 s{ldsreg}, s36, 10")
    X.I(f"s_add_u32 s{ldsreg}, s{ldsreg}, {BB_O}")
    X.I("s_and_b32 s39, s36, 1")
    X.I("s_cmp_eq_u32 s39, 0")
    X.I(f"s_cselect_b32 s{d}, s10, s12")
    X.I(f"s_cselect_b32 s{d+1}, s11, s13")
    X.I("s_lshr_b32 s36, s36, 1")
    X.I("s_lshl_b32 s36, s36, 3")
    X.I("s_mul_i32 s39, s33, 40")
    X.I("s_add_u32 s36, s36, s39")
    X.I("s_mul_i32 s36, s36, 1280")
    X.I(f"s_add_u32 s{d}, s{d}, s36")
    X.I(f"s_addc_u32 s{d+1}, s{d+1}, 0")
    X.I(f"s_and_b32 s{d+1}, s{d+1}, 0xffff")
    X.I(f"s_mov_b32 s{d+2}, 10240")
    X.I(f"s_mov_b32 s{d+3}, 0x00020000")

def put(X, item):
    t, g = item
    if t.endswith(":"): X.label(t[:-1])
    else: X.I(t, tag=g)
def emit(X, L):
    for grp in L:
        for it in grp: put(X, it)
def merge(X, main, side, frac=1.0):
    side = list(side)
    n = max(1, int(len(main) * frac))
    done = 0
    for k, m in enumerate(main):
        X.I(m)
        tgt = min(len(side), ((k + 1) * len(side) + n - 1) // n)
        while done < tgt:
            for it in side[done]: put(X, it)
            done += 1
    while done < len(side):
        for it in side[done]: put(X, it)
        done += 1
def mix(a, b):
    out = []; ia = ib = 0
    while ia < len(a) or ib < len(b):
        if ib >= len(b) or (ia < len(a) and ia * len(b) <= ib * len(a)):
            out.append(a[ia]); ia += 1
        else:
            out.append(b[ib]); ib += 1
    return out

def cnt_add(X, va, vt, addr):
    X.I(f"v_mov_b32 v{va}, {addr}")
    X.I(f"v_mov_b32 v{vt}, 1")
    X.I("s_mov_b64 exec, 1")
    X.I(f"ds_add_u32 v{va}, v{vt}")
    X.I("s_mov_b64 exec, -1")
def cnt_wait(X, lab, va, vt, addr, val):
    X.I(f"v_mov_b32 v{va}, {addr}")
    X.I("s_mov_b32 s39, 0")
    X.label(lab)
    X.I(f"ds_read_b32 v{vt}, v{va}")
    X.I("s_waitcnt lgkmcnt(0)")
    X.lg = []
    X.I(f"v_readfirstlane_b32 s36, v{vt}")
    X.I("s_add_u32 s39, s39, 1")
    X.I(f"s_cmp_eq_u32 s36, {val}")
    X.I(f"s_cbranch_scc1 {lab}d")
    X.I("s_sleep 1")
    X.I("s_cmp_lt_u32 s39, 0x400000")
    X.I(f"s_cbranch_scc1 {lab}")
    X.label(lab + "d")

def pr(idx):
    return f"v[{idx & ~1}:{(idx & ~1) + 1}]", idx & 1

def add_dry(X, name, tag, sreg, minlen=10, maxlen=48):
    lines = X.lines
    i0 = lines.index(";;DRYSTART")
    head, tail = lines[:i0], lines[i0 + 1:]
    def pure(l):
        t = l.strip()
        if t.startswith("v_"):
            return not (t.startswith("v_cmp") or t.startswith("v_readfirstlane") or t.startswith("v_mfma") or t.startswith("v_readlane") or "co_u32" in t)
        return t.startswith("s_nop")
    out = []; nb = 0; i = 0
    while i < len(tail):
        j = i
        while j < len(tail) and pure(tail[j]): j += 1
        if j - i >= minlen:
            k = i
            while k < j:
                e = min(j, k + maxlen)
                if j - e < minlen: e = j
                out.append(f"L_{name}_{tag}{nb}:")
                out += tail[k:e]
                out.append(f"    s_cbranch_execz L_{name}_{tag}disp")
                nb += 1; k = e
            i = j
        else:
            out += tail[i:max(j, i + 1)]; i = max(j, i + 1)
    drv = [f"    s_mov_b32 s{sreg}, s35", "    s_mov_b64 exec, 0", f"    s_branch L_{name}_{tag}go",
           f"L_{name}_{tag}disp:", f"    s_add_u32 s{sreg}, s{sreg}, 4", f"L_{name}_{tag}go:"]
    for b in range(nb):
        drv += [f"    s_cmp_eq_u32 s{sreg}, {b}", f"    s_cbranch_scc1 L_{name}_{tag}{b}"]
    drv += ["    s_mov_b64 exec, -1"]
    p = head.index(";;DRYPT")
    X.lines = head[:p] + drv + head[p + 1:] + out
    return nb

def gen_kf(name="kf_kernel", stamps=False, rot=True, dbg=""):
    import os
    STF = os.environ.get("STF1", "")
    STH = os.environ.get("STH", STF)
    A = Stream()
    A.raw(f".globl {name}\n.p2align 8\n.type {name},@function\n{name}:")
    A.I("s_cmp_ge_u32 s2, 256")
    A.I(f"s_cbranch_scc1 L_{name}_end")
    class St:
        n = 0
    def mkstamp(X):
        st = St()
        def stamp(ph=False):
            if not stamps: return
            if ("phst" in dbg) != ph: return
            assert st.n < 12
            X.I(f"s_memtime s[{74+2*st.n}:{75+2*st.n}]"); st.n += 1
        return stamp, st
    if stamps:
        A.I("s_memtime s[72:73]")
        A.I("s_memrealtime s[98:99]")
    A.I("s_load_dwordx16 s[4:19], s[0:1], 0")
    A.I("s_load_dwordx4 s[20:23], s[0:1], 80")
    A.I("s_load_dwordx2 s[24:25], s[0:1], 96")
    A.I("s_load_dwordx4 s[28:31], s[0:1], 120")
    A.I("s_and_b32 s36, s2, 7")
    A.I("s_lshr_b32 s37, s2, 3")
    if "map2" in dbg:
        A.I("s_and_b32 s32, s37, 15")
    else:
        A.I("s_and_b32 s32, s36, 1")
        A.I("s_lshl_b32 s32, s32, 3")
        A.I("s_and_b32 s38, s37, 7")
        A.I("s_add_u32 s32, s32, s38")
    if "map2" in dbg:
        A.I("s_lshl_b32 s33, s36, 1")
        A.I("s_lshr_b32 s38, s37, 4")
    else:
        A.I("s_lshr_b32 s33, s36, 1")
        A.I("s_lshl_b32 s33, s33, 2")
        A.I("s_lshr_b32 s38, s37, 3")
    A.I("s_add_u32 s33, s33, s38")
    import os
    rm = os.environ.get("ROTM", "full")
    if rot and rm == "full":
        A.I("s_and_b32 s26, s33, 3")
        A.I("s_mul_i32 s26, s26, 3")
        A.I("s_and_b32 s27, s32, 7")
        A.I("s_add_u32 s26, s26, s27")
        A.I("s_sub_u32 s27, s26, 10")
        A.I("s_cmp_ge_u32 s26, 10")
        A.I("s_cselect_b32 s26, s27, s26")
    elif rot and rm == "r4":
        A.I("s_add_u32 s26, s33, s32")
        A.I("s_and_b32 s26, s26, 3")
    elif rot and rm == "r2":
        A.I("s_add_u32 s26, s33, s32")
        A.I("s_and_b32 s26, s26, 1")
        A.I("s_lshl_b32 s26, s26, 1")
    elif rot and rm == "r4x2":
        A.I("s_add_u32 s26, s33, s32")
        A.I("s_and_b32 s26, s26, 3")
        A.I("s_lshl_b32 s26, s26, 1")
    else:
        A.I("s_mov_b32 s26, 0")
    A.I("v_lshrrev_b32 v1, 6, v0")
    A.I("v_and_b32 v0, 63, v0")
    A.I("v_readfirstlane_b32 s34, v1")
    A.I("s_and_b32 s35, s34, 3")
    A.I("s_cmp_ge_u32 s34, 4")
    A.wait_lg()
    if "notlb" not in dbg:
        A.I(f"s_mul_i32 s36, s32, {128*1280}")
        A.I("s_mul_i32 s37, s33, 51200")
        A.I("s_load_dword s3, s[4:5], s36")
        A.I("s_load_dword s3, s[10:11], s37")
        A.I("s_load_dword s3, s[12:13], s37")
        A.I("s_load_dword s3, s[20:21], 0")
        A.I("s_load_dword s3, s[20:21], 0xffffc")
        A.I("s_cmp_ge_u32 s34, 4")
    A.I(f"s_cbranch_scc1 L_{name}_M")

    def final_stamps(X, st):
        if not stamps: return
        X.wait_all()
        X.I(f"s_memtime s[{74+2*st.n}:{75+2*st.n}]"); st.n += 1
        X.I("s_memrealtime s[100:101]")
        X.wait_lg()
        X.I("s_lshl_b32 s36, s2, 3")
        X.I("s_add_u32 s36, s36, s34")
        X.I("s_lshl_b32 s36, s36, 7")
        X.I("s_add_u32 s36, s36, 0x2000000")
        X.I("s_add_u32 s40, s30, s36")
        X.I("s_addc_u32 s41, s31, 0")
        X.I("s_and_b32 s41, s41, 0xffff")
        X.I("s_mov_b32 s42, 128")
        X.I("s_mov_b32 s43, 0x00020000")
        X.I("v_mov_b32 v1, 0")
        for i in range(st.n + 1):
            X.I(f"v_mov_b32 v2, s{72+2*i}")
            X.I(f"buffer_store_dword v2, v1, s[40:43], 0 offen offset:{4*i}")
        X.I("v_mov_b32 v2, s98")
        X.I("buffer_store_dword v2, v1, s[40:43], 0 offen offset:120")
        X.I("v_mov_b32 v2, s100")
        X.I("buffer_store_dword v2, v1, s[40:43], 0 offen offset:124")
    def side_issue(S, vG_, vC_, vBB, SJA, SJB, SWS, t1, t2, t3, vL, vA):
        mk_srd(S, SWS, 30, 31, STATS_OFF - W2F_OFF, None, W2F_OFF)
        S.I("s_lshl_b32 s26, s2, 2")
        S.I("s_add_u32 s26, s26, s35")
        if "nosj" in dbg: S.I("s_mov_b32 s26, 1000")
        S.I("s_lshl_b32 s27, s35, 12")
        S.I(f"s_add_u32 s27, s27, {STG_L}")
        S.I(f"v_lshlrev_b32 v{vL}, 4, v0")
        S.I(f"v_mov_b32 v{vA}, 0")
        S.I("s_mov_b32 s22, 0")
        S.I("s_mov_b32 s23, 0")
        savevm = list(S.vm)
        S.I("s_cmp_ge_u32 s26, 880")
        S.I(f"s_cbranch_scc1 L_{name}_sj0")
        S.I("s_cmp_ge_u32 s26, 480")
        S.I(f"s_cbranch_scc1 L_{name}_sjc")
        mk_srd(S, SJA, 24, 25, 1966080)
        S.I(f"s_mul_hi_u32 s36, s26, {(2**32 + 47)//48}")
        S.I("s_mul_i32 s39, s36, 48")
        S.I("s_sub_u32 s39, s26, s39")
        S.I(f"s_mul_i32 s22, s36, {4*H1F_RT}")
        S.I("s_lshl_b32 s23, s39, 10")
        S.I("s_add_u32 s22, s22, s23")
        S.I(f"s_mov_b32 s23, {H1F_RT}")
        S.I("s_mul_i32 s39, s39, 40960")
        S.I("s_lshl_b32 s36, s36, 7")
        S.I("s_add_u32 s36, s36, s39")
        S.I(f"v_lshrrev_b32 v{t1}, 3, v0")
        S.I(f"v_mul_u32_u24 v{t1}, 1280, v{t1}")
        S.I(f"v_and_b32 v{t2}, 7, v0")
        S.I(f"v_lshl_add_u32 v{t1}, v{t2}, 4, v{t1}")
        for e in range(4):
            S.I(f"s_add_u32 m0, s27, {1024*e}")
            S.I(f"buffer_load_dwordx4 v{t1}, s[{SJA}:{SJA+3}], s36 offen lds")
            if e < 3: S.I("s_add_u32 s36, s36, 10240")
        S.I(f"v_lshrrev_b32 v{t1}, 1, v{vG_}")
        S.I(f"v_lshlrev_b32 v{t1}, 11, v{t1}")
        S.I(f"v_and_b32 v{t2}, 1, v{vG_}")
        S.I(f"v_lshl_add_u32 v{t1}, v{t2}, 9, v{t1}")
        S.I(f"v_lshrrev_b32 v{t2}, 2, v{vC_}")
        S.I(f"v_lshl_add_u32 v{t1}, v{t2}, 7, v{t1}")
        S.I(f"v_and_b32 v{t2}, 3, v{vC_}")
        S.I(f"v_lshl_add_u32 v{t1}, v{t2}, 3, v{t1}")
        S.I(f"v_add_u32 v{vA}, s27, v{t1}")
        S.I(f"s_branch L_{name}_sj0")
        S.label(f"L_{name}_sjc")
        mk_srd(S, SJA, 14, 15, 819200)
        mk_srd(S, SJB, 16, 17, 819200)
        S.I("s_sub_u32 s39, s26, 480")
        S.I(f"s_mul_hi_u32 s36, s39, {(2**32 + 9)//10}")
        S.I("s_mul_i32 s22, s36, 10")
        S.I("s_sub_u32 s39, s39, s22")
        S.I(f"s_mul_i32 s22, s36, {HF_RT}")
        S.I("s_lshl_b32 s23, s39, 12")
        S.I("s_add_u32 s22, s22, s23")
        S.I(f"s_add_u32 s22, s22, {CF_OFF - W2F_OFF}")
        S.I("s_mov_b32 s23, 1024")
        S.I("s_mul_i32 s36, s36, 20480")
        S.I("s_lshl_b32 s39, s39, 7")
        S.I("s_add_u32 s36, s36, s39")
        S.I("s_add_u32 s39, s36, 10240")
        for (srd_, mo) in ((SJA, 0), (SJB, 2048)):
            S.I(f"s_add_u32 m0, s27, {mo}")
            S.I(f"buffer_load_dwordx4 v{vBB}, s[{srd_}:{srd_+3}], s36 offen lds")
            S.I(f"s_add_u32 m0, s27, {mo+1024}")
            S.I(f"buffer_load_dwordx4 v{vBB}, s[{srd_}:{srd_+3}], s39 offen lds")
        S.I(f"v_and_b32 v{t1}, 1, v{vG_}")
        S.I(f"v_lshlrev_b32 v{t1}, 11, v{t1}")
        S.I(f"v_lshl_add_u32 v{t1}, v{vC_}, 7, v{t1}")
        S.I(f"v_lshrrev_b32 v{t2}, 1, v{vG_}")
        S.I(f"v_and_b32 v{t3}, 7, v{vC_}")
        S.I(f"v_xor_b32 v{t2}, v{t2}, v{t3}")
        S.I(f"v_lshl_add_u32 v{t1}, v{t2}, 4, v{t1}")
        S.I(f"v_add_u32 v{vA}, s27, v{t1}")
        S.label(f"L_{name}_sj0")
        S.vm = savevm

    def phaseB(X, typ, stamp):
        L = f"L_{name}_{typ}"
        isG = typ == "G"
        RT = H1F_RT if isG else HF_RT
        NS = 12 if isG else 10
        D = int(os.environ.get("FD", "3"))
        LDF = os.environ.get("LDF", " sc1")
        ACC, STG = 16, 96
        VO = STG + 36 * D
        SA, SB0, SFL, SAGB = 40, 44, 52, 56
        PRIV = 15360
        BASE = 0 if isG else 61440 + 0
        BASE = 0 if isG else 0
        X.I("s_setprio 0" if not isG or "nogp" in dbg else "s_setprio 2")
        X.I("s_waitcnt vmcnt(0) lgkmcnt(0)")
        X.vm = []; X.lg = []
        if not isG: X.I("v_mov_b32 v15, v254")
        cnt_add(X, 4, 5, CNT_L + (32 if isG else 44))
        cnt_add(X, 4, 5, CNT_L + 36)
        X.I("s_load_dwordx2 s[4:5], s[0:1], 0")
        X.I("s_load_dwordx2 s[6:7], s[0:1], 64")
        X.I("s_load_dwordx4 s[8:11], s[0:1], 104")
        mk_srd(X, SFL, 30, 31, 8192, None, FL_OFF)
        X.I("s_cmp_lg_u32 s35, 0")
        X.I(f"s_cbranch_scc1 {L}nf")
        cnt_wait(X, f"{L}w0", 4, 5, CNT_L + (32 if isG else 44), 4)
        X.I("s_lshl_b32 s36, s32, 7")
        X.I("s_lshl_b32 s39, s33, 2")
        X.I("s_add_u32 s36, s36, s39")
        if not isG: X.I("s_add_u32 s36, s36, 2048")
        X.I("v_mov_b32 v4, s36")
        X.I(f"v_mov_b32 v5, {TAG}")
        X.I("s_mov_b64 exec, 1")
        X.I(f"buffer_store_dword v5, v4, s[{SFL}:{SFL+3}], 0 offen sc1")
        X.I("s_mov_b64 exec, -1")
        X.label(f"{L}nf")
        X.vm = []
        stamp()
        X.I("s_and_b32 s36, s2, 7")
        X.I("s_lshr_b32 s37, s2, 3")
        X.I("s_and_b32 s60, s36, 3")
        X.I("s_lshl_b32 s60, s60, 3")
        X.I("s_and_b32 s38, s37, 7")
        X.I("s_add_u32 s60, s60, s38")
        X.I("s_lshr_b32 s61, s36, 2")
        X.I("s_lshl_b32 s61, s61, 2")
        X.I("s_lshr_b32 s38, s37, 3")
        X.I("s_add_u32 s61, s61, s38")
        X.I("v_lshlrev_b32 v2, 4, v0")
        X.I("v_lshrrev_b32 v1, 4, v0")
        X.I("v_and_b32 v3, 15, v0")
        for n in range(4):
            X.I(f"s_add_u32 s36, s35, {n}")
            X.I("s_and_b32 s36, s36, 3")
            X.I(f"s_mul_i32 s36, s36, {RT}")
            X.I(f"v_add_u32 v{VO+n}, s36, v2")
        for n in range(5):
            X.I(f"v_add_u32 v{VO+4+n}, {n*RT}, v2")
        X.I(f"s_mul_i32 s36, s60, {4*RT}")
        mk_srd(X, SA, 30, 31, 4 * RT, 36, H1F_OFF if isG else HF_OFF)
        X.I(f"s_mul_i32 s36, s61, {5*RT}")
        mk_srd(X, SB0, 30, 31, 5 * RT, 36, W2F_OFF if isG else CF_OFF)
        X.I(f"s_mul_i32 s63, s35, {NS*1024}")
        X.I("s_lshl_b32 s36, s60, 6")
        X.I("s_lshr_b32 s37, s35, 1")
        X.I("s_lshl_b32 s37, s37, 5")
        X.I("s_add_u32 s36, s36, s37")
        X.I("s_and_b32 s37, s35, 1")
        X.I("s_lshl_b32 s37, s37, 2")
        X.I("s_add_u32 s65, s36, s37")
        X.I("s_mul_i32 s66, s61, 160")
        X.I("s_waitcnt lgkmcnt(0)")
        X.lg = []
        EV = VO + 10
        if isG:
            SX, SP, SD = 48, 64 + 4, 20
            mk_srd(X, SX, 4, 5, 2621440)
            mk_srd(X, SP, 8, 9, 1280)
            mk_srd(X, SD, 6, 7, 1280)
            X.I("s_lshl_b32 s67, s35, 12")
            X.I(f"s_add_u32 s67, s67, {EP_L}")
            X.I("s_mul_i32 s37, s65, 1280")
            X.I("s_add_u32 s37, s37, s66")
            for e in range(3):
                X.I(f"v_add_u32 v4, {64*e}, v0")
                X.I("v_min_u32 v4, 159, v4")
                X.I("v_mul_u32_u24 v5, 6554, v4")
                X.I("v_lshrrev_b32 v5, 16, v5")
                X.I("v_mul_u32_u24 v6, 10, v5")
                X.I("v_sub_u32 v4, v4, v6")
                X.I("v_lshrrev_b32 v6, 2, v5")
                X.I("v_lshl_add_u32 v5, v6, 2, v5")
                X.I("v_mul_u32_u24 v5, 1280, v5")
                X.I("v_lshl_add_u32 v4, v4, 4, v5")
                X.I(f"s_add_u32 m0, s67, {1024*e}")
                X.I(f"buffer_load_dwordx4 v4, s[{SX}:{SX+3}], s37 offen lds")
            X.I("v_lshlrev_b32 v4, 2, v0")
            X.I("v_min_u32 v4, 156, v4")
            X.I("s_add_u32 m0, s67, 3072")
            X.I(f"buffer_load_dword v4, s[{SP}:{SP+3}], s66 offen lds")
            X.I("s_add_u32 m0, s67, 3328")
            X.I(f"buffer_load_dword v4, s[{SD}:{SD+3}], s66 offen lds")
        RC = CNT_L + (80 if isG else 84)
        X.I("s_cmp_lg_u32 s35, 0")
        X.I(f"s_cbranch_scc1 {L}pw")
        X.I(f"s_mul_i32 s36, s33, {AGG_G}")
        mk_srd(X, SAGB, 30, 31, AGG_G, 36, AGG_OFF)
        X.I("s_lshl_b32 s36, s32, 7")
        X.I(f"s_add_u32 s36, s36, {GO_O}")
        X.I("v_mov_b32 v4, s36")
        X.I("s_mov_b32 s39, 0")
        if not isG: X.I("v_mov_b32 v7, 0") if False else None
        X.label(f"{L}go")
        X.I(f"v_readfirstlane_b32 s36, v{7 if isG else 15}")
        X.I("s_add_u32 s39, s39, 1")
        X.I(f"s_cmp_eq_u32 s36, {TAG}")
        X.I(f"s_cbranch_scc1 {L}god")
        X.I(f"buffer_load_dword v{7 if isG else 15}, v4, s[{SAGB}:{SAGB+3}], 0 offen sc1")
        X.I("s_waitcnt vmcnt(0)")
        X.I("s_cmp_lt_u32 s39, 0x100000")
        X.I(f"s_cbranch_scc1 {L}go")
        X.label(f"{L}god")
        X.I(f"v_mov_b32 v6, {TAG}")
        X.I("s_lshr_b32 s36, s60, 1")
        X.I("s_lshl_b32 s36, s36, 7")
        if not isG: X.I("s_add_u32 s36, s36, 2048")
        X.I("v_lshlrev_b32 v4, 2, v3")
        X.I("v_add_u32 v4, s36, v4")
        X.I("s_lshl_b32 s36, s61, 7")
        X.I("s_add_u32 s36, s36, 4096")
        X.I("v_lshlrev_b32 v5, 2, v0")
        X.I("v_add_u32 v5, s36, v5")
        X.I("v_cmp_gt_u32 vcc, 32, v0")
        X.I("v_cndmask_b32 v4, v4, v5, vcc")
        X.I("s_mov_b32 s39, 0")
        X.label(f"{L}fl")
        X.I(f"buffer_load_dword v5, v4, s[{SFL}:{SFL+3}], 0 offen sc1")
        X.I("s_waitcnt vmcnt(0)")
        X.I("v_cmp_eq_u32 vcc, v5, v6")
        X.I("s_add_u32 s39, s39, 1")
        X.I("s_cmp_eq_u64 vcc, -1")
        X.I(f"s_cbranch_scc1 {L}fld")
        X.I("s_sleep 2")
        X.I("s_cmp_lt_u32 s39, 0x100000")
        X.I(f"s_cbranch_scc1 {L}fl")
        X.label(f"{L}fld")
        if LDF == "":
            X.raw("    buffer_inv sc1")
            X.I("s_waitcnt vmcnt(0)")
        cnt_add(X, 4, 5, RC)
        X.label(f"{L}pw")
        cnt_wait(X, f"{L}pwl", 4, 5, RC, 1)
        X.vm = []
        stamp()
        def stage(s): return STG + (s % D) * 36
        def issue(s):
            b = stage(s)
            Lx = []
            for n in range(4):
                Lx.append([(f"buffer_load_dwordx4 {vr(b+4*n,4)}, v{VO+n}, s[{SA}:{SA+3}], s63 offen offset:{(s%4)*1024}{LDF}", f"st{s}")])
            for n in range(5):
                Lx.append([(f"buffer_load_dwordx4 {vr(b+16+4*n,4)}, v{VO+4+n}, s[{SB0}:{SB0+3}], s63 offen offset:{(s%4)*1024}{LDF}", f"st{s}")])
            if s % 4 == 3: Lx[-1].append(("s_add_u32 s63, s63, 4096", None))
            return Lx
        for s in range(D - 1): emit(X, issue(s))
        if isG:
            mk_srd(X, SAGB, 30, 31, 16384, None, STATS_OFF)
            X.I("s_lshl_b32 s38, s65, 2")
            X.I("v_lshrrev_b32 v4, 2, v3")
            X.I("v_lshl_add_u32 v4, v4, 2, v3")
            X.I("v_lshlrev_b32 v4, 2, v4")
            X.I("v_add_u32 v5, 8192, v4")
            X.I(f"buffer_load_dword v{EV}, v4, s[{SAGB}:{SAGB+3}], s38 offen sc1", tag="ep")
            X.I(f"buffer_load_dword v{EV+1}, v5, s[{SAGB}:{SAGB+3}], s38 offen sc1", tag="ep")
        DB = 0 if isG else 61440
        X.I(f"s_mul_i32 s62, s35, {PRIV}")
        if DB: X.I(f"s_add_u32 s62, s62, {DB}")
        DW = EV + 2
        X.I(f"v_add_u32 v{DW}, s62, v2")
        for s in range(NS):
            X.wait_vm(f"st{s}")
            b = stage(s)
            side = issue(s + D - 1) if s + D - 1 < NS else []
            mm = []
            order = [1, 2, 3, 0] if s == NS - 1 else range(4)
            for n in order:
                for dt in range(5):
                    ac = vr(ACC + (n * 5 + dt) * 4, 4)
                    mm.append(f"v_mfma_f32_16x16x32_bf16 {ac}, {vr(b+16+4*dt,4)}, {vr(b+4*n,4)}, {'0' if s == 0 else ac}")
            if s == NS - 1:
                cnt_wait(X, f"{L}w1", 4, 5, CNT_L + 36, 8)
                for k, m in enumerate(mm):
                    X.I(m)
                    j = k - 7
                    if 0 <= j < 15: X.I(f"ds_write_b128 v{DW}, {vr(ACC+20+4*j,4)} offset:{1024*j}")
                for j in (13, 14): X.I(f"ds_write_b128 v{DW}, {vr(ACC+20+4*j,4)} offset:{1024*j}")
            else:
                merge(X, mm, side, 0.9)
        stamp()
        cnt_add(X, 4, 5, CNT_L + (48 if isG else 56))
        for k in range(1, 4):
            X.I(f"s_add_u32 s36, s35, {k}")
            X.I("s_and_b32 s36, s36, 3")
            X.I(f"s_mul_i32 s36, s36, {PRIV}")
            X.I(f"s_add_u32 s36, s36, {DB + (3 - k) * 5120}")
            X.I(f"v_add_u32 v{6+k}, s36, v2")
        cnt_wait(X, f"{L}w2", 4, 5, CNT_L + (48 if isG else 56), 4)
        RD = STG
        for dt in range(5):
            for k in range(3):
                X.I(f"ds_read_b128 {vr(RD+(dt*3+k)*4,4)}, v{7+k} offset:{1024*dt}", tag=f"p{dt}")
        if isG:
            T = ACC + 20; BS = ACC + 40; DS_ = ACC + 60
            X.I("v_lshlrev_b32 v10, 3, v1")
            X.I("v_add_u32 v10, s67, v10")
            X.I("v_mul_u32_u24 v11, 160, v3")
            X.I("v_add_u32 v11, v11, v10")
            for dt in range(5):
                X.I(f"ds_read_b64 {vr(T+4*dt+2,2)}, v10 offset:{3072+32*dt}", tag="e")
                X.I(f"ds_read_b64 {vr(DS_+4*dt+2,2)}, v10 offset:{3328+32*dt}", tag="e")
                X.I(f"ds_read_b64 {vr(BS+4*dt+2,2)}, v11 offset:{32*dt}", tag="e")
        for dt in range(5):
            X.wait_lg(f"p{dt}")
            a = ACC + 4 * dt; r0 = RD + dt * 12
            for r in range(4): X.I(f"v_add_f32 v{a+r}, v{a+r}, v{r0+r}")
            for r in range(4): X.I(f"v_add_f32 v{r0+4+r}, v{r0+4+r}, v{r0+8+r}")
            for r in range(4): X.I(f"v_add_f32 v{a+r}, v{a+r}, v{r0+4+r}")
        if isG:
            X.wait_lg()
            cnt_add(X, 4, 5, CNT_L + 52)
            X.I("s_mov_b32 s36, 0xffff0000")
            X.I(f"s_mov_b32 s37, {NEG_LOG2E}")
            for q in [T + 4 * dt for dt in range(5)] + [BS + 4 * dt for dt in range(5)] + [DS_ + 4 * dt for dt in range(5)]:
                X.I(f"v_lshlrev_b32 v{q}, 16, v{q+2}")
                X.I(f"v_and_b32 v{q+1}, s36, v{q+2}")
                X.I(f"v_lshlrev_b32 v{q+2}, 16, v{q+3}")
                X.I(f"v_and_b32 v{q+3}, s36, v{q+3}")
            for e in range(20): X.I(f"v_add_f32 v{ACC+e}, v{ACC+e}, v{T+e}")
            for e in range(20): X.I(f"v_mul_f32 v{T+e}, s37, v{ACC+e}")
            for e in range(20): X.I(f"v_exp_f32 v{T+e}, v{T+e}")
            for e in range(20): X.I(f"v_add_f32 v{T+e}, 1.0, v{T+e}")
            for e in range(20): X.I(f"v_rcp_f32 v{T+e}, v{T+e}")
            for e in range(20): X.I(f"v_mul_f32 v{ACC+e}, v{ACC+e}, v{T+e}")
            for e in range(20): X.I(f"v_fma_f32 v{T+e}, v{BS+e}, v{EV+1}, -v{EV}")
            for e in range(20): X.I(f"v_mul_f32 v{DS_+e}, v{DS_+e}, v{ACC+e}")
            for e in range(20): X.I(f"v_fmac_f32 v{BS+e}, v{T+e}, v{DS_+e}")
            cnt_wait(X, f"{L}w3", 4, 5, CNT_L + 52, 4)
            for dt in range(5):
                X.I(f"ds_write_b128 v{DW}, {vr(ACC+4*dt,4)} offset:{1024*dt}")
                X.I(f"ds_write_b128 v{DW}, {vr(BS+4*dt,4)} offset:{5120+1024*dt}")
            X.I("s_lshl_b32 s38, s35, 2")
            X.I(f"s_add_u32 s38, s38, {CNT_L+64}")
            cnt_add(X, 4, 5, "s38")
            X.wait_lg()
        else:
            SO = 48
            mk_srd(X, SO, 10, 11, 5242880)
            X.I("v_lshrrev_b32 v4, 2, v3")
            X.I("v_lshl_add_u32 v4, v4, 2, v3")
            X.I("v_add_u32 v4, s65, v4")
            X.I("v_mul_u32_u24 v10, 2560, v4")
            X.I("v_lshl_add_u32 v10, v1, 4, v10")
            X.I("s_lshl_b32 s66, s66, 1")
            X.I("s_mul_i32 s67, s35, 15360")
            X.I("v_add_u32 v11, s67, v2")
            X.I("s_lshl_b32 s38, s35, 2")
            X.I(f"s_add_u32 s38, s38, {CNT_L+64}")
            cnt_wait(X, f"{L}w3", 4, 5, "s38", 1)
            GQ = ACC + 20; BQ = ACC + 40
            for dt in range(5):
                X.I(f"ds_read_b128 {vr(GQ+4*dt,4)}, v11 offset:{1024*dt}", tag=f"g{dt}")
                X.I(f"ds_read_b128 {vr(BQ+4*dt,4)}, v11 offset:{5120+1024*dt}", tag=f"g{dt}")
            if "coal" in dbg:
                X.I("v_mul_u32_u24 v12, 320, v3")
                X.I("v_lshl_add_u32 v12, v1, 4, v12")
                X.I("v_add_u32 v12, s67, v12")
                OVO = RD
                for e in range(5):
                    X.I(f"v_add_u32 v4, {64*e}, v0")
                    X.I("v_mul_u32_u24 v5, 3277, v4")
                    X.I("v_lshrrev_b32 v5, 16, v5")
                    X.I("v_mul_u32_u24 v6, 20, v5")
                    X.I("v_sub_u32 v4, v4, v6")
                    X.I("v_lshrrev_b32 v6, 2, v5")
                    X.I("v_lshl_add_u32 v5, v6, 2, v5")
                    X.I("v_add_u32 v5, s65, v5")
                    X.I("v_mul_u32_u24 v5, 2560, v5")
                    X.I(f"v_lshl_add_u32 v{OVO+e}, v4, 4, v5")
            for dt in range(5):
                X.wait_lg(f"g{dt}")
                for r in range(4): X.I(f"v_fmac_f32 v{BQ+4*dt+r}, v{ACC+4*dt+r}, v{GQ+4*dt+r}")
                if "coal" in dbg:
                    X.I(f"ds_write_b128 v12, {vr(BQ+4*dt,4)} offset:{10240+64*dt}")
                else:
                    X.I(f"buffer_store_dwordx4 {vr(BQ+4*dt,4)}, v10, s[{SO}:{SO+3}], s66 offen offset:{64*dt}{os.environ.get('STF2','')}")
            if "coal" in dbg:
                for e in range(5):
                    X.I(f"ds_read_b128 {vr(GQ+4*e,4)}, v11 offset:{10240+1024*e}", tag=f"o{e}")
                for e in range(5):
                    X.wait_lg(f"o{e}")
                    X.I(f"buffer_store_dwordx4 {vr(GQ+4*e,4)}, v{OVO+e}, s[{SO}:{SO+3}], s66 offen{os.environ.get('STF2','')}")
    def adv():
        return [("s_add_u32 s26, s26, 1", None), ("s_cmp_eq_u32 s26, 10", None), ("s_cselect_b32 s26, 0, s26", None)]

    S = Stream(A)
    stamp, st = mkstamp(S)
    ACC = 16
    BUF = 56
    CA, CSB, CCO, CCX, CAS, CSBS = 168, 173, 178, 183, 188, 193
    A8, SB8, A128, SB128 = 198, 200, 202, 204
    SUM, SQ, ONE = 206, 214, 222
    MRV, RV = 226, 234
    DV = 246
    vG_, vC_, vSg = 1, 2, 3
    SX, SBBS = 40, 44
    if "early" in dbg: stamp()
    S.I(f"s_mul_i32 s36, s32, {128*1280}")
    mk_srd(S, SX, 4, 5, 128 * 1280, 36)
    S.I("v_lshrrev_b32 v4, 3, v0")
    S.I("v_and_b32 v5, 7, v0")
    S.I("v_and_b32 v6, 2, v4")
    S.I("v_lshrrev_b32 v7, 2, v4")
    S.I("v_or_b32 v6, v6, v7")
    S.I("v_xor_b32 v6, v6, v5")
    S.I("s_mul_i32 s36, s35, 40960")
    S.I("v_mul_u32_u24 v7, 1280, v4")
    S.I("v_add_u32 v8, s36, v7")
    for e in range(4):
        S.I(f"v_xor_b32 v9, {4 if e >= 2 else 0}, v6")
        S.I(f"v_lshl_add_u32 v{DV+e}, v9, 4, v8")
        if e: S.I(f"v_add_u32 v{DV+e}, {10240*e}, v{DV+e}")
    S.I("v_xor_b32 v9, v4, v5")
    S.I(f"v_lshl_add_u32 v{DV+4}, v9, 4, v7")
    S.I("s_lshl_b32 s37, s35, 12")
    S.I("s_mov_b32 s36, s35")
    bb_srd(S, SBBS, 27)
    def s_dma(p):
        q = p % 4
        L = []
        for e in range(4):
            g = [(f"s_add_u32 m0, s37, {q*SLOT + 1024*e}", None), (f"buffer_load_dwordx4 v{DV+e}, s[{SX}:{SX+3}], s38 offen lds", f"c{p}")]
            if e == 0: g = [("s_lshl_b32 s38, s26, 7", None)] + g
            L.append(g)
        L.append([(f"s_add_u32 m0, s27, {q*SLOT}", None), (f"buffer_load_dwordx4 v{DV+4}, s[{SBBS}:{SBBS+3}], s38 offen lds", f"c{p}")] + adv())
        return L
    S.I(f"v_lshrrev_b32 v{vG_}, 4, v0")
    S.I(f"v_and_b32 v{vC_}, 15, v0")
    if "early" in dbg: stamp()
    emit(S, s_dma(0))
    if "early" in dbg: stamp()
    def pslots(t):
        return (CCO + t, CCX + t, CAS + t) if t < 5 else (A128, SB128, A128 + 1)
    def par_issue():
        S.I("v_and_b32 v11, 7, v0")
        S.I("v_lshlrev_b32 v11, 1, v11")
        S.I(f"v_add_u32 v11, {PAR_L}, v11")
        S.I(f"v_lshlrev_b32 v12, 4, v{vG_}")
        S.I("v_add_u32 v12, v11, v12")
        for t in range(6):
            vo = "v11" if t < 5 else "v12"
            off = 16 * t if t < 5 else 0
            lre, lim, ldt = pslots(t)
            S.I(f"ds_read_u16 v{lre}, {vo} offset:{off}")
            S.I(f"ds_read_u16 v{lim}, {vo} offset:{off+128}")
            S.I(f"ds_read_u16 v{ldt}, {vo} offset:{off+256}")
    SJA, SJB, SWS = 56, 60, 64
    TT = BUF + 48
    S.I(f"v_lshrrev_b32 v{TT}, 2, v{vC_}")
    S.I(f"v_and_b32 v{TT+1}, 3, v{vC_}")
    S.I(f"v_lshlrev_b32 v{TT+2}, 3, v{TT}")
    S.I(f"v_add_u32 v{TT+2}, v{TT+2}, v{TT+1}")
    S.I("s_lshl_b32 s36, s35, 5")
    S.I(f"v_add_u32 v{TT+2}, s36, v{TT+2}")
    S.I(f"v_lshlrev_b32 v{TT+2}, 7, v{TT+2}")
    S.I(f"v_lshrrev_b32 v{TT+3}, 1, v{TT}")
    S.I(f"v_lshlrev_b32 v{TT+3}, 2, v{TT+3}")
    S.I(f"v_and_b32 v{TT+4}, 2, v{TT+1}")
    S.I(f"v_or_b32 v{TT+3}, v{TT+3}, v{TT+4}")
    S.I(f"v_xor_b32 v{TT+3}, v{TT+3}, v{vG_}")
    for T in range(2):
        for sp in range(2):
            d = 4 + 2 * T + sp
            S.I(f"v_xor_b32 v{TT+4}, {(4*sp) ^ T}, v{TT+3}")
            S.I(f"v_lshl_add_u32 v{d}, v{TT+4}, 4, v{TT+2}")
            if T: S.I(f"v_add_u32 v{d}, 512, v{d}")
    S.I(f"v_and_b32 v{TT}, 7, v{vC_}")
    S.I(f"v_xor_b32 v{TT}, v{TT}, v{vG_}")
    S.I(f"v_lshlrev_b32 v{TT+1}, 7, v{vC_}")
    for sp in range(2):
        S.I(f"v_xor_b32 v{TT+2}, {4*sp}, v{TT}")
        S.I(f"v_lshl_add_u32 v{8+sp}, v{TT+2}, 4, v{TT+1}")
        S.I(f"v_add_u32 v{8+sp}, {BB_O}, v{8+sp}")
    for k in range(4): S.I(f"v_mov_b32 v{ONE+k}, 0x3f803f80")
    S.I(f"v_mul_u32_u24 v10, 80, v{vG_}")
    S.I(f"v_lshrrev_b32 v{vSg}, 3, v{vC_}")
    S.I(f"v_cvt_f32_u32 v{vSg}, v{vSg}")
    S.I(f"v_fma_f32 v{vSg}, v{vSg}, 2.0, -1.0")
    S.I(f"s_mov_b32 s20, {LOG2E}")
    S.I(f"s_mov_b32 s21, {INV2PI}")
    def powr(ar, rev, n, da, dsb, t0):
        L = []
        if n is None:
            L.append(f"v_exp_f32 v{t0}, v{ar}")
            L.append(f"v_fract_f32 v{t0+1}, v{rev}")
        else:
            L.append(f"v_mul_f32 v{t0}, {n}, v{ar}")
            L.append(f"v_mul_f32 v{t0+1}, {n}, v{rev}")
            L.append(f"v_exp_f32 v{t0}, v{t0}")
            L.append(f"v_fract_f32 v{t0+1}, v{t0+1}")
        L.append(f"v_cos_f32 v{t0+2}, v{t0+1}")
        L.append(f"v_sin_f32 v{t0+3}, v{t0+1}")
        L.append(f"v_mul_f32 v{t0+3}, v{t0}, v{t0+3}")
        L.append(f"v_mul_f32 v{da}, v{t0}, v{t0+2}")
        L.append(f"v_mul_f32 v{dsb}, v{t0+3}, v{vSg}")
        return L
    def arrev(t):
        return (CAS + t, CSBS + t) if t < 5 else (A128, SB128)
    partA = ["s_lshl_b32 s36, s35, 2", f"v_add_u32 v245, s36, v{vG_}", "v_lshlrev_b32 v245, 3, v245", "v_cvt_f32_u32 v245, v245"]
    for t in range(6):
        lre, lim, ldt = pslots(t)
        ar, rev = 242, 243
        partA += [f"v_lshlrev_b32 v{lre}, 16, v{lre}", f"v_lshlrev_b32 v{lim}, 16, v{lim}", f"v_lshlrev_b32 v11, 16, v{ldt}",
                  "v_mul_f32 v11, s20, v11", "v_exp_f32 v11, v11", "v_cvt_pk_bf16_f32 v11, 0, v11",
                  f"v_mul_f32 v12, v11, v{lre}", f"v_mul_f32 v13, v11, v{lim}",
                  f"v_mul_f32 v{ar}, s20, v12", f"v_mul_f32 v{rev}, s21, v13"]
        if t < 5:
            partA += powr(ar, rev, None, CA + t, CSB + t, 11)
            partA += [f"v_add_f32 v11, -1.0, v{CA+t}", f"v_mul_f32 v12, v{lre}, v{lre}", f"v_fmac_f32 v12, v{lim}, v{lim}",
                      "v_rcp_f32 v12, v12", f"v_mul_f32 v13, v11, v{lre}", f"v_fmac_f32 v13, v14, v{lim}",
                      f"v_mul_f32 v244, v14, v{lre}", f"v_fma_f32 v244, -v11, v{lim}, v244", "v_mul_f32 v12, -2.0, v12",
                      f"v_mul_f32 v{CCX+t}, v244, v12", "v_mul_f32 v13, v13, v12", f"v_mul_f32 v{CCO+t}, v13, v{vSg}"]
            partA += powr(ar, rev, "v245", CAS + t, CSBS + t, 11)
        if t >= 4:
            k = 1 if t == 4 else 0
            partA += powr(ar, rev, f"{f2u(8.0)}", A8 + k, SB8 + k, 11)
            partA += powr(ar, rev, f"{f2u(128.0)}", 254 if t == 4 else A128, 255 if t == 4 else SB128, 11)
    partA += [f"v_mov_b32 v{A128+1}, v254", f"v_mov_b32 v{SB128+1}, v255"]
    SAG, SST = 48, 52
    S.I(f"s_mul_i32 s36, s33, {AGG_G}")
    mk_srd(S, SAG, 30, 31, AGG_G, 36, AGG_OFF)
    emit(S, s_dma(1))
    S.raw(";;DRYPT")
    stamp()
    def s_reads(p):
        b = BUF + (p & 1) * 56
        L = []
        for sp in range(2):
            for T in range(2):
                L.append([(f"ds_read_b128 {vr(b+(sp*2+T)*4,4)}, v{4+2*T+sp}", f"r{p}")])
            for j in range(5):
                L.append([(f"ds_read_b128 {vr(b+16+(sp*5+j)*4,4)}, v{8+sp} offset:{2048*j}", f"r{p}")])
        delta = SLOT if p % 4 != 3 else (-3 * SLOT) & 0xffffffff
        L.append([(f"v_add_u32 v{k}, {delta}, v{k}", None) for k in range(4, 10)])
        return L
    def s_stat(p):
        b = BUF + (p & 1) * 56
        L = []
        for sp in range(2):
            for T in range(2):
                x = vr(b + (sp * 2 + T) * 4, 4)
                z = (p == 0 and sp == 0)
                L.append(f"v_mfma_f32_16x16x32_bf16 {vr(SUM+4*T,4)}, {x}, {vr(ONE,4)}, {'0' if z else vr(SUM+4*T,4)}")
                L.append(f"v_mfma_f32_16x16x32_bf16 {vr(SQ+4*T,4)}, {x}, {x}, {'0' if z else vr(SQ+4*T,4)}")
        return L
    def s_mfma(p):
        b = BUF + (p & 1) * 56
        L = []
        for sp in range(2):
            for j in range(5):
                for T in range(2):
                    ac = ACC + 8 * j + 4 * T
                    c = "0" if (p == 0 and sp == 0) else vr(ac, 4)
                    L.append(f"v_mfma_f32_16x16x32_bf16 {vr(ac,4)}, {vr(b+(sp*2+T)*4,4)}, {vr(b+16+(sp*5+j)*4,4)}, {c}")
        return L
    for p in range(10):
        S.wait_vm(f"c{p}")
        S.I("s_barrier")
        stamp(True)
        if p in (0, 9): stamp()
        side = s_dma(p + 3) if p + 3 <= 9 else []
        if p == 0: side = s_dma(2)
        if p == 1: side = s_dma(3) + side
        rd = s_reads(p)
        if p == 2:
            par_issue()
        fill = []
        if 3 <= p <= 8:
            nper = (len(partA) + 5) // 6
            fill = [[(m, None)] for m in partA[(p - 3) * nper:(p - 2) * nper]]
        if p == 9:
            fill += [[("s_lshl_b32 s36, s32, 7", None), (f"s_add_u32 s36, s36, {GO_O}", None), ("v_mov_b32 v15, s36", None),
                      (f"buffer_load_dword v15, v15, s[{SAG}:{SAG+3}], 0 offen sc1", "clr")]]
        if "dmaonly" in dbg: emit(S, side)
        elif p == 0: emit(S, rd + side + fill)
        else: merge(S, s_stat(p - 1) + s_mfma(p - 1), mix(mix(rd, side), fill), 0.9)
        S.wait_lg()
    S.raw(";;DRYSTART")
    if "fine" in dbg: stamp()
    for m in s_stat(9): S.I(m)
    mm = s_mfma(9)
    CSV = BUF + 16
    S.I(f"v_lshlrev_b32 v12, 2, v{vC_}")
    for m in mm[:5]: S.I(m)
    for T in range(2):
        for r in range(4):
            S.I(f"ds_bpermute_b32 v{SQ+4*T+r}, v10, v{SQ+4*T+r} offset:{4*r}", tag="bp")
    for m in mm[5:9]: S.I(m)
    S.wait_lg("bp")
    if "fine" in dbg: stamp()
    fin = []
    K640 = f2u(1.0 / 640)
    for step in range(12):
        for k in range(8):
            su, sq = SUM + k, SQ + k
            fin.append([
                f"v_mul_f32 v{su}, {K640}, v{su}",
                f"v_mul_f32 v{sq}, {K640}, v{sq}",
                f"v_fma_f32 v{sq}, -v{su}, v{su}, v{sq}",
                f"v_max_f32 v{sq}, 0, v{sq}",
                f"v_cvt_pk_bf16_f32 v{su}, 0, v{su}",
                f"v_cvt_pk_bf16_f32 v{sq}, 0, v{sq}",
                f"v_add_f32 v{sq}, {f2u(1e-5)}, v{sq}",
                f"v_cvt_pk_bf16_f32 v{sq}, 0, v{sq}",
                f"v_sqrt_f32 v{sq}, v{sq}",
                f"v_cvt_pk_bf16_f32 v{sq}, 0, v{sq}",
                f"v_rcp_f32 v{RV+k}, v{sq}",
                f"v_mul_f32 v{MRV+k}, v{su}, v{RV+k}"][step])
    adds = ["s_lshl_b32 s36, s35, 7", f"v_lshlrev_b32 v13, 5, v{vG_}", "v_add_u32 v13, s36, v13", f"v_add_u32 v14, {STATS_L}, v13",
             "s_mul_i32 s36, s35, 1280", f"v_mul_u32_u24 v6, 320, v{vG_}", "v_add3_u32 v6, v6, v12, s36", f"v_add_u32 v7, {SEG_L}, v6",
             "v_lshlrev_b32 v8, 2, v0", f"v_add_u32 v9, {SEG_L}, v8", "v_mov_b32 v10, v12", f"v_add_u32 v11, {SEG_L+256}, v10",
             "s_lshl_b32 s38, s35, 2", f"s_add_u32 s38, s38, {CNT_L+16}", f"v_add_u32 v13, {CSB_L}, v12"]
    fin = fin[:40] + adds + fin[40:]
    merge(S, mm[9:], [[(m, None)] for m in fin], 1.0)
    stamp()
    cnt_wait(S, f"L_{name}_e0", 4, 5, CNT_L + 4, 4)
    if "noprio" not in dbg: S.I("s_setprio 3")
    if "f2" in dbg: stamp()
    for wv in range(4):
        for j in range(5):
            S.I(f"ds_read_b32 v{CSV+5*wv+j}, v13 offset:{320*wv+64*j}", tag="stt")
    S.I("s_mov_b32 exec_lo, 0x00010001")
    S.I("s_mov_b32 exec_hi, 0x00010001")
    for k in range(2):
        S.I(f"ds_write_b128 v14, {vr(MRV+4*k,4)} offset:{16*k}")
        S.I(f"ds_write_b128 v14, {vr(RV+4*k,4)} offset:{512+16*k}")
    cnt_add(S, 4, 5, "s38")
    for t2 in range(4):
        for j in range(5):
            a = ACC + 8 * j + 2 * t2
            S.I(f"v_mul_f32 v{a}, v{a}, v{RV+2*t2}")
            S.I(f"v_mul_f32 v{a+1}, v{a+1}, v{RV+2*t2+1}")
    S.wait_lg("stt")
    if "f2" in dbg: stamp()
    for j in range(5):
        S.I(f"v_add_f32 v{CSV+j}, v{CSV+j}, v{CSV+5+j}")
        S.I(f"v_add_f32 v{CSV+10+j}, v{CSV+10+j}, v{CSV+15+j}")
    for j in range(5):
        S.I(f"v_add_f32 v{CSV+j}, v{CSV+j}, v{CSV+10+j}")
    EA, EB = BUF + 40, BUF + 45
    cur = None
    for tl in range(8):
        for j in range(5):
            a = ACC + 8 * j + tl
            S.I(f"v_fma_f32 v{a}, -v{MRV+tl}, v{CSV+j}, v{a}")
        if tl == 0:
            cur = [ACC + 8 * j for j in range(5)]
        else:
            dst = EA if tl & 1 else EB
            for j in range(5):
                S.I(f"v_fma_f32 v{dst+j}, v{CA+j}, v{cur[j]}, v{ACC+8*j+tl}")
            for j in range(5):
                S.I(f"v_fmac_f32_dpp v{dst+j}, v{cur[j]}, v{CSB+j} {DPP}")
            cur = [dst + j for j in range(5)]
    if "f2" in dbg: stamp()
    for j in range(5):
        S.I(f"ds_write_b32 v7, v{cur[j]} offset:{64*j}")
    cnt_add(S, 4, 5, CNT_L)
    S.I("s_waitcnt vmcnt(0)")
    S.vm = []
    if "f2" in dbg: stamp()
    cnt_wait(S, f"L_{name}_x1", 4, 5, CNT_L, 4)
    stamp()
    EC = BUF + 56
    for s_ in range(16):
        S.I(f"ds_read_b32 v{EC+s_}, v9 offset:{320*s_}", tag=f"e{s_}")
        S.I(f"ds_read_b32 v{EC+16+s_}, v11 offset:{320*s_}", tag=f"e{s_}")
    S.I("v_lshlrev_b32 v4, 3, v0")
    S.I(f"v_lshlrev_b32 v5, 3, v{vC_}")
    PB = BUF + 90
    S.I(f"v_mov_b32 v{PB+1}, {TAG}")
    S.I(f"v_mov_b32 v{PB+3}, {TAG}")
    S.I("s_add_u32 s37, s32, 15")
    S.I("s_mul_i32 s37, s37, 640")
    for s_ in range(1, 16):
        S.wait_lg(f"e{s_}")
        for k in range(2):
            S.I(f"v_fmac_f32 v{EC+16*k+s_}, v{A8+k}, v{EC+16*k+s_-1}")
        for k in range(2):
            S.I(f"v_fmac_f32_dpp v{EC+16*k+s_}, v{EC+16*k+s_-1}, v{SB8+k} {DPP}")
    S.I("s_cmp_lg_u32 s35, 0")
    S.I(f"s_cbranch_scc1 L_{name}_nopub")
    S.I(f"v_mov_b32 v{PB}, v{EC+15}")
    S.I(f"v_mov_b32 v{PB+2}, v{EC+31}")
    S.I(f"buffer_store_dwordx2 {vr(PB,2)}, v4, s[{SAG}:{SAG+3}], s37 offen sc1")
    S.vm.pop()
    S.I(f"buffer_store_dwordx2 {vr(PB+2,2)}, v5, s[{SAG}:{SAG+3}], s37 offen offset:512 sc1")
    S.vm.pop()
    S.label(f"L_{name}_nopub")
    S.I("v_mov_b32 v254, v15")
    stamp()
    GL = BUF
    G0, G1 = 206, 221
    QV = BUF + 96
    S.I("v_lshlrev_b32 v252, 4, v0")
    S.I("s_mul_i32 s70, s32, 640")
    S.I("s_add_u32 s71, s70, 4096")
    S.I("s_add_u32 s69, s70, 8192")
    def gran_issue():
        for n in range(10):
            so = "s70" if n < 4 else ("s71" if n < 8 else "s69")
            S.I(f"buffer_load_dwordx4 {vr(GL+4*n,4)}, v252, s[{SAG}:{SAG+3}], {so} offen offset:{(n%4)*1024} sc1")
        S.vm = []
    def qstuff():
        S.I(f"v_add_u32 v9, {Q_L}, v8")
        S.I(f"v_add_u32 v11, {Q_L+256}, v10")
        S.I(f"v_mov_b32 v{PB}, 0")
        S.I(f"ds_write_b32 v9, v{PB}", tag="q")
        for s_ in range(15):
            S.I(f"ds_write_b32 v9, v{EC+s_} offset:{320*(s_+1)}", tag="q")
        S.I("s_mov_b64 exec, 0xffff")
        S.I(f"ds_write_b32 v11, v{PB}", tag="q")
        for s_ in range(15):
            S.I(f"ds_write_b32 v11, v{EC+16+s_} offset:{320*(s_+1)}", tag="q")
        S.I("s_mov_b64 exec, -1")
        S.I(f"v_add_u32 v7, {Q_L}, v6")
        for j in range(5):
            S.I(f"ds_read_b32 v{QV+j}, v7 offset:{64*j}", tag="qv")
    qstuff()
    S.I(f"v_add_u32 v9, {HS_L}, v8")
    S.I(f"v_add_u32 v11, {HS_L}, v10")
    S.I("s_cmp_lg_u32 s35, 0")
    S.I(f"s_cbranch_scc1 L_{name}_hw")
    S.I("s_cmp_eq_u32 s32, 0")
    S.I(f"s_cbranch_scc1 L_{name}_r0")
    S.I("s_mov_b32 s39, 0")
    S.I("s_lshl_b32 s38, s32, 7")
    S.I(f"s_add_u32 s38, s38, {GO_O}")
    S.I("v_mov_b32 v14, s38")
    S.label(f"L_{name}_cl")
    S.I("v_readfirstlane_b32 s38, v15")
    S.I("s_add_u32 s39, s39, 1")
    S.I(f"s_cmp_eq_u32 s38, {TAG}")
    S.I(f"s_cbranch_scc1 L_{name}_clok")
    S.I(f"buffer_load_dword v15, v14, s[{SAG}:{SAG+3}], 0 offen sc1")
    S.I("s_waitcnt vmcnt(0)")
    S.I("s_cmp_lt_u32 s39, 0x100000" if "nosync" not in dbg else "s_cmp_lt_u32 s39, 0")
    S.I(f"s_cbranch_scc1 L_{name}_cl")
    S.label(f"L_{name}_clok")
    S.I("v_mov_b32 v254, v15")
    gran_issue()
    cnt_wait(S, f"L_{name}_m9", 12, 13, CNT_L + 8, 4)
    S.I(f"v_mov_b32 v14, {TAG}")
    S.I(f"v_add_u32 v4, {GR_L}, v4")
    S.I(f"v_add_u32 v5, {GR_L}, v5")
    S.I(f"v_add_u32 v253, {GR_L}, v252")
    S.I("v_cmp_gt_u32 s[22:23], 24, v0")
    S.I("s_sub_u32 s38, 15, s32")
    S.I("s_mul_i32 s38, s38, 640")
    S.I("s_lshr_b32 s38, s38, 10")
    S.I("s_mov_b32 s39, 0")
    S.label(f"L_{name}_gp")
    S.I("s_waitcnt vmcnt(0)")
    S.I(f"v_cndmask_b32 v{GL+37}, v14, v{GL+37}, s[22:23]")
    S.I(f"v_cndmask_b32 v{GL+39}, v14, v{GL+39}, s[22:23]")
    S.I(f"v_and_b32 v12, v{GL+1}, v{GL+3}")
    S.I(f"v_or_b32 v13, v{GL+1}, v{GL+3}")
    for n in range(1, 10):
        S.I(f"v_and_b32 v15, v{GL+4*n+1}, v{GL+4*n+3}")
        S.I(f"v_or3_b32 v13, v13, v{GL+4*n+1}, v{GL+4*n+3}")
        S.I("v_and_b32 v12, v12, v15")
    S.I("v_cmp_eq_u32 vcc, v12, v14")
    S.I("v_cmp_eq_u32 s[24:25], v13, v14")
    S.I("s_and_b64 s[24:25], s[24:25], vcc")
    S.I("s_add_u32 s39, s39, 1")
    S.I("s_cmp_eq_u64 s[24:25], -1")
    S.I(f"s_cbranch_scc1 L_{name}_gpv")
    S.I("s_cmp_ge_u32 s39, 0x40000" if "nosync" not in dbg else "s_cmp_ge_u32 s39, 0")
    S.I(f"s_cbranch_scc1 L_{name}_gpv")
    for n in range(10):
        so = "s70" if n < 4 else ("s71" if n < 8 else "s69")
        if n < 9:
            S.I(f"s_cmp_gt_u32 s38, {n}")
            S.I(f"s_cbranch_scc1 L_{name}_gs{n}")
        S.I(f"buffer_load_dwordx4 {vr(GL+4*n,4)}, v252, s[{SAG}:{SAG+3}], {so} offen offset:{(n%4)*1024} sc1")
        if n < 9: S.label(f"L_{name}_gs{n}")
    S.I(f"s_branch L_{name}_gp")
    S.label(f"L_{name}_gpv")
    for n in range(10):
        S.I(f"ds_write_b128 v253, {vr(GL+4*n,4)} offset:{1024*n}")
    for d in range(15, 0, -1):
        o = (15 - d) * 640
        S.I(f"ds_read_b32 v{G0+d-1}, v4 offset:{o}")
        S.I(f"ds_read_b32 v{G1+d-1}, v5 offset:{o+512}")
    S.I("s_waitcnt lgkmcnt(0)")
    S.label(f"L_{name}_gpok")
    S.lg = []; S.vm = []
    for d in range(14, 0, -1):
        for (g_, k) in ((G0, 0), (G1, 1)):
            S.I(f"v_fmac_f32 v{g_+d-1}, v{A128+k}, v{g_+d}")
        for (g_, k) in ((G0, 0), (G1, 1)):
            S.I(f"v_fmac_f32_dpp v{g_+d-1}, v{g_+d}, v{SB128+k} {DPP}")
    S.I(f"s_branch L_{name}_hp")
    S.label(f"L_{name}_r0")
    S.I(f"v_mov_b32 v{G0}, 0")
    S.I(f"v_mov_b32 v{G1}, 0")
    S.label(f"L_{name}_hp")
    S.I(f"ds_write_b32 v9, v{G0}", tag="h")
    S.I(f"ds_write_b32 v11, v{G1} offset:256", tag="h")
    cnt_add(S, 12, 13, CNT_L + 12)
    S.label(f"L_{name}_hw")
    cnt_wait(S, f"L_{name}_hwl", 12, 13, CNT_L + 12, 1)
    stamp()
    HV = BUF + 32
    for j in range(5):
        S.I(f"ds_read_b32 v{HV+j}, v11 offset:{64*j}", tag="hv")
    S.I(f"v_mul_u32_u24 v9, 272, v{vC_}")
    S.I(f"v_lshlrev_b32 v12, 4, v{vG_}")
    S.I("s_lshl_b32 s36, s35, 6")
    S.I("v_add3_u32 v9, v9, v12, s36")
    S.wait_lg()
    for j in range(5):
        S.I(f"v_fmac_f32 v{QV+j}, v{CAS+j}, v{HV+j}")
    for j in range(5):
        S.I(f"v_fmac_f32_dpp v{QV+j}, v{HV+j}, v{CSBS+j} {DPP}")
    for tl in range(8):
        prev = [QV + j if tl == 0 else ACC + 8 * j + tl - 1 for j in range(5)]
        for j in range(5):
            S.I(f"v_fmac_f32 v{ACC+8*j+tl}, v{CA+j}, v{prev[j]}")
        for j in range(5):
            S.I(f"v_fmac_f32_dpp v{ACC+8*j+tl}, v{prev[j]}, v{CSB+j} {DPP}")
    OV = BUF + 40
    PK = BUF + 80
    for j in range(5):
        p_, sel = pr(CCO + j)
        for t2 in range(4):
            S.I(f"v_pk_mul_f32 {vr(OV+8*j+2*t2,2)}, {vr(ACC+8*j+2*t2,2)}, {p_} op_sel:[0,{sel}] op_sel_hi:[1,{sel}]")
        for tl in range(8):
            S.I(f"v_fmac_f32_dpp v{OV+8*j+tl}, v{ACC+8*j+tl}, v{CCX+j} {DPP}")
        for k in range(4):
            S.I(f"v_cvt_pk_bf16_f32 v{PK+4*j+k}, v{OV+8*j+2*k}, v{OV+8*j+2*k+1}")
        S.I(f"ds_write_b128 v9, {vr(PK+4*j,4)} offset:{16*272*j}", tag="tw")
    S.I(f"v_lshrrev_b32 v11, 2, v{vC_}")
    S.I("v_mul_u32_u24 v11, 272, v11")
    S.I(f"v_and_b32 v4, 3, v{vC_}")
    S.I("v_lshlrev_b32 v4, 4, v4")
    S.I("v_add3_u32 v11, v11, v4, s36")
    S.I(f"v_mul_u32_u24 v4, {8*272}, v{vG_}")
    S.I("v_add_u32 v4, v11, v4")
    S.I(f"v_and_b32 v5, 1, v{vG_}")
    S.I(f"v_mul_u32_u24 v5, {8*272}, v5")
    S.I(f"v_lshrrev_b32 v7, 1, v{vG_}")
    S.I("v_lshlrev_b32 v7, 3, v7")
    S.I("v_add3_u32 v5, v11, v5, v7")
    SHF = 40
    S.I("s_lshl_b32 s36, s32, 2")
    S.I("s_add_u32 s36, s36, s35")
    S.I(f"s_mul_i32 s36, s36, {2*HF_RT}")
    S.I("s_mul_i32 s37, s33, 2560")
    S.I("s_add_u32 s36, s36, s37")
    mk_srd(S, SHF, 30, 31, HF_RT + 2560, 36, HF_OFF)
    S.I("v_lshlrev_b32 v7, 4, v0")
    S.I(f"v_and_b32 v10, 1, v{vG_}")
    S.I("v_lshlrev_b32 v10, 8, v10")
    S.I(f"v_lshlrev_b32 v8, 4, v{vC_}")
    S.I("v_add_u32 v10, v10, v8")
    S.I(f"v_lshrrev_b32 v8, 1, v{vG_}")
    S.I(f"v_mul_u32_u24 v8, {HF_RT}, v8")
    S.I("v_add_u32 v10, v10, v8")
    S.I(f"s_mov_b32 s37, {HF_RT}")
    S.wait_lg()
    RD = BUF
    for n in range(5):
        for e in range(2):
            if n < 4:
                off = (n & 1) * 32 * 272 + e * 4 * 272 + (n >> 1) * 8
                S.I(f"ds_read_b64_tr_b16 {vr(RD+4*n+2*e,2)}, v4 offset:{off}", tag=f"t{n}")
            else:
                S.I(f"ds_read_b64_tr_b16 {vr(RD+4*n+2*e,2)}, v5 offset:{64*272+e*4*272}", tag=f"t{n}")
    for n in range(5):
        S.wait_lg(f"t{n}")
        if n < 4:
            so = "0" if n < 2 else "s37"
            S.I(f"buffer_store_dwordx4 {vr(RD+4*n,4)}, v7, s[{SHF}:{SHF+3}], {so} offen offset:{(n&1)*1024}{STH}", tag="st")
        else:
            S.I(f"buffer_store_dwordx4 {vr(RD+4*n,4)}, v10, s[{SHF}:{SHF+3}], 0 offen offset:2048{STH}", tag="st")
    phaseB(S, "Y", stamp)
    final_stamps(S, st)
    S.I("s_endpgm")

    M = Stream(A)
    M.label(f"L_{name}_M")
    stamp, st = mkstamp(M)
    SBB, SW1, SB1, SH1, SDB, SAGM = 40, 48, 52, 56, 60, 64
    MACC, XB, WB, FR = 24, 72, 104, 200
    CBA, CBF, WA, MSK = FR, FR + 20, FR + 40, FR + 52
    lbl = [0]
    if "early" in dbg: stamp()
    M.I("s_cmp_lg_u32 s35, 3")
    M.I("s_cselect_b64 vcc, -1, 0")
    mk_srd(M, SW1, 20, 21, 1966080)
    M.I("s_mul_i32 s39, s33, 192")
    M.I("s_lshl_b32 s36, s35, 8")
    for e in range(4):
        M.I(f"v_add_u32 v22, {64*e}, v0")
        M.I("v_add_u32 v22, s36, v22")
        M.I("v_min_u32 v22, 767, v22")
        M.I("v_mul_u32_u24 v23, 43691, v22")
        M.I("v_lshrrev_b32 v23, 19, v23")
        M.I("v_mul_u32_u24 v9, 12, v23")
        M.I("v_sub_u32 v22, v22, v9")
        M.I("v_lshlrev_b32 v22, 4, v22")
        M.I("v_mul_u32_u24 v23, 3072, v23")
        M.I(f"v_add3_u32 v{1+e}, v22, v23, s39")
    M.I("s_lshl_b32 s68, s35, 12")
    M.I(f"s_add_u32 s68, s68, {W1_O}")
    M.I("s_lshl_b32 s36, s35, 1")
    M.I("s_add_u32 s36, s36, 4")
    M.I("s_min_u32 s36, s36, 8")
    bb_srd(M, SBB, 69)
    M.I("s_lshl_b32 s36, s35, 1")
    M.I("s_add_u32 s36, s36, 5")
    M.I("s_min_u32 s36, s36, 9")
    bb_srd(M, SBB + 4, 70)
    M.I("v_lshrrev_b32 v22, 3, v0")
    M.I("v_and_b32 v23, 7, v0")
    M.I("v_xor_b32 v13, v22, v23")
    M.I("v_mul_u32_u24 v5, 1280, v22")
    M.I("v_lshl_add_u32 v13, v13, 4, v5")
    def guard(g):
        lbl[0] += 1
        return [(f"s_cbranch_vccz L_{name}_g{lbl[0]}", None)] + g + [(f"L_{name}_g{lbl[0]}:", None)]
    def m_dma(p):
        q = p % 4
        L = []
        g = [("s_lshl_b32 s38, s26, 7", None)]
        for e in range(2):
            g += [(f"s_add_u32 m0, s{69+e}, {q*SLOT}", None), (f"buffer_load_dwordx4 v13, s[{SBB+4*e}:{SBB+4*e+3}], s38 offen lds", f"c{p}")]
        L.append(guard(g))
        for e2 in range(2):
            g = [("s_mul_i32 s71, s26, 196608", None)] if e2 == 0 else []
            for e in (2 * e2, 2 * e2 + 1):
                g += [(f"s_add_u32 m0, s68, {q*SLOT + 1024*e}", None), (f"buffer_load_dwordx4 v{1+e}, s[{SW1}:{SW1+3}], s71 offen lds", f"c{p}")]
            if e2 == 1: g += adv()
            L.append(guard(g))
        return L
    def m_wait(tag):
        lbl[0] += 1
        M.I(f"s_cbranch_vccz L_{name}_g{lbl[0]}")
        M.wait_vm(tag)
        M.label(f"L_{name}_g{lbl[0]}")
    M.vm = []
    if "early" in dbg: stamp()
    emit(M, m_dma(0))
    if "early" in dbg: stamp()
    mk_srd(M, SDB, 28, 29, 256)
    M.I(f"s_mul_i32 s36, s33, {AGG_G}")
    mk_srd(M, SAGM, 30, 31, AGG_G, 36, AGG_OFF)
    for k in range(2): M.I(f"v_mov_b32 v{14+k}, 0")
    for k in range(4): M.I(f"v_mov_b32 v{18+k}, 0x3f803f80")
    savevm = list(M.vm)
    M.I(f"s_cbranch_vccnz L_{name}_noclr")
    M.I("v_min_u32 v8, 19, v0")
    M.I("v_lshlrev_b32 v8, 2, v8")
    M.I("s_mul_i32 s36, s33, 80")
    M.I("v_add_u32 v8, s36, v8")
    M.I("global_load_dword v1, v8, s[6:7]")
    M.I("global_load_dword v2, v8, s[8:9]")
    M.I("global_load_dword v3, v8, s[18:19]")
    M.I("v_min_u32 v8, 47, v0")
    M.I("v_lshlrev_b32 v8, 2, v8")
    M.I("s_mul_i32 s36, s33, 192")
    M.I("v_add_u32 v8, s36, v8")
    M.I("global_load_dword v4, v8, s[22:23]")
    mk_srd(M, SB1, 30, 31, 8192, None, FL_OFF)
    M.I("s_lshl_b32 s36, s32, 7")
    M.I("s_lshl_b32 s39, s33, 2")
    M.I("s_add_u32 s36, s36, s39")
    M.I("v_and_b32 v8, 1, v0")
    M.I("v_lshlrev_b32 v8, 11, v8")
    M.I("v_add_u32 v8, s36, v8")
    M.I("s_and_b32 s36, s2, 7")
    M.I("s_lshr_b32 s39, s2, 3")
    M.I("s_and_b32 s26, s36, 3")
    M.I("s_lshl_b32 s26, s26, 3")
    M.I("s_and_b32 s27, s39, 7")
    M.I("s_add_u32 s26, s26, s27")
    M.I("s_lshr_b32 s27, s36, 2")
    M.I("s_lshl_b32 s27, s27, 2")
    M.I("s_lshr_b32 s39, s39, 3")
    M.I("s_add_u32 s27, s27, s39")
    M.I("s_lshl_b32 s36, s27, 7")
    M.I("s_lshl_b32 s39, s26, 2")
    M.I("s_add_u32 s36, s36, s39")
    M.I("s_add_u32 s36, s36, 4096")
    M.I("v_writelane_b32 v8, s36, 2")
    M.I("s_mov_b64 exec, 7")
    M.I(f"buffer_store_dword v14, v8, s[{SB1}:{SB1+3}], 0 offen sc1")
    M.I("s_mov_b64 exec, -1")
    M.I("v_lshlrev_b32 v8, 3, v0")
    M.I("v_and_b32 v10, 15, v0")
    M.I("v_lshlrev_b32 v10, 3, v10")
    M.I("s_add_u32 s37, s32, 15")
    M.I("s_mul_i32 s37, s37, 640")
    M.I(f"buffer_store_dwordx2 v[14:15], v8, s[{SAGM}:{SAGM+3}], s37 offen sc1")
    M.I(f"buffer_store_dwordx2 v[14:15], v10, s[{SAGM}:{SAGM+3}], s37 offen offset:512 sc1")
    M.I("s_lshl_b32 s37, s32, 7")
    M.I(f"s_add_u32 s37, s37, {GO_O}")
    M.I(f"buffer_store_dwordx2 v[14:15], v14, s[{SAGM}:{SAGM+3}], s37 offen sc1")
    M.I("s_cmp_lg_u32 s32, 0")
    M.I(f"s_cbranch_scc1 L_{name}_noclr")
    M.I("v_mov_b32 v10, 0")
    M.I(f"v_mov_b32 v11, {TAG}")
    M.I("s_mov_b32 s37, 0")
    for k in range(19):
        if k == 18:
            M.I("v_min_u32 v8, 376, v8")
        M.I(f"buffer_store_dwordx2 v[10:11], v8, s[{SAGM}:{SAGM+3}], s37 offen offset:{(k%8)*512} sc1")
        if k % 8 == 7: M.I("s_add_u32 s37, s37, 4096")
    M.label(f"L_{name}_noclr")
    M.vm = savevm
    stamp()
    M.I("v_and_b32 v22, 15, v0")
    M.I("v_bfe_u32 v23, v0, 4, 1")
    T1 = XB
    M.I(f"v_lshrrev_b32 v{T1}, 2, v22")
    M.I(f"v_and_b32 v{T1+1}, 3, v22")
    M.I(f"v_lshlrev_b32 v{T1+2}, 3, v{T1}")
    M.I(f"v_lshl_add_u32 v{T1+2}, v23, 2, v{T1+2}")
    M.I(f"v_add_u32 v{T1+2}, v{T1+2}, v{T1+1}")
    M.I("s_lshl_b32 s36, s35, 5")
    M.I(f"v_add_u32 v{T1+5}, s36, v{T1+2}")
    M.I(f"v_lshlrev_b32 v{T1+2}, 7, v{T1+5}")
    M.I(f"v_lshrrev_b32 v{T1+3}, 1, v{T1}")
    M.I(f"v_lshlrev_b32 v{T1+3}, 2, v{T1+3}")
    M.I(f"v_and_b32 v{T1+4}, 2, v{T1+1}")
    M.I(f"v_or3_b32 v{T1+3}, v{T1+3}, v{T1+4}, v23")
    M.I(f"v_lshrrev_b32 v{T1+4}, 5, v0")
    M.I(f"v_xor_b32 v{T1+3}, v{T1+3}, v{T1+4}")
    M.I(f"v_lshlrev_b32 v{T1+6}, 3, v{T1+4}")
    M.I(f"v_bfe_u32 v{T1+7}, v0, 2, 2")
    M.I(f"v_add_u32 v{T1+6}, v{T1+6}, v{T1+7}")
    M.I(f"v_mul_u32_u24 v{T1+6}, 192, v{T1+6}")
    M.I(f"v_lshl_add_u32 v{T1+6}, v23, 5, v{T1+6}")
    M.I(f"v_and_b32 v{T1+7}, 3, v0")
    M.I(f"v_lshl_add_u32 v{T1+6}, v{T1+7}, 3, v{T1+6}")
    M.I(f"v_add_u32 v{T1+6}, {W1_O}, v{T1+6}")
    M.I(f"v_xor_b32 v{T1+7}, v23, v0")
    M.I(f"v_and_b32 v{T1+7}, 1, v{T1+7}")
    M.I(f"v_add_u32 v{T1+7}, -1, v{T1+7}")
    M.I(f"v_and_b32 v{MSK}, 0x3f803f80, v{T1+7}")
    for k in range(1, 4): M.I(f"v_mov_b32 v{MSK+k}, v{MSK}")
    for u in range(4):
        M.I(f"v_xor_b32 v{T1+4}, {2*u}, v{T1+3}")
        M.I(f"v_lshl_add_u32 v{5+u}, v{T1+4}, 4, v{T1+2}")
    for j2 in range(3):
        M.I(f"s_add_u32 s36, s35, {j2}")
        M.I("s_sub_u32 s39, s36, 3")
        M.I("s_cmp_ge_u32 s36, 3")
        M.I(f"s_cselect_b32 s{4+j2}, s39, s36")
        M.I(f"s_lshl_b32 s39, s{4+j2}, 6")
        M.I(f"v_add_u32 v{9+j2}, s39, v{T1+6}")
    M.I(f"v_lshlrev_b32 v23, 3, v{T1+5}")
    mk_srd(M, SB1, 22, 23, 3072)
    M.I(f"v_lshrrev_b32 v{T1}, 4, v0")
    M.I("s_and_b32 s36, s35, 1")
    M.I("s_lshl_b32 s36, s36, 2")
    M.I(f"v_add_u32 v{T1}, s36, v{T1}")
    M.I(f"v_and_b32 v{T1+1}, 7, v0")
    M.I(f"v_xor_b32 v{T1}, v{T1}, v{T1+1}")
    M.I(f"v_lshlrev_b32 v{T1+1}, 7, v22")
    M.I(f"v_lshl_add_u32 v16, v{T1}, 4, v{T1+1}")
    M.I(f"v_add_u32 v16, {BB_O}, v16")
    M.I(f"v_lshlrev_b32 v{T1}, 3, v0")
    M.I(f"v_add_u32 v{T1}, {CSW_L}, v{T1}")
    M.I(f"ds_write_b64 v{T1}, v[14:15]")
    for k in range(20): M.I(f"v_mov_b32 v{CBA+k}, 0")
    M.I("s_lshr_b32 s37, s35, 1")
    emit(M, m_dma(1))
    M.raw(";;DRYPT")
    def m_reads(p):
        L = []
        for u in range(4):
            L.append([(f"ds_read_b128 {vr(XB+16*(p&1)+4*u,4)}, v{5+u}", f"r{p}")])
            for jt in range(3):
                L.append([(f"ds_read_b64_tr_b16 {vr(WB+48*(p&1)+12*u+4*jt+2*e,2)}, v{9+jt} offset:{u*3072+e*768}", f"r{p}") for e in range(2)])
        delta = SLOT if p % 4 != 3 else (-3 * SLOT) & 0xffffffff
        L.append([(f"v_add_u32 v{k}, {delta}, v{k}", None) for k in range(5, 12)])
        return L
    def m_mfma(p):
        L = []
        for u in range(4):
            c = "0" if (p == 0 and u < 2) else vr(WA + 4 * (u & 1), 4)
            L.append(f"v_mfma_f32_16x16x32_bf16 {vr(WA+4*(u&1),4)}, {vr(WB+48*(p&1)+12*u,4)}, {vr(MSK,4)}, {c}")
        for u in range(4):
            for jt in range(3):
                c = "0" if (p == 0 and u == 0) else vr(MACC + 16 * jt, 16)
                L.append(f"v_mfma_f32_32x32x16_bf16 {vr(MACC+16*jt,16)}, {vr(WB+48*(p&1)+12*u+4*jt,4)}, {vr(XB+16*(p&1)+4*u,4)}, {c}")
        return L
    SJL = 2 * SLOT
    def sj_ids():
        M.I("s_and_b32 s36, s2, 7")
        M.I("s_lshr_b32 s39, s2, 3")
        M.I("s_and_b32 s26, s36, 3")
        M.I("s_lshl_b32 s26, s26, 3")
        M.I("s_and_b32 s27, s39, 7")
        M.I("s_add_u32 s26, s26, s27")
        M.I("s_lshr_b32 s27, s36, 2")
        M.I("s_lshl_b32 s27, s27, 2")
        M.I("s_lshr_b32 s39, s39, 3")
        M.I("s_add_u32 s27, s27, s39")
    def sj_issue_w():
        mk_srd(M, 40, 24, 25, 1966080)
        for jk in range(2):
            M.I(f"s_add_u32 s39, s26, {32*jk}")
            M.I("s_min_u32 s39, s39, 47")
            M.I(f"s_mul_i32 s{68+jk}, s27, {5*H1F_RT}")
            M.I("s_lshl_b32 s36, s39, 10")
            M.I(f"s_add_u32 s{68+jk}, s{68+jk}, s36")
            M.I("s_mul_i32 s39, s39, 40960")
            M.I("s_mul_i32 s36, s27, 160")
            M.I(f"s_add_u32 s{22+jk}, s36, s39")
        for e in range(5):
            M.I(f"v_add_u32 v1, {64*e}, v0")
            M.I("v_mul_u32_u24 v2, 6554, v1")
            M.I("v_lshrrev_b32 v2, 16, v2")
            M.I("v_mul_u32_u24 v3, 10, v2")
            M.I("v_sub_u32 v1, v1, v3")
            M.I("v_mul_u32_u24 v2, 1280, v2")
            M.I("v_lshl_add_u32 v1, v1, 4, v2")
            for jk in range(2):
                M.I(f"s_mov_b32 m0, {SJL + 5120*jk + 1024*e}")
                M.I(f"buffer_load_dwordx4 v1, s[40:43], s{22+jk} offen lds")
    def sj_issue_c():
        mk_srd(M, 44, 14, 15, 819200)
        mk_srd(M, 48, 16, 17, 819200)
        for jk in range(2):
            M.I(f"s_add_u32 s38, s26, {32*jk}")
            M.I("s_min_u32 s38, s38, 49")
            M.I(f"s_mul_hi_u32 s36, s38, {(2**32 + 9)//10}")
            M.I("s_mul_i32 s39, s36, 10")
            M.I("s_sub_u32 s39, s38, s39")
            M.I("s_mul_i32 s38, s27, 5")
            M.I("s_add_u32 s36, s36, s38")
            M.I(f"s_mul_i32 s{70+jk}, s36, {HF_RT}")
            M.I("s_lshl_b32 s38, s39, 12")
            M.I(f"s_add_u32 s{70+jk}, s{70+jk}, s38")
            M.I(f"s_add_u32 s{70+jk}, s{70+jk}, {CF_OFF - W2F_OFF}")
            M.I("s_mul_i32 s36, s36, 20480")
            M.I("s_lshl_b32 s39, s39, 7")
            M.I("s_add_u32 s36, s36, s39")
            M.I("s_add_u32 s39, s36, 10240")
            for (sr, mo) in ((44, 0), (48, 2048)):
                M.I(f"s_mov_b32 m0, {SJL + 10240 + 4096*jk + mo}")
                M.I(f"buffer_load_dwordx4 v13, s[{sr}:{sr+3}], s36 offen lds")
                M.I(f"s_mov_b32 m0, {SJL + 10240 + 4096*jk + mo + 1024}")
                M.I(f"buffer_load_dwordx4 v13, s[{sr}:{sr+3}], s39 offen lds")
    def sj_finish():
        mk_srd(M, 40, 30, 31, STATS_OFF - W2F_OFF, None, W2F_OFF)
        M.I("v_lshrrev_b32 v1, 4, v0")
        M.I("v_lshrrev_b32 v2, 1, v1")
        M.I("v_lshlrev_b32 v12, 4, v2")
        M.I("v_and_b32 v3, 1, v1")
        M.I("v_lshl_add_u32 v12, v3, 2, v12")
        M.I("v_lshrrev_b32 v17, 2, v22")
        M.I("v_add_u32 v12, v12, v17")
        M.I("v_mul_u32_u24 v12, 160, v12")
        M.I("v_and_b32 v17, 3, v22")
        M.I("v_lshl_add_u32 v12, v17, 3, v12")
        M.I(f"v_add_u32 v12, {SJL}, v12")
        M.I("v_lshlrev_b32 v3, 11, v3")
        M.I("v_lshl_add_u32 v3, v22, 7, v3")
        M.I("v_and_b32 v17, 7, v22")
        M.I("v_xor_b32 v2, v2, v17")
        M.I("v_lshl_add_u32 v3, v2, 4, v3")
        M.I(f"v_add_u32 v3, {SJL + 10240}, v3")
        M.I("v_lshlrev_b32 v1, 4, v0")
        RW = [WB, WB + 20]; RC_ = [CBF, CBA]
        for jk in range(2):
            for j in range(5):
                for e in range(2):
                    M.I(f"ds_read_b64_tr_b16 {vr(RW[jk]+4*j+2*e,2)}, v12 offset:{5120*jk+32*j+1280*e}")
        for j in range(4):
            M.I(f"v_xor_b32 v2, {32*j}, v3")
            for jk in range(2):
                M.I(f"ds_read_b128 {vr(RC_[jk]+4*j,4)}, v2 offset:{4096*jk}")
        M.I("s_waitcnt lgkmcnt(0)")
        for jk in range(2):
            for j in range(5):
                M.I(f"buffer_store_dwordx4 {vr(RW[jk]+4*j,4)}, v1, s[40:43], s{68+jk} offen sc1")
                M.vm.pop()
                if j < 4: M.I(f"s_add_u32 s{68+jk}, s{68+jk}, {H1F_RT}")
        for jk in range(2):
            for j in range(4):
                M.I(f"buffer_store_dwordx4 {vr(RC_[jk]+4*j,4)}, v1, s[40:43], s{70+jk} offen offset:{1024*j} sc1")
                M.vm.pop()
    B1V = WB + 24
    for p in range(10):
        m_wait(f"c{p}")
        if p == 1:
            M.I(f"s_cbranch_vccnz L_{name}_w7")
            M.I("s_waitcnt vmcnt(0)")
            M.I("v_min_u32 v17, 19, v0")
            M.I("v_lshlrev_b32 v17, 2, v17")
            M.I(f"v_add_u32 v17, {PAR_L}, v17")
            M.I("ds_write_b32 v17, v1")
            M.I("ds_write_b32 v17, v2 offset:128")
            M.I("ds_write_b32 v17, v3 offset:256")
            M.lg = []
            M.label(f"L_{name}_w7")
        if p == 0: M.wait_lg()
        M.I("s_barrier")
        stamp(True)
        if p in (0, 9): stamp()
        side = m_dma(p + 3) if p + 3 <= 9 else []
        if p == 0: side = m_dma(2)
        if p == 1: side = m_dma(3) + side
        rd = m_reads(p)
        M.I(f"s_cmp_lg_u32 s37, {p & 1}")
        M.I(f"s_cbranch_scc1 L_{name}_cs{p}a")
        for j in range(5):
            M.I(f"ds_read_b128 {vr(CBF+4*j,4)}, v16 offset:{2048*j}")
            M.lg.pop()
        M.label(f"L_{name}_cs{p}a")
        delta = SLOT if p % 4 != 3 else (-3 * SLOT) & 0xffffffff
        M.I(f"v_add_u32 v16, {delta}, v16")
        def cs_mfma():
            M.I(f"s_cmp_lg_u32 s37, {p & 1}")
            M.I(f"s_cbranch_scc1 L_{name}_cs{p}b")
            for j in range(5):
                M.I(f"v_mfma_f32_16x16x32_bf16 {vr(CBA+4*j,4)}, v[18:21], {vr(CBF+4*j,4)}, {vr(CBA+4*j,4)}")
            M.label(f"L_{name}_cs{p}b")
        if "dmaonly" in dbg: emit(M, side)
        elif p == 0: emit(M, rd + side)
        elif p == 9:
            mm8 = m_mfma(8)
            for m in mm8[:6]: M.I(m)
            M.I("s_waitcnt lgkmcnt(0)")
            cs_mfma()
            for m in mm8[6:8]: M.I(m)
            M.I("s_mul_i32 s36, s35, 320")
            M.I(f"s_add_u32 s36, s36, {CSB_L}")
            M.I("v_lshlrev_b32 v17, 2, v22")
            M.I("v_add_u32 v17, s36, v17")
            M.I("s_nop 3")
            M.I("s_mov_b64 exec, 0xffff")
            for j in range(5):
                M.I(f"ds_write_b32 v17, v{CBA+4*j} offset:{64*j}", tag="sw")
            cnt_add(M, 16, 17, CNT_L + 4)
            merge(M, mm8[8:], rd, 0.9)
            M.I(f"s_cbranch_vccnz L_{name}_nb1")
            M.I("v_min_u32 v17, 47, v0")
            M.I("v_lshlrev_b32 v17, 3, v17")
            M.I(f"v_add_u32 v17, {B1F_L}, v17")
            M.I("v_lshlrev_b32 v2, 16, v4")
            M.I("v_and_b32 v3, 0xffff0000, v4")
            M.I("ds_write_b64 v17, v[2:3]")
            M.label(f"L_{name}_nb1")
        else: merge(M, m_mfma(p - 1), mix(rd, side), 0.9)
        if p in (7, 8):
            svm = list(M.vm)
            M.I(f"s_cbranch_vccnz L_{name}_si{p}")
            if p == 7:
                M.I("s_waitcnt vmcnt(0)")
                M.I("v_readfirstlane_b32 s36, v15")
                M.I("s_cmp_lg_u32 s36, 15")
                M.I(f"s_cbranch_scc1 L_{name}_nb")
                mk_srd(M, SB1, 30, 31, 16 * AGG_G, None, AGG_OFF)
                M.I("v_lshlrev_b32 v14, 7, v22")
                M.I("v_lshrrev_b32 v15, 4, v0")
                M.I(f"v_mul_u32_u24 v15, {AGG_G}, v15")
                M.I(f"v_add3_u32 v14, v14, v15, {0}") if False else M.I("v_add_u32 v14, v14, v15")
                M.I(f"v_add_u32 v14, {GO_O}, v14")
                M.I(f"v_mov_b32 v15, {TAG}")
                for n in range(4):
                    M.I(f"s_mov_b32 s36, {4*n*AGG_G}")
                    M.I(f"buffer_store_dword v15, v14, s[{SB1}:{SB1+3}], s36 offen sc1")
                    M.vm.pop()
                M.label(f"L_{name}_nb")
                sj_ids(); sj_issue_w()
            else: sj_issue_c()
            M.label(f"L_{name}_si{p}")
            M.vm = svm
        if p == 1:
            M.I(f"s_cbranch_vccnz L_{name}_na")
            M.I("s_waitcnt vmcnt(0)")
            M.I("s_lshl_b32 s36, s33, 4")
            M.I("v_mov_b32 v14, s36")
            M.I("v_mov_b32 v15, 1")
            M.I("s_mov_b64 exec, 1")
            M.I(f"buffer_atomic_add v15, v14, s[{SDB}:{SDB+3}], 0 offen sc0")
            M.vm.pop()
            M.I("s_mov_b64 exec, -1")
            M.label(f"L_{name}_na")
        if p == 5:
            M.I(f"s_cbranch_vccnz L_{name}_n2")
            M.I("s_waitcnt vmcnt(0)")
            M.I("v_readfirstlane_b32 s36, v15")
            M.I("v_mov_b32 v15, 0")
            M.I("s_cmp_lg_u32 s36, 15")
            M.I(f"s_cbranch_scc1 L_{name}_n2")
            M.I("v_mov_b32 v14, 4")
            M.I("v_mov_b32 v15, 1")
            M.I("s_mov_b64 exec, 1")
            M.I(f"buffer_atomic_add v15, v14, s[{SDB}:{SDB+3}], 0 offen sc0")
            M.vm.pop()
            M.I("s_mov_b64 exec, -1")
            M.label(f"L_{name}_n2")
        M.I("s_waitcnt lgkmcnt(0)")
        M.lg = []
        if p < 9: cs_mfma()
    mm = m_mfma(9)
    M.raw(";;DRYSTART")
    M.I("s_lshl_b32 s38, s35, 2")
    M.I(f"s_add_u32 s38, s38, {CNT_L+16}")
    if "mdelay" in dbg: cnt_wait(M, f"L_{name}_mw2", 16, 17, "s38", 1)
    for m in mm[:4]: M.I(m)
    for m in mm[4:8]: M.I(m)
    for r in range(4): M.I(f"v_add_f32 v{WA+r}, v{WA+r}, v{WA+4+r}")
    M.I("v_and_b32 v16, 1, v0")
    M.I("v_lshlrev_b32 v16, 6, v16")
    M.I("v_lshrrev_b32 v17, 4, v0")
    M.I("v_lshl_add_u32 v16, v17, 4, v16")
    M.I("s_lshl_b32 s36, s4, 7")
    M.I(f"s_add_u32 s36, s36, {CSW_L}")
    M.I("v_add_u32 v16, s36, v16")
    M.I("s_mov_b32 exec_lo, 0x00030003")
    M.I("s_mov_b32 exec_hi, 0x00030003")
    M.I(f"ds_write_b128 v16, {vr(WA,4)}")
    cnt_add(M, 16, 17, CNT_L + 8)
    for m in mm[8:]: M.I(m)
    svm, slg = list(M.vm), list(M.lg)
    M.I(f"s_cbranch_vccnz L_{name}_sjl")
    M.I("s_waitcnt vmcnt(0)")
    sj_finish()
    M.label(f"L_{name}_sjl")
    M.vm, M.lg = svm, slg
    stamp()
    cnt_wait(M, f"L_{name}_mw1", 16, 17, CNT_L + 8, 4)
    if "mdelay" not in dbg: cnt_wait(M, f"L_{name}_mw2", 16, 17, "s38", 1)
    stamp()
    M.I("s_lshl_b32 s36, s32, 7")
    M.I(f"s_add_u32 s36, s36, {GO_O}")
    M.I("v_mov_b32 v7, s36")
    M.I(f"buffer_load_dword v7, v7, s[{SAGM}:{SAGM+3}], 0 offen sc1")
    M.vm.pop()
    CSV = XB
    B1V = WB + 16
    M.I("v_lshrrev_b32 v10, 5, v0")
    M.I("v_lshlrev_b32 v11, 4, v10")
    M.I(f"v_add_u32 v12, {B1F_L}, v11")
    M.I(f"v_add_u32 v11, {CSW_L}, v11")
    M.I("v_lshrrev_b32 v23, 1, v23")
    M.I(f"v_add_u32 v23, {STATS_L}, v23")
    M.I("ds_read_b32 v14, v23")
    M.I("ds_read_b32 v15, v23 offset:512")
    for jt in range(3):
        M.I(f"s_lshl_b32 s36, s{4+jt}, 7")
        M.I("v_add_u32 v16, s36, v11")
        M.I("v_add_u32 v17, s36, v12")
        M.I(f"s_lshl_b32 s{4+jt}, s{4+jt}, 10")
        for q in range(4):
            M.I(f"ds_read_b128 {vr(CSV+(jt*4+q)*4,4)}, v16 offset:{32*q}", tag=f"cr{jt}")
            M.I(f"ds_read_b128 {vr(B1V+(jt*4+q)*4,4)}, v17 offset:{32*q}", tag=f"cr{jt}")
    M.I("s_lshl_b32 s36, s32, 2")
    M.I("s_add_u32 s36, s36, s35")
    M.I(f"s_mul_i32 s36, s36, {2*H1F_RT}")
    M.I("s_mul_i32 s39, s33, 3072")
    M.I("s_add_u32 s36, s36, s39")
    mk_srd(M, SH1, 30, 31, H1F_RT + 3072, 36, H1F_OFF)
    M.I("v_bfe_u32 v9, v0, 4, 1")
    M.I(f"v_mul_u32_u24 v9, {H1F_RT}, v9")
    M.I("v_lshl_add_u32 v9, v10, 8, v9")
    M.I("v_lshl_add_u32 v9, v22, 4, v9")
    C1 = -2.0 * 1.4426950408889634 * 0.7978845608028654
    C2 = C1 * 0.044715
    M.I(f"v_mov_b32 v16, {f2u(C2)}")
    M.I(f"v_mov_b32 v17, {f2u(C1)}")
    TM = FR
    late = []
    for jt in range(3):
        M.wait_lg(f"cr{jt}")
        P = [MACC + 16 * jt + 2 * k for k in range(8)]
        cs = [CSV + jt * 16 + 2 * k for k in range(8)]
        b1 = [B1V + jt * 16 + 2 * k for k in range(8)]
        T_ = [TM + 2 * k for k in range(8)]
        for k in range(8):
            M.I(f"v_pk_fma_f32 {vr(b1[k],2)}, v[14:15], {vr(cs[k],2)}, {vr(b1[k],2)} op_sel:[0,0,0] op_sel_hi:[0,1,1] neg_lo:[1,0,0] neg_hi:[1,0,0]")
        for k in range(8):
            M.I(f"v_pk_fma_f32 {vr(P[k],2)}, {vr(P[k],2)}, v[14:15], {vr(b1[k],2)} op_sel:[0,1,0] op_sel_hi:[1,1,1]")
        for k in range(8):
            M.I(f"v_pk_mul_f32 {vr(T_[k],2)}, {vr(P[k],2)}, {vr(P[k],2)}")
        for k in range(8):
            M.I(f"v_pk_fma_f32 {vr(T_[k],2)}, {vr(T_[k],2)}, v[16:17], v[16:17] op_sel:[0,0,1] op_sel_hi:[1,0,1]")
        for k in range(8):
            M.I(f"v_pk_mul_f32 {vr(T_[k],2)}, {vr(T_[k],2)}, {vr(P[k],2)}")
        for k in range(16):
            M.I(f"v_exp_f32 v{TM+k}, v{TM+k}")
        for k in range(8):
            M.I(f"v_pk_add_f32 {vr(T_[k],2)}, {vr(T_[k],2)}, 1.0 op_sel_hi:[1,0]")
        for k in range(16):
            M.I(f"v_rcp_f32 v{TM+k}, v{TM+k}")
        for k in range(8):
            M.I(f"v_pk_mul_f32 {vr(P[k],2)}, {vr(P[k],2)}, {vr(T_[k],2)}")
        PKM = TM + 16 + 8 * jt
        for k in range(8):
            M.I(f"v_cvt_pk_bf16_f32 v{PKM+k}, v{P[k]}, v{P[k]+1}")
        def h1st(jt=jt, PKM=PKM):
            for AB in range(2):
                M.I(f"buffer_store_dwordx4 {vr(PKM+4*AB,4)}, v9, s[{SH1}:{SH1+3}], s{4+jt} offen offset:{512*AB}{STF}", tag="st")
        if jt == 1:
            M.I(f"s_cbranch_vccnz L_{name}_a2")
            M.I("s_waitcnt vmcnt(3)")
            mk_srd(M, 44, 30, 31, 8192, None, FL_OFF)
            M.I("s_lshl_b32 s36, s27, 7")
            M.I("s_lshl_b32 s39, s26, 2")
            M.I("s_add_u32 s36, s36, s39")
            M.I("s_add_u32 s36, s36, 4096")
            M.I("v_mov_b32 v1, s36")
            M.I(f"v_mov_b32 v2, {TAG}")
            M.I("s_mov_b64 exec, 1")
            M.I("buffer_store_dword v2, v1, s[44:47], 0 offen sc1")
            M.vm.pop()
            M.I("s_mov_b64 exec, -1")
            M.label(f"L_{name}_a2")
        if "mst" in dbg: late.append(h1st)
        else: h1st()
    if "mst" in dbg:
        cnt_wait(M, f"L_{name}_mw3", 16, 17, CNT_L + 12, 1)
        for f in late: f()
    M.I("s_cmp_lg_u32 s33, 0")
    M.I(f"s_cbranch_scc1 L_{name}_nostat")
    M.I("s_lshl_b32 s36, s32, 9")
    mk_srd(M, 40, 30, 31, 8192 + 512, 36, STATS_OFF)
    M.I(f"v_subrev_u32 v23, {STATS_L}, v23")
    M.I("s_mov_b32 s36, 8192")
    M.I("buffer_store_dword v14, v23, s[40:43], 0 offen sc1")
    M.I("buffer_store_dword v15, v23, s[40:43], s36 offen sc1")
    M.label(f"L_{name}_nostat")
    phaseB(M, "G", stamp)
    final_stamps(M, st)
    M.label(f"L_{name}_end")
    M.I("s_endpgm")
    if "dry" not in dbg:
        for X in (S, M): X.lines = [l for l in X.lines if not l.startswith(";;DRY")]
    else:
        print("dry blocks", add_dry(S, name, "ds", 39), add_dry(M, name, "dm", 39))
    desc = f""".section .rodata,"a"
.p2align 6
.amdhsa_kernel {name}
  .amdhsa_next_free_vgpr 256
  .amdhsa_next_free_sgpr 102
  .amdhsa_accum_offset 256
  .amdhsa_group_segment_fixed_size 0
  .amdhsa_kernarg_size 136
  .amdhsa_user_sgpr_count 2
  .amdhsa_user_sgpr_kernarg_segment_ptr 1
  .amdhsa_system_sgpr_workgroup_id_x 1
.end_amdhsa_kernel
.text"""
    return A.text() + "\n" + S.text() + "\n" + M.text() + "\n" + desc, (A.nins, S.nins, M.nins)
```

```python
from asmfw import *
from layout import *
import struct
def f2u(f): return struct.unpack("<I", struct.pack("<f", f))[0]
LOG2E = f2u(1.4426950408889634)
INV2PI = f2u(0.15915494309189535)
SLOT = 38912
BB_O = 16384
W1_O = 26624
MISC = 155648
SEG_L = MISC
CSW_L = MISC + 5120
CNT_L = CSW_L + 384
STATS_L = MISC + 5632
CSB_L = STATS_L + 1024
STG_L = 2 * SLOT
PAR_L = SEG_L
B1F_L = 34816
GR_L = 40960
TR_L = 0
Q_L = 24576
HS_L = 32768
TAG = 0x5a17c3e9
EP_L = 126976
MST_L = 0
NEG_LOG2E = 0xbfb8aa3b
DPP = "row_ror:8 row_mask:0xf bank_mask:0xf"

def mk_srd(A, d, lo, hi, nbytes, off_s=None, off_imm=0):
    if off_s is None and off_imm == 0:
        A.I(f"s_mov_b32 s{d}, s{lo}")
        A.I(f"s_and_b32 s{d+1}, s{hi}, 0xffff")
    else:
        if off_s is not None:
            if off_imm: A.I(f"s_add_u32 s{off_s}, s{off_s}, {off_imm}")
            A.I(f"s_add_u32 s{d}, s{lo}, s{off_s}")
        else:
            A.I(f"s_add_u32 s{d}, s{lo}, {off_imm}")
        A.I(f"s_addc_u32 s{d+1}, s{hi}, 0")
        A.I(f"s_and_b32 s{d+1}, s{d+1}, 0xffff")
    A.I(f"s_mov_b32 s{d+2}, {nbytes}")
    A.I(f"s_mov_b32 s{d+3}, 0x00020000")

def bb_srd(X, d, ldsreg):
    X.I(f"s_lshl_b32 s{ldsreg}, s36, 10")
    X.I(f"s_add_u32 s{ldsreg}, s{ldsreg}, {BB_O}")
    X.I("s_and_b32 s39, s36, 1")
    X.I("s_cmp_eq_u32 s39, 0")
    X.I(f"s_cselect_b32 s{d}, s10, s12")
    X.I(f"s_cselect_b32 s{d+1}, s11, s13")
    X.I("s_lshr_b32 s36, s36, 1")
    X.I("s_lshl_b32 s36, s36, 3")
    X.I("s_mul_i32 s39, s33, 40")
    X.I("s_add_u32 s36, s36, s39")
    X.I("s_mul_i32 s36, s36, 1280")
    X.I(f"s_add_u32 s{d}, s{d}, s36")
    X.I(f"s_addc_u32 s{d+1}, s{d+1}, 0")
    X.I(f"s_and_b32 s{d+1}, s{d+1}, 0xffff")
    X.I(f"s_mov_b32 s{d+2}, 10240")
    X.I(f"s_mov_b32 s{d+3}, 0x00020000")

def put(X, item):
    t, g = item
    if t.endswith(":"): X.label(t[:-1])
    else: X.I(t, tag=g)
def emit(X, L):
    for grp in L:
        for it in grp: put(X, it)
def merge(X, main, side, frac=1.0):
    side = list(side)
    n = max(1, int(len(main) * frac))
    done = 0
    for k, m in enumerate(main):
        X.I(m)
        tgt = min(len(side), ((k + 1) * len(side) + n - 1) // n)
        while done < tgt:
            for it in side[done]: put(X, it)
            done += 1
    while done < len(side):
        for it in side[done]: put(X, it)
        done += 1
def mix(a, b):
    out = []; ia = ib = 0
    while ia < len(a) or ib < len(b):
        if ib >= len(b) or (ia < len(a) and ia * len(b) <= ib * len(a)):
            out.append(a[ia]); ia += 1
        else:
            out.append(b[ib]); ib += 1
    return out

def cnt_add(X, va, vt, addr):
    X.I(f"v_mov_b32 v{va}, {addr}")
    X.I(f"v_mov_b32 v{vt}, 1")
    X.I("s_mov_b64 exec, 1")
    X.I(f"ds_add_u32 v{va}, v{vt}")
    X.I("s_mov_b64 exec, -1")
def cnt_wait(X, lab, va, vt, addr, val):
    X.I(f"v_mov_b32 v{va}, {addr}")
    X.I("s_mov_b32 s39, 0")
    X.label(lab)
    X.I(f"ds_read_b32 v{vt}, v{va}")
    X.I("s_waitcnt lgkmcnt(0)")
    X.lg = []
    X.I(f"v_readfirstlane_b32 s36, v{vt}")
    X.I("s_add_u32 s39, s39, 1")
    X.I(f"s_cmp_eq_u32 s36, {val}")
    X.I(f"s_cbranch_scc1 {lab}d")
    X.I("s_sleep 1")
    X.I("s_cmp_lt_u32 s39, 0x400000")
    X.I(f"s_cbranch_scc1 {lab}")
    X.label(lab + "d")

def pr(idx):
    return f"v[{idx & ~1}:{(idx & ~1) + 1}]", idx & 1

def add_dry(X, name, tag, sreg, minlen=10, maxlen=48):
    lines = X.lines
    i0 = lines.index(";;DRYSTART")
    head, tail = lines[:i0], lines[i0 + 1:]
    def pure(l):
        t = l.strip()
        if t.startswith("v_"):
            return not (t.startswith("v_cmp") or t.startswith("v_readfirstlane") or t.startswith("v_mfma") or t.startswith("v_readlane") or "co_u32" in t)
        return t.startswith("s_nop")
    out = []; nb = 0; i = 0
    while i < len(tail):
        j = i
        while j < len(tail) and pure(tail[j]): j += 1
        if j - i >= minlen:
            k = i
            while k < j:
                e = min(j, k + maxlen)
                if j - e < minlen: e = j
                out.append(f"L_{name}_{tag}{nb}:")
                out += tail[k:e]
                out.append(f"    s_cbranch_execz L_{name}_{tag}disp")
                nb += 1; k = e
            i = j
        else:
            out += tail[i:max(j, i + 1)]; i = max(j, i + 1)
    drv = [f"    s_mov_b32 s{sreg}, s35", "    s_mov_b64 exec, 0", f"    s_branch L_{name}_{tag}go",
           f"L_{name}_{tag}disp:", f"    s_add_u32 s{sreg}, s{sreg}, 4", f"L_{name}_{tag}go:"]
    for b in range(nb):
        drv += [f"    s_cmp_eq_u32 s{sreg}, {b}", f"    s_cbranch_scc1 L_{name}_{tag}{b}"]
    drv += ["    s_mov_b64 exec, -1"]
    p = head.index(";;DRYPT")
    X.lines = head[:p] + drv + head[p + 1:] + out
    return nb

def gen_kf(name="kf_kernel", stamps=False, rot=True, dbg=""):
    import os
    STF = os.environ.get("STF1", "")
    STH = os.environ.get("STH", STF)
    A = Stream()
    A.raw(f".globl {name}\n.p2align 8\n.type {name},@function\n{name}:")
    A.I("s_cmp_ge_u32 s2, 256")
    A.I(f"s_cbranch_scc1 L_{name}_end")
    class St:
        n = 0
    def mkstamp(X):
        st = St()
        def stamp(ph=False):
            if not stamps: return
            if ("phst" in dbg) != ph: return
            assert st.n < 12
            X.I(f"s_memtime s[{74+2*st.n}:{75+2*st.n}]"); st.n += 1
        return stamp, st
    if stamps:
        A.I("s_memtime s[72:73]")
        A.I("s_memrealtime s[98:99]")
    A.I("s_load_dwordx16 s[4:19], s[0:1], 0")
    A.I("s_load_dwordx4 s[20:23], s[0:1], 80")
    A.I("s_load_dwordx2 s[24:25], s[0:1], 96")
    A.I("s_load_dwordx4 s[28:31], s[0:1], 120")
    A.I("s_and_b32 s36, s2, 7")
    A.I("s_lshr_b32 s37, s2, 3")
    if "map2" in dbg:
        A.I("s_and_b32 s32, s37, 15")
    else:
        A.I("s_and_b32 s32, s36, 1")
        A.I("s_lshl_b32 s32, s32, 3")
        A.I("s_and_b32 s38, s37, 7")
        A.I("s_add_u32 s32, s32, s38")
    if "map2" in dbg:
        A.I("s_lshl_b32 s33, s36, 1")
        A.I("s_lshr_b32 s38, s37, 4")
    else:
        A.I("s_lshr_b32 s33, s36, 1")
        A.I("s_lshl_b32 s33, s33, 2")
        A.I("s_lshr_b32 s38, s37, 3")
    A.I("s_add_u32 s33, s33, s38")
    import os
    rm = os.environ.get("ROTM", "full")
    if rot and rm == "full":
        A.I("s_and_b32 s26, s33, 3")
        A.I("s_mul_i32 s26, s26, 3")
        A.I("s_and_b32 s27, s32, 7")
        A.I("s_add_u32 s26, s26, s27")
        A.I("s_sub_u32 s27, s26, 10")
        A.I("s_cmp_ge_u32 s26, 10")
        A.I("s_cselect_b32 s26, s27, s26")
    elif rot and rm == "r4":
        A.I("s_add_u32 s26, s33, s32")
        A.I("s_and_b32 s26, s26, 3")
    elif rot and rm == "r2":
        A.I("s_add_u32 s26, s33, s32")
        A.I("s_and_b32 s26, s26, 1")
        A.I("s_lshl_b32 s26, s26, 1")
    elif rot and rm == "r4x2":
        A.I("s_add_u32 s26, s33, s32")
        A.I("s_and_b32 s26, s26, 3")
        A.I("s_lshl_b32 s26, s26, 1")
    else:
        A.I("s_mov_b32 s26, 0")
    A.I("v_lshrrev_b32 v1, 6, v0")
    A.I("v_and_b32 v0, 63, v0")
    A.I("v_readfirstlane_b32 s34, v1")
    A.I("s_and_b32 s35, s34, 3")
    A.I("s_cmp_ge_u32 s34, 4")
    A.wait_lg()
    if "notlb" not in dbg:
        A.I(f"s_mul_i32 s36, s32, {128*1280}")
        A.I("s_mul_i32 s37, s33, 51200")
        A.I("s_load_dword s3, s[4:5], s36")
        A.I("s_load_dword s3, s[10:11], s37")
        A.I("s_load_dword s3, s[12:13], s37")
        A.I("s_load_dword s3, s[20:21], 0")
        A.I("s_load_dword s3, s[20:21], 0xffffc")
        A.I("s_cmp_ge_u32 s34, 4")
    A.I(f"s_cbranch_scc1 L_{name}_M")

    def final_stamps(X, st):
        if not stamps: return
        X.wait_all()
        X.I(f"s_memtime s[{74+2*st.n}:{75+2*st.n}]"); st.n += 1
        X.I("s_memrealtime s[100:101]")
        X.wait_lg()
        X.I("s_lshl_b32 s36, s2, 3")
        X.I("s_add_u32 s36, s36, s34")
        X.I("s_lshl_b32 s36, s36, 7")
        X.I("s_add_u32 s36, s36, 0x2000000")
        X.I("s_add_u32 s40, s30, s36")
        X.I("s_addc_u32 s41, s31, 0")
        X.I("s_and_b32 s41, s41, 0xffff")
        X.I("s_mov_b32 s42, 128")
        X.I("s_mov_b32 s43, 0x00020000")
        X.I("v_mov_b32 v1, 0")
        for i in range(st.n + 1):
            X.I(f"v_mov_b32 v2, s{72+2*i}")
            X.I(f"buffer_store_dword v2, v1, s[40:43], 0 offen offset:{4*i}")
        X.I("v_mov_b32 v2, s98")
        X.I("buffer_store_dword v2, v1, s[40:43], 0 offen offset:120")
        X.I("v_mov_b32 v2, s100")
        X.I("buffer_store_dword v2, v1, s[40:43], 0 offen offset:124")
    def side_issue(S, vG_, vC_, vBB, SJA, SJB, SWS, t1, t2, t3, vL, vA):
        mk_srd(S, SWS, 30, 31, STATS_OFF - W2F_OFF, None, W2F_OFF)
        S.I("s_lshl_b32 s26, s2, 2")
        S.I("s_add_u32 s26, s26, s35")
        if "nosj" in dbg: S.I("s_mov_b32 s26, 1000")
        S.I("s_lshl_b32 s27, s35, 12")
        S.I(f"s_add_u32 s27, s27, {STG_L}")
        S.I(f"v_lshlrev_b32 v{vL}, 4, v0")
        S.I(f"v_mov_b32 v{vA}, 0")
        S.I("s_mov_b32 s22, 0")
        S.I("s_mov_b32 s23, 0")
        savevm = list(S.vm)
        S.I("s_cmp_ge_u32 s26, 880")
        S.I(f"s_cbranch_scc1 L_{name}_sj0")
        S.I("s_cmp_ge_u32 s26, 480")
        S.I(f"s_cbranch_scc1 L_{name}_sjc")
        mk_srd(S, SJA, 24, 25, 1966080)
        S.I(f"s_mul_hi_u32 s36, s26, {(2**32 + 47)//48}")
        S.I("s_mul_i32 s39, s36, 48")
        S.I("s_sub_u32 s39, s26, s39")
        S.I(f"s_mul_i32 s22, s36, {4*H1F_RT}")
        S.I("s_lshl_b32 s23, s39, 10")
        S.I("s_add_u32 s22, s22, s23")
        S.I(f"s_mov_b32 s23, {H1F_RT}")
        S.I("s_mul_i32 s39, s39, 40960")
        S.I("s_lshl_b32 s36, s36, 7")
        S.I("s_add_u32 s36, s36, s39")
        S.I(f"v_lshrrev_b32 v{t1}, 3, v0")
        S.I(f"v_mul_u32_u24 v{t1}, 1280, v{t1}")
        S.I(f"v_and_b32 v{t2}, 7, v0")
        S.I(f"v_lshl_add_u32 v{t1}, v{t2}, 4, v{t1}")
        for e in range(4):
            S.I(f"s_add_u32 m0, s27, {1024*e}")
            S.I(f"buffer_load_dwordx4 v{t1}, s[{SJA}:{SJA+3}], s36 offen lds")
            if e < 3: S.I("s_add_u32 s36, s36, 10240")
        S.I(f"v_lshrrev_b32 v{t1}, 1, v{vG_}")
        S.I(f"v_lshlrev_b32 v{t1}, 11, v{t1}")
        S.I(f"v_and_b32 v{t2}, 1, v{vG_}")
        S.I(f"v_lshl_add_u32 v{t1}, v{t2}, 9, v{t1}")
        S.I(f"v_lshrrev_b32 v{t2}, 2, v{vC_}")
        S.I(f"v_lshl_add_u32 v{t1}, v{t2}, 7, v{t1}")
        S.I(f"v_and_b32 v{t2}, 3, v{vC_}")
        S.I(f"v_lshl_add_u32 v{t1}, v{t2}, 3, v{t1}")
        S.I(f"v_add_u32 v{vA}, s27, v{t1}")
        S.I(f"s_branch L_{name}_sj0")
        S.label(f"L_{name}_sjc")
        mk_srd(S, SJA, 14, 15, 819200)
        mk_srd(S, SJB, 16, 17, 819200)
        S.I("s_sub_u32 s39, s26, 480")
        S.I(f"s_mul_hi_u32 s36, s39, {(2**32 + 9)//10}")
        S.I("s_mul_i32 s22, s36, 10")
        S.I("s_sub_u32 s39, s39, s22")
        S.I(f"s_mul_i32 s22, s36, {HF_RT}")
        S.I("s_lshl_b32 s23, s39, 12")
        S.I("s_add_u32 s22, s22, s23")
        S.I(f"s_add_u32 s22, s22, {CF_OFF - W2F_OFF}")
        S.I("s_mov_b32 s23, 1024")
        S.I("s_mul_i32 s36, s36, 20480")
        S.I("s_lshl_b32 s39, s39, 7")
        S.I("s_add_u32 s36, s36, s39")
        S.I("s_add_u32 s39, s36, 10240")
        for (srd_, mo) in ((SJA, 0), (SJB, 2048)):
            S.I(f"s_add_u32 m0, s27, {mo}")
            S.I(f"buffer_load_dwordx4 v{vBB}, s[{srd_}:{srd_+3}], s36 offen lds")
            S.I(f"s_add_u32 m0, s27, {mo+1024}")
            S.I(f"buffer_load_dwordx4 v{vBB}, s[{srd_}:{srd_+3}], s39 offen lds")
        S.I(f"v_and_b32 v{t1}, 1, v{vG_}")
        S.I(f"v_lshlrev_b32 v{t1}, 11, v{t1}")
        S.I(f"v_lshl_add_u32 v{t1}, v{vC_}, 7, v{t1}")
        S.I(f"v_lshrrev_b32 v{t2}, 1, v{vG_}")
        S.I(f"v_and_b32 v{t3}, 7, v{vC_}")
        S.I(f"v_xor_b32 v{t2}, v{t2}, v{t3}")
        S.I(f"v_lshl_add_u32 v{t1}, v{t2}, 4, v{t1}")
        S.I(f"v_add_u32 v{vA}, s27, v{t1}")
        S.label(f"L_{name}_sj0")
        S.vm = savevm

    def phaseB(X, typ, stamp):
        L = f"L_{name}_{typ}"
        isG = typ == "G"
        RT = H1F_RT if isG else HF_RT
        NS = 12 if isG else 10
        D = int(os.environ.get("FDG" if isG else "FDY", "3"))
        LDF = os.environ.get("LDF", " sc1")
        ACC, STG = 16, 96
        VO = STG + 36 * D
        SA, SB0, SFL, SAGB = 40, 44, 52, 56
        PRIV = 15360
        BASE = 0 if isG else 61440 + 0
        BASE = 0 if isG else 0
        X.I("s_setprio 0" if not isG or "nogp" in dbg else "s_setprio 2")
        X.I("s_waitcnt vmcnt(0) lgkmcnt(0)")
        X.vm = []; X.lg = []
        if not isG: X.I("v_mov_b32 v15, v254")
        cnt_add(X, 4, 5, CNT_L + (32 if isG else 44))
        cnt_add(X, 4, 5, CNT_L + 36)
        X.I("s_load_dwordx2 s[4:5], s[0:1], 0")
        X.I("s_load_dwordx2 s[6:7], s[0:1], 64")
        X.I("s_load_dwordx4 s[8:11], s[0:1], 104")
        X.I("s_load_dwordx2 s[24:25], s[0:1], 96")
        mk_srd(X, SFL, 30, 31, 8192, None, FL_OFF)
        X.I("s_cmp_lg_u32 s35, 0")
        X.I(f"s_cbranch_scc1 {L}nf")
        cnt_wait(X, f"{L}w0", 4, 5, CNT_L + (32 if isG else 44), 4)
        X.I("s_lshl_b32 s36, s32, 7")
        X.I("s_lshl_b32 s39, s33, 2")
        X.I("s_add_u32 s36, s36, s39")
        if not isG: X.I("s_add_u32 s36, s36, 2048")
        X.I("v_mov_b32 v4, s36")
        X.I(f"v_mov_b32 v5, {TAG}")
        X.I("s_mov_b64 exec, 1")
        X.I(f"buffer_store_dword v5, v4, s[{SFL}:{SFL+3}], 0 offen sc1")
        X.I("s_mov_b64 exec, -1")
        X.label(f"{L}nf")
        X.vm = []
        stamp()
        X.I("s_and_b32 s36, s2, 7")
        X.I("s_lshr_b32 s37, s2, 3")
        X.I("s_and_b32 s60, s36, 3")
        X.I("s_lshl_b32 s60, s60, 3")
        X.I("s_and_b32 s38, s37, 7")
        X.I("s_add_u32 s60, s60, s38")
        X.I("s_lshr_b32 s61, s36, 2")
        X.I("s_lshl_b32 s61, s61, 2")
        X.I("s_lshr_b32 s38, s37, 3")
        X.I("s_add_u32 s61, s61, s38")
        X.I("v_lshlrev_b32 v2, 4, v0")
        X.I("v_lshrrev_b32 v1, 4, v0")
        X.I("v_and_b32 v3, 15, v0")
        for n in range(4):
            X.I(f"s_add_u32 s36, s35, {n}")
            X.I("s_and_b32 s36, s36, 3")
            X.I(f"s_mul_i32 s36, s36, {RT}")
            X.I(f"v_add_u32 v{VO+n}, s36, v2")
        for n in range(5):
            X.I(f"v_add_u32 v{VO+4+n}, {n*RT}, v2")
        X.I(f"s_mul_i32 s36, s60, {4*RT}")
        mk_srd(X, SA, 30, 31, 4 * RT, 36, H1F_OFF if isG else HF_OFF)
        X.I(f"s_mul_i32 s36, s61, {5*RT}")
        mk_srd(X, SB0, 30, 31, 5 * RT, 36, W2F_OFF if isG else CF_OFF)
        X.I(f"s_mul_i32 s63, s35, {NS*1024}")
        X.I("s_lshl_b32 s36, s60, 6")
        X.I("s_lshr_b32 s37, s35, 1")
        X.I("s_lshl_b32 s37, s37, 5")
        X.I("s_add_u32 s36, s36, s37")
        X.I("s_and_b32 s37, s35, 1")
        X.I("s_lshl_b32 s37, s37, 2")
        X.I("s_add_u32 s65, s36, s37")
        X.I("s_mul_i32 s66, s61, 160")
        X.I("s_waitcnt lgkmcnt(0)")
        X.lg = []
        EV = VO + 10
        NP = int(os.environ.get("NP", "4")) if isG else 0
        GP0, GPS = 67584, 22016
        ep = []
        if isG:
            SX, SP, SD = 48, 64 + 4, 20
            X.I(f"s_mul_i32 s62, s35, {GPS}")
            X.I(f"s_add_u32 s62, s62, {GP0}")
            X.I("s_add_u32 s67, s62, 15360")
            mk_srd(X, SX, 24, 25, 1966080)
            X.I(f"s_mul_i32 s64, s35, {12*40960}")
            X.I("s_add_u32 s64, s64, s66")
            cnt_wait(X, f"{L}p0", 4, 5, CNT_L + 32, 4)
            cnt_wait(X, f"{L}p1", 4, 5, CNT_L, 4)
            for e in range(5):
                X.I(f"v_add_u32 v4, {64*e}, v0")
                X.I("v_mul_u32_u24 v5, 6554, v4")
                X.I("v_lshrrev_b32 v5, 16, v5")
                X.I("v_mul_u32_u24 v6, 10, v5")
                X.I("v_sub_u32 v4, v4, v6")
                X.I("v_mul_u32_u24 v5, 1280, v5")
                X.I("v_lshl_add_u32 v4, v4, 4, v5")
                for q in range(NP):
                    X.I(f"s_add_u32 s36, s64, {40960*q}")
                    X.I(f"s_add_u32 m0, s62, {5120*q+1024*e}")
                    X.I(f"buffer_load_dwordx4 v4, s[{SX}:{SX+3}], s36 offen lds")
            X.I("v_lshrrev_b32 v4, 1, v1")
            X.I("v_lshlrev_b32 v4, 4, v4")
            X.I("v_and_b32 v5, 1, v1")
            X.I("v_lshl_add_u32 v4, v5, 2, v4")
            X.I("v_lshrrev_b32 v5, 2, v3")
            X.I("v_add_u32 v4, v4, v5")
            X.I("v_mul_u32_u24 v4, 160, v4")
            X.I("v_and_b32 v5, 3, v3")
            X.I("v_lshl_add_u32 v4, v5, 3, v4")
            X.I(f"v_add_u32 v{EV+3}, s62, v4")
            mk_srd(X, SX, 4, 5, 2621440)
            mk_srd(X, SP, 8, 9, 1280)
            mk_srd(X, SD, 6, 7, 1280)
            X.I("s_mul_i32 s64, s65, 1280")
            X.I("s_add_u32 s64, s64, s66")
            for e in range(3):
                X.I(f"v_add_u32 v4, {64*e}, v0")
                X.I("v_min_u32 v4, 159, v4")
                X.I("v_mul_u32_u24 v5, 6554, v4")
                X.I("v_lshrrev_b32 v5, 16, v5")
                X.I("v_mul_u32_u24 v6, 10, v5")
                X.I("v_sub_u32 v4, v4, v6")
                X.I("v_lshrrev_b32 v6, 2, v5")
                X.I("v_lshl_add_u32 v5, v6, 2, v5")
                X.I("v_mul_u32_u24 v5, 1280, v5")
                X.I(f"v_lshl_add_u32 v{8+e}, v4, 4, v5")
                ep.append([(f"s_add_u32 m0, s67, {1024*e}", None), (f"buffer_load_dwordx4 v{8+e}, s[{SX}:{SX+3}], s64 offen lds", "ep")])
            X.I("v_lshlrev_b32 v11, 2, v0")
            X.I("v_min_u32 v11, 156, v11")
            ep.append([("s_add_u32 m0, s67, 3072", None), (f"buffer_load_dword v11, s[{SP}:{SP+3}], s66 offen lds", "ep")])
            ep.append([("s_add_u32 m0, s67, 3328", None), (f"buffer_load_dword v11, s[{SD}:{SD+3}], s66 offen lds", "ep")])
        RC = CNT_L + (80 if isG else 84)
        X.I("s_cmp_lg_u32 s35, 0")
        X.I(f"s_cbranch_scc1 {L}pw")
        X.I(f"s_mul_i32 s36, s33, {AGG_G}")
        mk_srd(X, SAGB, 30, 31, AGG_G, 36, AGG_OFF)
        X.I("s_lshl_b32 s36, s32, 7")
        X.I(f"s_add_u32 s36, s36, {GO_O}")
        X.I("v_mov_b32 v4, s36")
        X.I("s_mov_b32 s39, 0")
        if not isG: X.I("v_mov_b32 v7, 0") if False else None
        X.label(f"{L}go")
        X.I(f"v_readfirstlane_b32 s36, v{7 if isG else 15}")
        X.I("s_add_u32 s39, s39, 1")
        X.I(f"s_cmp_eq_u32 s36, {TAG}")
        X.I(f"s_cbranch_scc1 {L}god")
        X.I(f"buffer_load_dword v{7 if isG else 15}, v4, s[{SAGB}:{SAGB+3}], 0 offen sc1")
        X.I("s_waitcnt vmcnt(0)")
        X.I("s_cmp_lt_u32 s39, 0x100000")
        X.I(f"s_cbranch_scc1 {L}go")
        X.label(f"{L}god")
        X.I(f"v_mov_b32 v6, {TAG}")
        X.I("s_lshr_b32 s36, s60, 1")
        X.I("s_lshl_b32 s36, s36, 7")
        if not isG: X.I("s_add_u32 s36, s36, 2048")
        X.I("v_lshlrev_b32 v4, 2, v3")
        X.I("v_add_u32 v4, s36, v4")
        X.I("s_lshl_b32 s36, s61, 7")
        X.I("s_add_u32 s36, s36, 4096")
        X.I("v_lshlrev_b32 v5, 2, v0")
        X.I("v_add_u32 v5, s36, v5")
        X.I("v_cmp_gt_u32 vcc, 32, v0")
        X.I("v_cndmask_b32 v4, v4, v5, vcc")
        X.I("s_mov_b32 s39, 0")
        X.label(f"{L}fl")
        X.I(f"buffer_load_dword v5, v4, s[{SFL}:{SFL+3}], 0 offen sc1")
        X.I("s_waitcnt vmcnt(0)")
        X.I("v_cmp_eq_u32 vcc, v5, v6")
        X.I("s_add_u32 s39, s39, 1")
        X.I("s_cmp_eq_u64 vcc, -1")
        X.I(f"s_cbranch_scc1 {L}fld")
        X.I("s_sleep 2")
        X.I("s_cmp_lt_u32 s39, 0x100000")
        X.I(f"s_cbranch_scc1 {L}fl")
        X.label(f"{L}fld")
        if LDF == "":
            X.raw("    buffer_inv sc1")
            X.I("s_waitcnt vmcnt(0)")
        cnt_add(X, 4, 5, RC)
        X.label(f"{L}pw")
        cnt_wait(X, f"{L}pwl", 4, 5, RC, 1)
        X.I("s_waitcnt vmcnt(0)")
        X.vm = []
        stamp()
        def stage(s): return STG + (s % D) * 36
        def issue(s):
            b = stage(s)
            Lx = []
            for n in range(4):
                Lx.append([(f"buffer_load_dwordx4 {vr(b+4*n,4)}, v{VO+n}, s[{SA}:{SA+3}], s63 offen offset:{(s%4)*1024}{LDF}", f"st{s}")])
            for n in range(5):
                if s < NP:
                    Lx.append([(f"ds_read_b64_tr_b16 {vr(b+16+4*n+2*e,2)}, v{EV+3} offset:{5120*s+1280*e+32*n}", f"lr{s}") for e in range(2)])
                else:
                    Lx.append([(f"buffer_load_dwordx4 {vr(b+16+4*n,4)}, v{VO+4+n}, s[{SB0}:{SB0+3}], s63 offen offset:{(s%4)*1024}{LDF}", f"st{s}")])
            if s % 4 == 3: Lx[-1].append(("s_add_u32 s63, s63, 4096", None))
            return Lx
        for s in range(D - 1): emit(X, issue(s))
        if isG:
            mk_srd(X, SAGB, 30, 31, 16384, None, STATS_OFF)
            X.I("s_lshl_b32 s38, s65, 2")
            X.I("v_lshrrev_b32 v4, 2, v3")
            X.I("v_lshl_add_u32 v4, v4, 2, v3")
            X.I("v_lshlrev_b32 v4, 2, v4")
            X.I("v_add_u32 v5, 8192, v4")
            X.I(f"buffer_load_dword v{EV}, v4, s[{SAGB}:{SAGB+3}], s38 offen sc1", tag="ep")
            X.I(f"buffer_load_dword v{EV+1}, v5, s[{SAGB}:{SAGB+3}], s38 offen sc1", tag="ep")
        DB = GP0 if isG else 0
        if isG: PRIV = GPS
        else: X.I(f"s_mul_i32 s62, s35, {PRIV}")
        DW = EV + 2
        X.I(f"v_add_u32 v{DW}, s62, v2")
        for s in range(NS):
            X.wait_vm(f"st{s}")
            X.wait_lg(f"lr{s}")
            b = stage(s)
            side = issue(s + D - 1) if s + D - 1 < NS else []
            if s == NP + 1: side = side + ep
            mm = []
            order = [1, 2, 3, 0] if s == NS - 1 else range(4)
            for n in order:
                for dt in range(5):
                    ac = vr(ACC + (n * 5 + dt) * 4, 4)
                    mm.append(f"v_mfma_f32_16x16x32_bf16 {ac}, {vr(b+16+4*dt,4)}, {vr(b+4*n,4)}, {'0' if s == 0 else ac}")
            if s == NS - 1:
                cnt_wait(X, f"{L}w1", 4, 5, CNT_L + 36, 8)
                for k, m in enumerate(mm):
                    X.I(m)
                    j = k - 7
                    if 0 <= j < 15: X.I(f"ds_write_b128 v{DW}, {vr(ACC+20+4*j,4)} offset:{1024*j}")
                for j in (13, 14): X.I(f"ds_write_b128 v{DW}, {vr(ACC+20+4*j,4)} offset:{1024*j}")
            else:
                merge(X, mm, side, 0.9)
        stamp()
        cnt_add(X, 4, 5, CNT_L + (48 if isG else 56))
        for k in range(1, 4):
            X.I(f"s_add_u32 s36, s35, {k}")
            X.I("s_and_b32 s36, s36, 3")
            X.I(f"s_mul_i32 s36, s36, {PRIV}")
            X.I(f"s_add_u32 s36, s36, {DB + (3 - k) * 5120}")
            X.I(f"v_add_u32 v{6+k}, s36, v2")
        cnt_wait(X, f"{L}w2", 4, 5, CNT_L + (48 if isG else 56), 4)
        RD = STG
        for dt in range(5):
            for k in range(3):
                X.I(f"ds_read_b128 {vr(RD+(dt*3+k)*4,4)}, v{7+k} offset:{1024*dt}", tag=f"p{dt}")
        if isG:
            T = ACC + 20; BS = ACC + 40; DS_ = ACC + 60
            X.I("v_lshlrev_b32 v10, 3, v1")
            X.I("v_add_u32 v10, s67, v10")
            X.I("v_mul_u32_u24 v11, 160, v3")
            X.I("v_add_u32 v11, v11, v10")
            for dt in range(5):
                X.I(f"ds_read_b64 {vr(T+4*dt+2,2)}, v10 offset:{3072+32*dt}", tag="e")
                X.I(f"ds_read_b64 {vr(DS_+4*dt+2,2)}, v10 offset:{3328+32*dt}", tag="e")
                X.I(f"ds_read_b64 {vr(BS+4*dt+2,2)}, v11 offset:{32*dt}", tag="e")
        for dt in range(5):
            X.wait_lg(f"p{dt}")
            a = ACC + 4 * dt; r0 = RD + dt * 12
            for r in range(4): X.I(f"v_add_f32 v{a+r}, v{a+r}, v{r0+r}")
            for r in range(4): X.I(f"v_add_f32 v{r0+4+r}, v{r0+4+r}, v{r0+8+r}")
            for r in range(4): X.I(f"v_add_f32 v{a+r}, v{a+r}, v{r0+4+r}")
        if isG:
            X.wait_lg()
            cnt_add(X, 4, 5, CNT_L + 52)
            X.I("s_mov_b32 s36, 0xffff0000")
            X.I(f"s_mov_b32 s37, {NEG_LOG2E}")
            for q in [T + 4 * dt for dt in range(5)] + [BS + 4 * dt for dt in range(5)] + [DS_ + 4 * dt for dt in range(5)]:
                X.I(f"v_lshlrev_b32 v{q}, 16, v{q+2}")
                X.I(f"v_and_b32 v{q+1}, s36, v{q+2}")
                X.I(f"v_lshlrev_b32 v{q+2}, 16, v{q+3}")
                X.I(f"v_and_b32 v{q+3}, s36, v{q+3}")
            for e in range(20): X.I(f"v_add_f32 v{ACC+e}, v{ACC+e}, v{T+e}")
            for e in range(20): X.I(f"v_mul_f32 v{T+e}, s37, v{ACC+e}")
            for e in range(20): X.I(f"v_exp_f32 v{T+e}, v{T+e}")
            for e in range(20): X.I(f"v_add_f32 v{T+e}, 1.0, v{T+e}")
            for e in range(20): X.I(f"v_rcp_f32 v{T+e}, v{T+e}")
            for e in range(20): X.I(f"v_mul_f32 v{ACC+e}, v{ACC+e}, v{T+e}")
            for e in range(20): X.I(f"v_fma_f32 v{T+e}, v{BS+e}, v{EV+1}, -v{EV}")
            for e in range(20): X.I(f"v_mul_f32 v{DS_+e}, v{DS_+e}, v{ACC+e}")
            for e in range(20): X.I(f"v_fmac_f32 v{BS+e}, v{T+e}, v{DS_+e}")
            cnt_wait(X, f"{L}w3", 4, 5, CNT_L + 52, 4)
            for dt in range(5):
                X.I(f"ds_write_b128 v{DW}, {vr(ACC+4*dt,4)} offset:{1024*dt}")
                X.I(f"ds_write_b128 v{DW}, {vr(BS+4*dt,4)} offset:{5120+1024*dt}")
            X.I("s_lshl_b32 s38, s35, 2")
            X.I(f"s_add_u32 s38, s38, {CNT_L+64}")
            cnt_add(X, 4, 5, "s38")
            X.wait_lg()
        else:
            SO = 48
            mk_srd(X, SO, 10, 11, 5242880)
            X.I("v_lshrrev_b32 v4, 2, v3")
            X.I("v_lshl_add_u32 v4, v4, 2, v3")
            X.I("v_add_u32 v4, s65, v4")
            X.I("v_mul_u32_u24 v10, 2560, v4")
            X.I("v_lshl_add_u32 v10, v1, 4, v10")
            X.I("s_lshl_b32 s66, s66, 1")
            X.I(f"s_mul_i32 s67, s35, {GPS}")
            X.I(f"s_add_u32 s67, s67, {GP0}")
            X.I("v_add_u32 v11, s67, v2")
            X.I("s_lshl_b32 s38, s35, 2")
            X.I(f"s_add_u32 s38, s38, {CNT_L+64}")
            cnt_wait(X, f"{L}w3", 4, 5, "s38", 1)
            GQ = ACC + 20; BQ = ACC + 40
            for dt in range(5):
                X.I(f"ds_read_b128 {vr(GQ+4*dt,4)}, v11 offset:{1024*dt}", tag=f"g{dt}")
                X.I(f"ds_read_b128 {vr(BQ+4*dt,4)}, v11 offset:{5120+1024*dt}", tag=f"g{dt}")
            if "coal" in dbg:
                X.I("v_mul_u32_u24 v12, 320, v3")
                X.I("v_lshl_add_u32 v12, v1, 4, v12")
                X.I("v_add_u32 v12, s67, v12")
                OVO = RD
                for e in range(5):
                    X.I(f"v_add_u32 v4, {64*e}, v0")
                    X.I("v_mul_u32_u24 v5, 3277, v4")
                    X.I("v_lshrrev_b32 v5, 16, v5")
                    X.I("v_mul_u32_u24 v6, 20, v5")
                    X.I("v_sub_u32 v4, v4, v6")
                    X.I("v_lshrrev_b32 v6, 2, v5")
                    X.I("v_lshl_add_u32 v5, v6, 2, v5")
                    X.I("v_add_u32 v5, s65, v5")
                    X.I("v_mul_u32_u24 v5, 2560, v5")
                    X.I(f"v_lshl_add_u32 v{OVO+e}, v4, 4, v5")
            for dt in range(5):
                X.wait_lg(f"g{dt}")
                for r in range(4): X.I(f"v_fmac_f32 v{BQ+4*dt+r}, v{ACC+4*dt+r}, v{GQ+4*dt+r}")
                if "coal" in dbg:
                    X.I(f"ds_write_b128 v12, {vr(BQ+4*dt,4)} offset:{10240+64*dt}")
                else:
                    X.I(f"buffer_store_dwordx4 {vr(BQ+4*dt,4)}, v10, s[{SO}:{SO+3}], s66 offen offset:{64*dt}{os.environ.get('STF2','')}")
            if "coal" in dbg:
                for e in range(5):
                    X.I(f"ds_read_b128 {vr(GQ+4*e,4)}, v11 offset:{10240+1024*e}", tag=f"o{e}")
                for e in range(5):
                    X.wait_lg(f"o{e}")
                    X.I(f"buffer_store_dwordx4 {vr(GQ+4*e,4)}, v{OVO+e}, s[{SO}:{SO+3}], s66 offen{os.environ.get('STF2','')}")
    def adv():
        return [("s_add_u32 s26, s26, 1", None), ("s_cmp_eq_u32 s26, 10", None), ("s_cselect_b32 s26, 0, s26", None)]

    S = Stream(A)
    stamp, st = mkstamp(S)
    ACC = 16
    BUF = 56
    CA, CSB, CCO, CCX, CAS, CSBS = 168, 173, 178, 183, 188, 193
    A8, SB8, A128, SB128 = 198, 200, 202, 204
    SUM, SQ, ONE = 206, 214, 222
    MRV, RV = 226, 234
    DV = 246
    vG_, vC_, vSg = 1, 2, 3
    SX, SBBS = 40, 44
    if "early" in dbg: stamp()
    S.I(f"s_mul_i32 s36, s32, {128*1280}")
    mk_srd(S, SX, 4, 5, 128 * 1280, 36)
    S.I("v_lshrrev_b32 v4, 3, v0")
    S.I("v_and_b32 v5, 7, v0")
    S.I("v_and_b32 v6, 2, v4")
    S.I("v_lshrrev_b32 v7, 2, v4")
    S.I("v_or_b32 v6, v6, v7")
    S.I("v_xor_b32 v6, v6, v5")
    S.I("s_mul_i32 s36, s35, 40960")
    S.I("v_mul_u32_u24 v7, 1280, v4")
    S.I("v_add_u32 v8, s36, v7")
    for e in range(4):
        S.I(f"v_xor_b32 v9, {4 if e >= 2 else 0}, v6")
        S.I(f"v_lshl_add_u32 v{DV+e}, v9, 4, v8")
        if e: S.I(f"v_add_u32 v{DV+e}, {10240*e}, v{DV+e}")
    S.I("v_xor_b32 v9, v4, v5")
    S.I(f"v_lshl_add_u32 v{DV+4}, v9, 4, v7")
    S.I("s_lshl_b32 s37, s35, 12")
    S.I("s_mov_b32 s36, s35")
    bb_srd(S, SBBS, 27)
    def s_dma(p):
        q = p % 4
        L = []
        for e in range(4):
            g = [(f"s_add_u32 m0, s37, {q*SLOT + 1024*e}", None), (f"buffer_load_dwordx4 v{DV+e}, s[{SX}:{SX+3}], s38 offen lds", f"c{p}")]
            if e == 0: g = [("s_lshl_b32 s38, s26, 7", None)] + g
            L.append(g)
        L.append([(f"s_add_u32 m0, s27, {q*SLOT}", None), (f"buffer_load_dwordx4 v{DV+4}, s[{SBBS}:{SBBS+3}], s38 offen lds", f"c{p}")] + adv())
        return L
    S.I(f"v_lshrrev_b32 v{vG_}, 4, v0")
    S.I(f"v_and_b32 v{vC_}, 15, v0")
    if "early" in dbg: stamp()
    emit(S, s_dma(0))
    if "early" in dbg: stamp()
    def pslots(t):
        return (CCO + t, CCX + t, CAS + t) if t < 5 else (A128, SB128, A128 + 1)
    def par_issue():
        S.I("v_and_b32 v11, 7, v0")
        S.I("v_lshlrev_b32 v11, 1, v11")
        S.I(f"v_add_u32 v11, {PAR_L}, v11")
        S.I(f"v_lshlrev_b32 v12, 4, v{vG_}")
        S.I("v_add_u32 v12, v11, v12")
        for t in range(6):
            vo = "v11" if t < 5 else "v12"
            off = 16 * t if t < 5 else 0
            lre, lim, ldt = pslots(t)
            S.I(f"ds_read_u16 v{lre}, {vo} offset:{off}")
            S.I(f"ds_read_u16 v{lim}, {vo} offset:{off+128}")
            S.I(f"ds_read_u16 v{ldt}, {vo} offset:{off+256}")
    SJA, SJB, SWS = 56, 60, 64
    TT = BUF + 48
    S.I(f"v_lshrrev_b32 v{TT}, 2, v{vC_}")
    S.I(f"v_and_b32 v{TT+1}, 3, v{vC_}")
    S.I(f"v_lshlrev_b32 v{TT+2}, 3, v{TT}")
    S.I(f"v_add_u32 v{TT+2}, v{TT+2}, v{TT+1}")
    S.I("s_lshl_b32 s36, s35, 5")
    S.I(f"v_add_u32 v{TT+2}, s36, v{TT+2}")
    S.I(f"v_lshlrev_b32 v{TT+2}, 7, v{TT+2}")
    S.I(f"v_lshrrev_b32 v{TT+3}, 1, v{TT}")
    S.I(f"v_lshlrev_b32 v{TT+3}, 2, v{TT+3}")
    S.I(f"v_and_b32 v{TT+4}, 2, v{TT+1}")
    S.I(f"v_or_b32 v{TT+3}, v{TT+3}, v{TT+4}")
    S.I(f"v_xor_b32 v{TT+3}, v{TT+3}, v{vG_}")
    for T in range(2):
        for sp in range(2):
            d = 4 + 2 * T + sp
            S.I(f"v_xor_b32 v{TT+4}, {(4*sp) ^ T}, v{TT+3}")
            S.I(f"v_lshl_add_u32 v{d}, v{TT+4}, 4, v{TT+2}")
            if T: S.I(f"v_add_u32 v{d}, 512, v{d}")
    S.I(f"v_and_b32 v{TT}, 7, v{vC_}")
    S.I(f"v_xor_b32 v{TT}, v{TT}, v{vG_}")
    S.I(f"v_lshlrev_b32 v{TT+1}, 7, v{vC_}")
    for sp in range(2):
        S.I(f"v_xor_b32 v{TT+2}, {4*sp}, v{TT}")
        S.I(f"v_lshl_add_u32 v{8+sp}, v{TT+2}, 4, v{TT+1}")
        S.I(f"v_add_u32 v{8+sp}, {BB_O}, v{8+sp}")
    for k in range(4): S.I(f"v_mov_b32 v{ONE+k}, 0x3f803f80")
    S.I(f"v_mul_u32_u24 v10, 80, v{vG_}")
    S.I(f"v_lshrrev_b32 v{vSg}, 3, v{vC_}")
    S.I(f"v_cvt_f32_u32 v{vSg}, v{vSg}")
    S.I(f"v_fma_f32 v{vSg}, v{vSg}, 2.0, -1.0")
    S.I(f"s_mov_b32 s20, {LOG2E}")
    S.I(f"s_mov_b32 s21, {INV2PI}")
    def powr(ar, rev, n, da, dsb, t0):
        L = []
        if n is None:
            L.append(f"v_exp_f32 v{t0}, v{ar}")
            L.append(f"v_fract_f32 v{t0+1}, v{rev}")
        else:
            L.append(f"v_mul_f32 v{t0}, {n}, v{ar}")
            L.append(f"v_mul_f32 v{t0+1}, {n}, v{rev}")
            L.append(f"v_exp_f32 v{t0}, v{t0}")
            L.append(f"v_fract_f32 v{t0+1}, v{t0+1}")
        L.append(f"v_cos_f32 v{t0+2}, v{t0+1}")
        L.append(f"v_sin_f32 v{t0+3}, v{t0+1}")
        L.append(f"v_mul_f32 v{t0+3}, v{t0}, v{t0+3}")
        L.append(f"v_mul_f32 v{da}, v{t0}, v{t0+2}")
        L.append(f"v_mul_f32 v{dsb}, v{t0+3}, v{vSg}")
        return L
    def arrev(t):
        return (CAS + t, CSBS + t) if t < 5 else (A128, SB128)
    partA = ["s_lshl_b32 s36, s35, 2", f"v_add_u32 v245, s36, v{vG_}", "v_lshlrev_b32 v245, 3, v245", "v_cvt_f32_u32 v245, v245"]
    for t in range(6):
        lre, lim, ldt = pslots(t)
        ar, rev = 242, 243
        partA += [f"v_lshlrev_b32 v{lre}, 16, v{lre}", f"v_lshlrev_b32 v{lim}, 16, v{lim}", f"v_lshlrev_b32 v11, 16, v{ldt}",
                  "v_mul_f32 v11, s20, v11", "v_exp_f32 v11, v11", "v_cvt_pk_bf16_f32 v11, 0, v11",
                  f"v_mul_f32 v12, v11, v{lre}", f"v_mul_f32 v13, v11, v{lim}",
                  f"v_mul_f32 v{ar}, s20, v12", f"v_mul_f32 v{rev}, s21, v13"]
        if t < 5:
            partA += powr(ar, rev, None, CA + t, CSB + t, 11)
            partA += [f"v_add_f32 v11, -1.0, v{CA+t}", f"v_mul_f32 v12, v{lre}, v{lre}", f"v_fmac_f32 v12, v{lim}, v{lim}",
                      "v_rcp_f32 v12, v12", f"v_mul_f32 v13, v11, v{lre}", f"v_fmac_f32 v13, v14, v{lim}",
                      f"v_mul_f32 v244, v14, v{lre}", f"v_fma_f32 v244, -v11, v{lim}, v244", "v_mul_f32 v12, -2.0, v12",
                      f"v_mul_f32 v{CCX+t}, v244, v12", "v_mul_f32 v13, v13, v12", f"v_mul_f32 v{CCO+t}, v13, v{vSg}"]
            partA += powr(ar, rev, "v245", CAS + t, CSBS + t, 11)
        if t >= 4:
            k = 1 if t == 4 else 0
            partA += powr(ar, rev, f"{f2u(8.0)}", A8 + k, SB8 + k, 11)
            partA += powr(ar, rev, f"{f2u(128.0)}", 254 if t == 4 else A128, 255 if t == 4 else SB128, 11)
    partA += [f"v_mov_b32 v{A128+1}, v254", f"v_mov_b32 v{SB128+1}, v255"]
    SAG, SST = 48, 52
    S.I(f"s_mul_i32 s36, s33, {AGG_G}")
    mk_srd(S, SAG, 30, 31, AGG_G, 36, AGG_OFF)
    emit(S, s_dma(1))
    S.raw(";;DRYPT")
    stamp()
    def s_reads(p):
        b = BUF + (p & 1) * 56
        L = []
        for sp in range(2):
            for T in range(2):
                L.append([(f"ds_read_b128 {vr(b+(sp*2+T)*4,4)}, v{4+2*T+sp}", f"r{p}")])
            for j in range(5):
                L.append([(f"ds_read_b128 {vr(b+16+(sp*5+j)*4,4)}, v{8+sp} offset:{2048*j}", f"r{p}")])
        delta = SLOT if p % 4 != 3 else (-3 * SLOT) & 0xffffffff
        L.append([(f"v_add_u32 v{k}, {delta}, v{k}", None) for k in range(4, 10)])
        return L
    def s_stat(p):
        b = BUF + (p & 1) * 56
        L = []
        for sp in range(2):
            for T in range(2):
                x = vr(b + (sp * 2 + T) * 4, 4)
                z = (p == 0 and sp == 0)
                L.append(f"v_mfma_f32_16x16x32_bf16 {vr(SUM+4*T,4)}, {x}, {vr(ONE,4)}, {'0' if z else vr(SUM+4*T,4)}")
                L.append(f"v_mfma_f32_16x16x32_bf16 {vr(SQ+4*T,4)}, {x}, {x}, {'0' if z else vr(SQ+4*T,4)}")
        return L
    def s_mfma(p):
        b = BUF + (p & 1) * 56
        L = []
        for sp in range(2):
            for j in range(5):
                for T in range(2):
                    ac = ACC + 8 * j + 4 * T
                    c = "0" if (p == 0 and sp == 0) else vr(ac, 4)
                    L.append(f"v_mfma_f32_16x16x32_bf16 {vr(ac,4)}, {vr(b+(sp*2+T)*4,4)}, {vr(b+16+(sp*5+j)*4,4)}, {c}")
        return L
    for p in range(10):
        S.wait_vm(f"c{p}")
        S.I("s_barrier")
        stamp(True)
        if p in (0, 9): stamp()
        side = s_dma(p + 3) if p + 3 <= 9 else []
        if p == 0: side = s_dma(2)
        if p == 1: side = s_dma(3) + side
        rd = s_reads(p)
        if p == 2:
            par_issue()
        fill = []
        if 3 <= p <= 8:
            nper = (len(partA) + 5) // 6
            fill = [[(m, None)] for m in partA[(p - 3) * nper:(p - 2) * nper]]
        if p == 9:
            fill += [[("s_lshl_b32 s36, s32, 7", None), (f"s_add_u32 s36, s36, {GO_O}", None), ("v_mov_b32 v15, s36", None),
                      (f"buffer_load_dword v15, v15, s[{SAG}:{SAG+3}], 0 offen sc1", "clr")]]
        if "dmaonly" in dbg: emit(S, side)
        elif p == 0: emit(S, rd + side + fill)
        else: merge(S, s_stat(p - 1) + s_mfma(p - 1), mix(mix(rd, side), fill), 0.9)
        S.wait_lg()
    S.raw(";;DRYSTART")
    if "fine" in dbg: stamp()
    for m in s_stat(9): S.I(m)
    mm = s_mfma(9)
    CSV = BUF + 16
    S.I(f"v_lshlrev_b32 v12, 2, v{vC_}")
    for m in mm[:5]: S.I(m)
    for T in range(2):
        for r in range(4):
            S.I(f"ds_bpermute_b32 v{SQ+4*T+r}, v10, v{SQ+4*T+r} offset:{4*r}", tag="bp")
    for m in mm[5:9]: S.I(m)
    S.wait_lg("bp")
    if "fine" in dbg: stamp()
    fin = []
    K640 = f2u(1.0 / 640)
    for step in range(12):
        for k in range(8):
            su, sq = SUM + k, SQ + k
            fin.append([
                f"v_mul_f32 v{su}, {K640}, v{su}",
                f"v_mul_f32 v{sq}, {K640}, v{sq}",
                f"v_fma_f32 v{sq}, -v{su}, v{su}, v{sq}",
                f"v_max_f32 v{sq}, 0, v{sq}",
                f"v_cvt_pk_bf16_f32 v{su}, 0, v{su}",
                f"v_cvt_pk_bf16_f32 v{sq}, 0, v{sq}",
                f"v_add_f32 v{sq}, {f2u(1e-5)}, v{sq}",
                f"v_cvt_pk_bf16_f32 v{sq}, 0, v{sq}",
                f"v_sqrt_f32 v{sq}, v{sq}",
                f"v_cvt_pk_bf16_f32 v{sq}, 0, v{sq}",
                f"v_rcp_f32 v{RV+k}, v{sq}",
                f"v_mul_f32 v{MRV+k}, v{su}, v{RV+k}"][step])
    adds = ["s_lshl_b32 s36, s35, 7", f"v_lshlrev_b32 v13, 5, v{vG_}", "v_add_u32 v13, s36, v13", f"v_add_u32 v14, {STATS_L}, v13",
             "s_mul_i32 s36, s35, 1280", f"v_mul_u32_u24 v6, 320, v{vG_}", "v_add3_u32 v6, v6, v12, s36", f"v_add_u32 v7, {SEG_L}, v6",
             "v_lshlrev_b32 v8, 2, v0", f"v_add_u32 v9, {SEG_L}, v8", "v_mov_b32 v10, v12", f"v_add_u32 v11, {SEG_L+256}, v10",
             "s_lshl_b32 s38, s35, 2", f"s_add_u32 s38, s38, {CNT_L+16}", f"v_add_u32 v13, {CSB_L}, v12"]
    fin = fin[:40] + adds + fin[40:]
    merge(S, mm[9:], [[(m, None)] for m in fin], 1.0)
    stamp()
    cnt_wait(S, f"L_{name}_e0", 4, 5, CNT_L + 4, 4)
    if "noprio" not in dbg: S.I("s_setprio 3")
    if "f2" in dbg: stamp()
    for wv in range(4):
        for j in range(5):
            S.I(f"ds_read_b32 v{CSV+5*wv+j}, v13 offset:{320*wv+64*j}", tag="stt")
    S.I("s_mov_b32 exec_lo, 0x00010001")
    S.I("s_mov_b32 exec_hi, 0x00010001")
    for k in range(2):
        S.I(f"ds_write_b128 v14, {vr(MRV+4*k,4)} offset:{16*k}")
        S.I(f"ds_write_b128 v14, {vr(RV+4*k,4)} offset:{512+16*k}")
    cnt_add(S, 4, 5, "s38")
    for t2 in range(4):
        for j in range(5):
            a = ACC + 8 * j + 2 * t2
            S.I(f"v_mul_f32 v{a}, v{a}, v{RV+2*t2}")
            S.I(f"v_mul_f32 v{a+1}, v{a+1}, v{RV+2*t2+1}")
    S.wait_lg("stt")
    if "f2" in dbg: stamp()
    for j in range(5):
        S.I(f"v_add_f32 v{CSV+j}, v{CSV+j}, v{CSV+5+j}")
        S.I(f"v_add_f32 v{CSV+10+j}, v{CSV+10+j}, v{CSV+15+j}")
    for j in range(5):
        S.I(f"v_add_f32 v{CSV+j}, v{CSV+j}, v{CSV+10+j}")
    EA, EB = BUF + 40, BUF + 45
    cur = None
    for tl in range(8):
        for j in range(5):
            a = ACC + 8 * j + tl
            S.I(f"v_fma_f32 v{a}, -v{MRV+tl}, v{CSV+j}, v{a}")
        if tl == 0:
            cur = [ACC + 8 * j for j in range(5)]
        else:
            dst = EA if tl & 1 else EB
            for j in range(5):
                S.I(f"v_fma_f32 v{dst+j}, v{CA+j}, v{cur[j]}, v{ACC+8*j+tl}")
            for j in range(5):
                S.I(f"v_fmac_f32_dpp v{dst+j}, v{cur[j]}, v{CSB+j} {DPP}")
            cur = [dst + j for j in range(5)]
    if "f2" in dbg: stamp()
    for j in range(5):
        S.I(f"ds_write_b32 v7, v{cur[j]} offset:{64*j}")
    cnt_add(S, 4, 5, CNT_L)
    S.I("s_waitcnt vmcnt(0)")
    S.vm = []
    if "f2" in dbg: stamp()
    cnt_wait(S, f"L_{name}_x1", 4, 5, CNT_L, 4)
    stamp()
    EC = BUF + 56
    for s_ in range(16):
        S.I(f"ds_read_b32 v{EC+s_}, v9 offset:{320*s_}", tag=f"e{s_}")
        S.I(f"ds_read_b32 v{EC+16+s_}, v11 offset:{320*s_}", tag=f"e{s_}")
    S.I("v_lshlrev_b32 v4, 3, v0")
    S.I(f"v_lshlrev_b32 v5, 3, v{vC_}")
    PB = BUF + 90
    S.I(f"v_mov_b32 v{PB+1}, {TAG}")
    S.I(f"v_mov_b32 v{PB+3}, {TAG}")
    S.I("s_add_u32 s37, s32, 15")
    S.I("s_mul_i32 s37, s37, 640")
    for s_ in range(1, 16):
        S.wait_lg(f"e{s_}")
        for k in range(2):
            S.I(f"v_fmac_f32 v{EC+16*k+s_}, v{A8+k}, v{EC+16*k+s_-1}")
        for k in range(2):
            S.I(f"v_fmac_f32_dpp v{EC+16*k+s_}, v{EC+16*k+s_-1}, v{SB8+k} {DPP}")
    S.I("s_cmp_lg_u32 s35, 0")
    S.I(f"s_cbranch_scc1 L_{name}_nopub")
    S.I(f"v_mov_b32 v{PB}, v{EC+15}")
    S.I(f"v_mov_b32 v{PB+2}, v{EC+31}")
    S.I(f"buffer_store_dwordx2 {vr(PB,2)}, v4, s[{SAG}:{SAG+3}], s37 offen sc1")
    S.vm.pop()
    S.I(f"buffer_store_dwordx2 {vr(PB+2,2)}, v5, s[{SAG}:{SAG+3}], s37 offen offset:512 sc1")
    S.vm.pop()
    S.label(f"L_{name}_nopub")
    S.I("v_mov_b32 v254, v15")
    stamp()
    GL = BUF
    G0, G1 = 206, 221
    QV = BUF + 96
    S.I("v_lshlrev_b32 v252, 4, v0")
    S.I("s_mul_i32 s70, s32, 640")
    S.I("s_add_u32 s71, s70, 4096")
    S.I("s_add_u32 s69, s70, 8192")
    def gran_issue():
        for n in range(10):
            so = "s70" if n < 4 else ("s71" if n < 8 else "s69")
            S.I(f"buffer_load_dwordx4 {vr(GL+4*n,4)}, v252, s[{SAG}:{SAG+3}], {so} offen offset:{(n%4)*1024} sc1")
        S.vm = []
    def qstuff():
        S.I(f"v_add_u32 v9, {Q_L}, v8")
        S.I(f"v_add_u32 v11, {Q_L+256}, v10")
        S.I(f"v_mov_b32 v{PB}, 0")
        S.I(f"ds_write_b32 v9, v{PB}", tag="q")
        for s_ in range(15):
            S.I(f"ds_write_b32 v9, v{EC+s_} offset:{320*(s_+1)}", tag="q")
        S.I("s_mov_b64 exec, 0xffff")
        S.I(f"ds_write_b32 v11, v{PB}", tag="q")
        for s_ in range(15):
            S.I(f"ds_write_b32 v11, v{EC+16+s_} offset:{320*(s_+1)}", tag="q")
        S.I("s_mov_b64 exec, -1")
        S.I(f"v_add_u32 v7, {Q_L}, v6")
        for j in range(5):
            S.I(f"ds_read_b32 v{QV+j}, v7 offset:{64*j}", tag="qv")
    qstuff()
    S.I(f"v_add_u32 v9, {HS_L}, v8")
    S.I(f"v_add_u32 v11, {HS_L}, v10")
    S.I("s_cmp_lg_u32 s35, 0")
    S.I(f"s_cbranch_scc1 L_{name}_hw")
    S.I("s_cmp_eq_u32 s32, 0")
    S.I(f"s_cbranch_scc1 L_{name}_r0")
    S.I("s_mov_b32 s39, 0")
    S.I("s_lshl_b32 s38, s32, 7")
    S.I(f"s_add_u32 s38, s38, {GO_O}")
    S.I("v_mov_b32 v14, s38")
    S.label(f"L_{name}_cl")
    S.I("v_readfirstlane_b32 s38, v15")
    S.I("s_add_u32 s39, s39, 1")
    S.I(f"s_cmp_eq_u32 s38, {TAG}")
    S.I(f"s_cbranch_scc1 L_{name}_clok")
    S.I(f"buffer_load_dword v15, v14, s[{SAG}:{SAG+3}], 0 offen sc1")
    S.I("s_waitcnt vmcnt(0)")
    S.I("s_cmp_lt_u32 s39, 0x100000" if "nosync" not in dbg else "s_cmp_lt_u32 s39, 0")
    S.I(f"s_cbranch_scc1 L_{name}_cl")
    S.label(f"L_{name}_clok")
    S.I("v_mov_b32 v254, v15")
    gran_issue()
    cnt_wait(S, f"L_{name}_m9", 12, 13, CNT_L + 8, 4)
    S.I(f"v_mov_b32 v14, {TAG}")
    S.I(f"v_add_u32 v4, {GR_L}, v4")
    S.I(f"v_add_u32 v5, {GR_L}, v5")
    S.I(f"v_add_u32 v253, {GR_L}, v252")
    S.I("v_cmp_gt_u32 s[22:23], 24, v0")
    S.I("s_sub_u32 s38, 15, s32")
    S.I("s_mul_i32 s38, s38, 640")
    S.I("s_lshr_b32 s38, s38, 10")
    S.I("s_mov_b32 s39, 0")
    S.label(f"L_{name}_gp")
    S.I("s_waitcnt vmcnt(0)")
    S.I(f"v_cndmask_b32 v{GL+37}, v14, v{GL+37}, s[22:23]")
    S.I(f"v_cndmask_b32 v{GL+39}, v14, v{GL+39}, s[22:23]")
    S.I(f"v_and_b32 v12, v{GL+1}, v{GL+3}")
    S.I(f"v_or_b32 v13, v{GL+1}, v{GL+3}")
    for n in range(1, 10):
        S.I(f"v_and_b32 v15, v{GL+4*n+1}, v{GL+4*n+3}")
        S.I(f"v_or3_b32 v13, v13, v{GL+4*n+1}, v{GL+4*n+3}")
        S.I("v_and_b32 v12, v12, v15")
    S.I("v_cmp_eq_u32 vcc, v12, v14")
    S.I("v_cmp_eq_u32 s[24:25], v13, v14")
    S.I("s_and_b64 s[24:25], s[24:25], vcc")
    S.I("s_add_u32 s39, s39, 1")
    S.I("s_cmp_eq_u64 s[24:25], -1")
    S.I(f"s_cbranch_scc1 L_{name}_gpv")
    S.I("s_cmp_ge_u32 s39, 0x40000" if "nosync" not in dbg else "s_cmp_ge_u32 s39, 0")
    S.I(f"s_cbranch_scc1 L_{name}_gpv")
    for n in range(10):
        so = "s70" if n < 4 else ("s71" if n < 8 else "s69")
        if n < 9:
            S.I(f"s_cmp_gt_u32 s38, {n}")
            S.I(f"s_cbranch_scc1 L_{name}_gs{n}")
        S.I(f"buffer_load_dwordx4 {vr(GL+4*n,4)}, v252, s[{SAG}:{SAG+3}], {so} offen offset:{(n%4)*1024} sc1")
        if n < 9: S.label(f"L_{name}_gs{n}")
    S.I(f"s_branch L_{name}_gp")
    S.label(f"L_{name}_gpv")
    for n in range(10):
        S.I(f"ds_write_b128 v253, {vr(GL+4*n,4)} offset:{1024*n}")
    for d in range(15, 0, -1):
        o = (15 - d) * 640
        S.I(f"ds_read_b32 v{G0+d-1}, v4 offset:{o}")
        S.I(f"ds_read_b32 v{G1+d-1}, v5 offset:{o+512}")
    S.I("s_waitcnt lgkmcnt(0)")
    S.label(f"L_{name}_gpok")
    S.lg = []; S.vm = []
    for d in range(14, 0, -1):
        for (g_, k) in ((G0, 0), (G1, 1)):
            S.I(f"v_fmac_f32 v{g_+d-1}, v{A128+k}, v{g_+d}")
        for (g_, k) in ((G0, 0), (G1, 1)):
            S.I(f"v_fmac_f32_dpp v{g_+d-1}, v{g_+d}, v{SB128+k} {DPP}")
    S.I(f"s_branch L_{name}_hp")
    S.label(f"L_{name}_r0")
    S.I(f"v_mov_b32 v{G0}, 0")
    S.I(f"v_mov_b32 v{G1}, 0")
    S.label(f"L_{name}_hp")
    S.I(f"ds_write_b32 v9, v{G0}", tag="h")
    S.I(f"ds_write_b32 v11, v{G1} offset:256", tag="h")
    cnt_add(S, 12, 13, CNT_L + 12)
    S.label(f"L_{name}_hw")
    cnt_wait(S, f"L_{name}_hwl", 12, 13, CNT_L + 12, 1)
    stamp()
    HV = BUF + 32
    for j in range(5):
        S.I(f"ds_read_b32 v{HV+j}, v11 offset:{64*j}", tag="hv")
    S.I(f"v_mul_u32_u24 v9, 272, v{vC_}")
    S.I(f"v_lshlrev_b32 v12, 4, v{vG_}")
    S.I("s_lshl_b32 s36, s35, 6")
    S.I("v_add3_u32 v9, v9, v12, s36")
    S.wait_lg()
    for j in range(5):
        S.I(f"v_fmac_f32 v{QV+j}, v{CAS+j}, v{HV+j}")
    for j in range(5):
        S.I(f"v_fmac_f32_dpp v{QV+j}, v{HV+j}, v{CSBS+j} {DPP}")
    for tl in range(8):
        prev = [QV + j if tl == 0 else ACC + 8 * j + tl - 1 for j in range(5)]
        for j in range(5):
            S.I(f"v_fmac_f32 v{ACC+8*j+tl}, v{CA+j}, v{prev[j]}")
        for j in range(5):
            S.I(f"v_fmac_f32_dpp v{ACC+8*j+tl}, v{prev[j]}, v{CSB+j} {DPP}")
    OV = BUF + 40
    PK = BUF + 80
    for j in range(5):
        p_, sel = pr(CCO + j)
        for t2 in range(4):
            S.I(f"v_pk_mul_f32 {vr(OV+8*j+2*t2,2)}, {vr(ACC+8*j+2*t2,2)}, {p_} op_sel:[0,{sel}] op_sel_hi:[1,{sel}]")
        for tl in range(8):
            S.I(f"v_fmac_f32_dpp v{OV+8*j+tl}, v{ACC+8*j+tl}, v{CCX+j} {DPP}")
        for k in range(4):
            S.I(f"v_cvt_pk_bf16_f32 v{PK+4*j+k}, v{OV+8*j+2*k}, v{OV+8*j+2*k+1}")
        S.I(f"ds_write_b128 v9, {vr(PK+4*j,4)} offset:{16*272*j}", tag="tw")
    S.I(f"v_lshrrev_b32 v11, 2, v{vC_}")
    S.I("v_mul_u32_u24 v11, 272, v11")
    S.I(f"v_and_b32 v4, 3, v{vC_}")
    S.I("v_lshlrev_b32 v4, 4, v4")
    S.I("v_add3_u32 v11, v11, v4, s36")
    S.I(f"v_mul_u32_u24 v4, {8*272}, v{vG_}")
    S.I("v_add_u32 v4, v11, v4")
    S.I(f"v_and_b32 v5, 1, v{vG_}")
    S.I(f"v_mul_u32_u24 v5, {8*272}, v5")
    S.I(f"v_lshrrev_b32 v7, 1, v{vG_}")
    S.I("v_lshlrev_b32 v7, 3, v7")
    S.I("v_add3_u32 v5, v11, v5, v7")
    SHF = 40
    S.I("s_lshl_b32 s36, s32, 2")
    S.I("s_add_u32 s36, s36, s35")
    S.I(f"s_mul_i32 s36, s36, {2*HF_RT}")
    S.I("s_mul_i32 s37, s33, 2560")
    S.I("s_add_u32 s36, s36, s37")
    mk_srd(S, SHF, 30, 31, HF_RT + 2560, 36, HF_OFF)
    S.I("v_lshlrev_b32 v7, 4, v0")
    S.I(f"v_and_b32 v10, 1, v{vG_}")
    S.I("v_lshlrev_b32 v10, 8, v10")
    S.I(f"v_lshlrev_b32 v8, 4, v{vC_}")
    S.I("v_add_u32 v10, v10, v8")
    S.I(f"v_lshrrev_b32 v8, 1, v{vG_}")
    S.I(f"v_mul_u32_u24 v8, {HF_RT}, v8")
    S.I("v_add_u32 v10, v10, v8")
    S.I(f"s_mov_b32 s37, {HF_RT}")
    S.wait_lg()
    RD = BUF
    for n in range(5):
        for e in range(2):
            if n < 4:
                off = (n & 1) * 32 * 272 + e * 4 * 272 + (n >> 1) * 8
                S.I(f"ds_read_b64_tr_b16 {vr(RD+4*n+2*e,2)}, v4 offset:{off}", tag=f"t{n}")
            else:
                S.I(f"ds_read_b64_tr_b16 {vr(RD+4*n+2*e,2)}, v5 offset:{64*272+e*4*272}", tag=f"t{n}")
    for n in range(5):
        S.wait_lg(f"t{n}")
        if n < 4:
            so = "0" if n < 2 else "s37"
            S.I(f"buffer_store_dwordx4 {vr(RD+4*n,4)}, v7, s[{SHF}:{SHF+3}], {so} offen offset:{(n&1)*1024}{STH}", tag="st")
        else:
            S.I(f"buffer_store_dwordx4 {vr(RD+4*n,4)}, v10, s[{SHF}:{SHF+3}], 0 offen offset:2048{STH}", tag="st")
    phaseB(S, "Y", stamp)
    final_stamps(S, st)
    S.I("s_endpgm")

    M = Stream(A)
    M.label(f"L_{name}_M")
    stamp, st = mkstamp(M)
    SBB, SW1, SB1, SH1, SDB, SAGM = 40, 48, 52, 56, 60, 64
    MACC, XB, WB, FR = 24, 72, 104, 200
    CBA, CBF, WA, MSK = FR, FR + 20, FR + 40, FR + 52
    lbl = [0]
    if "early" in dbg: stamp()
    M.I("s_cmp_lg_u32 s35, 3")
    M.I("s_cselect_b64 vcc, -1, 0")
    mk_srd(M, SW1, 20, 21, 1966080)
    M.I("s_mul_i32 s39, s33, 192")
    M.I("s_lshl_b32 s36, s35, 8")
    for e in range(4):
        M.I(f"v_add_u32 v22, {64*e}, v0")
        M.I("v_add_u32 v22, s36, v22")
        M.I("v_min_u32 v22, 767, v22")
        M.I("v_mul_u32_u24 v23, 43691, v22")
        M.I("v_lshrrev_b32 v23, 19, v23")
        M.I("v_mul_u32_u24 v9, 12, v23")
        M.I("v_sub_u32 v22, v22, v9")
        M.I("v_lshlrev_b32 v22, 4, v22")
        M.I("v_mul_u32_u24 v23, 3072, v23")
        M.I(f"v_add3_u32 v{1+e}, v22, v23, s39")
    M.I("s_lshl_b32 s68, s35, 12")
    M.I(f"s_add_u32 s68, s68, {W1_O}")
    M.I("s_lshl_b32 s36, s35, 1")
    M.I("s_add_u32 s36, s36, 4")
    M.I("s_min_u32 s36, s36, 8")
    bb_srd(M, SBB, 69)
    M.I("s_lshl_b32 s36, s35, 1")
    M.I("s_add_u32 s36, s36, 5")
    M.I("s_min_u32 s36, s36, 9")
    bb_srd(M, SBB + 4, 70)
    M.I("v_lshrrev_b32 v22, 3, v0")
    M.I("v_and_b32 v23, 7, v0")
    M.I("v_xor_b32 v13, v22, v23")
    M.I("v_mul_u32_u24 v5, 1280, v22")
    M.I("v_lshl_add_u32 v13, v13, 4, v5")
    def guard(g):
        lbl[0] += 1
        return [(f"s_cbranch_vccz L_{name}_g{lbl[0]}", None)] + g + [(f"L_{name}_g{lbl[0]}:", None)]
    def m_dma(p):
        q = p % 4
        L = []
        g = [("s_lshl_b32 s38, s26, 7", None)]
        for e in range(2):
            g += [(f"s_add_u32 m0, s{69+e}, {q*SLOT}", None), (f"buffer_load_dwordx4 v13, s[{SBB+4*e}:{SBB+4*e+3}], s38 offen lds", f"c{p}")]
        L.append(guard(g))
        for e2 in range(2):
            g = [("s_mul_i32 s71, s26, 196608", None)] if e2 == 0 else []
            for e in (2 * e2, 2 * e2 + 1):
                g += [(f"s_add_u32 m0, s68, {q*SLOT + 1024*e}", None), (f"buffer_load_dwordx4 v{1+e}, s[{SW1}:{SW1+3}], s71 offen lds", f"c{p}")]
            if e2 == 1: g += adv()
            L.append(guard(g))
        return L
    def m_wait(tag):
        lbl[0] += 1
        M.I(f"s_cbranch_vccz L_{name}_g{lbl[0]}")
        M.wait_vm(tag)
        M.label(f"L_{name}_g{lbl[0]}")
    M.vm = []
    if "early" in dbg: stamp()
    emit(M, m_dma(0))
    if "early" in dbg: stamp()
    mk_srd(M, SDB, 28, 29, 256)
    M.I(f"s_mul_i32 s36, s33, {AGG_G}")
    mk_srd(M, SAGM, 30, 31, AGG_G, 36, AGG_OFF)
    for k in range(2): M.I(f"v_mov_b32 v{14+k}, 0")
    for k in range(4): M.I(f"v_mov_b32 v{18+k}, 0x3f803f80")
    savevm = list(M.vm)
    M.I(f"s_cbranch_vccnz L_{name}_noclr")
    M.I("v_min_u32 v8, 19, v0")
    M.I("v_lshlrev_b32 v8, 2, v8")
    M.I("s_mul_i32 s36, s33, 80")
    M.I("v_add_u32 v8, s36, v8")
    M.I("global_load_dword v1, v8, s[6:7]")
    M.I("global_load_dword v2, v8, s[8:9]")
    M.I("global_load_dword v3, v8, s[18:19]")
    M.I("v_min_u32 v8, 47, v0")
    M.I("v_lshlrev_b32 v8, 2, v8")
    M.I("s_mul_i32 s36, s33, 192")
    M.I("v_add_u32 v8, s36, v8")
    M.I("global_load_dword v4, v8, s[22:23]")
    mk_srd(M, SB1, 30, 31, 8192, None, FL_OFF)
    M.I("s_lshl_b32 s36, s32, 7")
    M.I("s_lshl_b32 s39, s33, 2")
    M.I("s_add_u32 s36, s36, s39")
    M.I("v_and_b32 v8, 1, v0")
    M.I("v_lshlrev_b32 v8, 11, v8")
    M.I("v_add_u32 v8, s36, v8")
    M.I("s_and_b32 s36, s2, 7")
    M.I("s_lshr_b32 s39, s2, 3")
    M.I("s_and_b32 s26, s36, 3")
    M.I("s_lshl_b32 s26, s26, 3")
    M.I("s_and_b32 s27, s39, 7")
    M.I("s_add_u32 s26, s26, s27")
    M.I("s_lshr_b32 s27, s36, 2")
    M.I("s_lshl_b32 s27, s27, 2")
    M.I("s_lshr_b32 s39, s39, 3")
    M.I("s_add_u32 s27, s27, s39")
    M.I("s_lshl_b32 s36, s27, 7")
    M.I("s_lshl_b32 s39, s26, 2")
    M.I("s_add_u32 s36, s36, s39")
    M.I("s_add_u32 s36, s36, 4096")
    M.I("v_writelane_b32 v8, s36, 2")
    M.I("s_mov_b64 exec, 7")
    M.I(f"buffer_store_dword v14, v8, s[{SB1}:{SB1+3}], 0 offen sc1")
    M.I("s_mov_b64 exec, -1")
    M.I("v_lshlrev_b32 v8, 3, v0")
    M.I("v_and_b32 v10, 15, v0")
    M.I("v_lshlrev_b32 v10, 3, v10")
    M.I("s_add_u32 s37, s32, 15")
    M.I("s_mul_i32 s37, s37, 640")
    M.I(f"buffer_store_dwordx2 v[14:15], v8, s[{SAGM}:{SAGM+3}], s37 offen sc1")
    M.I(f"buffer_store_dwordx2 v[14:15], v10, s[{SAGM}:{SAGM+3}], s37 offen offset:512 sc1")
    M.I("s_lshl_b32 s37, s32, 7")
    M.I(f"s_add_u32 s37, s37, {GO_O}")
    M.I(f"buffer_store_dwordx2 v[14:15], v14, s[{SAGM}:{SAGM+3}], s37 offen sc1")
    M.I("s_cmp_lg_u32 s32, 0")
    M.I(f"s_cbranch_scc1 L_{name}_noclr")
    M.I("v_mov_b32 v10, 0")
    M.I(f"v_mov_b32 v11, {TAG}")
    M.I("s_mov_b32 s37, 0")
    for k in range(19):
        if k == 18:
            M.I("v_min_u32 v8, 376, v8")
        M.I(f"buffer_store_dwordx2 v[10:11], v8, s[{SAGM}:{SAGM+3}], s37 offen offset:{(k%8)*512} sc1")
        if k % 8 == 7: M.I("s_add_u32 s37, s37, 4096")
    M.label(f"L_{name}_noclr")
    M.vm = savevm
    stamp()
    M.I("v_and_b32 v22, 15, v0")
    M.I("v_bfe_u32 v23, v0, 4, 1")
    T1 = XB
    M.I(f"v_lshrrev_b32 v{T1}, 2, v22")
    M.I(f"v_and_b32 v{T1+1}, 3, v22")
    M.I(f"v_lshlrev_b32 v{T1+2}, 3, v{T1}")
    M.I(f"v_lshl_add_u32 v{T1+2}, v23, 2, v{T1+2}")
    M.I(f"v_add_u32 v{T1+2}, v{T1+2}, v{T1+1}")
    M.I("s_lshl_b32 s36, s35, 5")
    M.I(f"v_add_u32 v{T1+5}, s36, v{T1+2}")
    M.I(f"v_lshlrev_b32 v{T1+2}, 7, v{T1+5}")
    M.I(f"v_lshrrev_b32 v{T1+3}, 1, v{T1}")
    M.I(f"v_lshlrev_b32 v{T1+3}, 2, v{T1+3}")
    M.I(f"v_and_b32 v{T1+4}, 2, v{T1+1}")
    M.I(f"v_or3_b32 v{T1+3}, v{T1+3}, v{T1+4}, v23")
    M.I(f"v_lshrrev_b32 v{T1+4}, 5, v0")
    M.I(f"v_xor_b32 v{T1+3}, v{T1+3}, v{T1+4}")
    M.I(f"v_lshlrev_b32 v{T1+6}, 3, v{T1+4}")
    M.I(f"v_bfe_u32 v{T1+7}, v0, 2, 2")
    M.I(f"v_add_u32 v{T1+6}, v{T1+6}, v{T1+7}")
    M.I(f"v_mul_u32_u24 v{T1+6}, 192, v{T1+6}")
    M.I(f"v_lshl_add_u32 v{T1+6}, v23, 5, v{T1+6}")
    M.I(f"v_and_b32 v{T1+7}, 3, v0")
    M.I(f"v_lshl_add_u32 v{T1+6}, v{T1+7}, 3, v{T1+6}")
    M.I(f"v_add_u32 v{T1+6}, {W1_O}, v{T1+6}")
    M.I(f"v_xor_b32 v{T1+7}, v23, v0")
    M.I(f"v_and_b32 v{T1+7}, 1, v{T1+7}")
    M.I(f"v_add_u32 v{T1+7}, -1, v{T1+7}")
    M.I(f"v_and_b32 v{MSK}, 0x3f803f80, v{T1+7}")
    for k in range(1, 4): M.I(f"v_mov_b32 v{MSK+k}, v{MSK}")
    for u in range(4):
        M.I(f"v_xor_b32 v{T1+4}, {2*u}, v{T1+3}")
        M.I(f"v_lshl_add_u32 v{5+u}, v{T1+4}, 4, v{T1+2}")
    for j2 in range(3):
        M.I(f"s_add_u32 s36, s35, {j2}")
        M.I("s_sub_u32 s39, s36, 3")
        M.I("s_cmp_ge_u32 s36, 3")
        M.I(f"s_cselect_b32 s{4+j2}, s39, s36")
        M.I(f"s_lshl_b32 s39, s{4+j2}, 6")
        M.I(f"v_add_u32 v{9+j2}, s39, v{T1+6}")
    M.I(f"v_lshlrev_b32 v23, 3, v{T1+5}")
    mk_srd(M, SB1, 22, 23, 3072)
    M.I(f"v_lshrrev_b32 v{T1}, 4, v0")
    M.I("s_and_b32 s36, s35, 1")
    M.I("s_lshl_b32 s36, s36, 2")
    M.I(f"v_add_u32 v{T1}, s36, v{T1}")
    M.I(f"v_and_b32 v{T1+1}, 7, v0")
    M.I(f"v_xor_b32 v{T1}, v{T1}, v{T1+1}")
    M.I(f"v_lshlrev_b32 v{T1+1}, 7, v22")
    M.I(f"v_lshl_add_u32 v16, v{T1}, 4, v{T1+1}")
    M.I(f"v_add_u32 v16, {BB_O}, v16")
    M.I(f"v_lshlrev_b32 v{T1}, 3, v0")
    M.I(f"v_add_u32 v{T1}, {CSW_L}, v{T1}")
    M.I(f"ds_write_b64 v{T1}, v[14:15]")
    for k in range(20): M.I(f"v_mov_b32 v{CBA+k}, 0")
    M.I("s_lshr_b32 s37, s35, 1")
    emit(M, m_dma(1))
    M.raw(";;DRYPT")
    def m_reads(p):
        L = []
        for u in range(4):
            L.append([(f"ds_read_b128 {vr(XB+16*(p&1)+4*u,4)}, v{5+u}", f"r{p}")])
            for jt in range(3):
                L.append([(f"ds_read_b64_tr_b16 {vr(WB+48*(p&1)+12*u+4*jt+2*e,2)}, v{9+jt} offset:{u*3072+e*768}", f"r{p}") for e in range(2)])
        delta = SLOT if p % 4 != 3 else (-3 * SLOT) & 0xffffffff
        L.append([(f"v_add_u32 v{k}, {delta}, v{k}", None) for k in range(5, 12)])
        return L
    def m_mfma(p):
        L = []
        for u in range(4):
            c = "0" if (p == 0 and u < 2) else vr(WA + 4 * (u & 1), 4)
            L.append(f"v_mfma_f32_16x16x32_bf16 {vr(WA+4*(u&1),4)}, {vr(WB+48*(p&1)+12*u,4)}, {vr(MSK,4)}, {c}")
        for u in range(4):
            for jt in range(3):
                c = "0" if (p == 0 and u == 0) else vr(MACC + 16 * jt, 16)
                L.append(f"v_mfma_f32_32x32x16_bf16 {vr(MACC+16*jt,16)}, {vr(WB+48*(p&1)+12*u+4*jt,4)}, {vr(XB+16*(p&1)+4*u,4)}, {c}")
        return L
    SJL = 2 * SLOT
    def sj_ids(M=None):
        M.I("s_and_b32 s36, s2, 7")
        M.I("s_lshr_b32 s39, s2, 3")
        M.I("s_and_b32 s26, s36, 3")
        M.I("s_lshl_b32 s26, s26, 3")
        M.I("s_and_b32 s27, s39, 7")
        M.I("s_add_u32 s26, s26, s27")
        M.I("s_lshr_b32 s27, s36, 2")
        M.I("s_lshl_b32 s27, s27, 2")
        M.I("s_lshr_b32 s39, s39, 3")
        M.I("s_add_u32 s27, s27, s39")
    def sj_issue_w(M=None):
        mk_srd(M, 40, 24, 25, 1966080)
        for jk in range(2):
            M.I(f"s_add_u32 s39, s26, {32*jk}")
            M.I("s_min_u32 s39, s39, 47")
            M.I(f"s_mul_i32 s{68+jk}, s27, {5*H1F_RT}")
            M.I("s_lshl_b32 s36, s39, 10")
            M.I(f"s_add_u32 s{68+jk}, s{68+jk}, s36")
            M.I("s_mul_i32 s39, s39, 40960")
            M.I("s_mul_i32 s36, s27, 160")
            M.I(f"s_add_u32 s{22+jk}, s36, s39")
        for e in range(5):
            M.I(f"v_add_u32 v1, {64*e}, v0")
            M.I("v_mul_u32_u24 v2, 6554, v1")
            M.I("v_lshrrev_b32 v2, 16, v2")
            M.I("v_mul_u32_u24 v3, 10, v2")
            M.I("v_sub_u32 v1, v1, v3")
            M.I("v_mul_u32_u24 v2, 1280, v2")
            M.I("v_lshl_add_u32 v1, v1, 4, v2")
            for jk in range(2):
                M.I(f"s_mov_b32 m0, {SJL + 5120*jk + 1024*e}")
                M.I(f"buffer_load_dwordx4 v1, s[40:43], s{22+jk} offen lds")
    def sj_issue_c(M=None):
        mk_srd(M, 44, 14, 15, 819200)
        mk_srd(M, 48, 16, 17, 819200)
        for jk in range(2):
            M.I(f"s_add_u32 s38, s26, {32*jk}")
            M.I("s_min_u32 s38, s38, 49")
            M.I(f"s_mul_hi_u32 s36, s38, {(2**32 + 9)//10}")
            M.I("s_mul_i32 s39, s36, 10")
            M.I("s_sub_u32 s39, s38, s39")
            M.I("s_mul_i32 s38, s27, 5")
            M.I("s_add_u32 s36, s36, s38")
            M.I(f"s_mul_i32 s{70+jk}, s36, {HF_RT}")
            M.I("s_lshl_b32 s38, s39, 12")
            M.I(f"s_add_u32 s{70+jk}, s{70+jk}, s38")
            M.I(f"s_add_u32 s{70+jk}, s{70+jk}, {CF_OFF - W2F_OFF}")
            M.I("s_mul_i32 s36, s36, 20480")
            M.I("s_lshl_b32 s39, s39, 7")
            M.I("s_add_u32 s36, s36, s39")
            M.I("s_add_u32 s39, s36, 10240")
            for (sr, mo) in ((44, 0), (48, 2048)):
                M.I(f"s_mov_b32 m0, {SJL + 10240 + 4096*jk + mo}")
                M.I(f"buffer_load_dwordx4 v13, s[{sr}:{sr+3}], s36 offen lds")
                M.I(f"s_mov_b32 m0, {SJL + 10240 + 4096*jk + mo + 1024}")
                M.I(f"buffer_load_dwordx4 v13, s[{sr}:{sr+3}], s39 offen lds")
    def sj_rec(rec, p):
        if p == 7:
            sj_ids(rec); sj_issue_w(rec)
        else: sj_issue_c(rec)
    def sj_finish():
        mk_srd(M, 40, 30, 31, STATS_OFF - W2F_OFF, None, W2F_OFF)
        M.I("v_lshrrev_b32 v1, 4, v0")
        M.I("v_lshrrev_b32 v2, 1, v1")
        M.I("v_lshlrev_b32 v12, 4, v2")
        M.I("v_and_b32 v3, 1, v1")
        M.I("v_lshl_add_u32 v12, v3, 2, v12")
        M.I("v_lshrrev_b32 v17, 2, v22")
        M.I("v_add_u32 v12, v12, v17")
        M.I("v_mul_u32_u24 v12, 160, v12")
        M.I("v_and_b32 v17, 3, v22")
        M.I("v_lshl_add_u32 v12, v17, 3, v12")
        M.I(f"v_add_u32 v12, {SJL}, v12")
        M.I("v_lshlrev_b32 v3, 11, v3")
        M.I("v_lshl_add_u32 v3, v22, 7, v3")
        M.I("v_and_b32 v17, 7, v22")
        M.I("v_xor_b32 v2, v2, v17")
        M.I("v_lshl_add_u32 v3, v2, 4, v3")
        M.I(f"v_add_u32 v3, {SJL + 10240}, v3")
        M.I("v_lshlrev_b32 v1, 4, v0")
        RW = [WB, WB + 20]; RC_ = [CBF, CBA]
        for jk in range(2):
            for j in range(5):
                for e in range(2):
                    M.I(f"ds_read_b64_tr_b16 {vr(RW[jk]+4*j+2*e,2)}, v12 offset:{5120*jk+32*j+1280*e}")
        for j in range(4):
            M.I(f"v_xor_b32 v2, {32*j}, v3")
            for jk in range(2):
                M.I(f"ds_read_b128 {vr(RC_[jk]+4*j,4)}, v2 offset:{4096*jk}")
        M.I("s_waitcnt lgkmcnt(0)")
        for jk in range(2):
            for j in range(5):
                M.I(f"buffer_store_dwordx4 {vr(RW[jk]+4*j,4)}, v1, s[40:43], s{68+jk} offen sc1")
                M.vm.pop()
                if j < 4: M.I(f"s_add_u32 s{68+jk}, s{68+jk}, {H1F_RT}")
        for jk in range(2):
            for j in range(4):
                M.I(f"buffer_store_dwordx4 {vr(RC_[jk]+4*j,4)}, v1, s[40:43], s{70+jk} offen offset:{1024*j} sc1")
                M.vm.pop()
    B1V = WB + 24
    for p in range(10):
        m_wait(f"c{p}")
        if p == 1:
            M.I(f"s_cbranch_vccnz L_{name}_w7")
            M.I("s_waitcnt vmcnt(0)")
            M.I("v_min_u32 v17, 19, v0")
            M.I("v_lshlrev_b32 v17, 2, v17")
            M.I(f"v_add_u32 v17, {PAR_L}, v17")
            M.I("ds_write_b32 v17, v1")
            M.I("ds_write_b32 v17, v2 offset:128")
            M.I("ds_write_b32 v17, v3 offset:256")
            M.lg = []
            M.label(f"L_{name}_w7")
        if p == 0: M.wait_lg()
        M.I("s_barrier")
        stamp(True)
        if p in (0, 9): stamp()
        side = m_dma(p + 3) if p + 3 <= 9 else []
        if p == 0: side = m_dma(2)
        if p == 1: side = m_dma(3) + side
        rd = m_reads(p)
        M.I(f"s_cmp_lg_u32 s37, {p & 1}")
        M.I(f"s_cbranch_scc1 L_{name}_cs{p}a")
        for j in range(5):
            M.I(f"ds_read_b128 {vr(CBF+4*j,4)}, v16 offset:{2048*j}")
            M.lg.pop()
        M.label(f"L_{name}_cs{p}a")
        delta = SLOT if p % 4 != 3 else (-3 * SLOT) & 0xffffffff
        M.I(f"v_add_u32 v16, {delta}, v16")
        def cs_mfma():
            M.I(f"s_cmp_lg_u32 s37, {p & 1}")
            M.I(f"s_cbranch_scc1 L_{name}_cs{p}b")
            for j in range(5):
                M.I(f"v_mfma_f32_16x16x32_bf16 {vr(CBA+4*j,4)}, v[18:21], {vr(CBF+4*j,4)}, {vr(CBA+4*j,4)}")
            M.label(f"L_{name}_cs{p}b")
        if "dmaonly" in dbg: emit(M, side)
        elif p == 0: emit(M, rd + side)
        elif p == 9:
            mm8 = m_mfma(8)
            for m in mm8[:6]: M.I(m)
            M.I("s_waitcnt lgkmcnt(0)")
            cs_mfma()
            for m in mm8[6:8]: M.I(m)
            M.I("s_mul_i32 s36, s35, 320")
            M.I(f"s_add_u32 s36, s36, {CSB_L}")
            M.I("v_lshlrev_b32 v17, 2, v22")
            M.I("v_add_u32 v17, s36, v17")
            M.I("s_nop 3")
            M.I("s_mov_b64 exec, 0xffff")
            for j in range(5):
                M.I(f"ds_write_b32 v17, v{CBA+4*j} offset:{64*j}", tag="sw")
            cnt_add(M, 16, 17, CNT_L + 4)
            merge(M, mm8[8:], rd, 0.9)
            M.I(f"s_cbranch_vccnz L_{name}_nb1")
            M.I("v_min_u32 v17, 47, v0")
            M.I("v_lshlrev_b32 v17, 3, v17")
            M.I(f"v_add_u32 v17, {B1F_L}, v17")
            M.I("v_lshlrev_b32 v2, 16, v4")
            M.I("v_and_b32 v3, 0xffff0000, v4")
            M.I("ds_write_b64 v17, v[2:3]")
            M.label(f"L_{name}_nb1")
        elif p in (7, 8):
            class Rec:
                def __init__(self): self.L = []; self.vm = []
                def I(self, t, tag=None): self.L.append(t)
            Msave = M; rec = Rec()
            globals()["_REC"] = rec
            sj_rec(rec, p)
            groups = []
            n = 9
            for k in range(0, len(rec.L), n):
                chunk = rec.L[k:k + n]
                groups.append(chunk)
            fixed = []; cur = []
            for t in rec.L:
                cur.append(t)
                if len(cur) >= n and not (t.startswith("s_mov_b32 m0") or t.startswith("s_add_u32") or t.startswith("s_cmp")):
                    fixed.append(cur); cur = []
            if cur: fixed.append(cur)
            gs = []
            for g in fixed:
                lbl[0] += 1
                gs.append([(f"s_cbranch_vccnz L_{name}_g{lbl[0]}", None)] + [(t, "sj") for t in g] + [(f"L_{name}_g{lbl[0]}:", None)])
            merge(M, m_mfma(p - 1), mix(rd, gs), 0.95)
            M.vm = [t for t in M.vm if t != "sj"]
        else: merge(M, m_mfma(p - 1), mix(rd, side), 0.9)
        if p == 6:
            svm = list(M.vm)
            M.I(f"s_cbranch_vccnz L_{name}_si{p}")
            if p == 6:
                M.I("s_waitcnt vmcnt(0)")
                M.I("v_readfirstlane_b32 s36, v15")
                M.I("s_cmp_lg_u32 s36, 15")
                M.I(f"s_cbranch_scc1 L_{name}_nb")
                mk_srd(M, SB1, 30, 31, 16 * AGG_G, None, AGG_OFF)
                M.I("v_lshlrev_b32 v14, 7, v22")
                M.I("v_lshrrev_b32 v15, 4, v0")
                M.I(f"v_mul_u32_u24 v15, {AGG_G}, v15")
                M.I(f"v_add3_u32 v14, v14, v15, {0}") if False else M.I("v_add_u32 v14, v14, v15")
                M.I(f"v_add_u32 v14, {GO_O}, v14")
                M.I(f"v_mov_b32 v15, {TAG}")
                for n in range(4):
                    M.I(f"s_mov_b32 s36, {4*n*AGG_G}")
                    M.I(f"buffer_store_dword v15, v14, s[{SB1}:{SB1+3}], s36 offen sc1")
                    M.vm.pop()
                M.label(f"L_{name}_nb")
                pass
            M.label(f"L_{name}_si{p}")
            M.vm = svm
        if p == 1:
            M.I(f"s_cbranch_vccnz L_{name}_na")
            M.I("s_waitcnt vmcnt(0)")
            M.I("s_lshl_b32 s36, s33, 4")
            M.I("v_mov_b32 v14, s36")
            M.I("v_mov_b32 v15, 1")
            M.I("s_mov_b64 exec, 1")
            M.I(f"buffer_atomic_add v15, v14, s[{SDB}:{SDB+3}], 0 offen sc0")
            M.vm.pop()
            M.I("s_mov_b64 exec, -1")
            M.label(f"L_{name}_na")
        if p == 4:
            M.I(f"s_cbranch_vccnz L_{name}_n2")
            M.I("s_waitcnt vmcnt(0)")
            M.I("v_readfirstlane_b32 s36, v15")
            M.I("v_mov_b32 v15, 0")
            M.I("s_cmp_lg_u32 s36, 15")
            M.I(f"s_cbranch_scc1 L_{name}_n2")
            M.I("v_mov_b32 v14, 4")
            M.I("v_mov_b32 v15, 1")
            M.I("s_mov_b64 exec, 1")
            M.I(f"buffer_atomic_add v15, v14, s[{SDB}:{SDB+3}], 0 offen sc0")
            M.vm.pop()
            M.I("s_mov_b64 exec, -1")
            M.label(f"L_{name}_n2")
        M.I("s_waitcnt lgkmcnt(0)")
        M.lg = []
        if p < 9: cs_mfma()
    mm = m_mfma(9)
    M.raw(";;DRYSTART")
    M.I("s_lshl_b32 s38, s35, 2")
    M.I(f"s_add_u32 s38, s38, {CNT_L+16}")
    if "mdelay" in dbg: cnt_wait(M, f"L_{name}_mw2", 16, 17, "s38", 1)
    for m in mm[:4]: M.I(m)
    for m in mm[4:8]: M.I(m)
    for r in range(4): M.I(f"v_add_f32 v{WA+r}, v{WA+r}, v{WA+4+r}")
    M.I("v_and_b32 v16, 1, v0")
    M.I("v_lshlrev_b32 v16, 6, v16")
    M.I("v_lshrrev_b32 v17, 4, v0")
    M.I("v_lshl_add_u32 v16, v17, 4, v16")
    M.I("s_lshl_b32 s36, s4, 7")
    M.I(f"s_add_u32 s36, s36, {CSW_L}")
    M.I("v_add_u32 v16, s36, v16")
    M.I("s_mov_b32 exec_lo, 0x00030003")
    M.I("s_mov_b32 exec_hi, 0x00030003")
    M.I(f"ds_write_b128 v16, {vr(WA,4)}")
    cnt_add(M, 16, 17, CNT_L + 8)
    for m in mm[8:]: M.I(m)
    svm, slg = list(M.vm), list(M.lg)
    M.I(f"s_cbranch_vccnz L_{name}_sjl")
    M.I("s_waitcnt vmcnt(0)")
    sj_finish()
    M.label(f"L_{name}_sjl")
    M.vm, M.lg = svm, slg
    stamp()
    cnt_wait(M, f"L_{name}_mw1", 16, 17, CNT_L + 8, 4)
    if "mdelay" not in dbg: cnt_wait(M, f"L_{name}_mw2", 16, 17, "s38", 1)
    stamp()
    M.I("s_lshl_b32 s36, s32, 7")
    M.I(f"s_add_u32 s36, s36, {GO_O}")
    M.I("v_mov_b32 v7, s36")
    M.I(f"buffer_load_dword v7, v7, s[{SAGM}:{SAGM+3}], 0 offen sc1")
    M.vm.pop()
    CSV = XB
    B1V = WB + 16
    M.I("v_lshrrev_b32 v10, 5, v0")
    M.I("v_lshlrev_b32 v11, 4, v10")
    M.I(f"v_add_u32 v12, {B1F_L}, v11")
    M.I(f"v_add_u32 v11, {CSW_L}, v11")
    M.I("v_lshrrev_b32 v23, 1, v23")
    M.I(f"v_add_u32 v23, {STATS_L}, v23")
    M.I("ds_read_b32 v14, v23")
    M.I("ds_read_b32 v15, v23 offset:512")
    for jt in range(3):
        M.I(f"s_lshl_b32 s36, s{4+jt}, 7")
        M.I("v_add_u32 v16, s36, v11")
        M.I("v_add_u32 v17, s36, v12")
        M.I(f"s_lshl_b32 s{4+jt}, s{4+jt}, 10")
        for q in range(4):
            M.I(f"ds_read_b128 {vr(CSV+(jt*4+q)*4,4)}, v16 offset:{32*q}", tag=f"cr{jt}")
            M.I(f"ds_read_b128 {vr(B1V+(jt*4+q)*4,4)}, v17 offset:{32*q}", tag=f"cr{jt}")
    M.I("s_lshl_b32 s36, s32, 2")
    M.I("s_add_u32 s36, s36, s35")
    M.I(f"s_mul_i32 s36, s36, {2*H1F_RT}")
    M.I("s_mul_i32 s39, s33, 3072")
    M.I("s_add_u32 s36, s36, s39")
    mk_srd(M, SH1, 30, 31, H1F_RT + 3072, 36, H1F_OFF)
    M.I("v_bfe_u32 v9, v0, 4, 1")
    M.I(f"v_mul_u32_u24 v9, {H1F_RT}, v9")
    M.I("v_lshl_add_u32 v9, v10, 8, v9")
    M.I("v_lshl_add_u32 v9, v22, 4, v9")
    C1 = -2.0 * 1.4426950408889634 * 0.7978845608028654
    C2 = C1 * 0.044715
    M.I(f"v_mov_b32 v16, {f2u(C2)}")
    M.I(f"v_mov_b32 v17, {f2u(C1)}")
    TM = FR
    late = []
    for jt in range(3):
        M.wait_lg(f"cr{jt}")
        P = [MACC + 16 * jt + 2 * k for k in range(8)]
        cs = [CSV + jt * 16 + 2 * k for k in range(8)]
        b1 = [B1V + jt * 16 + 2 * k for k in range(8)]
        T_ = [TM + 2 * k for k in range(8)]
        for k in range(8):
            M.I(f"v_pk_fma_f32 {vr(b1[k],2)}, v[14:15], {vr(cs[k],2)}, {vr(b1[k],2)} op_sel:[0,0,0] op_sel_hi:[0,1,1] neg_lo:[1,0,0] neg_hi:[1,0,0]")
        for k in range(8):
            M.I(f"v_pk_fma_f32 {vr(P[k],2)}, {vr(P[k],2)}, v[14:15], {vr(b1[k],2)} op_sel:[0,1,0] op_sel_hi:[1,1,1]")
        for k in range(8):
            M.I(f"v_pk_mul_f32 {vr(T_[k],2)}, {vr(P[k],2)}, {vr(P[k],2)}")
        for k in range(8):
            M.I(f"v_pk_fma_f32 {vr(T_[k],2)}, {vr(T_[k],2)}, v[16:17], v[16:17] op_sel:[0,0,1] op_sel_hi:[1,0,1]")
        for k in range(8):
            M.I(f"v_pk_mul_f32 {vr(T_[k],2)}, {vr(T_[k],2)}, {vr(P[k],2)}")
        for k in range(16):
            M.I(f"v_exp_f32 v{TM+k}, v{TM+k}")
        for k in range(8):
            M.I(f"v_pk_add_f32 {vr(T_[k],2)}, {vr(T_[k],2)}, 1.0 op_sel_hi:[1,0]")
        for k in range(16):
            M.I(f"v_rcp_f32 v{TM+k}, v{TM+k}")
        for k in range(8):
            M.I(f"v_pk_mul_f32 {vr(P[k],2)}, {vr(P[k],2)}, {vr(T_[k],2)}")
        PKM = TM + 16 + 8 * jt
        for k in range(8):
            M.I(f"v_cvt_pk_bf16_f32 v{PKM+k}, v{P[k]}, v{P[k]+1}")
        def h1st(jt=jt, PKM=PKM):
            for AB in range(2):
                M.I(f"buffer_store_dwordx4 {vr(PKM+4*AB,4)}, v9, s[{SH1}:{SH1+3}], s{4+jt} offen offset:{512*AB}{STF}", tag="st")
        if jt == 1:
            M.I(f"s_cbranch_vccnz L_{name}_a2")
            M.I("s_waitcnt vmcnt(3)")
            mk_srd(M, 44, 30, 31, 8192, None, FL_OFF)
            M.I("s_lshl_b32 s36, s27, 7")
            M.I("s_lshl_b32 s39, s26, 2")
            M.I("s_add_u32 s36, s36, s39")
            M.I("s_add_u32 s36, s36, 4096")
            M.I("v_mov_b32 v1, s36")
            M.I(f"v_mov_b32 v2, {TAG}")
            M.I("s_mov_b64 exec, 1")
            M.I("buffer_store_dword v2, v1, s[44:47], 0 offen sc1")
            M.vm.pop()
            M.I("s_mov_b64 exec, -1")
            M.label(f"L_{name}_a2")
        if "mst" in dbg: late.append(h1st)
        else: h1st()
    if "mst" in dbg:
        cnt_wait(M, f"L_{name}_mw3", 16, 17, CNT_L + 12, 1)
        for f in late: f()
    M.I("s_cmp_lg_u32 s33, 0")
    M.I(f"s_cbranch_scc1 L_{name}_nostat")
    M.I("s_lshl_b32 s36, s32, 9")
    mk_srd(M, 40, 30, 31, 8192 + 512, 36, STATS_OFF)
    M.I(f"v_subrev_u32 v23, {STATS_L}, v23")
    M.I("s_mov_b32 s36, 8192")
    M.I("buffer_store_dword v14, v23, s[40:43], 0 offen sc1")
    M.I("buffer_store_dword v15, v23, s[40:43], s36 offen sc1")
    M.label(f"L_{name}_nostat")
    phaseB(M, "G", stamp)
    final_stamps(M, st)
    M.label(f"L_{name}_end")
    M.I("s_endpgm")
    if "dry" not in dbg:
        for X in (S, M): X.lines = [l for l in X.lines if not l.startswith(";;DRY")]
    else:
        print("dry blocks", add_dry(S, name, "ds", 39), add_dry(M, name, "dm", 39))
    desc = f""".section .rodata,"a"
.p2align 6
.amdhsa_kernel {name}
  .amdhsa_next_free_vgpr 256
  .amdhsa_next_free_sgpr 102
  .amdhsa_accum_offset 256
  .amdhsa_group_segment_fixed_size 0
  .amdhsa_kernarg_size 136
  .amdhsa_user_sgpr_count 2
  .amdhsa_user_sgpr_kernarg_segment_ptr 1
  .amdhsa_system_sgpr_workgroup_id_x 1
.end_amdhsa_kernel
.text"""
    return A.text() + "\n" + S.text() + "\n" + M.text() + "\n" + desc, (A.nins, S.nins, M.nins)
```

```python
from asmfw import *
from layout import *
import struct
def f2u(f): return struct.unpack("<I", struct.pack("<f", f))[0]
LOG2E = f2u(1.4426950408889634)
INV2PI = f2u(0.15915494309189535)
SLOT = 38912
BB_O = 16384
W1_O = 26624
MISC = 155648
SEG_L = MISC
CSW_L = MISC + 5120
CNT_L = CSW_L + 384
STATS_L = MISC + 5632
CSB_L = STATS_L + 1024
STG_L = 2 * SLOT
PAR_L = SEG_L
B1F_L = 34816
GR_L = 40960
TR_L = 0
Q_L = 24576
HS_L = 32768
TAG = 0x5a17c3e9
EP_L = 126976
MST_L = 0
NEG_LOG2E = 0xbfb8aa3b
DPP = "row_ror:8 row_mask:0xf bank_mask:0xf"

def mk_srd(A, d, lo, hi, nbytes, off_s=None, off_imm=0):
    if off_s is None and off_imm == 0:
        A.I(f"s_mov_b32 s{d}, s{lo}")
        A.I(f"s_and_b32 s{d+1}, s{hi}, 0xffff")
    else:
        if off_s is not None:
            if off_imm: A.I(f"s_add_u32 s{off_s}, s{off_s}, {off_imm}")
            A.I(f"s_add_u32 s{d}, s{lo}, s{off_s}")
        else:
            A.I(f"s_add_u32 s{d}, s{lo}, {off_imm}")
        A.I(f"s_addc_u32 s{d+1}, s{hi}, 0")
        A.I(f"s_and_b32 s{d+1}, s{d+1}, 0xffff")
    A.I(f"s_mov_b32 s{d+2}, {nbytes}")
    A.I(f"s_mov_b32 s{d+3}, 0x00020000")

def bb_srd(X, d, ldsreg):
    X.I(f"s_lshl_b32 s{ldsreg}, s36, 10")
    X.I(f"s_add_u32 s{ldsreg}, s{ldsreg}, {BB_O}")
    X.I("s_and_b32 s39, s36, 1")
    X.I("s_cmp_eq_u32 s39, 0")
    X.I(f"s_cselect_b32 s{d}, s10, s12")
    X.I(f"s_cselect_b32 s{d+1}, s11, s13")
    X.I("s_lshr_b32 s36, s36, 1")
    X.I("s_lshl_b32 s36, s36, 3")
    X.I("s_mul_i32 s39, s33, 40")
    X.I("s_add_u32 s36, s36, s39")
    X.I("s_mul_i32 s36, s36, 1280")
    X.I(f"s_add_u32 s{d}, s{d}, s36")
    X.I(f"s_addc_u32 s{d+1}, s{d+1}, 0")
    X.I(f"s_and_b32 s{d+1}, s{d+1}, 0xffff")
    X.I(f"s_mov_b32 s{d+2}, 10240")
    X.I(f"s_mov_b32 s{d+3}, 0x00020000")

def put(X, item):
    t, g = item
    if t.endswith(":"): X.label(t[:-1])
    else: X.I(t, tag=g)
def emit(X, L):
    for grp in L:
        for it in grp: put(X, it)
def merge(X, main, side, frac=1.0):
    side = list(side)
    n = max(1, int(len(main) * frac))
    done = 0
    for k, m in enumerate(main):
        X.I(m)
        tgt = min(len(side), ((k + 1) * len(side) + n - 1) // n)
        while done < tgt:
            for it in side[done]: put(X, it)
            done += 1
    while done < len(side):
        for it in side[done]: put(X, it)
        done += 1
def mix(a, b):
    out = []; ia = ib = 0
    while ia < len(a) or ib < len(b):
        if ib >= len(b) or (ia < len(a) and ia * len(b) <= ib * len(a)):
            out.append(a[ia]); ia += 1
        else:
            out.append(b[ib]); ib += 1
    return out

def cnt_add(X, va, vt, addr):
    X.I(f"v_mov_b32 v{va}, {addr}")
    X.I(f"v_mov_b32 v{vt}, 1")
    X.I("s_mov_b64 exec, 1")
    X.I(f"ds_add_u32 v{va}, v{vt}")
    X.I("s_mov_b64 exec, -1")
def cnt_wait(X, lab, va, vt, addr, val):
    X.I(f"v_mov_b32 v{va}, {addr}")
    X.I("s_mov_b32 s39, 0")
    X.label(lab)
    X.I(f"ds_read_b32 v{vt}, v{va}")
    X.I("s_waitcnt lgkmcnt(0)")
    X.lg = []
    X.I(f"v_readfirstlane_b32 s36, v{vt}")
    X.I("s_add_u32 s39, s39, 1")
    X.I(f"s_cmp_eq_u32 s36, {val}")
    X.I(f"s_cbranch_scc1 {lab}d")
    X.I("s_sleep 1")
    X.I("s_cmp_lt_u32 s39, 0x400000")
    X.I(f"s_cbranch_scc1 {lab}")
    X.label(lab + "d")

def pr(idx):
    return f"v[{idx & ~1}:{(idx & ~1) + 1}]", idx & 1

def add_dry(X, name, tag, sreg, minlen=10, maxlen=48):
    lines = X.lines
    i0 = lines.index(";;DRYSTART")
    head, tail = lines[:i0], lines[i0 + 1:]
    def pure(l):
        t = l.strip()
        if t.startswith("v_"):
            return not (t.startswith("v_cmp") or t.startswith("v_readfirstlane") or t.startswith("v_mfma") or t.startswith("v_readlane") or "co_u32" in t)
        return t.startswith("s_nop")
    out = []; nb = 0; i = 0
    while i < len(tail):
        j = i
        while j < len(tail) and pure(tail[j]): j += 1
        if j - i >= minlen:
            k = i
            while k < j:
                e = min(j, k + maxlen)
                if j - e < minlen: e = j
                out.append(f"L_{name}_{tag}{nb}:")
                out += tail[k:e]
                out.append(f"    s_cbranch_execz L_{name}_{tag}disp")
                nb += 1; k = e
            i = j
        else:
            out += tail[i:max(j, i + 1)]; i = max(j, i + 1)
    drv = [f"    s_mov_b32 s{sreg}, s35", "    s_mov_b64 exec, 0", f"    s_branch L_{name}_{tag}go",
           f"L_{name}_{tag}disp:", f"    s_add_u32 s{sreg}, s{sreg}, 4", f"L_{name}_{tag}go:"]
    for b in range(nb):
        drv += [f"    s_cmp_eq_u32 s{sreg}, {b}", f"    s_cbranch_scc1 L_{name}_{tag}{b}"]
    drv += ["    s_mov_b64 exec, -1"]
    p = head.index(";;DRYPT")
    X.lines = head[:p] + drv + head[p + 1:] + out
    return nb

def gen_kf(name="kf_kernel", stamps=False, rot=True, dbg=""):
    import os
    STF = os.environ.get("STF1", "")
    STH = os.environ.get("STH", STF)
    A = Stream()
    A.raw(f".globl {name}\n.p2align 8\n.type {name},@function\n{name}:")
    A.I("s_cmp_ge_u32 s2, 256")
    A.I(f"s_cbranch_scc1 L_{name}_end")
    class St:
        n = 0
    def mkstamp(X):
        st = St()
        def stamp(ph=False):
            if not stamps: return
            if ("phst" in dbg) != ph: return
            assert st.n < 12
            X.I(f"s_memtime s[{74+2*st.n}:{75+2*st.n}]"); st.n += 1
        return stamp, st
    if stamps:
        A.I("s_memtime s[72:73]")
        A.I("s_memrealtime s[98:99]")
    A.I("s_load_dwordx16 s[4:19], s[0:1], 0")
    A.I("s_load_dwordx4 s[20:23], s[0:1], 80")
    A.I("s_load_dwordx2 s[24:25], s[0:1], 96")
    A.I("s_load_dwordx4 s[28:31], s[0:1], 120")
    A.I("s_and_b32 s36, s2, 7")
    A.I("s_lshr_b32 s37, s2, 3")
    if "map2" in dbg:
        A.I("s_and_b32 s32, s37, 15")
    else:
        A.I("s_and_b32 s32, s36, 1")
        A.I("s_lshl_b32 s32, s32, 3")
        A.I("s_and_b32 s38, s37, 7")
        A.I("s_add_u32 s32, s32, s38")
    if "map2" in dbg:
        A.I("s_lshl_b32 s33, s36, 1")
        A.I("s_lshr_b32 s38, s37, 4")
    else:
        A.I("s_lshr_b32 s33, s36, 1")
        A.I("s_lshl_b32 s33, s33, 2")
        A.I("s_lshr_b32 s38, s37, 3")
    A.I("s_add_u32 s33, s33, s38")
    import os
    rm = os.environ.get("ROTM", "full")
    if rot and rm == "full":
        A.I("s_and_b32 s26, s33, 3")
        A.I("s_mul_i32 s26, s26, 3")
        A.I("s_and_b32 s27, s32, 7")
        A.I("s_add_u32 s26, s26, s27")
        A.I("s_sub_u32 s27, s26, 10")
        A.I("s_cmp_ge_u32 s26, 10")
        A.I("s_cselect_b32 s26, s27, s26")
    elif rot and rm == "r4":
        A.I("s_add_u32 s26, s33, s32")
        A.I("s_and_b32 s26, s26, 3")
    elif rot and rm == "r2":
        A.I("s_add_u32 s26, s33, s32")
        A.I("s_and_b32 s26, s26, 1")
        A.I("s_lshl_b32 s26, s26, 1")
    elif rot and rm == "r4x2":
        A.I("s_add_u32 s26, s33, s32")
        A.I("s_and_b32 s26, s26, 3")
        A.I("s_lshl_b32 s26, s26, 1")
    else:
        A.I("s_mov_b32 s26, 0")
    A.I("v_lshrrev_b32 v1, 6, v0")
    A.I("v_and_b32 v0, 63, v0")
    A.I("v_readfirstlane_b32 s34, v1")
    A.I("s_and_b32 s35, s34, 3")
    A.I("s_cmp_ge_u32 s34, 4")
    A.wait_lg()
    if "notlb" not in dbg:
        A.I(f"s_mul_i32 s36, s32, {128*1280}")
        A.I("s_mul_i32 s37, s33, 51200")
        A.I("s_load_dword s3, s[4:5], s36")
        A.I("s_load_dword s3, s[10:11], s37")
        A.I("s_load_dword s3, s[12:13], s37")
        A.I("s_load_dword s3, s[20:21], 0")
        A.I("s_load_dword s3, s[20:21], 0xffffc")
        A.I("s_cmp_ge_u32 s34, 4")
    A.I(f"s_cbranch_scc1 L_{name}_M")

    def final_stamps(X, st):
        if not stamps: return
        X.wait_all()
        X.I(f"s_memtime s[{74+2*st.n}:{75+2*st.n}]"); st.n += 1
        X.I("s_memrealtime s[100:101]")
        X.wait_lg()
        X.I("s_lshl_b32 s36, s2, 3")
        X.I("s_add_u32 s36, s36, s34")
        X.I("s_lshl_b32 s36, s36, 7")
        X.I("s_add_u32 s36, s36, 0x2000000")
        X.I("s_add_u32 s40, s30, s36")
        X.I("s_addc_u32 s41, s31, 0")
        X.I("s_and_b32 s41, s41, 0xffff")
        X.I("s_mov_b32 s42, 128")
        X.I("s_mov_b32 s43, 0x00020000")
        X.I("v_mov_b32 v1, 0")
        for i in range(st.n + 1):
            X.I(f"v_mov_b32 v2, s{72+2*i}")
            X.I(f"buffer_store_dword v2, v1, s[40:43], 0 offen offset:{4*i}")
        X.I("v_mov_b32 v2, s98")
        X.I("buffer_store_dword v2, v1, s[40:43], 0 offen offset:120")
        X.I("v_mov_b32 v2, s100")
        X.I("buffer_store_dword v2, v1, s[40:43], 0 offen offset:124")
    def side_issue(S, vG_, vC_, vBB, SJA, SJB, SWS, t1, t2, t3, vL, vA):
        mk_srd(S, SWS, 30, 31, STATS_OFF - W2F_OFF, None, W2F_OFF)
        S.I("s_lshl_b32 s26, s2, 2")
        S.I("s_add_u32 s26, s26, s35")
        if "nosj" in dbg: S.I("s_mov_b32 s26, 1000")
        S.I("s_lshl_b32 s27, s35, 12")
        S.I(f"s_add_u32 s27, s27, {STG_L}")
        S.I(f"v_lshlrev_b32 v{vL}, 4, v0")
        S.I(f"v_mov_b32 v{vA}, 0")
        S.I("s_mov_b32 s22, 0")
        S.I("s_mov_b32 s23, 0")
        savevm = list(S.vm)
        S.I("s_cmp_ge_u32 s26, 880")
        S.I(f"s_cbranch_scc1 L_{name}_sj0")
        S.I("s_cmp_ge_u32 s26, 480")
        S.I(f"s_cbranch_scc1 L_{name}_sjc")
        mk_srd(S, SJA, 24, 25, 1966080)
        S.I(f"s_mul_hi_u32 s36, s26, {(2**32 + 47)//48}")
        S.I("s_mul_i32 s39, s36, 48")
        S.I("s_sub_u32 s39, s26, s39")
        S.I(f"s_mul_i32 s22, s36, {4*H1F_RT}")
        S.I("s_lshl_b32 s23, s39, 10")
        S.I("s_add_u32 s22, s22, s23")
        S.I(f"s_mov_b32 s23, {H1F_RT}")
        S.I("s_mul_i32 s39, s39, 40960")
        S.I("s_lshl_b32 s36, s36, 7")
        S.I("s_add_u32 s36, s36, s39")
        S.I(f"v_lshrrev_b32 v{t1}, 3, v0")
        S.I(f"v_mul_u32_u24 v{t1}, 1280, v{t1}")
        S.I(f"v_and_b32 v{t2}, 7, v0")
        S.I(f"v_lshl_add_u32 v{t1}, v{t2}, 4, v{t1}")
        for e in range(4):
            S.I(f"s_add_u32 m0, s27, {1024*e}")
            S.I(f"buffer_load_dwordx4 v{t1}, s[{SJA}:{SJA+3}], s36 offen lds")
            if e < 3: S.I("s_add_u32 s36, s36, 10240")
        S.I(f"v_lshrrev_b32 v{t1}, 1, v{vG_}")
        S.I(f"v_lshlrev_b32 v{t1}, 11, v{t1}")
        S.I(f"v_and_b32 v{t2}, 1, v{vG_}")
        S.I(f"v_lshl_add_u32 v{t1}, v{t2}, 9, v{t1}")
        S.I(f"v_lshrrev_b32 v{t2}, 2, v{vC_}")
        S.I(f"v_lshl_add_u32 v{t1}, v{t2}, 7, v{t1}")
        S.I(f"v_and_b32 v{t2}, 3, v{vC_}")
        S.I(f"v_lshl_add_u32 v{t1}, v{t2}, 3, v{t1}")
        S.I(f"v_add_u32 v{vA}, s27, v{t1}")
        S.I(f"s_branch L_{name}_sj0")
        S.label(f"L_{name}_sjc")
        mk_srd(S, SJA, 14, 15, 819200)
        mk_srd(S, SJB, 16, 17, 819200)
        S.I("s_sub_u32 s39, s26, 480")
        S.I(f"s_mul_hi_u32 s36, s39, {(2**32 + 9)//10}")
        S.I("s_mul_i32 s22, s36, 10")
        S.I("s_sub_u32 s39, s39, s22")
        S.I(f"s_mul_i32 s22, s36, {HF_RT}")
        S.I("s_lshl_b32 s23, s39, 12")
        S.I("s_add_u32 s22, s22, s23")
        S.I(f"s_add_u32 s22, s22, {CF_OFF - W2F_OFF}")
        S.I("s_mov_b32 s23, 1024")
        S.I("s_mul_i32 s36, s36, 20480")
        S.I("s_lshl_b32 s39, s39, 7")
        S.I("s_add_u32 s36, s36, s39")
        S.I("s_add_u32 s39, s36, 10240")
        for (srd_, mo) in ((SJA, 0), (SJB, 2048)):
            S.I(f"s_add_u32 m0, s27, {mo}")
            S.I(f"buffer_load_dwordx4 v{vBB}, s[{srd_}:{srd_+3}], s36 offen lds")
            S.I(f"s_add_u32 m0, s27, {mo+1024}")
            S.I(f"buffer_load_dwordx4 v{vBB}, s[{srd_}:{srd_+3}], s39 offen lds")
        S.I(f"v_and_b32 v{t1}, 1, v{vG_}")
        S.I(f"v_lshlrev_b32 v{t1}, 11, v{t1}")
        S.I(f"v_lshl_add_u32 v{t1}, v{vC_}, 7, v{t1}")
        S.I(f"v_lshrrev_b32 v{t2}, 1, v{vG_}")
        S.I(f"v_and_b32 v{t3}, 7, v{vC_}")
        S.I(f"v_xor_b32 v{t2}, v{t2}, v{t3}")
        S.I(f"v_lshl_add_u32 v{t1}, v{t2}, 4, v{t1}")
        S.I(f"v_add_u32 v{vA}, s27, v{t1}")
        S.label(f"L_{name}_sj0")
        S.vm = savevm

    def phaseB(X, typ, stamp):
        L = f"L_{name}_{typ}"
        isG = typ == "G"
        RT = H1F_RT if isG else HF_RT
        NS = 12 if isG else 10
        D = int(os.environ.get("FDG" if isG else "FDY", "3"))
        LDF = os.environ.get("LDF", " sc1")
        ACC, STG = 16, 96
        VO = STG + 36 * D
        SA, SB0, SFL, SAGB = 40, 44, 52, 56
        PRIV = 15360
        BASE = 0 if isG else 61440 + 0
        BASE = 0 if isG else 0
        if isG: X.I("s_setprio 1")
        X.I("s_load_dwordx2 s[4:5], s[0:1], 0")
        X.I("s_load_dwordx2 s[6:7], s[0:1], 64")
        X.I("s_load_dwordx4 s[8:11], s[0:1], 104")
        X.I("s_load_dwordx2 s[24:25], s[0:1], 96")
        def signal(nyoung):
            X.I(f"s_waitcnt vmcnt({nyoung}) lgkmcnt(0)")
            X.vm = []; X.lg = []
            if not isG: X.I("v_mov_b32 v15, v254")
            cnt_add(X, 4, 5, CNT_L + (32 if isG else 44))
            cnt_add(X, 4, 5, CNT_L + 36)
            mk_srd(X, SFL, 30, 31, 8192, None, FL_OFF)
            X.I("s_cmp_lg_u32 s35, 0")
            X.I(f"s_cbranch_scc1 {L}nf")
            cnt_wait(X, f"{L}w0", 4, 5, CNT_L + (32 if isG else 44), 4)
            X.I("s_lshl_b32 s36, s32, 7")
            X.I("s_lshl_b32 s39, s33, 2")
            X.I("s_add_u32 s36, s36, s39")
            if not isG: X.I("s_add_u32 s36, s36, 2048")
            X.I("v_mov_b32 v4, s36")
            X.I(f"v_mov_b32 v5, {TAG}")
            X.I("s_mov_b64 exec, 1")
            X.I(f"buffer_store_dword v5, v4, s[{SFL}:{SFL+3}], 0 offen sc1")
            X.I("s_mov_b64 exec, -1")
            X.label(f"{L}nf")
            X.vm = []
            stamp()
        signal(0)
        X.I("s_and_b32 s36, s2, 7")
        X.I("s_lshr_b32 s37, s2, 3")
        X.I("s_and_b32 s60, s36, 3")
        X.I("s_lshl_b32 s60, s60, 3")
        X.I("s_and_b32 s38, s37, 7")
        X.I("s_add_u32 s60, s60, s38")
        X.I("s_lshr_b32 s61, s36, 2")
        X.I("s_lshl_b32 s61, s61, 2")
        X.I("s_lshr_b32 s38, s37, 3")
        X.I("s_add_u32 s61, s61, s38")
        X.I("v_lshlrev_b32 v2, 4, v0")
        X.I("v_lshrrev_b32 v1, 4, v0")
        X.I("v_and_b32 v3, 15, v0")
        for n in range(4):
            X.I(f"s_add_u32 s36, s35, {n}")
            X.I("s_and_b32 s36, s36, 3")
            X.I(f"s_mul_i32 s36, s36, {RT}")
            X.I(f"v_add_u32 v{VO+n}, s36, v2")
        for n in range(5):
            X.I(f"v_add_u32 v{VO+4+n}, {n*RT}, v2")
        X.I(f"s_mul_i32 s36, s60, {4*RT}")
        mk_srd(X, SA, 30, 31, 4 * RT, 36, H1F_OFF if isG else HF_OFF)
        X.I(f"s_mul_i32 s36, s61, {5*RT}")
        mk_srd(X, SB0, 30, 31, 5 * RT, 36, W2F_OFF if isG else CF_OFF)
        X.I(f"s_mul_i32 s63, s35, {NS*1024}")
        X.I("s_lshl_b32 s36, s60, 6")
        X.I("s_lshr_b32 s37, s35, 1")
        X.I("s_lshl_b32 s37, s37, 5")
        X.I("s_add_u32 s36, s36, s37")
        X.I("s_and_b32 s37, s35, 1")
        X.I("s_lshl_b32 s37, s37, 2")
        X.I("s_add_u32 s65, s36, s37")
        X.I("s_mul_i32 s66, s61, 160")
        X.I("s_waitcnt lgkmcnt(0)")
        X.lg = []
        EV = VO + 10
        NP = int(os.environ.get("NP", "4")) if isG else 0
        GP0, GPS = 61440, 23552
        ep = []
        if isG:
            SX, SP, SD = 48, 64 + 4, 20
            X.I(f"s_mul_i32 s62, s35, {GPS}")
            X.I(f"s_add_u32 s62, s62, {GP0}")
            X.I("s_add_u32 s67, s62, 20480")
            mk_srd(X, SX, 24, 25, 1966080)
            X.I(f"s_mul_i32 s64, s35, {12*40960}")
            X.I("s_add_u32 s64, s64, s66")
            cnt_wait(X, f"{L}p0", 4, 5, CNT_L + 40, 1)
            cnt_wait(X, f"{L}p1", 4, 5, CNT_L, 4)
            for e in range(5):
                X.I(f"v_add_u32 v4, {64*e}, v0")
                X.I("v_mul_u32_u24 v5, 6554, v4")
                X.I("v_lshrrev_b32 v5, 16, v5")
                X.I("v_mul_u32_u24 v6, 10, v5")
                X.I("v_sub_u32 v4, v4, v6")
                X.I("v_mul_u32_u24 v5, 1280, v5")
                X.I("v_lshl_add_u32 v4, v4, 4, v5")
                for q in range(NP):
                    X.I(f"s_add_u32 s36, s64, {40960*(q+12-NP)}")
                    X.I(f"s_add_u32 m0, s62, {5120*q+1024*e}")
                    X.I(f"buffer_load_dwordx4 v4, s[{SX}:{SX+3}], s36 offen lds")
            X.I("v_lshrrev_b32 v4, 1, v1")
            X.I("v_lshlrev_b32 v4, 4, v4")
            X.I("v_and_b32 v5, 1, v1")
            X.I("v_lshl_add_u32 v4, v5, 2, v4")
            X.I("v_lshrrev_b32 v5, 2, v3")
            X.I("v_add_u32 v4, v4, v5")
            X.I("v_mul_u32_u24 v4, 160, v4")
            X.I("v_and_b32 v5, 3, v3")
            X.I("v_lshl_add_u32 v4, v5, 3, v4")
            X.I(f"v_add_u32 v{EV+3}, s62, v4")
            mk_srd(X, SX, 4, 5, 2621440)
            mk_srd(X, SP, 8, 9, 1280)
            mk_srd(X, SD, 6, 7, 1280)
            X.I("s_mul_i32 s64, s65, 1280")
            X.I("s_add_u32 s64, s64, s66")
            for e in range(3):
                X.I(f"v_add_u32 v4, {64*e}, v0")
                X.I("v_min_u32 v4, 159, v4")
                X.I("v_mul_u32_u24 v5, 6554, v4")
                X.I("v_lshrrev_b32 v5, 16, v5")
                X.I("v_mul_u32_u24 v6, 10, v5")
                X.I("v_sub_u32 v4, v4, v6")
                X.I("v_lshrrev_b32 v6, 2, v5")
                X.I("v_lshl_add_u32 v5, v6, 2, v5")
                X.I("v_mul_u32_u24 v5, 1280, v5")
                X.I(f"v_lshl_add_u32 v{8+e}, v4, 4, v5")
                if e == 2: X.I("s_mov_b64 exec, 0xffffffff")
                X.I(f"s_add_u32 m0, s67, {1024*e}")
                X.I(f"buffer_load_dwordx4 v{8+e}, s[{SX}:{SX+3}], s64 offen lds")
                if e == 2: X.I("s_mov_b64 exec, -1")
            X.I("v_lshlrev_b32 v11, 2, v0")
            X.I("v_min_u32 v11, 156, v11")
            X.I("s_mov_b32 exec_hi, 0xff")
            X.I("s_add_u32 m0, s67, 2560")
            X.I(f"buffer_load_dword v11, s[{SP}:{SP+3}], s66 offen lds")
            X.I("s_add_u32 m0, s67, 2720")
            X.I(f"buffer_load_dword v11, s[{SD}:{SD+3}], s66 offen lds")
            X.I("s_mov_b64 exec, -1")
        RC = CNT_L + (80 if isG else 84)
        X.I("s_cmp_lg_u32 s35, 0")
        X.I(f"s_cbranch_scc1 {L}pw")
        X.I(f"s_mul_i32 s36, s33, {AGG_G}")
        mk_srd(X, SAGB, 30, 31, AGG_G, 36, AGG_OFF)
        X.I("s_lshl_b32 s36, s32, 7")
        X.I(f"s_add_u32 s36, s36, {GO_O}")
        X.I("v_mov_b32 v4, s36")
        X.I("s_mov_b32 s39, 0")
        if not isG: X.I("v_mov_b32 v7, 0") if False else None
        X.label(f"{L}go")
        X.I(f"v_readfirstlane_b32 s36, v{7 if isG else 15}")
        X.I("s_add_u32 s39, s39, 1")
        X.I(f"s_cmp_eq_u32 s36, {TAG}")
        X.I(f"s_cbranch_scc1 {L}god")
        X.I(f"buffer_load_dword v{7 if isG else 15}, v4, s[{SAGB}:{SAGB+3}], 0 offen sc1")
        X.I("s_waitcnt vmcnt(0)")
        X.I("s_cmp_lt_u32 s39, 0x100000")
        X.I(f"s_cbranch_scc1 {L}go")
        X.label(f"{L}god")
        X.I(f"v_mov_b32 v6, {TAG}")
        X.I("s_lshr_b32 s36, s60, 1")
        X.I("s_lshl_b32 s36, s36, 7")
        if not isG: X.I("s_add_u32 s36, s36, 2048")
        X.I("v_lshlrev_b32 v4, 2, v3")
        X.I("v_add_u32 v4, s36, v4")
        X.I("s_lshl_b32 s36, s61, 7")
        X.I("s_add_u32 s36, s36, 4096")
        X.I("v_lshlrev_b32 v5, 2, v0")
        X.I("v_add_u32 v5, s36, v5")
        X.I("v_cmp_gt_u32 vcc, 32, v0")
        X.I("v_cndmask_b32 v4, v4, v5, vcc")
        X.I("s_mov_b32 s39, 0")
        X.label(f"{L}fl")
        X.I(f"buffer_load_dword v5, v4, s[{SFL}:{SFL+3}], 0 offen sc1")
        X.I("s_waitcnt vmcnt(0)")
        X.I("v_cmp_eq_u32 vcc, v5, v6")
        X.I("s_add_u32 s39, s39, 1")
        X.I("s_cmp_eq_u64 vcc, -1")
        X.I(f"s_cbranch_scc1 {L}fld")
        X.I("s_sleep 2")
        X.I("s_cmp_lt_u32 s39, 0x100000")
        X.I(f"s_cbranch_scc1 {L}fl")
        X.label(f"{L}fld")
        if LDF == "":
            X.raw("    buffer_inv sc1")
            X.I("s_waitcnt vmcnt(0)")
        cnt_add(X, 4, 5, RC)
        X.label(f"{L}pw")
        cnt_wait(X, f"{L}pwl", 4, 5, RC, 1)
        X.vm = []
        stamp()
        def stage(s): return STG + (s % D) * 36
        def issue(s):
            b = stage(s)
            Lx = []
            for n in range(4):
                Lx.append([(f"buffer_load_dwordx4 {vr(b+4*n,4)}, v{VO+n}, s[{SA}:{SA+3}], s63 offen offset:{(s%4)*1024}{LDF}", f"st{s}")])
            for n in range(5):
                if s >= NS - NP:
                    Lx.append([(f"ds_read_b64_tr_b16 {vr(b+16+4*n+2*e,2)}, v{EV+3} offset:{5120*(s-NS+NP)+1280*e+32*n}", f"lr{s}") for e in range(2)])
                else:
                    Lx.append([(f"buffer_load_dwordx4 {vr(b+16+4*n,4)}, v{VO+4+n}, s[{SB0}:{SB0+3}], s63 offen offset:{(s%4)*1024}{LDF}", f"st{s}")])
            if s % 4 == 3: Lx[-1].append(("s_add_u32 s63, s63, 4096", None))
            return Lx
        if not isG: X.I("s_setprio 0")
        for s in range(D - 1): emit(X, issue(s))
        if isG:
            mk_srd(X, SAGB, 30, 31, 16384, None, STATS_OFF)
            X.I("s_lshl_b32 s38, s65, 2")
            X.I("v_lshrrev_b32 v4, 2, v3")
            X.I("v_lshl_add_u32 v4, v4, 2, v3")
            X.I("v_lshlrev_b32 v4, 2, v4")
            X.I("v_add_u32 v5, 8192, v4")
            X.I(f"buffer_load_dword v{EV}, v4, s[{SAGB}:{SAGB+3}], s38 offen sc1", tag="ep")
            X.I(f"buffer_load_dword v{EV+1}, v5, s[{SAGB}:{SAGB+3}], s38 offen sc1", tag="ep")
        DB = GP0 if isG else 0
        if isG: PRIV = GPS
        else: X.I(f"s_mul_i32 s62, s35, {PRIV}")
        DW = EV + 2
        X.I(f"v_add_u32 v{DW}, s62, v2")
        for s in range(NS):
            X.wait_vm(f"st{s}")
            X.wait_lg(f"lr{s}")
            b = stage(s)
            side = issue(s + D - 1) if s + D - 1 < NS else []
            if s == NP + 1: side = side + ep
            mm = []
            order = [1, 2, 3, 0] if s == NS - 1 else range(4)
            for n in order:
                for dt in range(5):
                    ac = vr(ACC + (n * 5 + dt) * 4, 4)
                    mm.append(f"v_mfma_f32_16x16x32_bf16 {ac}, {vr(b+16+4*dt,4)}, {vr(b+4*n,4)}, {'0' if s == 0 else ac}")
            if s == NS - 1:
                cnt_wait(X, f"{L}w1", 4, 5, CNT_L + 36, 8)
                for k, m in enumerate(mm):
                    X.I(m)
                    j = k - 7
                    if 0 <= j < 15: X.I(f"ds_write_b128 v{DW}, {vr(ACC+20+4*j,4)} offset:{1024*j}")
                for j in (13, 14): X.I(f"ds_write_b128 v{DW}, {vr(ACC+20+4*j,4)} offset:{1024*j}")
            else:
                merge(X, mm, side, 0.9)
        stamp()
        cnt_add(X, 4, 5, CNT_L + (48 if isG else 56))
        for k in range(1, 4):
            X.I(f"s_add_u32 s36, s35, {k}")
            X.I("s_and_b32 s36, s36, 3")
            X.I(f"s_mul_i32 s36, s36, {PRIV}")
            X.I(f"s_add_u32 s36, s36, {DB + (3 - k) * 5120}")
            X.I(f"v_add_u32 v{6+k}, s36, v2")
        cnt_wait(X, f"{L}w2", 4, 5, CNT_L + (48 if isG else 56), 4)
        RD = STG
        for dt in range(5):
            for k in range(3):
                X.I(f"ds_read_b128 {vr(RD+(dt*3+k)*4,4)}, v{7+k} offset:{1024*dt}", tag=f"p{dt}")
        if isG:
            T = ACC + 20; BS = ACC + 40; DS_ = ACC + 60
            X.I("v_lshlrev_b32 v10, 3, v1")
            X.I("v_add_u32 v10, s67, v10")
            X.I("v_mul_u32_u24 v11, 160, v3")
            X.I("v_add_u32 v11, v11, v10")
            for dt in range(5):
                X.I(f"ds_read_b64 {vr(T+4*dt+2,2)}, v10 offset:{2560+32*dt}", tag="e")
                X.I(f"ds_read_b64 {vr(DS_+4*dt+2,2)}, v10 offset:{2720+32*dt}", tag="e")
                X.I(f"ds_read_b64 {vr(BS+4*dt+2,2)}, v11 offset:{32*dt}", tag="e")
        for dt in range(5):
            X.wait_lg(f"p{dt}")
            a = ACC + 4 * dt; r0 = RD + dt * 12
            for r in range(4): X.I(f"v_add_f32 v{a+r}, v{a+r}, v{r0+r}")
            for r in range(4): X.I(f"v_add_f32 v{r0+4+r}, v{r0+4+r}, v{r0+8+r}")
            for r in range(4): X.I(f"v_add_f32 v{a+r}, v{a+r}, v{r0+4+r}")
        if isG:
            X.wait_lg()
            cnt_add(X, 4, 5, CNT_L + 52)
            X.I("s_mov_b32 s36, 0xffff0000")
            X.I(f"s_mov_b32 s37, {NEG_LOG2E}")
            for q in [T + 4 * dt for dt in range(5)] + [BS + 4 * dt for dt in range(5)] + [DS_ + 4 * dt for dt in range(5)]:
                X.I(f"v_lshlrev_b32 v{q}, 16, v{q+2}")
                X.I(f"v_and_b32 v{q+1}, s36, v{q+2}")
                X.I(f"v_lshlrev_b32 v{q+2}, 16, v{q+3}")
                X.I(f"v_and_b32 v{q+3}, s36, v{q+3}")
            for e in range(20): X.I(f"v_add_f32 v{ACC+e}, v{ACC+e}, v{T+e}")
            for e in range(20): X.I(f"v_mul_f32 v{T+e}, s37, v{ACC+e}")
            for e in range(20): X.I(f"v_exp_f32 v{T+e}, v{T+e}")
            for e in range(20): X.I(f"v_add_f32 v{T+e}, 1.0, v{T+e}")
            for e in range(20): X.I(f"v_rcp_f32 v{T+e}, v{T+e}")
            for e in range(20): X.I(f"v_mul_f32 v{ACC+e}, v{ACC+e}, v{T+e}")
            for e in range(20): X.I(f"v_fma_f32 v{T+e}, v{BS+e}, v{EV+1}, -v{EV}")
            for e in range(20): X.I(f"v_mul_f32 v{DS_+e}, v{DS_+e}, v{ACC+e}")
            for e in range(20): X.I(f"v_fmac_f32 v{BS+e}, v{T+e}, v{DS_+e}")
            cnt_wait(X, f"{L}w3", 4, 5, CNT_L + 52, 4)
            for dt in range(5):
                X.I(f"ds_write_b128 v{DW}, {vr(ACC+4*dt,4)} offset:{1024*dt}")
                X.I(f"ds_write_b128 v{DW}, {vr(BS+4*dt,4)} offset:{5120+1024*dt}")
            X.I("s_lshl_b32 s38, s35, 2")
            X.I(f"s_add_u32 s38, s38, {CNT_L+64}")
            cnt_add(X, 4, 5, "s38")
            X.wait_lg()
        else:
            SO = 48
            mk_srd(X, SO, 10, 11, 5242880)
            X.I("v_lshrrev_b32 v4, 2, v3")
            X.I("v_lshl_add_u32 v4, v4, 2, v3")
            X.I("v_add_u32 v4, s65, v4")
            X.I("v_mul_u32_u24 v10, 2560, v4")
            X.I("v_lshl_add_u32 v10, v1, 4, v10")
            X.I("s_lshl_b32 s66, s66, 1")
            X.I(f"s_mul_i32 s67, s35, {GPS}")
            X.I(f"s_add_u32 s67, s67, {GP0}")
            X.I("v_add_u32 v11, s67, v2")
            X.I("s_lshl_b32 s38, s35, 2")
            X.I(f"s_add_u32 s38, s38, {CNT_L+64}")
            cnt_wait(X, f"{L}w3", 4, 5, "s38", 1)
            GQ = ACC + 20; BQ = ACC + 40
            for dt in range(5):
                X.I(f"ds_read_b128 {vr(GQ+4*dt,4)}, v11 offset:{1024*dt}", tag=f"g{dt}")
                X.I(f"ds_read_b128 {vr(BQ+4*dt,4)}, v11 offset:{5120+1024*dt}", tag=f"g{dt}")
            if "coal" in dbg:
                X.I("v_mul_u32_u24 v12, 320, v3")
                X.I("v_lshl_add_u32 v12, v1, 4, v12")
                X.I("v_add_u32 v12, s67, v12")
                OVO = RD
                for e in range(5):
                    X.I(f"v_add_u32 v4, {64*e}, v0")
                    X.I("v_mul_u32_u24 v5, 3277, v4")
                    X.I("v_lshrrev_b32 v5, 16, v5")
                    X.I("v_mul_u32_u24 v6, 20, v5")
                    X.I("v_sub_u32 v4, v4, v6")
                    X.I("v_lshrrev_b32 v6, 2, v5")
                    X.I("v_lshl_add_u32 v5, v6, 2, v5")
                    X.I("v_add_u32 v5, s65, v5")
                    X.I("v_mul_u32_u24 v5, 2560, v5")
                    X.I(f"v_lshl_add_u32 v{OVO+e}, v4, 4, v5")
            for dt in range(5):
                X.wait_lg(f"g{dt}")
                for r in range(4): X.I(f"v_fmac_f32 v{BQ+4*dt+r}, v{ACC+4*dt+r}, v{GQ+4*dt+r}")
                if "coal" in dbg:
                    X.I(f"ds_write_b128 v12, {vr(BQ+4*dt,4)} offset:{10240+64*dt}")
                else:
                    X.I(f"buffer_store_dwordx4 {vr(BQ+4*dt,4)}, v10, s[{SO}:{SO+3}], s66 offen offset:{64*dt}{os.environ.get('STF2','')}")
            if "coal" in dbg:
                for e in range(5):
                    X.I(f"ds_read_b128 {vr(GQ+4*e,4)}, v11 offset:{10240+1024*e}", tag=f"o{e}")
                for e in range(5):
                    X.wait_lg(f"o{e}")
                    X.I(f"buffer_store_dwordx4 {vr(GQ+4*e,4)}, v{OVO+e}, s[{SO}:{SO+3}], s66 offen{os.environ.get('STF2','')}")
    def adv():
        return [("s_add_u32 s26, s26, 1", None), ("s_cmp_eq_u32 s26, 10", None), ("s_cselect_b32 s26, 0, s26", None)]

    S = Stream(A)
    stamp, st = mkstamp(S)
    ACC = 16
    BUF = 56
    CA, CSB, CCO, CCX, CAS, CSBS = 168, 173, 178, 183, 188, 193
    A8, SB8, A128, SB128 = 198, 200, 202, 204
    SUM, SQ, ONE = 206, 214, 222
    MRV, RV = 226, 234
    DV = 246
    vG_, vC_, vSg = 1, 2, 3
    SX, SBBS = 40, 44
    if "early" in dbg: stamp()
    S.I(f"s_mul_i32 s36, s32, {128*1280}")
    mk_srd(S, SX, 4, 5, 128 * 1280, 36)
    S.I("v_lshrrev_b32 v4, 3, v0")
    S.I("v_and_b32 v5, 7, v0")
    S.I("v_and_b32 v6, 2, v4")
    S.I("v_lshrrev_b32 v7, 2, v4")
    S.I("v_or_b32 v6, v6, v7")
    S.I("v_xor_b32 v6, v6, v5")
    S.I("s_mul_i32 s36, s35, 40960")
    S.I("v_mul_u32_u24 v7, 1280, v4")
    S.I("v_add_u32 v8, s36, v7")
    for e in range(4):
        S.I(f"v_xor_b32 v9, {4 if e >= 2 else 0}, v6")
        S.I(f"v_lshl_add_u32 v{DV+e}, v9, 4, v8")
        if e: S.I(f"v_add_u32 v{DV+e}, {10240*e}, v{DV+e}")
    S.I("v_xor_b32 v9, v4, v5")
    S.I(f"v_lshl_add_u32 v{DV+4}, v9, 4, v7")
    S.I("s_lshl_b32 s37, s35, 12")
    S.I("s_mov_b32 s36, s35")
    bb_srd(S, SBBS, 27)
    def s_dma(p):
        q = p % 4
        L = []
        for e in range(4):
            g = [(f"s_add_u32 m0, s37, {q*SLOT + 1024*e}", None), (f"buffer_load_dwordx4 v{DV+e}, s[{SX}:{SX+3}], s38 offen lds", f"c{p}")]
            if e == 0: g = [("s_lshl_b32 s38, s26, 7", None)] + g
            L.append(g)
        L.append([(f"s_add_u32 m0, s27, {q*SLOT}", None), (f"buffer_load_dwordx4 v{DV+4}, s[{SBBS}:{SBBS+3}], s38 offen lds", f"c{p}")] + adv())
        return L
    S.I(f"v_lshrrev_b32 v{vG_}, 4, v0")
    S.I(f"v_and_b32 v{vC_}, 15, v0")
    if "early" in dbg: stamp()
    emit(S, s_dma(0))
    if "early" in dbg: stamp()
    def pslots(t):
        return (CCO + t, CCX + t, CAS + t) if t < 5 else (A128, SB128, A128 + 1)
    def par_issue():
        S.I("v_and_b32 v11, 7, v0")
        S.I("v_lshlrev_b32 v11, 1, v11")
        S.I(f"v_add_u32 v11, {PAR_L}, v11")
        S.I(f"v_lshlrev_b32 v12, 4, v{vG_}")
        S.I("v_add_u32 v12, v11, v12")
        for t in range(6):
            vo = "v11" if t < 5 else "v12"
            off = 16 * t if t < 5 else 0
            lre, lim, ldt = pslots(t)
            S.I(f"ds_read_u16 v{lre}, {vo} offset:{off}")
            S.I(f"ds_read_u16 v{lim}, {vo} offset:{off+128}")
            S.I(f"ds_read_u16 v{ldt}, {vo} offset:{off+256}")
    SJA, SJB, SWS = 56, 60, 64
    TT = BUF + 48
    S.I(f"v_lshrrev_b32 v{TT}, 2, v{vC_}")
    S.I(f"v_and_b32 v{TT+1}, 3, v{vC_}")
    S.I(f"v_lshlrev_b32 v{TT+2}, 3, v{TT}")
    S.I(f"v_add_u32 v{TT+2}, v{TT+2}, v{TT+1}")
    S.I("s_lshl_b32 s36, s35, 5")
    S.I(f"v_add_u32 v{TT+2}, s36, v{TT+2}")
    S.I(f"v_lshlrev_b32 v{TT+2}, 7, v{TT+2}")
    S.I(f"v_lshrrev_b32 v{TT+3}, 1, v{TT}")
    S.I(f"v_lshlrev_b32 v{TT+3}, 2, v{TT+3}")
    S.I(f"v_and_b32 v{TT+4}, 2, v{TT+1}")
    S.I(f"v_or_b32 v{TT+3}, v{TT+3}, v{TT+4}")
    S.I(f"v_xor_b32 v{TT+3}, v{TT+3}, v{vG_}")
    for T in range(2):
        for sp in range(2):
            d = 4 + 2 * T + sp
            S.I(f"v_xor_b32 v{TT+4}, {(4*sp) ^ T}, v{TT+3}")
            S.I(f"v_lshl_add_u32 v{d}, v{TT+4}, 4, v{TT+2}")
            if T: S.I(f"v_add_u32 v{d}, 512, v{d}")
    S.I(f"v_and_b32 v{TT}, 7, v{vC_}")
    S.I(f"v_xor_b32 v{TT}, v{TT}, v{vG_}")
    S.I(f"v_lshlrev_b32 v{TT+1}, 7, v{vC_}")
    for sp in range(2):
        S.I(f"v_xor_b32 v{TT+2}, {4*sp}, v{TT}")
        S.I(f"v_lshl_add_u32 v{8+sp}, v{TT+2}, 4, v{TT+1}")
        S.I(f"v_add_u32 v{8+sp}, {BB_O}, v{8+sp}")
    for k in range(4): S.I(f"v_mov_b32 v{ONE+k}, 0x3f803f80")
    S.I(f"v_mul_u32_u24 v10, 80, v{vG_}")
    S.I(f"v_lshrrev_b32 v{vSg}, 3, v{vC_}")
    S.I(f"v_cvt_f32_u32 v{vSg}, v{vSg}")
    S.I(f"v_fma_f32 v{vSg}, v{vSg}, 2.0, -1.0")
    S.I(f"s_mov_b32 s20, {LOG2E}")
    S.I(f"s_mov_b32 s21, {INV2PI}")
    def powr(ar, rev, n, da, dsb, t0):
        L = []
        if n is None:
            L.append(f"v_exp_f32 v{t0}, v{ar}")
            L.append(f"v_fract_f32 v{t0+1}, v{rev}")
        else:
            L.append(f"v_mul_f32 v{t0}, {n}, v{ar}")
            L.append(f"v_mul_f32 v{t0+1}, {n}, v{rev}")
            L.append(f"v_exp_f32 v{t0}, v{t0}")
            L.append(f"v_fract_f32 v{t0+1}, v{t0+1}")
        L.append(f"v_cos_f32 v{t0+2}, v{t0+1}")
        L.append(f"v_sin_f32 v{t0+3}, v{t0+1}")
        L.append(f"v_mul_f32 v{t0+3}, v{t0}, v{t0+3}")
        L.append(f"v_mul_f32 v{da}, v{t0}, v{t0+2}")
        L.append(f"v_mul_f32 v{dsb}, v{t0+3}, v{vSg}")
        return L
    def arrev(t):
        return (CAS + t, CSBS + t) if t < 5 else (A128, SB128)
    partA = ["s_lshl_b32 s36, s35, 2", f"v_add_u32 v245, s36, v{vG_}", "v_lshlrev_b32 v245, 3, v245", "v_cvt_f32_u32 v245, v245"]
    for t in range(6):
        lre, lim, ldt = pslots(t)
        ar, rev = 242, 243
        partA += [f"v_lshlrev_b32 v{lre}, 16, v{lre}", f"v_lshlrev_b32 v{lim}, 16, v{lim}", f"v_lshlrev_b32 v11, 16, v{ldt}",
                  "v_mul_f32 v11, s20, v11", "v_exp_f32 v11, v11", "v_cvt_pk_bf16_f32 v11, 0, v11",
                  f"v_mul_f32 v12, v11, v{lre}", f"v_mul_f32 v13, v11, v{lim}",
                  f"v_mul_f32 v{ar}, s20, v12", f"v_mul_f32 v{rev}, s21, v13"]
        if t < 5:
            partA += powr(ar, rev, None, CA + t, CSB + t, 11)
            partA += [f"v_add_f32 v11, -1.0, v{CA+t}", f"v_mul_f32 v12, v{lre}, v{lre}", f"v_fmac_f32 v12, v{lim}, v{lim}",
                      "v_rcp_f32 v12, v12", f"v_mul_f32 v13, v11, v{lre}", f"v_fmac_f32 v13, v14, v{lim}",
                      f"v_mul_f32 v244, v14, v{lre}", f"v_fma_f32 v244, -v11, v{lim}, v244", "v_mul_f32 v12, -2.0, v12",
                      f"v_mul_f32 v{CCX+t}, v244, v12", "v_mul_f32 v13, v13, v12", f"v_mul_f32 v{CCO+t}, v13, v{vSg}"]
            partA += powr(ar, rev, "v245", CAS + t, CSBS + t, 11)
        if t >= 4:
            k = 1 if t == 4 else 0
            partA += powr(ar, rev, f"{f2u(8.0)}", A8 + k, SB8 + k, 11)
            partA += powr(ar, rev, f"{f2u(128.0)}", 254 if t == 4 else A128, 255 if t == 4 else SB128, 11)
    partA += [f"v_mov_b32 v{A128+1}, v254", f"v_mov_b32 v{SB128+1}, v255"]
    SAG, SST = 48, 52
    S.I(f"s_mul_i32 s36, s33, {AGG_G}")
    mk_srd(S, SAG, 30, 31, AGG_G, 36, AGG_OFF)
    emit(S, s_dma(1))
    S.raw(";;DRYPT")
    stamp()
    def s_reads(p):
        b = BUF + (p & 1) * 56
        L = []
        for sp in range(2):
            for T in range(2):
                L.append([(f"ds_read_b128 {vr(b+(sp*2+T)*4,4)}, v{4+2*T+sp}", f"r{p}")])
            for j in range(5):
                L.append([(f"ds_read_b128 {vr(b+16+(sp*5+j)*4,4)}, v{8+sp} offset:{2048*j}", f"r{p}")])
        delta = SLOT if p % 4 != 3 else (-3 * SLOT) & 0xffffffff
        L.append([(f"v_add_u32 v{k}, {delta}, v{k}", None) for k in range(4, 10)])
        return L
    def s_stat(p):
        b = BUF + (p & 1) * 56
        L = []
        for sp in range(2):
            for T in range(2):
                x = vr(b + (sp * 2 + T) * 4, 4)
                z = (p == 0 and sp == 0)
                L.append(f"v_mfma_f32_16x16x32_bf16 {vr(SUM+4*T,4)}, {x}, {vr(ONE,4)}, {'0' if z else vr(SUM+4*T,4)}")
                L.append(f"v_mfma_f32_16x16x32_bf16 {vr(SQ+4*T,4)}, {x}, {x}, {'0' if z else vr(SQ+4*T,4)}")
        return L
    def s_mfma(p):
        b = BUF + (p & 1) * 56
        L = []
        for sp in range(2):
            for j in range(5):
                for T in range(2):
                    ac = ACC + 8 * j + 4 * T
                    c = "0" if (p == 0 and sp == 0) else vr(ac, 4)
                    L.append(f"v_mfma_f32_16x16x32_bf16 {vr(ac,4)}, {vr(b+(sp*2+T)*4,4)}, {vr(b+16+(sp*5+j)*4,4)}, {c}")
        return L
    for p in range(10):
        S.wait_vm(f"c{p}")
        S.I("s_barrier")
        stamp(True)
        if p in (0, 9): stamp()
        side = s_dma(p + 3) if p + 3 <= 9 else []
        if p == 0: side = s_dma(2)
        if p == 1: side = s_dma(3) + side
        rd = s_reads(p)
        if p == 2:
            par_issue()
        fill = []
        if 3 <= p <= 8:
            nper = (len(partA) + 5) // 6
            fill = [[(m, None)] for m in partA[(p - 3) * nper:(p - 2) * nper]]
        if p == 9:
            fill += [[("s_lshl_b32 s36, s32, 7", None), (f"s_add_u32 s36, s36, {GO_O}", None), ("v_mov_b32 v15, s36", None),
                      (f"buffer_load_dword v15, v15, s[{SAG}:{SAG+3}], 0 offen sc1", "clr")]]
        if "dmaonly" in dbg: emit(S, side)
        elif p == 0: emit(S, rd + side + fill)
        else: merge(S, s_stat(p - 1) + s_mfma(p - 1), mix(mix(rd, side), fill), 0.9)
        S.wait_lg()
    S.raw(";;DRYSTART")
    if "fine" in dbg: stamp()
    for m in s_stat(9): S.I(m)
    mm = s_mfma(9)
    CSV = BUF + 16
    S.I(f"v_lshlrev_b32 v12, 2, v{vC_}")
    for m in mm[:5]: S.I(m)
    for T in range(2):
        for r in range(4):
            S.I(f"ds_bpermute_b32 v{SQ+4*T+r}, v10, v{SQ+4*T+r} offset:{4*r}", tag="bp")
    for m in mm[5:9]: S.I(m)
    S.wait_lg("bp")
    if "fine" in dbg: stamp()
    fin = []
    K640 = f2u(1.0 / 640)
    for step in range(12):
        for k in range(8):
            su, sq = SUM + k, SQ + k
            fin.append([
                f"v_mul_f32 v{su}, {K640}, v{su}",
                f"v_mul_f32 v{sq}, {K640}, v{sq}",
                f"v_fma_f32 v{sq}, -v{su}, v{su}, v{sq}",
                f"v_max_f32 v{sq}, 0, v{sq}",
                f"v_cvt_pk_bf16_f32 v{su}, 0, v{su}",
                f"v_cvt_pk_bf16_f32 v{sq}, 0, v{sq}",
                f"v_add_f32 v{sq}, {f2u(1e-5)}, v{sq}",
                f"v_cvt_pk_bf16_f32 v{sq}, 0, v{sq}",
                f"v_sqrt_f32 v{sq}, v{sq}",
                f"v_cvt_pk_bf16_f32 v{sq}, 0, v{sq}",
                f"v_rcp_f32 v{RV+k}, v{sq}",
                f"v_mul_f32 v{MRV+k}, v{su}, v{RV+k}"][step])
    adds = ["s_lshl_b32 s36, s35, 7", f"v_lshlrev_b32 v13, 5, v{vG_}", "v_add_u32 v13, s36, v13", f"v_add_u32 v14, {STATS_L}, v13",
             "s_mul_i32 s36, s35, 1280", f"v_mul_u32_u24 v6, 320, v{vG_}", "v_add3_u32 v6, v6, v12, s36", f"v_add_u32 v7, {SEG_L}, v6",
             "v_lshlrev_b32 v8, 2, v0", f"v_add_u32 v9, {SEG_L}, v8", "v_mov_b32 v10, v12", f"v_add_u32 v11, {SEG_L+256}, v10",
             "s_lshl_b32 s38, s35, 2", f"s_add_u32 s38, s38, {CNT_L+16}", f"v_add_u32 v13, {CSB_L}, v12"]
    fin = fin[:40] + adds + fin[40:]
    merge(S, mm[9:], [[(m, None)] for m in fin], 1.0)
    stamp()
    cnt_wait(S, f"L_{name}_e0", 4, 5, CNT_L + 4, 4)
    S.I("s_setprio 3" if "sprio" in dbg else "s_setprio 2")
    if "f2" in dbg: stamp()
    for wv in range(4):
        for j in range(5):
            S.I(f"ds_read_b32 v{CSV+5*wv+j}, v13 offset:{320*wv+64*j}", tag="stt")
    S.I("s_mov_b32 exec_lo, 0x00010001")
    S.I("s_mov_b32 exec_hi, 0x00010001")
    for k in range(2):
        S.I(f"ds_write_b128 v14, {vr(MRV+4*k,4)} offset:{16*k}")
        S.I(f"ds_write_b128 v14, {vr(RV+4*k,4)} offset:{512+16*k}")
    cnt_add(S, 4, 5, "s38")
    for t2 in range(4):
        for j in range(5):
            a = ACC + 8 * j + 2 * t2
            S.I(f"v_mul_f32 v{a}, v{a}, v{RV+2*t2}")
            S.I(f"v_mul_f32 v{a+1}, v{a+1}, v{RV+2*t2+1}")
    S.wait_lg("stt")
    if "f2" in dbg: stamp()
    for j in range(5):
        S.I(f"v_add_f32 v{CSV+j}, v{CSV+j}, v{CSV+5+j}")
        S.I(f"v_add_f32 v{CSV+10+j}, v{CSV+10+j}, v{CSV+15+j}")
    for j in range(5):
        S.I(f"v_add_f32 v{CSV+j}, v{CSV+j}, v{CSV+10+j}")
    EA, EB = BUF + 40, BUF + 45
    cur = None
    for tl in range(8):
        for j in range(5):
            a = ACC + 8 * j + tl
            S.I(f"v_fma_f32 v{a}, -v{MRV+tl}, v{CSV+j}, v{a}")
        if tl == 0:
            cur = [ACC + 8 * j for j in range(5)]
        else:
            dst = EA if tl & 1 else EB
            for j in range(5):
                S.I(f"v_fma_f32 v{dst+j}, v{CA+j}, v{cur[j]}, v{ACC+8*j+tl}")
            for j in range(5):
                S.I(f"v_fmac_f32_dpp v{dst+j}, v{cur[j]}, v{CSB+j} {DPP}")
            cur = [dst + j for j in range(5)]
    if "f2" in dbg: stamp()
    for j in range(5):
        S.I(f"ds_write_b32 v7, v{cur[j]} offset:{64*j}")
    cnt_add(S, 4, 5, CNT_L)
    S.I("s_waitcnt vmcnt(0)")
    S.vm = []
    if "f2" in dbg: stamp()
    cnt_wait(S, f"L_{name}_x1", 4, 5, CNT_L, 4)
    stamp()
    EC = BUF + 56
    for s_ in range(16):
        S.I(f"ds_read_b32 v{EC+s_}, v9 offset:{320*s_}", tag=f"e{s_}")
        S.I(f"ds_read_b32 v{EC+16+s_}, v11 offset:{320*s_}", tag=f"e{s_}")
    S.I("v_lshlrev_b32 v4, 3, v0")
    S.I(f"v_lshlrev_b32 v5, 3, v{vC_}")
    PB = BUF + 90
    S.I(f"v_mov_b32 v{PB+1}, {TAG}")
    S.I(f"v_mov_b32 v{PB+3}, {TAG}")
    S.I("s_add_u32 s37, s32, 15")
    S.I("s_mul_i32 s37, s37, 640")
    for s_ in range(1, 16):
        S.wait_lg(f"e{s_}")
        for k in range(2):
            S.I(f"v_fmac_f32 v{EC+16*k+s_}, v{A8+k}, v{EC+16*k+s_-1}")
        for k in range(2):
            S.I(f"v_fmac_f32_dpp v{EC+16*k+s_}, v{EC+16*k+s_-1}, v{SB8+k} {DPP}")
    S.I("s_cmp_lg_u32 s35, 0")
    S.I(f"s_cbranch_scc1 L_{name}_nopub")
    S.I(f"v_mov_b32 v{PB}, v{EC+15}")
    S.I(f"v_mov_b32 v{PB+2}, v{EC+31}")
    S.I(f"buffer_store_dwordx2 {vr(PB,2)}, v4, s[{SAG}:{SAG+3}], s37 offen sc1")
    S.vm.pop()
    S.I(f"buffer_store_dwordx2 {vr(PB+2,2)}, v5, s[{SAG}:{SAG+3}], s37 offen offset:512 sc1")
    S.vm.pop()
    S.label(f"L_{name}_nopub")
    S.I("v_mov_b32 v254, v15")
    stamp()
    GL = BUF
    G0, G1 = 206, 221
    QV = BUF + 96
    S.I("v_lshlrev_b32 v252, 4, v0")
    S.I("s_mul_i32 s70, s32, 640")
    S.I("s_add_u32 s71, s70, 4096")
    S.I("s_add_u32 s69, s70, 8192")
    def gran_issue():
        for n in range(10):
            so = "s70" if n < 4 else ("s71" if n < 8 else "s69")
            S.I(f"buffer_load_dwordx4 {vr(GL+4*n,4)}, v252, s[{SAG}:{SAG+3}], {so} offen offset:{(n%4)*1024} sc1")
        S.vm = []
    def qstuff():
        S.I(f"v_add_u32 v9, {Q_L}, v8")
        S.I(f"v_add_u32 v11, {Q_L+256}, v10")
        S.I(f"v_mov_b32 v{PB}, 0")
        S.I(f"ds_write_b32 v9, v{PB}", tag="q")
        for s_ in range(15):
            S.I(f"ds_write_b32 v9, v{EC+s_} offset:{320*(s_+1)}", tag="q")
        S.I("s_mov_b64 exec, 0xffff")
        S.I(f"ds_write_b32 v11, v{PB}", tag="q")
        for s_ in range(15):
            S.I(f"ds_write_b32 v11, v{EC+16+s_} offset:{320*(s_+1)}", tag="q")
        S.I("s_mov_b64 exec, -1")
        S.I(f"v_add_u32 v7, {Q_L}, v6")
        for j in range(5):
            S.I(f"ds_read_b32 v{QV+j}, v7 offset:{64*j}", tag="qv")
    qstuff()
    S.I(f"v_add_u32 v9, {HS_L}, v8")
    S.I(f"v_add_u32 v11, {HS_L}, v10")
    S.I("s_cmp_lg_u32 s35, 0")
    S.I(f"s_cbranch_scc1 L_{name}_hw")
    S.I("s_cmp_eq_u32 s32, 0")
    S.I(f"s_cbranch_scc1 L_{name}_r0")
    S.I("s_mov_b32 s39, 0")
    S.I("s_lshl_b32 s38, s32, 7")
    S.I(f"s_add_u32 s38, s38, {GO_O}")
    S.I("v_mov_b32 v14, s38")
    S.label(f"L_{name}_cl")
    S.I("v_readfirstlane_b32 s38, v15")
    S.I("s_add_u32 s39, s39, 1")
    S.I(f"s_cmp_eq_u32 s38, {TAG}")
    S.I(f"s_cbranch_scc1 L_{name}_clok")
    S.I(f"buffer_load_dword v15, v14, s[{SAG}:{SAG+3}], 0 offen sc1")
    S.I("s_waitcnt vmcnt(0)")
    S.I("s_cmp_lt_u32 s39, 0x100000" if "nosync" not in dbg else "s_cmp_lt_u32 s39, 0")
    S.I(f"s_cbranch_scc1 L_{name}_cl")
    S.label(f"L_{name}_clok")
    S.I("v_mov_b32 v254, v15")
    gran_issue()
    cnt_wait(S, f"L_{name}_m9", 12, 13, CNT_L + 8, 4)
    S.I(f"v_mov_b32 v14, {TAG}")
    S.I(f"v_add_u32 v4, {GR_L}, v4")
    S.I(f"v_add_u32 v5, {GR_L}, v5")
    S.I(f"v_add_u32 v253, {GR_L}, v252")
    S.I("v_cmp_gt_u32 s[22:23], 24, v0")
    S.I("s_sub_u32 s38, 15, s32")
    S.I("s_mul_i32 s38, s38, 640")
    S.I("s_lshr_b32 s38, s38, 10")
    S.I("s_mov_b32 s39, 0")
    S.label(f"L_{name}_gp")
    S.I("s_waitcnt vmcnt(0)")
    S.I(f"v_cndmask_b32 v{GL+37}, v14, v{GL+37}, s[22:23]")
    S.I(f"v_cndmask_b32 v{GL+39}, v14, v{GL+39}, s[22:23]")
    S.I(f"v_and_b32 v12, v{GL+1}, v{GL+3}")
    S.I(f"v_or_b32 v13, v{GL+1}, v{GL+3}")
    for n in range(1, 10):
        S.I(f"v_and_b32 v15, v{GL+4*n+1}, v{GL+4*n+3}")
        S.I(f"v_or3_b32 v13, v13, v{GL+4*n+1}, v{GL+4*n+3}")
        S.I("v_and_b32 v12, v12, v15")
    S.I("v_cmp_eq_u32 vcc, v12, v14")
    S.I("v_cmp_eq_u32 s[24:25], v13, v14")
    S.I("s_and_b64 s[24:25], s[24:25], vcc")
    S.I("s_add_u32 s39, s39, 1")
    S.I("s_cmp_eq_u64 s[24:25], -1")
    S.I(f"s_cbranch_scc1 L_{name}_gpv")
    S.I("s_cmp_ge_u32 s39, 0x40000" if "nosync" not in dbg else "s_cmp_ge_u32 s39, 0")
    S.I(f"s_cbranch_scc1 L_{name}_gpv")
    for n in range(10):
        so = "s70" if n < 4 else ("s71" if n < 8 else "s69")
        if n < 9:
            S.I(f"s_cmp_gt_u32 s38, {n}")
            S.I(f"s_cbranch_scc1 L_{name}_gs{n}")
        S.I(f"buffer_load_dwordx4 {vr(GL+4*n,4)}, v252, s[{SAG}:{SAG+3}], {so} offen offset:{(n%4)*1024} sc1")
        if n < 9: S.label(f"L_{name}_gs{n}")
    S.I(f"s_branch L_{name}_gp")
    S.label(f"L_{name}_gpv")
    for n in range(10):
        S.I(f"ds_write_b128 v253, {vr(GL+4*n,4)} offset:{1024*n}")
    for d in range(15, 0, -1):
        o = (15 - d) * 640
        S.I(f"ds_read_b32 v{G0+d-1}, v4 offset:{o}")
        S.I(f"ds_read_b32 v{G1+d-1}, v5 offset:{o+512}")
    S.I("s_waitcnt lgkmcnt(0)")
    S.label(f"L_{name}_gpok")
    S.lg = []; S.vm = []
    for d in range(14, 0, -1):
        for (g_, k) in ((G0, 0), (G1, 1)):
            S.I(f"v_fmac_f32 v{g_+d-1}, v{A128+k}, v{g_+d}")
        for (g_, k) in ((G0, 0), (G1, 1)):
            S.I(f"v_fmac_f32_dpp v{g_+d-1}, v{g_+d}, v{SB128+k} {DPP}")
    S.I(f"s_branch L_{name}_hp")
    S.label(f"L_{name}_r0")
    S.I(f"v_mov_b32 v{G0}, 0")
    S.I(f"v_mov_b32 v{G1}, 0")
    S.label(f"L_{name}_hp")
    S.I(f"ds_write_b32 v9, v{G0}", tag="h")
    S.I(f"ds_write_b32 v11, v{G1} offset:256", tag="h")
    cnt_add(S, 12, 13, CNT_L + 12)
    S.label(f"L_{name}_hw")
    cnt_wait(S, f"L_{name}_hwl", 12, 13, CNT_L + 12, 1)
    stamp()
    HV = BUF + 32
    for j in range(5):
        S.I(f"ds_read_b32 v{HV+j}, v11 offset:{64*j}", tag="hv")
    S.I(f"v_mul_u32_u24 v9, 272, v{vC_}")
    S.I(f"v_lshlrev_b32 v12, 4, v{vG_}")
    S.I("s_lshl_b32 s36, s35, 6")
    S.I("v_add3_u32 v9, v9, v12, s36")
    S.wait_lg()
    for j in range(5):
        S.I(f"v_fmac_f32 v{QV+j}, v{CAS+j}, v{HV+j}")
    for j in range(5):
        S.I(f"v_fmac_f32_dpp v{QV+j}, v{HV+j}, v{CSBS+j} {DPP}")
    for tl in range(8):
        prev = [QV + j if tl == 0 else ACC + 8 * j + tl - 1 for j in range(5)]
        for j in range(5):
            S.I(f"v_fmac_f32 v{ACC+8*j+tl}, v{CA+j}, v{prev[j]}")
        for j in range(5):
            S.I(f"v_fmac_f32_dpp v{ACC+8*j+tl}, v{prev[j]}, v{CSB+j} {DPP}")
    OV = BUF + 40
    PK = BUF + 80
    for j in range(5):
        p_, sel = pr(CCO + j)
        for t2 in range(4):
            S.I(f"v_pk_mul_f32 {vr(OV+8*j+2*t2,2)}, {vr(ACC+8*j+2*t2,2)}, {p_} op_sel:[0,{sel}] op_sel_hi:[1,{sel}]")
        for tl in range(8):
            S.I(f"v_fmac_f32_dpp v{OV+8*j+tl}, v{ACC+8*j+tl}, v{CCX+j} {DPP}")
        for k in range(4):
            S.I(f"v_cvt_pk_bf16_f32 v{PK+4*j+k}, v{OV+8*j+2*k}, v{OV+8*j+2*k+1}")
        S.I(f"ds_write_b128 v9, {vr(PK+4*j,4)} offset:{16*272*j}", tag="tw")
    S.I(f"v_lshrrev_b32 v11, 2, v{vC_}")
    S.I("v_mul_u32_u24 v11, 272, v11")
    S.I(f"v_and_b32 v4, 3, v{vC_}")
    S.I("v_lshlrev_b32 v4, 4, v4")
    S.I("v_add3_u32 v11, v11, v4, s36")
    S.I(f"v_mul_u32_u24 v4, {8*272}, v{vG_}")
    S.I("v_add_u32 v4, v11, v4")
    S.I(f"v_and_b32 v5, 1, v{vG_}")
    S.I(f"v_mul_u32_u24 v5, {8*272}, v5")
    S.I(f"v_lshrrev_b32 v7, 1, v{vG_}")
    S.I("v_lshlrev_b32 v7, 3, v7")
    S.I("v_add3_u32 v5, v11, v5, v7")
    SHF = 40
    S.I("s_lshl_b32 s36, s32, 2")
    S.I("s_add_u32 s36, s36, s35")
    S.I(f"s_mul_i32 s36, s36, {2*HF_RT}")
    S.I("s_mul_i32 s37, s33, 2560")
    S.I("s_add_u32 s36, s36, s37")
    mk_srd(S, SHF, 30, 31, HF_RT + 2560, 36, HF_OFF)
    S.I("v_lshlrev_b32 v7, 4, v0")
    S.I(f"v_and_b32 v10, 1, v{vG_}")
    S.I("v_lshlrev_b32 v10, 8, v10")
    S.I(f"v_lshlrev_b32 v8, 4, v{vC_}")
    S.I("v_add_u32 v10, v10, v8")
    S.I(f"v_lshrrev_b32 v8, 1, v{vG_}")
    S.I(f"v_mul_u32_u24 v8, {HF_RT}, v8")
    S.I("v_add_u32 v10, v10, v8")
    S.I(f"s_mov_b32 s37, {HF_RT}")
    S.wait_lg()
    RD = BUF
    for n in range(5):
        for e in range(2):
            if n < 4:
                off = (n & 1) * 32 * 272 + e * 4 * 272 + (n >> 1) * 8
                S.I(f"ds_read_b64_tr_b16 {vr(RD+4*n+2*e,2)}, v4 offset:{off}", tag=f"t{n}")
            else:
                S.I(f"ds_read_b64_tr_b16 {vr(RD+4*n+2*e,2)}, v5 offset:{64*272+e*4*272}", tag=f"t{n}")
    for n in range(5):
        S.wait_lg(f"t{n}")
        if n < 4:
            so = "0" if n < 2 else "s37"
            S.I(f"buffer_store_dwordx4 {vr(RD+4*n,4)}, v7, s[{SHF}:{SHF+3}], {so} offen offset:{(n&1)*1024}{STH}", tag="st")
        else:
            S.I(f"buffer_store_dwordx4 {vr(RD+4*n,4)}, v10, s[{SHF}:{SHF+3}], 0 offen offset:2048{STH}", tag="st")
    phaseB(S, "Y", stamp)
    final_stamps(S, st)
    S.I("s_endpgm")

    M = Stream(A)
    M.label(f"L_{name}_M")
    stamp, st = mkstamp(M)
    SBB, SW1, SB1, SH1, SDB, SAGM = 40, 48, 52, 56, 60, 64
    MACC, XB, WB, FR = 24, 72, 104, 200
    CBA, CBF, WA, MSK = FR, FR + 20, FR + 40, FR + 52
    lbl = [0]
    if "early" in dbg: stamp()
    M.I("s_cmp_lg_u32 s35, 3")
    M.I("s_cselect_b64 vcc, -1, 0")
    mk_srd(M, SW1, 20, 21, 1966080)
    M.I("s_mul_i32 s39, s33, 192")
    M.I("s_lshl_b32 s36, s35, 8")
    for e in range(4):
        M.I(f"v_add_u32 v22, {64*e}, v0")
        M.I("v_add_u32 v22, s36, v22")
        M.I("v_min_u32 v22, 767, v22")
        M.I("v_mul_u32_u24 v23, 43691, v22")
        M.I("v_lshrrev_b32 v23, 19, v23")
        M.I("v_mul_u32_u24 v9, 12, v23")
        M.I("v_sub_u32 v22, v22, v9")
        M.I("v_lshlrev_b32 v22, 4, v22")
        M.I("v_mul_u32_u24 v23, 3072, v23")
        M.I(f"v_add3_u32 v{1+e}, v22, v23, s39")
    M.I("s_lshl_b32 s68, s35, 12")
    M.I(f"s_add_u32 s68, s68, {W1_O}")
    M.I("s_lshl_b32 s36, s35, 1")
    M.I("s_add_u32 s36, s36, 4")
    M.I("s_min_u32 s36, s36, 8")
    bb_srd(M, SBB, 69)
    M.I("s_lshl_b32 s36, s35, 1")
    M.I("s_add_u32 s36, s36, 5")
    M.I("s_min_u32 s36, s36, 9")
    bb_srd(M, SBB + 4, 70)
    M.I("v_lshrrev_b32 v22, 3, v0")
    M.I("v_and_b32 v23, 7, v0")
    M.I("v_xor_b32 v13, v22, v23")
    M.I("v_mul_u32_u24 v5, 1280, v22")
    M.I("v_lshl_add_u32 v13, v13, 4, v5")
    def guard(g):
        lbl[0] += 1
        return [(f"s_cbranch_vccz L_{name}_g{lbl[0]}", None)] + g + [(f"L_{name}_g{lbl[0]}:", None)]
    def m_dma(p):
        q = p % 4
        L = []
        g = [("s_lshl_b32 s38, s26, 7", None)]
        for e in range(2):
            g += [(f"s_add_u32 m0, s{69+e}, {q*SLOT}", None), (f"buffer_load_dwordx4 v13, s[{SBB+4*e}:{SBB+4*e+3}], s38 offen lds", f"c{p}")]
        L.append(guard(g))
        for e2 in range(2):
            g = [("s_mul_i32 s71, s26, 196608", None)] if e2 == 0 else []
            for e in (2 * e2, 2 * e2 + 1):
                g += [(f"s_add_u32 m0, s68, {q*SLOT + 1024*e}", None), (f"buffer_load_dwordx4 v{1+e}, s[{SW1}:{SW1+3}], s71 offen lds", f"c{p}")]
            if e2 == 1: g += adv()
            L.append(guard(g))
        return L
    def m_wait(tag):
        lbl[0] += 1
        M.I(f"s_cbranch_vccz L_{name}_g{lbl[0]}")
        M.wait_vm(tag)
        M.label(f"L_{name}_g{lbl[0]}")
    M.vm = []
    if "early" in dbg: stamp()
    emit(M, m_dma(0))
    if "early" in dbg: stamp()
    mk_srd(M, SDB, 28, 29, 256)
    M.I(f"s_mul_i32 s36, s33, {AGG_G}")
    mk_srd(M, SAGM, 30, 31, AGG_G, 36, AGG_OFF)
    for k in range(2): M.I(f"v_mov_b32 v{14+k}, 0")
    for k in range(4): M.I(f"v_mov_b32 v{18+k}, 0x3f803f80")
    savevm = list(M.vm)
    M.I(f"s_cbranch_vccnz L_{name}_noclr")
    M.I("v_min_u32 v8, 19, v0")
    M.I("v_lshlrev_b32 v8, 2, v8")
    M.I("s_mul_i32 s36, s33, 80")
    M.I("v_add_u32 v8, s36, v8")
    M.I("global_load_dword v1, v8, s[6:7]")
    M.I("global_load_dword v2, v8, s[8:9]")
    M.I("global_load_dword v3, v8, s[18:19]")
    M.I("v_min_u32 v8, 47, v0")
    M.I("v_lshlrev_b32 v8, 2, v8")
    M.I("s_mul_i32 s36, s33, 192")
    M.I("v_add_u32 v8, s36, v8")
    M.I("global_load_dword v4, v8, s[22:23]")
    mk_srd(M, SB1, 30, 31, 8192, None, FL_OFF)
    M.I("s_lshl_b32 s36, s32, 7")
    M.I("s_lshl_b32 s39, s33, 2")
    M.I("s_add_u32 s36, s36, s39")
    M.I("v_and_b32 v8, 1, v0")
    M.I("v_lshlrev_b32 v8, 11, v8")
    M.I("v_add_u32 v8, s36, v8")
    M.I("s_and_b32 s36, s2, 7")
    M.I("s_lshr_b32 s39, s2, 3")
    M.I("s_and_b32 s26, s36, 3")
    M.I("s_lshl_b32 s26, s26, 3")
    M.I("s_and_b32 s27, s39, 7")
    M.I("s_add_u32 s26, s26, s27")
    M.I("s_lshr_b32 s27, s36, 2")
    M.I("s_lshl_b32 s27, s27, 2")
    M.I("s_lshr_b32 s39, s39, 3")
    M.I("s_add_u32 s27, s27, s39")
    M.I("s_lshl_b32 s36, s27, 7")
    M.I("s_lshl_b32 s39, s26, 2")
    M.I("s_add_u32 s36, s36, s39")
    M.I("s_add_u32 s36, s36, 4096")
    M.I("v_writelane_b32 v8, s36, 2")
    M.I("s_mov_b64 exec, 7")
    M.I(f"buffer_store_dword v14, v8, s[{SB1}:{SB1+3}], 0 offen sc1")
    M.I("s_mov_b64 exec, -1")
    M.I("v_lshlrev_b32 v8, 3, v0")
    M.I("v_and_b32 v10, 15, v0")
    M.I("v_lshlrev_b32 v10, 3, v10")
    M.I("s_add_u32 s37, s32, 15")
    M.I("s_mul_i32 s37, s37, 640")
    M.I(f"buffer_store_dwordx2 v[14:15], v8, s[{SAGM}:{SAGM+3}], s37 offen sc1")
    M.I(f"buffer_store_dwordx2 v[14:15], v10, s[{SAGM}:{SAGM+3}], s37 offen offset:512 sc1")
    M.I("s_lshl_b32 s37, s32, 7")
    M.I(f"s_add_u32 s37, s37, {GO_O}")
    M.I(f"buffer_store_dwordx2 v[14:15], v14, s[{SAGM}:{SAGM+3}], s37 offen sc1")
    M.I("s_cmp_lg_u32 s32, 0")
    M.I(f"s_cbranch_scc1 L_{name}_noclr")
    M.I("v_mov_b32 v10, 0")
    M.I(f"v_mov_b32 v11, {TAG}")
    M.I("s_mov_b32 s37, 0")
    for k in range(19):
        if k == 18:
            M.I("v_min_u32 v8, 376, v8")
        M.I(f"buffer_store_dwordx2 v[10:11], v8, s[{SAGM}:{SAGM+3}], s37 offen offset:{(k%8)*512} sc1")
        if k % 8 == 7: M.I("s_add_u32 s37, s37, 4096")
    M.label(f"L_{name}_noclr")
    M.vm = savevm
    stamp()
    M.I("v_and_b32 v22, 15, v0")
    M.I("v_bfe_u32 v23, v0, 4, 1")
    T1 = XB
    M.I(f"v_lshrrev_b32 v{T1}, 2, v22")
    M.I(f"v_and_b32 v{T1+1}, 3, v22")
    M.I(f"v_lshlrev_b32 v{T1+2}, 3, v{T1}")
    M.I(f"v_lshl_add_u32 v{T1+2}, v23, 2, v{T1+2}")
    M.I(f"v_add_u32 v{T1+2}, v{T1+2}, v{T1+1}")
    M.I("s_lshl_b32 s36, s35, 5")
    M.I(f"v_add_u32 v{T1+5}, s36, v{T1+2}")
    M.I(f"v_lshlrev_b32 v{T1+2}, 7, v{T1+5}")
    M.I(f"v_lshrrev_b32 v{T1+3}, 1, v{T1}")
    M.I(f"v_lshlrev_b32 v{T1+3}, 2, v{T1+3}")
    M.I(f"v_and_b32 v{T1+4}, 2, v{T1+1}")
    M.I(f"v_or3_b32 v{T1+3}, v{T1+3}, v{T1+4}, v23")
    M.I(f"v_lshrrev_b32 v{T1+4}, 5, v0")
    M.I(f"v_xor_b32 v{T1+3}, v{T1+3}, v{T1+4}")
    M.I(f"v_lshlrev_b32 v{T1+6}, 3, v{T1+4}")
    M.I(f"v_bfe_u32 v{T1+7}, v0, 2, 2")
    M.I(f"v_add_u32 v{T1+6}, v{T1+6}, v{T1+7}")
    M.I(f"v_mul_u32_u24 v{T1+6}, 192, v{T1+6}")
    M.I(f"v_lshl_add_u32 v{T1+6}, v23, 5, v{T1+6}")
    M.I(f"v_and_b32 v{T1+7}, 3, v0")
    M.I(f"v_lshl_add_u32 v{T1+6}, v{T1+7}, 3, v{T1+6}")
    M.I(f"v_add_u32 v{T1+6}, {W1_O}, v{T1+6}")
    M.I(f"v_xor_b32 v{T1+7}, v23, v0")
    M.I(f"v_and_b32 v{T1+7}, 1, v{T1+7}")
    M.I(f"v_add_u32 v{T1+7}, -1, v{T1+7}")
    M.I(f"v_and_b32 v{MSK}, 0x3f803f80, v{T1+7}")
    for k in range(1, 4): M.I(f"v_mov_b32 v{MSK+k}, v{MSK}")
    for u in range(4):
        M.I(f"v_xor_b32 v{T1+4}, {2*u}, v{T1+3}")
        M.I(f"v_lshl_add_u32 v{5+u}, v{T1+4}, 4, v{T1+2}")
    for j2 in range(3):
        M.I(f"s_add_u32 s36, s35, {j2}")
        M.I("s_sub_u32 s39, s36, 3")
        M.I("s_cmp_ge_u32 s36, 3")
        M.I(f"s_cselect_b32 s{4+j2}, s39, s36")
        M.I(f"s_lshl_b32 s39, s{4+j2}, 6")
        M.I(f"v_add_u32 v{9+j2}, s39, v{T1+6}")
    M.I(f"v_lshlrev_b32 v23, 3, v{T1+5}")
    mk_srd(M, SB1, 22, 23, 3072)
    M.I(f"v_lshrrev_b32 v{T1}, 4, v0")
    M.I("s_and_b32 s36, s35, 1")
    M.I("s_lshl_b32 s36, s36, 2")
    M.I(f"v_add_u32 v{T1}, s36, v{T1}")
    M.I(f"v_and_b32 v{T1+1}, 7, v0")
    M.I(f"v_xor_b32 v{T1}, v{T1}, v{T1+1}")
    M.I(f"v_lshlrev_b32 v{T1+1}, 7, v22")
    M.I(f"v_lshl_add_u32 v16, v{T1}, 4, v{T1+1}")
    M.I(f"v_add_u32 v16, {BB_O}, v16")
    M.I(f"v_lshlrev_b32 v{T1}, 3, v0")
    M.I(f"v_add_u32 v{T1}, {CSW_L}, v{T1}")
    M.I(f"ds_write_b64 v{T1}, v[14:15]")
    for k in range(20): M.I(f"v_mov_b32 v{CBA+k}, 0")
    M.I("s_lshr_b32 s37, s35, 1")
    emit(M, m_dma(1))
    M.raw(";;DRYPT")
    def m_reads(p):
        L = []
        for u in range(4):
            L.append([(f"ds_read_b128 {vr(XB+16*(p&1)+4*u,4)}, v{5+u}", f"r{p}")])
            for jt in range(3):
                L.append([(f"ds_read_b64_tr_b16 {vr(WB+48*(p&1)+12*u+4*jt+2*e,2)}, v{9+jt} offset:{u*3072+e*768}", f"r{p}") for e in range(2)])
        delta = SLOT if p % 4 != 3 else (-3 * SLOT) & 0xffffffff
        L.append([(f"v_add_u32 v{k}, {delta}, v{k}", None) for k in range(5, 12)])
        return L
    def m_mfma(p):
        L = []
        for u in range(4):
            c = "0" if (p == 0 and u < 2) else vr(WA + 4 * (u & 1), 4)
            L.append(f"v_mfma_f32_16x16x32_bf16 {vr(WA+4*(u&1),4)}, {vr(WB+48*(p&1)+12*u,4)}, {vr(MSK,4)}, {c}")
        for u in range(4):
            for jt in range(3):
                c = "0" if (p == 0 and u == 0) else vr(MACC + 16 * jt, 16)
                L.append(f"v_mfma_f32_32x32x16_bf16 {vr(MACC+16*jt,16)}, {vr(WB+48*(p&1)+12*u+4*jt,4)}, {vr(XB+16*(p&1)+4*u,4)}, {c}")
        return L
    SJL = 2 * SLOT
    def sj_ids(M=None):
        M.I("s_and_b32 s36, s2, 7")
        M.I("s_lshr_b32 s39, s2, 3")
        M.I("s_and_b32 s26, s36, 3")
        M.I("s_lshl_b32 s26, s26, 3")
        M.I("s_and_b32 s27, s39, 7")
        M.I("s_add_u32 s26, s26, s27")
        M.I("s_lshr_b32 s27, s36, 2")
        M.I("s_lshl_b32 s27, s27, 2")
        M.I("s_lshr_b32 s39, s39, 3")
        M.I("s_add_u32 s27, s27, s39")
    def sj_issue_w(M=None):
        mk_srd(M, 40, 24, 25, 1966080)
        for jk in range(2):
            M.I(f"s_add_u32 s39, s26, {32*jk}")
            M.I("s_min_u32 s39, s39, 47")
            M.I(f"s_mul_i32 s{68+jk}, s27, {5*H1F_RT}")
            M.I("s_lshl_b32 s36, s39, 10")
            M.I(f"s_add_u32 s{68+jk}, s{68+jk}, s36")
            M.I("s_mul_i32 s39, s39, 40960")
            M.I("s_mul_i32 s36, s27, 160")
            M.I(f"s_add_u32 s{22+jk}, s36, s39")
        for e in range(5):
            M.I(f"v_add_u32 v1, {64*e}, v0")
            M.I("v_mul_u32_u24 v2, 6554, v1")
            M.I("v_lshrrev_b32 v2, 16, v2")
            M.I("v_mul_u32_u24 v3, 10, v2")
            M.I("v_sub_u32 v1, v1, v3")
            M.I("v_mul_u32_u24 v2, 1280, v2")
            M.I("v_lshl_add_u32 v1, v1, 4, v2")
            for jk in range(2):
                M.I(f"s_mov_b32 m0, {SJL + 5120*jk + 1024*e}")
                M.I(f"buffer_load_dwordx4 v1, s[40:43], s{22+jk} offen lds")
    def sj_issue_c(M=None):
        mk_srd(M, 44, 14, 15, 819200)
        mk_srd(M, 48, 16, 17, 819200)
        for jk in range(2):
            M.I(f"s_add_u32 s38, s26, {32*jk}")
            M.I("s_min_u32 s38, s38, 49")
            M.I(f"s_mul_hi_u32 s36, s38, {(2**32 + 9)//10}")
            M.I("s_mul_i32 s39, s36, 10")
            M.I("s_sub_u32 s39, s38, s39")
            M.I("s_mul_i32 s38, s27, 5")
            M.I("s_add_u32 s36, s36, s38")
            M.I(f"s_mul_i32 s{70+jk}, s36, {HF_RT}")
            M.I("s_lshl_b32 s38, s39, 12")
            M.I(f"s_add_u32 s{70+jk}, s{70+jk}, s38")
            M.I(f"s_add_u32 s{70+jk}, s{70+jk}, {CF_OFF - W2F_OFF}")
            M.I("s_mul_i32 s36, s36, 20480")
            M.I("s_lshl_b32 s39, s39, 7")
            M.I("s_add_u32 s36, s36, s39")
            M.I("s_add_u32 s39, s36, 10240")
            for (sr, mo) in ((44, 0), (48, 2048)):
                M.I(f"s_mov_b32 m0, {SJL + 10240 + 4096*jk + mo}")
                M.I(f"buffer_load_dwordx4 v13, s[{sr}:{sr+3}], s36 offen lds")
                M.I(f"s_mov_b32 m0, {SJL + 10240 + 4096*jk + mo + 1024}")
                M.I(f"buffer_load_dwordx4 v13, s[{sr}:{sr+3}], s39 offen lds")
    def sj_rec(rec, p):
        if p == 7:
            sj_ids(rec); sj_issue_w(rec)
        else: sj_issue_c(rec)
    def sj_finish():
        mk_srd(M, 40, 30, 31, STATS_OFF - W2F_OFF, None, W2F_OFF)
        M.I("v_lshrrev_b32 v1, 4, v0")
        M.I("v_lshrrev_b32 v2, 1, v1")
        M.I("v_lshlrev_b32 v12, 4, v2")
        M.I("v_and_b32 v3, 1, v1")
        M.I("v_lshl_add_u32 v12, v3, 2, v12")
        M.I("v_lshrrev_b32 v17, 2, v22")
        M.I("v_add_u32 v12, v12, v17")
        M.I("v_mul_u32_u24 v12, 160, v12")
        M.I("v_and_b32 v17, 3, v22")
        M.I("v_lshl_add_u32 v12, v17, 3, v12")
        M.I(f"v_add_u32 v12, {SJL}, v12")
        M.I("v_lshlrev_b32 v3, 11, v3")
        M.I("v_lshl_add_u32 v3, v22, 7, v3")
        M.I("v_and_b32 v17, 7, v22")
        M.I("v_xor_b32 v2, v2, v17")
        M.I("v_lshl_add_u32 v3, v2, 4, v3")
        M.I(f"v_add_u32 v3, {SJL + 10240}, v3")
        M.I("v_lshlrev_b32 v1, 4, v0")
        RW = [WB, WB + 20]; RC_ = [CBF, CBA]
        for jk in range(2):
            for j in range(5):
                for e in range(2):
                    M.I(f"ds_read_b64_tr_b16 {vr(RW[jk]+4*j+2*e,2)}, v12 offset:{5120*jk+32*j+1280*e}")
        for j in range(4):
            M.I(f"v_xor_b32 v2, {32*j}, v3")
            for jk in range(2):
                M.I(f"ds_read_b128 {vr(RC_[jk]+4*j,4)}, v2 offset:{4096*jk}")
        M.I("s_waitcnt lgkmcnt(0)")
        for jk in range(2):
            for j in range(5):
                M.I(f"buffer_store_dwordx4 {vr(RW[jk]+4*j,4)}, v1, s[40:43], s{68+jk} offen sc1")
                M.vm.pop()
                if j < 4: M.I(f"s_add_u32 s{68+jk}, s{68+jk}, {H1F_RT}")
        for jk in range(2):
            for j in range(4):
                M.I(f"buffer_store_dwordx4 {vr(RC_[jk]+4*j,4)}, v1, s[40:43], s{70+jk} offen offset:{1024*j} sc1")
                M.vm.pop()
    B1V = WB + 24
    for p in range(10):
        m_wait(f"c{p}")
        if p == 1:
            M.I(f"s_cbranch_vccnz L_{name}_w7")
            M.I("s_waitcnt vmcnt(0)")
            M.I("v_min_u32 v17, 19, v0")
            M.I("v_lshlrev_b32 v17, 2, v17")
            M.I(f"v_add_u32 v17, {PAR_L}, v17")
            M.I("ds_write_b32 v17, v1")
            M.I("ds_write_b32 v17, v2 offset:128")
            M.I("ds_write_b32 v17, v3 offset:256")
            M.lg = []
            M.label(f"L_{name}_w7")
        if p == 0: M.wait_lg()
        M.I("s_barrier")
        stamp(True)
        if p in (0, 9): stamp()
        side = m_dma(p + 3) if p + 3 <= 9 else []
        if p == 0: side = m_dma(2)
        if p == 1: side = m_dma(3) + side
        rd = m_reads(p)
        M.I(f"s_cmp_lg_u32 s37, {p & 1}")
        M.I(f"s_cbranch_scc1 L_{name}_cs{p}a")
        for j in range(5):
            M.I(f"ds_read_b128 {vr(CBF+4*j,4)}, v16 offset:{2048*j}")
            M.lg.pop()
        M.label(f"L_{name}_cs{p}a")
        delta = SLOT if p % 4 != 3 else (-3 * SLOT) & 0xffffffff
        M.I(f"v_add_u32 v16, {delta}, v16")
        def cs_mfma():
            M.I(f"s_cmp_lg_u32 s37, {p & 1}")
            M.I(f"s_cbranch_scc1 L_{name}_cs{p}b")
            for j in range(5):
                M.I(f"v_mfma_f32_16x16x32_bf16 {vr(CBA+4*j,4)}, v[18:21], {vr(CBF+4*j,4)}, {vr(CBA+4*j,4)}")
            M.label(f"L_{name}_cs{p}b")
        if "dmaonly" in dbg: emit(M, side)
        elif p == 0: emit(M, rd + side)
        elif p == 9:
            mm8 = m_mfma(8)
            for m in mm8[:6]: M.I(m)
            M.I("s_waitcnt lgkmcnt(0)")
            cs_mfma()
            for m in mm8[6:8]: M.I(m)
            M.I("s_mul_i32 s36, s35, 320")
            M.I(f"s_add_u32 s36, s36, {CSB_L}")
            M.I("v_lshlrev_b32 v17, 2, v22")
            M.I("v_add_u32 v17, s36, v17")
            M.I("s_nop 3")
            M.I("s_mov_b64 exec, 0xffff")
            for j in range(5):
                M.I(f"ds_write_b32 v17, v{CBA+4*j} offset:{64*j}", tag="sw")
            cnt_add(M, 16, 17, CNT_L + 4)
            merge(M, mm8[8:], rd, 0.9)
            M.I(f"s_cbranch_vccnz L_{name}_nb1")
            M.I("v_min_u32 v17, 47, v0")
            M.I("v_lshlrev_b32 v17, 3, v17")
            M.I(f"v_add_u32 v17, {B1F_L}, v17")
            M.I("v_lshlrev_b32 v2, 16, v4")
            M.I("v_and_b32 v3, 0xffff0000, v4")
            M.I("ds_write_b64 v17, v[2:3]")
            M.label(f"L_{name}_nb1")
        elif p in (7, 8):
            class Rec:
                def __init__(self): self.L = []; self.vm = []
                def I(self, t, tag=None): self.L.append(t)
            Msave = M; rec = Rec()
            globals()["_REC"] = rec
            sj_rec(rec, p)
            groups = []
            n = 9
            for k in range(0, len(rec.L), n):
                chunk = rec.L[k:k + n]
                groups.append(chunk)
            fixed = []; cur = []
            for t in rec.L:
                cur.append(t)
                if len(cur) >= n and not (t.startswith("s_mov_b32 m0") or t.startswith("s_add_u32") or t.startswith("s_cmp")):
                    fixed.append(cur); cur = []
            if cur: fixed.append(cur)
            gs = []
            for g in fixed:
                lbl[0] += 1
                gs.append([(f"s_cbranch_vccnz L_{name}_g{lbl[0]}", None)] + [(t, "sj") for t in g] + [(f"L_{name}_g{lbl[0]}:", None)])
            merge(M, m_mfma(p - 1), mix(rd, gs), 0.95)
            M.vm = [t for t in M.vm if t != "sj"]
        else: merge(M, m_mfma(p - 1), mix(rd, side), 0.9)
        if p == 6:
            svm = list(M.vm)
            M.I(f"s_cbranch_vccnz L_{name}_si{p}")
            if p == 6:
                M.I("s_waitcnt vmcnt(0)")
                M.I("v_readfirstlane_b32 s36, v15")
                M.I("s_and_b32 s36, s36, 15")
                M.I("s_cmp_lg_u32 s36, 15")
                M.I(f"s_cbranch_scc1 L_{name}_nb")
                mk_srd(M, SB1, 30, 31, 16 * AGG_G, None, AGG_OFF)
                M.I("v_lshlrev_b32 v14, 7, v22")
                M.I("v_lshrrev_b32 v15, 4, v0")
                M.I(f"v_mul_u32_u24 v15, {AGG_G}, v15")
                M.I(f"v_add3_u32 v14, v14, v15, {0}") if False else M.I("v_add_u32 v14, v14, v15")
                M.I(f"v_add_u32 v14, {GO_O}, v14")
                M.I(f"v_mov_b32 v15, {TAG}")
                for n in range(4):
                    M.I(f"s_mov_b32 s36, {4*n*AGG_G}")
                    M.I(f"buffer_store_dword v15, v14, s[{SB1}:{SB1+3}], s36 offen sc1")
                    M.vm.pop()
                M.label(f"L_{name}_nb")
                pass
            M.label(f"L_{name}_si{p}")
            M.vm = svm
        if p == 1:
            M.I(f"s_cbranch_vccnz L_{name}_na")
            M.I("s_waitcnt vmcnt(0)")
            M.I("s_lshl_b32 s36, s33, 4")
            M.I("v_mov_b32 v14, s36")
            M.I("v_mov_b32 v15, 1")
            M.I("s_mov_b64 exec, 1")
            M.I(f"buffer_atomic_add v15, v14, s[{SDB}:{SDB+3}], 0 offen sc0")
            M.vm.pop()
            M.I("s_mov_b64 exec, -1")
            M.label(f"L_{name}_na")
        if p == 4:
            M.I(f"s_cbranch_vccnz L_{name}_n2")
            M.I("s_waitcnt vmcnt(0)")
            M.I("v_readfirstlane_b32 s36, v15")
            M.I("v_mov_b32 v15, 0")
            M.I("s_and_b32 s36, s36, 15")
            M.I("s_cmp_lg_u32 s36, 15")
            M.I(f"s_cbranch_scc1 L_{name}_n2")
            M.I("v_mov_b32 v14, 4")
            M.I("v_mov_b32 v15, 1")
            M.I("s_mov_b64 exec, 1")
            M.I(f"buffer_atomic_add v15, v14, s[{SDB}:{SDB+3}], 0 offen sc0")
            M.vm.pop()
            M.I("s_mov_b64 exec, -1")
            M.label(f"L_{name}_n2")
        M.I("s_waitcnt lgkmcnt(0)")
        M.lg = []
        if p < 9: cs_mfma()
    mm = m_mfma(9)
    M.raw(";;DRYSTART")
    M.I("s_lshl_b32 s38, s35, 2")
    M.I(f"s_add_u32 s38, s38, {CNT_L+16}")
    if "mdelay" in dbg: cnt_wait(M, f"L_{name}_mw2", 16, 17, "s38", 1)
    for m in mm[:4]: M.I(m)
    for m in mm[4:8]: M.I(m)
    for r in range(4): M.I(f"v_add_f32 v{WA+r}, v{WA+r}, v{WA+4+r}")
    M.I("v_and_b32 v16, 1, v0")
    M.I("v_lshlrev_b32 v16, 6, v16")
    M.I("v_lshrrev_b32 v17, 4, v0")
    M.I("v_lshl_add_u32 v16, v17, 4, v16")
    M.I("s_lshl_b32 s36, s4, 7")
    M.I(f"s_add_u32 s36, s36, {CSW_L}")
    M.I("v_add_u32 v16, s36, v16")
    M.I("s_mov_b32 exec_lo, 0x00030003")
    M.I("s_mov_b32 exec_hi, 0x00030003")
    M.I(f"ds_write_b128 v16, {vr(WA,4)}")
    cnt_add(M, 16, 17, CNT_L + 8)
    for m in mm[8:]: M.I(m)
    svm, slg = list(M.vm), list(M.lg)
    M.I(f"s_cbranch_vccnz L_{name}_sjl")
    M.I("s_waitcnt vmcnt(0)")
    sj_finish()
    cnt_add(M, 1, 2, CNT_L + 40)
    M.label(f"L_{name}_sjl")
    M.vm, M.lg = svm, slg
    stamp()
    cnt_wait(M, f"L_{name}_mw1", 16, 17, CNT_L + 8, 4)
    if "mdelay" not in dbg: cnt_wait(M, f"L_{name}_mw2", 16, 17, "s38", 1)
    stamp()
    M.I("s_lshl_b32 s36, s32, 7")
    M.I(f"s_add_u32 s36, s36, {GO_O}")
    M.I("v_mov_b32 v7, s36")
    M.I(f"buffer_load_dword v7, v7, s[{SAGM}:{SAGM+3}], 0 offen sc1")
    M.vm.pop()
    if "sprio" not in dbg: M.I("s_setprio 3")
    CSV = XB
    B1V = WB + 16
    M.I("v_lshrrev_b32 v10, 5, v0")
    M.I("v_lshlrev_b32 v11, 4, v10")
    M.I(f"v_add_u32 v12, {B1F_L}, v11")
    M.I(f"v_add_u32 v11, {CSW_L}, v11")
    M.I("v_lshrrev_b32 v23, 1, v23")
    M.I(f"v_add_u32 v23, {STATS_L}, v23")
    M.I("ds_read_b32 v14, v23")
    M.I("ds_read_b32 v15, v23 offset:512")
    for jt in range(3):
        M.I(f"s_lshl_b32 s36, s{4+jt}, 7")
        M.I("v_add_u32 v16, s36, v11")
        M.I("v_add_u32 v17, s36, v12")
        M.I(f"s_lshl_b32 s{4+jt}, s{4+jt}, 10")
        for q in range(4):
            M.I(f"ds_read_b128 {vr(CSV+(jt*4+q)*4,4)}, v16 offset:{32*q}", tag=f"cr{jt}")
            M.I(f"ds_read_b128 {vr(B1V+(jt*4+q)*4,4)}, v17 offset:{32*q}", tag=f"cr{jt}")
    M.I("s_lshl_b32 s36, s32, 2")
    M.I("s_add_u32 s36, s36, s35")
    M.I(f"s_mul_i32 s36, s36, {2*H1F_RT}")
    M.I("s_mul_i32 s39, s33, 3072")
    M.I("s_add_u32 s36, s36, s39")
    mk_srd(M, SH1, 30, 31, H1F_RT + 3072, 36, H1F_OFF)
    M.I("v_bfe_u32 v9, v0, 4, 1")
    M.I(f"v_mul_u32_u24 v9, {H1F_RT}, v9")
    M.I("v_lshl_add_u32 v9, v10, 8, v9")
    M.I("v_lshl_add_u32 v9, v22, 4, v9")
    C1 = -2.0 * 1.4426950408889634 * 0.7978845608028654
    C2 = C1 * 0.044715
    M.I(f"v_mov_b32 v16, {f2u(C2)}")
    M.I(f"v_mov_b32 v17, {f2u(C1)}")
    TM = FR
    late = []
    for jt in range(3):
        M.wait_lg(f"cr{jt}")
        P = [MACC + 16 * jt + 2 * k for k in range(8)]
        cs = [CSV + jt * 16 + 2 * k for k in range(8)]
        b1 = [B1V + jt * 16 + 2 * k for k in range(8)]
        T_ = [TM + 2 * k for k in range(8)]
        for k in range(8):
            M.I(f"v_pk_fma_f32 {vr(b1[k],2)}, v[14:15], {vr(cs[k],2)}, {vr(b1[k],2)} op_sel:[0,0,0] op_sel_hi:[0,1,1] neg_lo:[1,0,0] neg_hi:[1,0,0]")
        for k in range(8):
            M.I(f"v_pk_fma_f32 {vr(P[k],2)}, {vr(P[k],2)}, v[14:15], {vr(b1[k],2)} op_sel:[0,1,0] op_sel_hi:[1,1,1]")
        for k in range(8):
            M.I(f"v_pk_mul_f32 {vr(T_[k],2)}, {vr(P[k],2)}, {vr(P[k],2)}")
        for k in range(8):
            M.I(f"v_pk_fma_f32 {vr(T_[k],2)}, {vr(T_[k],2)}, v[16:17], v[16:17] op_sel:[0,0,1] op_sel_hi:[1,0,1]")
        for k in range(8):
            M.I(f"v_pk_mul_f32 {vr(T_[k],2)}, {vr(T_[k],2)}, {vr(P[k],2)}")
        for k in range(16):
            M.I(f"v_exp_f32 v{TM+k}, v{TM+k}")
        for k in range(8):
            M.I(f"v_pk_add_f32 {vr(T_[k],2)}, {vr(T_[k],2)}, 1.0 op_sel_hi:[1,0]")
        for k in range(16):
            M.I(f"v_rcp_f32 v{TM+k}, v{TM+k}")
        for k in range(8):
            M.I(f"v_pk_mul_f32 {vr(P[k],2)}, {vr(P[k],2)}, {vr(T_[k],2)}")
        PKM = TM + 16 + 8 * jt
        for k in range(8):
            M.I(f"v_cvt_pk_bf16_f32 v{PKM+k}, v{P[k]}, v{P[k]+1}")
        def h1st(jt=jt, PKM=PKM):
            for AB in range(2):
                M.I(f"buffer_store_dwordx4 {vr(PKM+4*AB,4)}, v9, s[{SH1}:{SH1+3}], s{4+jt} offen offset:{512*AB}{STF}", tag="st")
        if jt == 1:
            M.I(f"s_cbranch_vccnz L_{name}_a2")
            M.I("s_waitcnt vmcnt(2)")
            mk_srd(M, 44, 30, 31, 8192, None, FL_OFF)
            M.I("s_lshl_b32 s36, s27, 7")
            M.I("s_lshl_b32 s39, s26, 2")
            M.I("s_add_u32 s36, s36, s39")
            M.I("s_add_u32 s36, s36, 4096")
            M.I("v_mov_b32 v1, s36")
            M.I(f"v_mov_b32 v2, {TAG}")
            M.I("s_mov_b64 exec, 1")
            M.I("buffer_store_dword v2, v1, s[44:47], 0 offen sc1")
            M.vm.pop()
            M.I("s_mov_b64 exec, -1")
            M.label(f"L_{name}_a2")
        if "mst" in dbg: late.append(h1st)
        else: h1st()
    if "mst" in dbg:
        cnt_wait(M, f"L_{name}_mw3", 16, 17, CNT_L + 12, 1)
        for f in late: f()
    M.I("s_cmp_lg_u32 s33, 0")
    M.I(f"s_cbranch_scc1 L_{name}_nostat")
    M.I("s_lshl_b32 s36, s32, 9")
    mk_srd(M, 40, 30, 31, 8192 + 512, 36, STATS_OFF)
    M.I(f"v_subrev_u32 v23, {STATS_L}, v23")
    M.I("s_mov_b32 s36, 8192")
    M.I("buffer_store_dword v14, v23, s[40:43], 0 offen sc1")
    M.I("buffer_store_dword v15, v23, s[40:43], s36 offen sc1")
    M.label(f"L_{name}_nostat")
    phaseB(M, "G", stamp)
    final_stamps(M, st)
    M.label(f"L_{name}_end")
    M.I("s_endpgm")
    if "dry" not in dbg:
        for X in (S, M): X.lines = [l for l in X.lines if not l.startswith(";;DRY")]
    else:
        print("dry blocks", add_dry(S, name, "ds", 39), add_dry(M, name, "dm", 39))
    desc = f""".section .rodata,"a"
.p2align 6
.amdhsa_kernel {name}
  .amdhsa_next_free_vgpr 256
  .amdhsa_next_free_sgpr 102
  .amdhsa_accum_offset 256
  .amdhsa_group_segment_fixed_size 0
  .amdhsa_kernarg_size 136
  .amdhsa_user_sgpr_count 2
  .amdhsa_user_sgpr_kernarg_segment_ptr 1
  .amdhsa_system_sgpr_workgroup_id_x 1
.end_amdhsa_kernel
.text"""
    return A.text() + "\n" + S.text() + "\n" + M.text() + "\n" + desc, (A.nins, S.nins, M.nins)
```

```python
from asmfw import *
from layout import *
import struct
def f2u(f): return struct.unpack("<I", struct.pack("<f", f))[0]
LOG2E = f2u(1.4426950408889634)
INV2PI = f2u(0.15915494309189535)
SLOT = 38912
BB_O = 16384
W1_O = 26624
MISC = 155648
SEG_L = MISC
CSW_L = MISC + 5120
CNT_L = CSW_L + 384
STATS_L = MISC + 5632
CSB_L = STATS_L + 1024
STG_L = 2 * SLOT
PAR_L = SEG_L
B1F_L = 34816
GR_L = 40960
TR_L = 0
Q_L = 24576
HS_L = 32768
TAG = 0x5a17c3e9
EP_L = 126976
MST_L = 0
NEG_LOG2E = 0xbfb8aa3b
DPP = "row_ror:8 row_mask:0xf bank_mask:0xf"

def mk_srd(A, d, lo, hi, nbytes, off_s=None, off_imm=0):
    if off_s is None and off_imm == 0:
        A.I(f"s_mov_b32 s{d}, s{lo}")
        A.I(f"s_and_b32 s{d+1}, s{hi}, 0xffff")
    else:
        if off_s is not None:
            if off_imm: A.I(f"s_add_u32 s{off_s}, s{off_s}, {off_imm}")
            A.I(f"s_add_u32 s{d}, s{lo}, s{off_s}")
        else:
            A.I(f"s_add_u32 s{d}, s{lo}, {off_imm}")
        A.I(f"s_addc_u32 s{d+1}, s{hi}, 0")
        A.I(f"s_and_b32 s{d+1}, s{d+1}, 0xffff")
    A.I(f"s_mov_b32 s{d+2}, {nbytes}")
    A.I(f"s_mov_b32 s{d+3}, 0x00020000")

def bb_srd(X, d, ldsreg):
    X.I(f"s_lshl_b32 s{ldsreg}, s36, 10")
    X.I(f"s_add_u32 s{ldsreg}, s{ldsreg}, {BB_O}")
    X.I("s_and_b32 s39, s36, 1")
    X.I("s_cmp_eq_u32 s39, 0")
    X.I(f"s_cselect_b32 s{d}, s10, s12")
    X.I(f"s_cselect_b32 s{d+1}, s11, s13")
    X.I("s_lshr_b32 s36, s36, 1")
    X.I("s_lshl_b32 s36, s36, 3")
    X.I("s_mul_i32 s39, s33, 40")
    X.I("s_add_u32 s36, s36, s39")
    X.I("s_mul_i32 s36, s36, 1280")
    X.I(f"s_add_u32 s{d}, s{d}, s36")
    X.I(f"s_addc_u32 s{d+1}, s{d+1}, 0")
    X.I(f"s_and_b32 s{d+1}, s{d+1}, 0xffff")
    X.I(f"s_mov_b32 s{d+2}, 10240")
    X.I(f"s_mov_b32 s{d+3}, 0x00020000")

def put(X, item):
    t, g = item
    if t.endswith(":"): X.label(t[:-1])
    else: X.I(t, tag=g)
def emit(X, L):
    for grp in L:
        for it in grp: put(X, it)
def merge(X, main, side, frac=1.0):
    side = list(side)
    n = max(1, int(len(main) * frac))
    done = 0
    for k, m in enumerate(main):
        X.I(m)
        tgt = min(len(side), ((k + 1) * len(side) + n - 1) // n)
        while done < tgt:
            for it in side[done]: put(X, it)
            done += 1
    while done < len(side):
        for it in side[done]: put(X, it)
        done += 1
def mix(a, b):
    out = []; ia = ib = 0
    while ia < len(a) or ib < len(b):
        if ib >= len(b) or (ia < len(a) and ia * len(b) <= ib * len(a)):
            out.append(a[ia]); ia += 1
        else:
            out.append(b[ib]); ib += 1
    return out

def cnt_add(X, va, vt, addr):
    X.I(f"v_mov_b32 v{va}, {addr}")
    X.I(f"v_mov_b32 v{vt}, 1")
    X.I("s_mov_b64 exec, 1")
    X.I(f"ds_add_u32 v{va}, v{vt}")
    X.I("s_mov_b64 exec, -1")
def cnt_wait(X, lab, va, vt, addr, val):
    X.I(f"v_mov_b32 v{va}, {addr}")
    X.I("s_mov_b32 s39, 0")
    X.label(lab)
    X.I(f"ds_read_b32 v{vt}, v{va}")
    X.I("s_waitcnt lgkmcnt(0)")
    X.lg = []
    X.I(f"v_readfirstlane_b32 s36, v{vt}")
    X.I("s_add_u32 s39, s39, 1")
    X.I(f"s_cmp_eq_u32 s36, {val}")
    X.I(f"s_cbranch_scc1 {lab}d")
    X.I("s_sleep 1")
    X.I("s_cmp_lt_u32 s39, 0x400000")
    X.I(f"s_cbranch_scc1 {lab}")
    X.label(lab + "d")

def pr(idx):
    return f"v[{idx & ~1}:{(idx & ~1) + 1}]", idx & 1

def add_dry(X, name, tag, sreg, minlen=10, maxlen=48):
    lines = X.lines
    i0 = lines.index(";;DRYSTART")
    head, tail = lines[:i0], lines[i0 + 1:]
    def pure(l):
        t = l.strip()
        if t.startswith("v_"):
            return not (t.startswith("v_cmp") or t.startswith("v_readfirstlane") or t.startswith("v_mfma") or t.startswith("v_readlane") or "co_u32" in t)
        return t.startswith("s_nop")
    out = []; nb = 0; i = 0
    while i < len(tail):
        j = i
        while j < len(tail) and pure(tail[j]): j += 1
        if j - i >= minlen:
            k = i
            while k < j:
                e = min(j, k + maxlen)
                if j - e < minlen: e = j
                out.append(f"L_{name}_{tag}{nb}:")
                out += tail[k:e]
                out.append(f"    s_cbranch_execz L_{name}_{tag}disp")
                nb += 1; k = e
            i = j
        else:
            out += tail[i:max(j, i + 1)]; i = max(j, i + 1)
    drv = [f"    s_mov_b32 s{sreg}, s35", "    s_mov_b64 exec, 0", f"    s_branch L_{name}_{tag}go",
           f"L_{name}_{tag}disp:", f"    s_add_u32 s{sreg}, s{sreg}, 4", f"L_{name}_{tag}go:"]
    for b in range(nb):
        drv += [f"    s_cmp_eq_u32 s{sreg}, {b}", f"    s_cbranch_scc1 L_{name}_{tag}{b}"]
    drv += ["    s_mov_b64 exec, -1"]
    p = head.index(";;DRYPT")
    X.lines = head[:p] + drv + head[p + 1:] + out
    return nb

def gen_kf(name="kf_kernel", stamps=False, rot=True, dbg=""):
    import os
    STF = os.environ.get("STF1", "")
    STH = os.environ.get("STH", STF)
    A = Stream()
    A.raw(f".globl {name}\n.p2align 8\n.type {name},@function\n{name}:")
    A.I("s_cmp_ge_u32 s2, 256")
    A.I(f"s_cbranch_scc1 L_{name}_end")
    class St:
        n = 0
    def mkstamp(X):
        st = St()
        def stamp(ph=False):
            if not stamps: return
            if ("phst" in dbg) != ph: return
            assert st.n < 12
            X.I(f"s_memtime s[{74+2*st.n}:{75+2*st.n}]"); st.n += 1
        return stamp, st
    if stamps:
        A.I("s_memtime s[72:73]")
        A.I("s_memrealtime s[98:99]")
    A.I("s_load_dwordx16 s[4:19], s[0:1], 0")
    A.I("s_load_dwordx4 s[20:23], s[0:1], 80")
    A.I("s_load_dwordx2 s[24:25], s[0:1], 96")
    A.I("s_load_dwordx4 s[28:31], s[0:1], 120")
    A.I("s_and_b32 s36, s2, 7")
    A.I("s_lshr_b32 s37, s2, 3")
    if "map2" in dbg:
        A.I("s_and_b32 s32, s37, 15")
    else:
        A.I("s_and_b32 s32, s36, 1")
        A.I("s_lshl_b32 s32, s32, 3")
        A.I("s_and_b32 s38, s37, 7")
        A.I("s_add_u32 s32, s32, s38")
    if "map2" in dbg:
        A.I("s_lshl_b32 s33, s36, 1")
        A.I("s_lshr_b32 s38, s37, 4")
    else:
        A.I("s_lshr_b32 s33, s36, 1")
        A.I("s_lshl_b32 s33, s33, 2")
        A.I("s_lshr_b32 s38, s37, 3")
    A.I("s_add_u32 s33, s33, s38")
    import os
    rm = os.environ.get("ROTM", "full")
    if rot and rm == "full":
        A.I("s_and_b32 s26, s33, 3")
        A.I("s_mul_i32 s26, s26, 3")
        A.I("s_and_b32 s27, s32, 7")
        A.I("s_add_u32 s26, s26, s27")
        A.I("s_sub_u32 s27, s26, 10")
        A.I("s_cmp_ge_u32 s26, 10")
        A.I("s_cselect_b32 s26, s27, s26")
    elif rot and rm == "r4":
        A.I("s_add_u32 s26, s33, s32")
        A.I("s_and_b32 s26, s26, 3")
    elif rot and rm == "r2":
        A.I("s_add_u32 s26, s33, s32")
        A.I("s_and_b32 s26, s26, 1")
        A.I("s_lshl_b32 s26, s26, 1")
    elif rot and rm == "r4x2":
        A.I("s_add_u32 s26, s33, s32")
        A.I("s_and_b32 s26, s26, 3")
        A.I("s_lshl_b32 s26, s26, 1")
    else:
        A.I("s_mov_b32 s26, 0")
    A.I("v_lshrrev_b32 v1, 6, v0")
    A.I("v_and_b32 v0, 63, v0")
    A.I("v_readfirstlane_b32 s34, v1")
    A.I("s_and_b32 s35, s34, 3")
    A.I("s_cmp_ge_u32 s34, 4")
    A.wait_lg()
    if "notlb" not in dbg:
        A.I(f"s_mul_i32 s36, s32, {128*1280}")
        A.I("s_mul_i32 s37, s33, 51200")
        A.I("s_load_dword s3, s[4:5], s36")
        A.I("s_load_dword s3, s[10:11], s37")
        A.I("s_load_dword s3, s[12:13], s37")
        A.I("s_load_dword s3, s[20:21], 0")
        A.I("s_load_dword s3, s[20:21], 0xffffc")
        A.I("s_cmp_ge_u32 s34, 4")
    A.I(f"s_cbranch_scc1 L_{name}_M")

    def final_stamps(X, st):
        if stamps and "dbgst" in dbg:
            X.wait_all()
            X.I(f"s_memtime s[{74+2*st.n}:{75+2*st.n}]")
            X.I("s_memrealtime s[100:101]")
            X.wait_lg()
            X.I("s_cmp_lg_u32 s34, 0")
            X.I(f"s_cbranch_scc1 L_{name}_ds{id(X)%1000}")
            X.I("s_cmp_ge_u32 s2, 4")
            X.I(f"s_cbranch_scc1 L_{name}_ds{id(X)%1000}")
            mk_srd(X, 40, 28, 29, 256)
            X.I("s_sub_u32 s36, s100, s98")
            X.I(f"s_sub_u32 s37, s{74+2*st.n}, s72")
            X.I("v_mov_b32 v2, s36")
            X.I("v_mov_b32 v3, s37")
            X.I("s_lshl_b32 s38, s2, 4")
            X.I("v_mov_b32 v1, s38")
            X.I("buffer_store_dwordx2 v[2:3], v1, s[40:43], 0 offen offset:8")
            X.label(f"L_{name}_ds{id(X)%1000}")
            return
        if not stamps: return
        X.wait_all()
        X.I(f"s_memtime s[{74+2*st.n}:{75+2*st.n}]"); st.n += 1
        X.I("s_memrealtime s[100:101]")
        X.wait_lg()
        X.I("s_lshl_b32 s36, s2, 3")
        X.I("s_add_u32 s36, s36, s34")
        X.I("s_lshl_b32 s36, s36, 7")
        X.I("s_add_u32 s36, s36, 0x2000000")
        X.I("s_add_u32 s40, s30, s36")
        X.I("s_addc_u32 s41, s31, 0")
        X.I("s_and_b32 s41, s41, 0xffff")
        X.I("s_mov_b32 s42, 128")
        X.I("s_mov_b32 s43, 0x00020000")
        X.I("v_mov_b32 v1, 0")
        for i in range(st.n + 1):
            X.I(f"v_mov_b32 v2, s{72+2*i}")
            X.I(f"buffer_store_dword v2, v1, s[40:43], 0 offen offset:{4*i}")
        X.I("v_mov_b32 v2, s98")
        X.I("buffer_store_dword v2, v1, s[40:43], 0 offen offset:120")
        X.I("v_mov_b32 v2, s100")
        X.I("buffer_store_dword v2, v1, s[40:43], 0 offen offset:124")
    def side_issue(S, vG_, vC_, vBB, SJA, SJB, SWS, t1, t2, t3, vL, vA):
        mk_srd(S, SWS, 30, 31, STATS_OFF - W2F_OFF, None, W2F_OFF)
        S.I("s_lshl_b32 s26, s2, 2")
        S.I("s_add_u32 s26, s26, s35")
        if "nosj" in dbg: S.I("s_mov_b32 s26, 1000")
        S.I("s_lshl_b32 s27, s35, 12")
        S.I(f"s_add_u32 s27, s27, {STG_L}")
        S.I(f"v_lshlrev_b32 v{vL}, 4, v0")
        S.I(f"v_mov_b32 v{vA}, 0")
        S.I("s_mov_b32 s22, 0")
        S.I("s_mov_b32 s23, 0")
        savevm = list(S.vm)
        S.I("s_cmp_ge_u32 s26, 880")
        S.I(f"s_cbranch_scc1 L_{name}_sj0")
        S.I("s_cmp_ge_u32 s26, 480")
        S.I(f"s_cbranch_scc1 L_{name}_sjc")
        mk_srd(S, SJA, 24, 25, 1966080)
        S.I(f"s_mul_hi_u32 s36, s26, {(2**32 + 47)//48}")
        S.I("s_mul_i32 s39, s36, 48")
        S.I("s_sub_u32 s39, s26, s39")
        S.I(f"s_mul_i32 s22, s36, {4*H1F_RT}")
        S.I("s_lshl_b32 s23, s39, 10")
        S.I("s_add_u32 s22, s22, s23")
        S.I(f"s_mov_b32 s23, {H1F_RT}")
        S.I("s_mul_i32 s39, s39, 40960")
        S.I("s_lshl_b32 s36, s36, 7")
        S.I("s_add_u32 s36, s36, s39")
        S.I(f"v_lshrrev_b32 v{t1}, 3, v0")
        S.I(f"v_mul_u32_u24 v{t1}, 1280, v{t1}")
        S.I(f"v_and_b32 v{t2}, 7, v0")
        S.I(f"v_lshl_add_u32 v{t1}, v{t2}, 4, v{t1}")
        for e in range(4):
            S.I(f"s_add_u32 m0, s27, {1024*e}")
            S.I(f"buffer_load_dwordx4 v{t1}, s[{SJA}:{SJA+3}], s36 offen lds")
            if e < 3: S.I("s_add_u32 s36, s36, 10240")
        S.I(f"v_lshrrev_b32 v{t1}, 1, v{vG_}")
        S.I(f"v_lshlrev_b32 v{t1}, 11, v{t1}")
        S.I(f"v_and_b32 v{t2}, 1, v{vG_}")
        S.I(f"v_lshl_add_u32 v{t1}, v{t2}, 9, v{t1}")
        S.I(f"v_lshrrev_b32 v{t2}, 2, v{vC_}")
        S.I(f"v_lshl_add_u32 v{t1}, v{t2}, 7, v{t1}")
        S.I(f"v_and_b32 v{t2}, 3, v{vC_}")
        S.I(f"v_lshl_add_u32 v{t1}, v{t2}, 3, v{t1}")
        S.I(f"v_add_u32 v{vA}, s27, v{t1}")
        S.I(f"s_branch L_{name}_sj0")
        S.label(f"L_{name}_sjc")
        mk_srd(S, SJA, 14, 15, 819200)
        mk_srd(S, SJB, 16, 17, 819200)
        S.I("s_sub_u32 s39, s26, 480")
        S.I(f"s_mul_hi_u32 s36, s39, {(2**32 + 9)//10}")
        S.I("s_mul_i32 s22, s36, 10")
        S.I("s_sub_u32 s39, s39, s22")
        S.I(f"s_mul_i32 s22, s36, {HF_RT}")
        S.I("s_lshl_b32 s23, s39, 12")
        S.I("s_add_u32 s22, s22, s23")
        S.I(f"s_add_u32 s22, s22, {CF_OFF - W2F_OFF}")
        S.I("s_mov_b32 s23, 1024")
        S.I("s_mul_i32 s36, s36, 20480")
        S.I("s_lshl_b32 s39, s39, 7")
        S.I("s_add_u32 s36, s36, s39")
        S.I("s_add_u32 s39, s36, 10240")
        for (srd_, mo) in ((SJA, 0), (SJB, 2048)):
            S.I(f"s_add_u32 m0, s27, {mo}")
            S.I(f"buffer_load_dwordx4 v{vBB}, s[{srd_}:{srd_+3}], s36 offen lds")
            S.I(f"s_add_u32 m0, s27, {mo+1024}")
            S.I(f"buffer_load_dwordx4 v{vBB}, s[{srd_}:{srd_+3}], s39 offen lds")
        S.I(f"v_and_b32 v{t1}, 1, v{vG_}")
        S.I(f"v_lshlrev_b32 v{t1}, 11, v{t1}")
        S.I(f"v_lshl_add_u32 v{t1}, v{vC_}, 7, v{t1}")
        S.I(f"v_lshrrev_b32 v{t2}, 1, v{vG_}")
        S.I(f"v_and_b32 v{t3}, 7, v{vC_}")
        S.I(f"v_xor_b32 v{t2}, v{t2}, v{t3}")
        S.I(f"v_lshl_add_u32 v{t1}, v{t2}, 4, v{t1}")
        S.I(f"v_add_u32 v{vA}, s27, v{t1}")
        S.label(f"L_{name}_sj0")
        S.vm = savevm

    def phaseB(X, typ, stamp):
        L = f"L_{name}_{typ}"
        isG = typ == "G"
        RT = H1F_RT if isG else HF_RT
        NS = 12 if isG else 10
        D = int(os.environ.get("FDG" if isG else "FDY", "3"))
        LDF = os.environ.get("LDF", " sc1")
        ACC, STG = 16, 96
        VO = STG + 36 * D
        SA, SB0, SFL, SAGB = 40, 44, 52, 56
        PRIV = 15360
        BASE = 0 if isG else 61440 + 0
        BASE = 0 if isG else 0
        if isG: X.I("s_setprio 1")
        X.I("s_load_dwordx2 s[4:5], s[0:1], 0")
        X.I("s_load_dwordx2 s[6:7], s[0:1], 64")
        X.I("s_load_dwordx4 s[8:11], s[0:1], 104")
        X.I("s_load_dwordx2 s[24:25], s[0:1], 96")
        def signal(nyoung):
            X.I(f"s_waitcnt vmcnt({nyoung}) lgkmcnt(0)")
            X.vm = []; X.lg = []
            if not isG: X.I("v_mov_b32 v15, v254")
            cnt_add(X, 4, 5, CNT_L + (32 if isG else 44))
            cnt_add(X, 4, 5, CNT_L + 36)
            mk_srd(X, SFL, 30, 31, 8192, None, FL_OFF)
            X.I("s_cmp_lg_u32 s35, 0")
            X.I(f"s_cbranch_scc1 {L}nf")
            cnt_wait(X, f"{L}w0", 4, 5, CNT_L + (32 if isG else 44), 4)
            X.I("s_lshl_b32 s36, s32, 7")
            X.I("s_lshl_b32 s39, s33, 2")
            X.I("s_add_u32 s36, s36, s39")
            if not isG: X.I("s_add_u32 s36, s36, 2048")
            X.I("v_mov_b32 v4, s36")
            X.I(f"v_mov_b32 v5, {TAG}")
            X.I("s_mov_b64 exec, 1")
            X.I(f"buffer_store_dword v5, v4, s[{SFL}:{SFL+3}], 0 offen sc1")
            X.I("s_mov_b64 exec, -1")
            X.label(f"{L}nf")
            X.vm = []
            stamp()
        signal(0)
        X.I("s_and_b32 s36, s2, 7")
        X.I("s_lshr_b32 s37, s2, 3")
        X.I("s_and_b32 s60, s36, 3")
        X.I("s_lshl_b32 s60, s60, 3")
        X.I("s_and_b32 s38, s37, 7")
        X.I("s_add_u32 s60, s60, s38")
        X.I("s_lshr_b32 s61, s36, 2")
        X.I("s_lshl_b32 s61, s61, 2")
        X.I("s_lshr_b32 s38, s37, 3")
        X.I("s_add_u32 s61, s61, s38")
        X.I("v_lshlrev_b32 v2, 4, v0")
        X.I("v_lshrrev_b32 v1, 4, v0")
        X.I("v_and_b32 v3, 15, v0")
        for n in range(4):
            X.I(f"s_add_u32 s36, s35, {n}")
            X.I("s_and_b32 s36, s36, 3")
            X.I(f"s_mul_i32 s36, s36, {RT}")
            X.I(f"v_add_u32 v{VO+n}, s36, v2")
        for n in range(5):
            X.I(f"v_add_u32 v{VO+4+n}, {n*RT}, v2")
        X.I(f"s_mul_i32 s36, s60, {4*RT}")
        mk_srd(X, SA, 30, 31, 4 * RT, 36, H1F_OFF if isG else HF_OFF)
        X.I(f"s_mul_i32 s36, s61, {5*RT}")
        mk_srd(X, SB0, 30, 31, 5 * RT, 36, W2F_OFF if isG else CF_OFF)
        X.I(f"s_mul_i32 s63, s35, {NS*1024}")
        X.I("s_lshl_b32 s36, s60, 6")
        X.I("s_lshr_b32 s37, s35, 1")
        X.I("s_lshl_b32 s37, s37, 5")
        X.I("s_add_u32 s36, s36, s37")
        X.I("s_and_b32 s37, s35, 1")
        X.I("s_lshl_b32 s37, s37, 2")
        X.I("s_add_u32 s65, s36, s37")
        X.I("s_mul_i32 s66, s61, 160")
        X.I("s_waitcnt lgkmcnt(0)")
        X.lg = []
        EV = VO + 10
        NP = int(os.environ.get("NP", "4")) if isG else 0
        GP0, GPS = 61440, 23552
        ep = []
        if isG:
            SX, SP, SD = 48, 64 + 4, 20
            X.I(f"s_mul_i32 s62, s35, {GPS}")
            X.I(f"s_add_u32 s62, s62, {GP0}")
            X.I("s_add_u32 s67, s62, 20480")
            mk_srd(X, SX, 24, 25, 1966080)
            X.I(f"s_mul_i32 s64, s35, {12*40960}")
            X.I("s_add_u32 s64, s64, s66")
            cnt_wait(X, f"{L}p0", 4, 5, CNT_L + 40, 1)
            cnt_wait(X, f"{L}p1", 4, 5, CNT_L, 4)
            for e in range(5):
                X.I(f"v_add_u32 v4, {64*e}, v0")
                X.I("v_mul_u32_u24 v5, 6554, v4")
                X.I("v_lshrrev_b32 v5, 16, v5")
                X.I("v_mul_u32_u24 v6, 10, v5")
                X.I("v_sub_u32 v4, v4, v6")
                X.I("v_mul_u32_u24 v5, 1280, v5")
                X.I("v_lshl_add_u32 v4, v4, 4, v5")
                for q in range(NP):
                    X.I(f"s_add_u32 s36, s64, {40960*(q+12-NP)}")
                    X.I(f"s_add_u32 m0, s62, {5120*q+1024*e}")
                    X.I(f"buffer_load_dwordx4 v4, s[{SX}:{SX+3}], s36 offen lds")
            X.I("v_lshrrev_b32 v4, 1, v1")
            X.I("v_lshlrev_b32 v4, 4, v4")
            X.I("v_and_b32 v5, 1, v1")
            X.I("v_lshl_add_u32 v4, v5, 2, v4")
            X.I("v_lshrrev_b32 v5, 2, v3")
            X.I("v_add_u32 v4, v4, v5")
            X.I("v_mul_u32_u24 v4, 160, v4")
            X.I("v_and_b32 v5, 3, v3")
            X.I("v_lshl_add_u32 v4, v5, 3, v4")
            X.I(f"v_add_u32 v{EV+3}, s62, v4")
            mk_srd(X, SX, 4, 5, 2621440)
            mk_srd(X, SP, 8, 9, 1280)
            mk_srd(X, SD, 6, 7, 1280)
            X.I("s_mul_i32 s64, s65, 1280")
            X.I("s_add_u32 s64, s64, s66")
            for e in range(3):
                X.I(f"v_add_u32 v4, {64*e}, v0")
                X.I("v_min_u32 v4, 159, v4")
                X.I("v_mul_u32_u24 v5, 6554, v4")
                X.I("v_lshrrev_b32 v5, 16, v5")
                X.I("v_mul_u32_u24 v6, 10, v5")
                X.I("v_sub_u32 v4, v4, v6")
                X.I("v_lshrrev_b32 v6, 2, v5")
                X.I("v_lshl_add_u32 v5, v6, 2, v5")
                X.I("v_mul_u32_u24 v5, 1280, v5")
                X.I(f"v_lshl_add_u32 v{8+e}, v4, 4, v5")
                if e == 2: X.I("s_mov_b64 exec, 0xffffffff")
                X.I(f"s_add_u32 m0, s67, {1024*e}")
                X.I(f"buffer_load_dwordx4 v{8+e}, s[{SX}:{SX+3}], s64 offen lds")
                if e == 2: X.I("s_mov_b64 exec, -1")
            X.I("v_lshlrev_b32 v11, 2, v0")
            X.I("v_min_u32 v11, 156, v11")
            X.I("s_mov_b32 exec_hi, 0xff")
            X.I("s_add_u32 m0, s67, 2560")
            X.I(f"buffer_load_dword v11, s[{SP}:{SP+3}], s66 offen lds")
            X.I("s_add_u32 m0, s67, 2720")
            X.I(f"buffer_load_dword v11, s[{SD}:{SD+3}], s66 offen lds")
            X.I("s_mov_b64 exec, -1")
        RC = CNT_L + (80 if isG else 84)
        X.I("s_cmp_lg_u32 s35, 0")
        X.I(f"s_cbranch_scc1 {L}pw")
        X.I(f"s_mul_i32 s36, s33, {AGG_G}")
        mk_srd(X, SAGB, 30, 31, AGG_G, 36, AGG_OFF)
        X.I("s_lshl_b32 s36, s32, 7")
        X.I(f"s_add_u32 s36, s36, {GO_O}")
        X.I("v_mov_b32 v4, s36")
        X.I("s_mov_b32 s39, 0")
        if not isG: X.I("v_mov_b32 v7, 0") if False else None
        X.label(f"{L}go")
        X.I(f"v_readfirstlane_b32 s36, v{7 if isG else 15}")
        X.I("s_add_u32 s39, s39, 1")
        X.I(f"s_cmp_eq_u32 s36, {TAG}")
        X.I(f"s_cbranch_scc1 {L}god")
        X.I(f"buffer_load_dword v{7 if isG else 15}, v4, s[{SAGB}:{SAGB+3}], 0 offen sc1")
        X.I("s_waitcnt vmcnt(0)")
        X.I("s_cmp_lt_u32 s39, 0x100000")
        X.I(f"s_cbranch_scc1 {L}go")
        X.label(f"{L}god")
        X.I(f"v_mov_b32 v6, {TAG}")
        X.I("s_lshr_b32 s36, s60, 1")
        X.I("s_lshl_b32 s36, s36, 7")
        if not isG: X.I("s_add_u32 s36, s36, 2048")
        X.I("v_lshlrev_b32 v4, 2, v3")
        X.I("v_add_u32 v4, s36, v4")
        X.I("s_lshl_b32 s36, s61, 7")
        X.I("s_add_u32 s36, s36, 4096")
        X.I("v_lshlrev_b32 v5, 2, v0")
        X.I("v_add_u32 v5, s36, v5")
        X.I("v_cmp_gt_u32 vcc, 32, v0")
        X.I("v_cndmask_b32 v4, v4, v5, vcc")
        X.I("s_mov_b32 s39, 0")
        X.label(f"{L}fl")
        X.I(f"buffer_load_dword v5, v4, s[{SFL}:{SFL+3}], 0 offen sc1")
        X.I("s_waitcnt vmcnt(0)")
        X.I("v_cmp_eq_u32 vcc, v5, v6")
        X.I("s_add_u32 s39, s39, 1")
        X.I("s_cmp_eq_u64 vcc, -1")
        X.I(f"s_cbranch_scc1 {L}fld")
        X.I("s_sleep 2")
        X.I("s_cmp_lt_u32 s39, 0x100000")
        X.I(f"s_cbranch_scc1 {L}fl")
        X.label(f"{L}fld")
        if LDF == "":
            X.raw("    buffer_inv sc1")
            X.I("s_waitcnt vmcnt(0)")
        cnt_add(X, 4, 5, RC)
        X.label(f"{L}pw")
        cnt_wait(X, f"{L}pwl", 4, 5, RC, 1)
        X.vm = []
        stamp()
        def stage(s): return STG + (s % D) * 36
        def issue(s):
            b = stage(s)
            Lx = []
            for n in range(4):
                Lx.append([(f"buffer_load_dwordx4 {vr(b+4*n,4)}, v{VO+n}, s[{SA}:{SA+3}], s63 offen offset:{(s%4)*1024}{LDF}", f"st{s}")])
            for n in range(5):
                if s >= NS - NP:
                    Lx.append([(f"ds_read_b64_tr_b16 {vr(b+16+4*n+2*e,2)}, v{EV+3} offset:{5120*(s-NS+NP)+1280*e+32*n}", f"lr{s}") for e in range(2)])
                else:
                    Lx.append([(f"buffer_load_dwordx4 {vr(b+16+4*n,4)}, v{VO+4+n}, s[{SB0}:{SB0+3}], s63 offen offset:{(s%4)*1024}{LDF}", f"st{s}")])
            if s % 4 == 3: Lx[-1].append(("s_add_u32 s63, s63, 4096", None))
            return Lx
        if not isG: X.I("s_setprio 0")
        for s in range(D - 1): emit(X, issue(s))
        if isG:
            mk_srd(X, SAGB, 30, 31, 16384, None, STATS_OFF)
            X.I("s_lshl_b32 s38, s65, 2")
            X.I("v_lshrrev_b32 v4, 2, v3")
            X.I("v_lshl_add_u32 v4, v4, 2, v3")
            X.I("v_lshlrev_b32 v4, 2, v4")
            X.I("v_add_u32 v5, 8192, v4")
            X.I(f"buffer_load_dword v{EV}, v4, s[{SAGB}:{SAGB+3}], s38 offen sc1", tag="ep")
            X.I(f"buffer_load_dword v{EV+1}, v5, s[{SAGB}:{SAGB+3}], s38 offen sc1", tag="ep")
        DB = GP0 if isG else 0
        if isG: PRIV = GPS
        else: X.I(f"s_mul_i32 s62, s35, {PRIV}")
        DW = EV + 2
        X.I(f"v_add_u32 v{DW}, s62, v2")
        for s in range(NS):
            X.wait_vm(f"st{s}")
            X.wait_lg(f"lr{s}")
            b = stage(s)
            side = issue(s + D - 1) if s + D - 1 < NS else []
            if s == NP + 1: side = side + ep
            mm = []
            order = [1, 2, 3, 0] if s == NS - 1 else range(4)
            for n in order:
                for dt in range(5):
                    ac = vr(ACC + (n * 5 + dt) * 4, 4)
                    mm.append(f"v_mfma_f32_16x16x32_bf16 {ac}, {vr(b+16+4*dt,4)}, {vr(b+4*n,4)}, {'0' if s == 0 else ac}")
            if s == NS - 1:
                cnt_wait(X, f"{L}w1", 4, 5, CNT_L + 36, 8)
                for k, m in enumerate(mm):
                    X.I(m)
                    j = k - 7
                    if 0 <= j < 15: X.I(f"ds_write_b128 v{DW}, {vr(ACC+20+4*j,4)} offset:{1024*j}")
                for j in (13, 14): X.I(f"ds_write_b128 v{DW}, {vr(ACC+20+4*j,4)} offset:{1024*j}")
            else:
                merge(X, mm, side, 0.9)
        stamp()
        cnt_add(X, 4, 5, CNT_L + (48 if isG else 56))
        for k in range(1, 4):
            X.I(f"s_add_u32 s36, s35, {k}")
            X.I("s_and_b32 s36, s36, 3")
            X.I(f"s_mul_i32 s36, s36, {PRIV}")
            X.I(f"s_add_u32 s36, s36, {DB + (3 - k) * 5120}")
            X.I(f"v_add_u32 v{6+k}, s36, v2")
        cnt_wait(X, f"{L}w2", 4, 5, CNT_L + (48 if isG else 56), 4)
        RD = STG
        for dt in range(5):
            for k in range(3):
                X.I(f"ds_read_b128 {vr(RD+(dt*3+k)*4,4)}, v{7+k} offset:{1024*dt}", tag=f"p{dt}")
        if isG:
            T = ACC + 20; BS = ACC + 40; DS_ = ACC + 60
            X.I("v_lshlrev_b32 v10, 3, v1")
            X.I("v_add_u32 v10, s67, v10")
            X.I("v_mul_u32_u24 v11, 160, v3")
            X.I("v_add_u32 v11, v11, v10")
            for dt in range(5):
                X.I(f"ds_read_b64 {vr(T+4*dt+2,2)}, v10 offset:{2560+32*dt}", tag="e")
                X.I(f"ds_read_b64 {vr(DS_+4*dt+2,2)}, v10 offset:{2720+32*dt}", tag="e")
                X.I(f"ds_read_b64 {vr(BS+4*dt+2,2)}, v11 offset:{32*dt}", tag="e")
        for dt in range(5):
            X.wait_lg(f"p{dt}")
            a = ACC + 4 * dt; r0 = RD + dt * 12
            for r in range(4): X.I(f"v_add_f32 v{a+r}, v{a+r}, v{r0+r}")
            for r in range(4): X.I(f"v_add_f32 v{r0+4+r}, v{r0+4+r}, v{r0+8+r}")
            for r in range(4): X.I(f"v_add_f32 v{a+r}, v{a+r}, v{r0+4+r}")
        if isG:
            X.wait_lg()
            cnt_add(X, 4, 5, CNT_L + 52)
            X.I("s_mov_b32 s36, 0xffff0000")
            X.I(f"s_mov_b32 s37, {NEG_LOG2E}")
            for q in [T + 4 * dt for dt in range(5)] + [BS + 4 * dt for dt in range(5)] + [DS_ + 4 * dt for dt in range(5)]:
                X.I(f"v_lshlrev_b32 v{q}, 16, v{q+2}")
                X.I(f"v_and_b32 v{q+1}, s36, v{q+2}")
                X.I(f"v_lshlrev_b32 v{q+2}, 16, v{q+3}")
                X.I(f"v_and_b32 v{q+3}, s36, v{q+3}")
            for e in range(20): X.I(f"v_add_f32 v{ACC+e}, v{ACC+e}, v{T+e}")
            for e in range(20): X.I(f"v_mul_f32 v{T+e}, s37, v{ACC+e}")
            for e in range(20): X.I(f"v_exp_f32 v{T+e}, v{T+e}")
            for e in range(20): X.I(f"v_add_f32 v{T+e}, 1.0, v{T+e}")
            for e in range(20): X.I(f"v_rcp_f32 v{T+e}, v{T+e}")
            for e in range(20): X.I(f"v_mul_f32 v{ACC+e}, v{ACC+e}, v{T+e}")
            for e in range(20): X.I(f"v_fma_f32 v{T+e}, v{BS+e}, v{EV+1}, -v{EV}")
            for e in range(20): X.I(f"v_mul_f32 v{DS_+e}, v{DS_+e}, v{ACC+e}")
            for e in range(20): X.I(f"v_fmac_f32 v{BS+e}, v{T+e}, v{DS_+e}")
            cnt_wait(X, f"{L}w3", 4, 5, CNT_L + 52, 4)
            for dt in range(5):
                X.I(f"ds_write_b128 v{DW}, {vr(ACC+4*dt,4)} offset:{1024*dt}")
                X.I(f"ds_write_b128 v{DW}, {vr(BS+4*dt,4)} offset:{5120+1024*dt}")
            X.I("s_lshl_b32 s38, s35, 2")
            X.I(f"s_add_u32 s38, s38, {CNT_L+64}")
            cnt_add(X, 4, 5, "s38")
            X.wait_lg()
        else:
            SO = 48
            mk_srd(X, SO, 10, 11, 5242880)
            X.I("v_lshrrev_b32 v4, 2, v3")
            X.I("v_lshl_add_u32 v4, v4, 2, v3")
            X.I("v_add_u32 v4, s65, v4")
            X.I("v_mul_u32_u24 v10, 2560, v4")
            X.I("v_lshl_add_u32 v10, v1, 4, v10")
            X.I("s_lshl_b32 s66, s66, 1")
            X.I(f"s_mul_i32 s67, s35, {GPS}")
            X.I(f"s_add_u32 s67, s67, {GP0}")
            X.I("v_add_u32 v11, s67, v2")
            X.I("s_lshl_b32 s38, s35, 2")
            X.I(f"s_add_u32 s38, s38, {CNT_L+64}")
            cnt_wait(X, f"{L}w3", 4, 5, "s38", 1)
            GQ = ACC + 20; BQ = ACC + 40
            for dt in range(5):
                X.I(f"ds_read_b128 {vr(GQ+4*dt,4)}, v11 offset:{1024*dt}", tag=f"g{dt}")
                X.I(f"ds_read_b128 {vr(BQ+4*dt,4)}, v11 offset:{5120+1024*dt}", tag=f"g{dt}")
            if "coal" in dbg:
                X.I("v_mul_u32_u24 v12, 320, v3")
                X.I("v_lshl_add_u32 v12, v1, 4, v12")
                X.I("v_add_u32 v12, s67, v12")
                OVO = RD
                for e in range(5):
                    X.I(f"v_add_u32 v4, {64*e}, v0")
                    X.I("v_mul_u32_u24 v5, 3277, v4")
                    X.I("v_lshrrev_b32 v5, 16, v5")
                    X.I("v_mul_u32_u24 v6, 20, v5")
                    X.I("v_sub_u32 v4, v4, v6")
                    X.I("v_lshrrev_b32 v6, 2, v5")
                    X.I("v_lshl_add_u32 v5, v6, 2, v5")
                    X.I("v_add_u32 v5, s65, v5")
                    X.I("v_mul_u32_u24 v5, 2560, v5")
                    X.I(f"v_lshl_add_u32 v{OVO+e}, v4, 4, v5")
            for dt in range(5):
                X.wait_lg(f"g{dt}")
                for r in range(4): X.I(f"v_fmac_f32 v{BQ+4*dt+r}, v{ACC+4*dt+r}, v{GQ+4*dt+r}")
                if "coal" in dbg:
                    X.I(f"ds_write_b128 v12, {vr(BQ+4*dt,4)} offset:{10240+64*dt}")
                else:
                    X.I(f"buffer_store_dwordx4 {vr(BQ+4*dt,4)}, v10, s[{SO}:{SO+3}], s66 offen offset:{64*dt}{os.environ.get('STF2','')}")
            if "coal" in dbg:
                for e in range(5):
                    X.I(f"ds_read_b128 {vr(GQ+4*e,4)}, v11 offset:{10240+1024*e}", tag=f"o{e}")
                for e in range(5):
                    X.wait_lg(f"o{e}")
                    X.I(f"buffer_store_dwordx4 {vr(GQ+4*e,4)}, v{OVO+e}, s[{SO}:{SO+3}], s66 offen{os.environ.get('STF2','')}")
    def adv():
        return [("s_add_u32 s26, s26, 1", None), ("s_cmp_eq_u32 s26, 10", None), ("s_cselect_b32 s26, 0, s26", None)]

    S = Stream(A)
    stamp, st = mkstamp(S)
    ACC = 16
    BUF = 56
    CA, CSB, CCO, CCX, CAS, CSBS = 168, 173, 178, 183, 188, 193
    A8, SB8, A128, SB128 = 198, 200, 202, 204
    SUM, SQ, ONE = 206, 214, 222
    MRV, RV = 226, 234
    DV = 246
    vG_, vC_, vSg = 1, 2, 3
    SX, SBBS = 40, 44
    if "early" in dbg: stamp()
    S.I(f"s_mul_i32 s36, s32, {128*1280}")
    mk_srd(S, SX, 4, 5, 128 * 1280, 36)
    S.I("v_lshrrev_b32 v4, 3, v0")
    S.I("v_and_b32 v5, 7, v0")
    S.I("v_and_b32 v6, 2, v4")
    S.I("v_lshrrev_b32 v7, 2, v4")
    S.I("v_or_b32 v6, v6, v7")
    S.I("v_xor_b32 v6, v6, v5")
    S.I("s_mul_i32 s36, s35, 40960")
    S.I("v_mul_u32_u24 v7, 1280, v4")
    S.I("v_add_u32 v8, s36, v7")
    for e in range(4):
        S.I(f"v_xor_b32 v9, {4 if e >= 2 else 0}, v6")
        S.I(f"v_lshl_add_u32 v{DV+e}, v9, 4, v8")
        if e: S.I(f"v_add_u32 v{DV+e}, {10240*e}, v{DV+e}")
    S.I("v_xor_b32 v9, v4, v5")
    S.I(f"v_lshl_add_u32 v{DV+4}, v9, 4, v7")
    S.I("s_lshl_b32 s37, s35, 12")
    S.I("s_mov_b32 s36, s35")
    bb_srd(S, SBBS, 27)
    def s_dma(p):
        q = p % 4
        L = []
        for e in range(4):
            g = [(f"s_add_u32 m0, s37, {q*SLOT + 1024*e}", None), (f"buffer_load_dwordx4 v{DV+e}, s[{SX}:{SX+3}], s38 offen lds", f"c{p}")]
            if e == 0: g = [("s_lshl_b32 s38, s26, 7", None)] + g
            L.append(g)
        L.append([(f"s_add_u32 m0, s27, {q*SLOT}", None), (f"buffer_load_dwordx4 v{DV+4}, s[{SBBS}:{SBBS+3}], s38 offen lds", f"c{p}")] + adv())
        return L
    S.I(f"v_lshrrev_b32 v{vG_}, 4, v0")
    S.I(f"v_and_b32 v{vC_}, 15, v0")
    if "early" in dbg: stamp()
    emit(S, s_dma(0))
    if "early" in dbg: stamp()
    def pslots(t):
        return (CCO + t, CCX + t, CAS + t) if t < 5 else (A128, SB128, A128 + 1)
    def par_issue():
        S.I("v_and_b32 v11, 7, v0")
        S.I("v_lshlrev_b32 v11, 1, v11")
        S.I(f"v_add_u32 v11, {PAR_L}, v11")
        S.I(f"v_lshlrev_b32 v12, 4, v{vG_}")
        S.I("v_add_u32 v12, v11, v12")
        for t in range(6):
            vo = "v11" if t < 5 else "v12"
            off = 16 * t if t < 5 else 0
            lre, lim, ldt = pslots(t)
            S.I(f"ds_read_u16 v{lre}, {vo} offset:{off}")
            S.I(f"ds_read_u16 v{lim}, {vo} offset:{off+128}")
            S.I(f"ds_read_u16 v{ldt}, {vo} offset:{off+256}")
    SJA, SJB, SWS = 56, 60, 64
    TT = BUF + 48
    S.I(f"v_lshrrev_b32 v{TT}, 2, v{vC_}")
    S.I(f"v_and_b32 v{TT+1}, 3, v{vC_}")
    S.I(f"v_lshlrev_b32 v{TT+2}, 3, v{TT}")
    S.I(f"v_add_u32 v{TT+2}, v{TT+2}, v{TT+1}")
    S.I("s_lshl_b32 s36, s35, 5")
    S.I(f"v_add_u32 v{TT+2}, s36, v{TT+2}")
    S.I(f"v_lshlrev_b32 v{TT+2}, 7, v{TT+2}")
    S.I(f"v_lshrrev_b32 v{TT+3}, 1, v{TT}")
    S.I(f"v_lshlrev_b32 v{TT+3}, 2, v{TT+3}")
    S.I(f"v_and_b32 v{TT+4}, 2, v{TT+1}")
    S.I(f"v_or_b32 v{TT+3}, v{TT+3}, v{TT+4}")
    S.I(f"v_xor_b32 v{TT+3}, v{TT+3}, v{vG_}")
    for T in range(2):
        for sp in range(2):
            d = 4 + 2 * T + sp
            S.I(f"v_xor_b32 v{TT+4}, {(4*sp) ^ T}, v{TT+3}")
            S.I(f"v_lshl_add_u32 v{d}, v{TT+4}, 4, v{TT+2}")
            if T: S.I(f"v_add_u32 v{d}, 512, v{d}")
    S.I(f"v_and_b32 v{TT}, 7, v{vC_}")
    S.I(f"v_xor_b32 v{TT}, v{TT}, v{vG_}")
    S.I(f"v_lshlrev_b32 v{TT+1}, 7, v{vC_}")
    for sp in range(2):
        S.I(f"v_xor_b32 v{TT+2}, {4*sp}, v{TT}")
        S.I(f"v_lshl_add_u32 v{8+sp}, v{TT+2}, 4, v{TT+1}")
        S.I(f"v_add_u32 v{8+sp}, {BB_O}, v{8+sp}")
    for k in range(4): S.I(f"v_mov_b32 v{ONE+k}, 0x3f803f80")
    S.I(f"v_mul_u32_u24 v10, 80, v{vG_}")
    S.I(f"v_lshrrev_b32 v{vSg}, 3, v{vC_}")
    S.I(f"v_cvt_f32_u32 v{vSg}, v{vSg}")
    S.I(f"v_fma_f32 v{vSg}, v{vSg}, 2.0, -1.0")
    S.I(f"s_mov_b32 s20, {LOG2E}")
    S.I(f"s_mov_b32 s21, {INV2PI}")
    def powr(ar, rev, n, da, dsb, t0):
        L = []
        if n is None:
            L.append(f"v_exp_f32 v{t0}, v{ar}")
            L.append(f"v_fract_f32 v{t0+1}, v{rev}")
        else:
            L.append(f"v_mul_f32 v{t0}, {n}, v{ar}")
            L.append(f"v_mul_f32 v{t0+1}, {n}, v{rev}")
            L.append(f"v_exp_f32 v{t0}, v{t0}")
            L.append(f"v_fract_f32 v{t0+1}, v{t0+1}")
        L.append(f"v_cos_f32 v{t0+2}, v{t0+1}")
        L.append(f"v_sin_f32 v{t0+3}, v{t0+1}")
        L.append(f"v_mul_f32 v{t0+3}, v{t0}, v{t0+3}")
        L.append(f"v_mul_f32 v{da}, v{t0}, v{t0+2}")
        L.append(f"v_mul_f32 v{dsb}, v{t0+3}, v{vSg}")
        return L
    def arrev(t):
        return (CAS + t, CSBS + t) if t < 5 else (A128, SB128)
    partA = ["s_lshl_b32 s36, s35, 2", f"v_add_u32 v245, s36, v{vG_}", "v_lshlrev_b32 v245, 3, v245", "v_cvt_f32_u32 v245, v245"]
    for t in range(6):
        lre, lim, ldt = pslots(t)
        ar, rev = 242, 243
        partA += [f"v_lshlrev_b32 v{lre}, 16, v{lre}", f"v_lshlrev_b32 v{lim}, 16, v{lim}", f"v_lshlrev_b32 v11, 16, v{ldt}",
                  "v_mul_f32 v11, s20, v11", "v_exp_f32 v11, v11", "v_cvt_pk_bf16_f32 v11, 0, v11",
                  f"v_mul_f32 v12, v11, v{lre}", f"v_mul_f32 v13, v11, v{lim}",
                  f"v_mul_f32 v{ar}, s20, v12", f"v_mul_f32 v{rev}, s21, v13"]
        if t < 5:
            partA += powr(ar, rev, None, CA + t, CSB + t, 11)
            partA += [f"v_add_f32 v11, -1.0, v{CA+t}", f"v_mul_f32 v12, v{lre}, v{lre}", f"v_fmac_f32 v12, v{lim}, v{lim}",
                      "v_rcp_f32 v12, v12", f"v_mul_f32 v13, v11, v{lre}", f"v_fmac_f32 v13, v14, v{lim}",
                      f"v_mul_f32 v244, v14, v{lre}", f"v_fma_f32 v244, -v11, v{lim}, v244", "v_mul_f32 v12, -2.0, v12",
                      f"v_mul_f32 v{CCX+t}, v244, v12", "v_mul_f32 v13, v13, v12", f"v_mul_f32 v{CCO+t}, v13, v{vSg}"]
            partA += powr(ar, rev, "v245", CAS + t, CSBS + t, 11)
        if t >= 4:
            k = 1 if t == 4 else 0
            partA += powr(ar, rev, f"{f2u(8.0)}", A8 + k, SB8 + k, 11)
            partA += powr(ar, rev, f"{f2u(128.0)}", 254 if t == 4 else A128, 255 if t == 4 else SB128, 11)
    partA += [f"v_mov_b32 v{A128+1}, v254", f"v_mov_b32 v{SB128+1}, v255"]
    SAG, SST = 48, 52
    S.I(f"s_mul_i32 s36, s33, {AGG_G}")
    mk_srd(S, SAG, 30, 31, AGG_G, 36, AGG_OFF)
    emit(S, s_dma(1))
    S.raw(";;DRYPT")
    stamp()
    def s_reads(p):
        b = BUF + (p & 1) * 56
        L = []
        for sp in range(2):
            for T in range(2):
                L.append([(f"ds_read_b128 {vr(b+(sp*2+T)*4,4)}, v{4+2*T+sp}", f"r{p}")])
            for j in range(5):
                L.append([(f"ds_read_b128 {vr(b+16+(sp*5+j)*4,4)}, v{8+sp} offset:{2048*j}", f"r{p}")])
        delta = SLOT if p % 4 != 3 else (-3 * SLOT) & 0xffffffff
        L.append([(f"v_add_u32 v{k}, {delta}, v{k}", None) for k in range(4, 10)])
        return L
    def s_stat(p):
        b = BUF + (p & 1) * 56
        L = []
        for sp in range(2):
            for T in range(2):
                x = vr(b + (sp * 2 + T) * 4, 4)
                z = (p == 0 and sp == 0)
                L.append(f"v_mfma_f32_16x16x32_bf16 {vr(SUM+4*T,4)}, {x}, {vr(ONE,4)}, {'0' if z else vr(SUM+4*T,4)}")
                L.append(f"v_mfma_f32_16x16x32_bf16 {vr(SQ+4*T,4)}, {x}, {x}, {'0' if z else vr(SQ+4*T,4)}")
        return L
    def s_mfma(p):
        b = BUF + (p & 1) * 56
        L = []
        for sp in range(2):
            for j in range(5):
                for T in range(2):
                    ac = ACC + 8 * j + 4 * T
                    c = "0" if (p == 0 and sp == 0) else vr(ac, 4)
                    L.append(f"v_mfma_f32_16x16x32_bf16 {vr(ac,4)}, {vr(b+(sp*2+T)*4,4)}, {vr(b+16+(sp*5+j)*4,4)}, {c}")
        return L
    for p in range(10):
        S.wait_vm(f"c{p}")
        S.I("s_barrier")
        stamp(True)
        if p in (0, 9): stamp()
        side = s_dma(p + 3) if p + 3 <= 9 else []
        if p == 0: side = s_dma(2)
        if p == 1: side = s_dma(3) + side
        rd = s_reads(p)
        if p == 2:
            par_issue()
        fill = []
        if 3 <= p <= 8:
            nper = (len(partA) + 5) // 6
            fill = [[(m, None)] for m in partA[(p - 3) * nper:(p - 2) * nper]]
        if p == 9:
            fill += [[("s_lshl_b32 s36, s32, 7", None), (f"s_add_u32 s36, s36, {GO_O}", None), ("v_mov_b32 v15, s36", None),
                      (f"buffer_load_dword v15, v15, s[{SAG}:{SAG+3}], 0 offen sc1", "clr")]]
        if "dmaonly" in dbg: emit(S, side)
        elif p == 0: emit(S, rd + side + fill)
        else: merge(S, s_stat(p - 1) + s_mfma(p - 1), mix(mix(rd, side), fill), 0.9)
        S.wait_lg()
    S.raw(";;DRYSTART")
    if "fine" in dbg: stamp()
    for m in s_stat(9): S.I(m)
    mm = s_mfma(9)
    CSV = BUF + 16
    S.I(f"v_lshlrev_b32 v12, 2, v{vC_}")
    for m in mm[:5]: S.I(m)
    for T in range(2):
        for r in range(4):
            S.I(f"ds_bpermute_b32 v{SQ+4*T+r}, v10, v{SQ+4*T+r} offset:{4*r}", tag="bp")
    for m in mm[5:9]: S.I(m)
    S.wait_lg("bp")
    if "fine" in dbg: stamp()
    fin = []
    K640 = f2u(1.0 / 640)
    for step in range(12):
        for k in range(8):
            su, sq = SUM + k, SQ + k
            fin.append([
                f"v_mul_f32 v{su}, {K640}, v{su}",
                f"v_mul_f32 v{sq}, {K640}, v{sq}",
                f"v_fma_f32 v{sq}, -v{su}, v{su}, v{sq}",
                f"v_max_f32 v{sq}, 0, v{sq}",
                f"v_cvt_pk_bf16_f32 v{su}, 0, v{su}",
                f"v_cvt_pk_bf16_f32 v{sq}, 0, v{sq}",
                f"v_add_f32 v{sq}, {f2u(1e-5)}, v{sq}",
                f"v_cvt_pk_bf16_f32 v{sq}, 0, v{sq}",
                f"v_sqrt_f32 v{sq}, v{sq}",
                f"v_cvt_pk_bf16_f32 v{sq}, 0, v{sq}",
                f"v_rcp_f32 v{RV+k}, v{sq}",
                f"v_mul_f32 v{MRV+k}, v{su}, v{RV+k}"][step])
    adds = ["s_lshl_b32 s36, s35, 7", f"v_lshlrev_b32 v13, 5, v{vG_}", "v_add_u32 v13, s36, v13", f"v_add_u32 v14, {STATS_L}, v13",
             "s_mul_i32 s36, s35, 1280", f"v_mul_u32_u24 v6, 320, v{vG_}", "v_add3_u32 v6, v6, v12, s36", f"v_add_u32 v7, {SEG_L}, v6",
             "v_lshlrev_b32 v8, 2, v0", f"v_add_u32 v9, {SEG_L}, v8", "v_mov_b32 v10, v12", f"v_add_u32 v11, {SEG_L+256}, v10",
             "s_lshl_b32 s38, s35, 2", f"s_add_u32 s38, s38, {CNT_L+16}", f"v_add_u32 v13, {CSB_L}, v12"]
    fin = fin[:40] + adds + fin[40:]
    merge(S, mm[9:], [[(m, None)] for m in fin], 1.0)
    stamp()
    cnt_wait(S, f"L_{name}_e0", 4, 5, CNT_L + 4, 4)
    S.I("s_setprio 3" if "sprio" in dbg else "s_setprio 2")
    if "f2" in dbg: stamp()
    for wv in range(4):
        for j in range(5):
            S.I(f"ds_read_b32 v{CSV+5*wv+j}, v13 offset:{320*wv+64*j}", tag="stt")
    S.I("s_mov_b32 exec_lo, 0x00010001")
    S.I("s_mov_b32 exec_hi, 0x00010001")
    for k in range(2):
        S.I(f"ds_write_b128 v14, {vr(MRV+4*k,4)} offset:{16*k}")
        S.I(f"ds_write_b128 v14, {vr(RV+4*k,4)} offset:{512+16*k}")
    cnt_add(S, 4, 5, "s38")
    for t2 in range(4):
        for j in range(5):
            a = ACC + 8 * j + 2 * t2
            S.I(f"v_mul_f32 v{a}, v{a}, v{RV+2*t2}")
            S.I(f"v_mul_f32 v{a+1}, v{a+1}, v{RV+2*t2+1}")
    S.wait_lg("stt")
    if "f2" in dbg: stamp()
    for j in range(5):
        S.I(f"v_add_f32 v{CSV+j}, v{CSV+j}, v{CSV+5+j}")
        S.I(f"v_add_f32 v{CSV+10+j}, v{CSV+10+j}, v{CSV+15+j}")
    for j in range(5):
        S.I(f"v_add_f32 v{CSV+j}, v{CSV+j}, v{CSV+10+j}")
    EA, EB = BUF + 40, BUF + 45
    cur = None
    for tl in range(8):
        for j in range(5):
            a = ACC + 8 * j + tl
            S.I(f"v_fma_f32 v{a}, -v{MRV+tl}, v{CSV+j}, v{a}")
        if tl == 0:
            cur = [ACC + 8 * j for j in range(5)]
        else:
            dst = EA if tl & 1 else EB
            for j in range(5):
                S.I(f"v_fma_f32 v{dst+j}, v{CA+j}, v{cur[j]}, v{ACC+8*j+tl}")
            for j in range(5):
                S.I(f"v_fmac_f32_dpp v{dst+j}, v{cur[j]}, v{CSB+j} {DPP}")
            cur = [dst + j for j in range(5)]
    if "f2" in dbg: stamp()
    for j in range(5):
        S.I(f"ds_write_b32 v7, v{cur[j]} offset:{64*j}")
    cnt_add(S, 4, 5, CNT_L)
    S.I("s_waitcnt vmcnt(0)")
    S.vm = []
    if "f2" in dbg: stamp()
    cnt_wait(S, f"L_{name}_x1", 4, 5, CNT_L, 4)
    stamp()
    EC = BUF + 56
    for s_ in range(16):
        S.I(f"ds_read_b32 v{EC+s_}, v9 offset:{320*s_}", tag=f"e{s_}")
        S.I(f"ds_read_b32 v{EC+16+s_}, v11 offset:{320*s_}", tag=f"e{s_}")
    S.I("v_lshlrev_b32 v4, 3, v0")
    S.I(f"v_lshlrev_b32 v5, 3, v{vC_}")
    PB = BUF + 90
    S.I(f"v_mov_b32 v{PB+1}, {TAG}")
    S.I(f"v_mov_b32 v{PB+3}, {TAG}")
    S.I("s_add_u32 s37, s32, 15")
    S.I("s_mul_i32 s37, s37, 640")
    for s_ in range(1, 16):
        S.wait_lg(f"e{s_}")
        for k in range(2):
            S.I(f"v_fmac_f32 v{EC+16*k+s_}, v{A8+k}, v{EC+16*k+s_-1}")
        for k in range(2):
            S.I(f"v_fmac_f32_dpp v{EC+16*k+s_}, v{EC+16*k+s_-1}, v{SB8+k} {DPP}")
    S.I("s_cmp_lg_u32 s35, 0")
    S.I(f"s_cbranch_scc1 L_{name}_nopub")
    S.I(f"v_mov_b32 v{PB}, v{EC+15}")
    S.I(f"v_mov_b32 v{PB+2}, v{EC+31}")
    S.I(f"buffer_store_dwordx2 {vr(PB,2)}, v4, s[{SAG}:{SAG+3}], s37 offen sc1")
    S.vm.pop()
    S.I(f"buffer_store_dwordx2 {vr(PB+2,2)}, v5, s[{SAG}:{SAG+3}], s37 offen offset:512 sc1")
    S.vm.pop()
    S.label(f"L_{name}_nopub")
    S.I("v_mov_b32 v254, v15")
    stamp()
    GL = BUF
    G0, G1 = 206, 221
    QV = BUF + 96
    S.I("v_lshlrev_b32 v252, 4, v0")
    S.I("s_mul_i32 s70, s32, 640")
    S.I("s_add_u32 s71, s70, 4096")
    S.I("s_add_u32 s69, s70, 8192")
    def gran_issue():
        for n in range(10):
            so = "s70" if n < 4 else ("s71" if n < 8 else "s69")
            S.I(f"buffer_load_dwordx4 {vr(GL+4*n,4)}, v252, s[{SAG}:{SAG+3}], {so} offen offset:{(n%4)*1024} sc1")
        S.vm = []
    def qstuff():
        S.I(f"v_add_u32 v9, {Q_L}, v8")
        S.I(f"v_add_u32 v11, {Q_L+256}, v10")
        S.I(f"v_mov_b32 v{PB}, 0")
        S.I(f"ds_write_b32 v9, v{PB}", tag="q")
        for s_ in range(15):
            S.I(f"ds_write_b32 v9, v{EC+s_} offset:{320*(s_+1)}", tag="q")
        S.I("s_mov_b64 exec, 0xffff")
        S.I(f"ds_write_b32 v11, v{PB}", tag="q")
        for s_ in range(15):
            S.I(f"ds_write_b32 v11, v{EC+16+s_} offset:{320*(s_+1)}", tag="q")
        S.I("s_mov_b64 exec, -1")
        S.I(f"v_add_u32 v7, {Q_L}, v6")
        for j in range(5):
            S.I(f"ds_read_b32 v{QV+j}, v7 offset:{64*j}", tag="qv")
    qstuff()
    S.I(f"v_add_u32 v9, {HS_L}, v8")
    S.I(f"v_add_u32 v11, {HS_L}, v10")
    S.I("s_cmp_lg_u32 s35, 0")
    S.I(f"s_cbranch_scc1 L_{name}_hw")
    S.I("s_cmp_eq_u32 s32, 0")
    S.I(f"s_cbranch_scc1 L_{name}_r0")
    S.I("s_mov_b32 s39, 0")
    S.I("s_lshl_b32 s38, s32, 7")
    S.I(f"s_add_u32 s38, s38, {GO_O}")
    S.I("v_mov_b32 v14, s38")
    S.label(f"L_{name}_cl")
    S.I("v_readfirstlane_b32 s38, v15")
    S.I("s_add_u32 s39, s39, 1")
    S.I(f"s_cmp_eq_u32 s38, {TAG}")
    S.I(f"s_cbranch_scc1 L_{name}_clok")
    S.I(f"buffer_load_dword v15, v14, s[{SAG}:{SAG+3}], 0 offen sc1")
    S.I("s_waitcnt vmcnt(0)")
    S.I("s_cmp_lt_u32 s39, 0x100000" if "nosync" not in dbg else "s_cmp_lt_u32 s39, 0")
    S.I(f"s_cbranch_scc1 L_{name}_cl")
    S.label(f"L_{name}_clok")
    S.I("v_mov_b32 v254, v15")
    gran_issue()
    cnt_wait(S, f"L_{name}_m9", 12, 13, CNT_L + 8, 4)
    S.I(f"v_mov_b32 v14, {TAG}")
    S.I(f"v_add_u32 v4, {GR_L}, v4")
    S.I(f"v_add_u32 v5, {GR_L}, v5")
    S.I(f"v_add_u32 v253, {GR_L}, v252")
    S.I("v_cmp_gt_u32 s[22:23], 24, v0")
    S.I("s_sub_u32 s38, 15, s32")
    S.I("s_mul_i32 s38, s38, 640")
    S.I("s_lshr_b32 s38, s38, 10")
    S.I("s_mov_b32 s39, 0")
    S.label(f"L_{name}_gp")
    S.I("s_waitcnt vmcnt(0)")
    S.I(f"v_cndmask_b32 v{GL+37}, v14, v{GL+37}, s[22:23]")
    S.I(f"v_cndmask_b32 v{GL+39}, v14, v{GL+39}, s[22:23]")
    S.I(f"v_and_b32 v12, v{GL+1}, v{GL+3}")
    S.I(f"v_or_b32 v13, v{GL+1}, v{GL+3}")
    for n in range(1, 10):
        S.I(f"v_and_b32 v15, v{GL+4*n+1}, v{GL+4*n+3}")
        S.I(f"v_or3_b32 v13, v13, v{GL+4*n+1}, v{GL+4*n+3}")
        S.I("v_and_b32 v12, v12, v15")
    S.I("v_cmp_eq_u32 vcc, v12, v14")
    S.I("v_cmp_eq_u32 s[24:25], v13, v14")
    S.I("s_and_b64 s[24:25], s[24:25], vcc")
    S.I("s_add_u32 s39, s39, 1")
    S.I("s_cmp_eq_u64 s[24:25], -1")
    S.I(f"s_cbranch_scc1 L_{name}_gpv")
    S.I("s_cmp_ge_u32 s39, 0x40000" if "nosync" not in dbg else "s_cmp_ge_u32 s39, 0")
    S.I(f"s_cbranch_scc1 L_{name}_gpv")
    for n in range(10):
        so = "s70" if n < 4 else ("s71" if n < 8 else "s69")
        if n < 9:
            S.I(f"s_cmp_gt_u32 s38, {n}")
            S.I(f"s_cbranch_scc1 L_{name}_gs{n}")
        S.I(f"buffer_load_dwordx4 {vr(GL+4*n,4)}, v252, s[{SAG}:{SAG+3}], {so} offen offset:{(n%4)*1024} sc1")
        if n < 9: S.label(f"L_{name}_gs{n}")
    S.I(f"s_branch L_{name}_gp")
    S.label(f"L_{name}_gpv")
    for n in range(10):
        S.I(f"ds_write_b128 v253, {vr(GL+4*n,4)} offset:{1024*n}")
    for d in range(15, 0, -1):
        o = (15 - d) * 640
        S.I(f"ds_read_b32 v{G0+d-1}, v4 offset:{o}")
        S.I(f"ds_read_b32 v{G1+d-1}, v5 offset:{o+512}")
    S.I("s_waitcnt lgkmcnt(0)")
    S.label(f"L_{name}_gpok")
    S.lg = []; S.vm = []
    for d in range(14, 0, -1):
        for (g_, k) in ((G0, 0), (G1, 1)):
            S.I(f"v_fmac_f32 v{g_+d-1}, v{A128+k}, v{g_+d}")
        for (g_, k) in ((G0, 0), (G1, 1)):
            S.I(f"v_fmac_f32_dpp v{g_+d-1}, v{g_+d}, v{SB128+k} {DPP}")
    S.I(f"s_branch L_{name}_hp")
    S.label(f"L_{name}_r0")
    S.I(f"v_mov_b32 v{G0}, 0")
    S.I(f"v_mov_b32 v{G1}, 0")
    S.label(f"L_{name}_hp")
    S.I(f"ds_write_b32 v9, v{G0}", tag="h")
    S.I(f"ds_write_b32 v11, v{G1} offset:256", tag="h")
    cnt_add(S, 12, 13, CNT_L + 12)
    S.label(f"L_{name}_hw")
    cnt_wait(S, f"L_{name}_hwl", 12, 13, CNT_L + 12, 1)
    stamp()
    HV = BUF + 32
    for j in range(5):
        S.I(f"ds_read_b32 v{HV+j}, v11 offset:{64*j}", tag="hv")
    S.I(f"v_mul_u32_u24 v9, 272, v{vC_}")
    S.I(f"v_lshlrev_b32 v12, 4, v{vG_}")
    S.I("s_lshl_b32 s36, s35, 6")
    S.I("v_add3_u32 v9, v9, v12, s36")
    S.wait_lg()
    for j in range(5):
        S.I(f"v_fmac_f32 v{QV+j}, v{CAS+j}, v{HV+j}")
    for j in range(5):
        S.I(f"v_fmac_f32_dpp v{QV+j}, v{HV+j}, v{CSBS+j} {DPP}")
    for tl in range(8):
        prev = [QV + j if tl == 0 else ACC + 8 * j + tl - 1 for j in range(5)]
        for j in range(5):
            S.I(f"v_fmac_f32 v{ACC+8*j+tl}, v{CA+j}, v{prev[j]}")
        for j in range(5):
            S.I(f"v_fmac_f32_dpp v{ACC+8*j+tl}, v{prev[j]}, v{CSB+j} {DPP}")
    OV = BUF + 40
    PK = BUF + 80
    for j in range(5):
        p_, sel = pr(CCO + j)
        for t2 in range(4):
            S.I(f"v_pk_mul_f32 {vr(OV+8*j+2*t2,2)}, {vr(ACC+8*j+2*t2,2)}, {p_} op_sel:[0,{sel}] op_sel_hi:[1,{sel}]")
        for tl in range(8):
            S.I(f"v_fmac_f32_dpp v{OV+8*j+tl}, v{ACC+8*j+tl}, v{CCX+j} {DPP}")
        for k in range(4):
            S.I(f"v_cvt_pk_bf16_f32 v{PK+4*j+k}, v{OV+8*j+2*k}, v{OV+8*j+2*k+1}")
        S.I(f"ds_write_b128 v9, {vr(PK+4*j,4)} offset:{16*272*j}", tag="tw")
    S.I(f"v_lshrrev_b32 v11, 2, v{vC_}")
    S.I("v_mul_u32_u24 v11, 272, v11")
    S.I(f"v_and_b32 v4, 3, v{vC_}")
    S.I("v_lshlrev_b32 v4, 4, v4")
    S.I("v_add3_u32 v11, v11, v4, s36")
    S.I(f"v_mul_u32_u24 v4, {8*272}, v{vG_}")
    S.I("v_add_u32 v4, v11, v4")
    S.I(f"v_and_b32 v5, 1, v{vG_}")
    S.I(f"v_mul_u32_u24 v5, {8*272}, v5")
    S.I(f"v_lshrrev_b32 v7, 1, v{vG_}")
    S.I("v_lshlrev_b32 v7, 3, v7")
    S.I("v_add3_u32 v5, v11, v5, v7")
    SHF = 40
    S.I("s_lshl_b32 s36, s32, 2")
    S.I("s_add_u32 s36, s36, s35")
    S.I(f"s_mul_i32 s36, s36, {2*HF_RT}")
    S.I("s_mul_i32 s37, s33, 2560")
    S.I("s_add_u32 s36, s36, s37")
    mk_srd(S, SHF, 30, 31, HF_RT + 2560, 36, HF_OFF)
    S.I("v_lshlrev_b32 v7, 4, v0")
    S.I(f"v_and_b32 v10, 1, v{vG_}")
    S.I("v_lshlrev_b32 v10, 8, v10")
    S.I(f"v_lshlrev_b32 v8, 4, v{vC_}")
    S.I("v_add_u32 v10, v10, v8")
    S.I(f"v_lshrrev_b32 v8, 1, v{vG_}")
    S.I(f"v_mul_u32_u24 v8, {HF_RT}, v8")
    S.I("v_add_u32 v10, v10, v8")
    S.I(f"s_mov_b32 s37, {HF_RT}")
    S.wait_lg()
    RD = BUF
    for n in range(5):
        for e in range(2):
            if n < 4:
                off = (n & 1) * 32 * 272 + e * 4 * 272 + (n >> 1) * 8
                S.I(f"ds_read_b64_tr_b16 {vr(RD+4*n+2*e,2)}, v4 offset:{off}", tag=f"t{n}")
            else:
                S.I(f"ds_read_b64_tr_b16 {vr(RD+4*n+2*e,2)}, v5 offset:{64*272+e*4*272}", tag=f"t{n}")
    for n in range(5):
        S.wait_lg(f"t{n}")
        if n < 4:
            so = "0" if n < 2 else "s37"
            S.I(f"buffer_store_dwordx4 {vr(RD+4*n,4)}, v7, s[{SHF}:{SHF+3}], {so} offen offset:{(n&1)*1024}{STH}", tag="st")
        else:
            S.I(f"buffer_store_dwordx4 {vr(RD+4*n,4)}, v10, s[{SHF}:{SHF+3}], 0 offen offset:2048{STH}", tag="st")
    phaseB(S, "Y", stamp)
    final_stamps(S, st)
    S.I("s_endpgm")

    M = Stream(A)
    M.label(f"L_{name}_M")
    stamp, st = mkstamp(M)
    SBB, SW1, SB1, SH1, SDB, SAGM = 40, 48, 52, 56, 60, 64
    MACC, XB, WB, FR = 24, 72, 104, 200
    CBA, CBF, WA, MSK = FR, FR + 20, FR + 40, FR + 52
    lbl = [0]
    if "early" in dbg: stamp()
    M.I("s_cmp_lg_u32 s35, 3")
    M.I("s_cselect_b64 vcc, -1, 0")
    mk_srd(M, SW1, 20, 21, 1966080)
    M.I("s_mul_i32 s39, s33, 192")
    M.I("s_lshl_b32 s36, s35, 8")
    for e in range(4):
        M.I(f"v_add_u32 v22, {64*e}, v0")
        M.I("v_add_u32 v22, s36, v22")
        M.I("v_min_u32 v22, 767, v22")
        M.I("v_mul_u32_u24 v23, 43691, v22")
        M.I("v_lshrrev_b32 v23, 19, v23")
        M.I("v_mul_u32_u24 v9, 12, v23")
        M.I("v_sub_u32 v22, v22, v9")
        M.I("v_lshlrev_b32 v22, 4, v22")
        M.I("v_mul_u32_u24 v23, 3072, v23")
        M.I(f"v_add3_u32 v{1+e}, v22, v23, s39")
    M.I("s_lshl_b32 s68, s35, 12")
    M.I(f"s_add_u32 s68, s68, {W1_O}")
    M.I("s_lshl_b32 s36, s35, 1")
    M.I("s_add_u32 s36, s36, 4")
    M.I("s_min_u32 s36, s36, 8")
    bb_srd(M, SBB, 69)
    M.I("s_lshl_b32 s36, s35, 1")
    M.I("s_add_u32 s36, s36, 5")
    M.I("s_min_u32 s36, s36, 9")
    bb_srd(M, SBB + 4, 70)
    M.I("v_lshrrev_b32 v22, 3, v0")
    M.I("v_and_b32 v23, 7, v0")
    M.I("v_xor_b32 v13, v22, v23")
    M.I("v_mul_u32_u24 v5, 1280, v22")
    M.I("v_lshl_add_u32 v13, v13, 4, v5")
    def guard(g):
        lbl[0] += 1
        return [(f"s_cbranch_vccz L_{name}_g{lbl[0]}", None)] + g + [(f"L_{name}_g{lbl[0]}:", None)]
    def m_dma(p):
        q = p % 4
        L = []
        g = [("s_lshl_b32 s38, s26, 7", None)]
        for e in range(2):
            g += [(f"s_add_u32 m0, s{69+e}, {q*SLOT}", None), (f"buffer_load_dwordx4 v13, s[{SBB+4*e}:{SBB+4*e+3}], s38 offen lds", f"c{p}")]
        L.append(guard(g))
        for e2 in range(2):
            g = [("s_mul_i32 s71, s26, 196608", None)] if e2 == 0 else []
            for e in (2 * e2, 2 * e2 + 1):
                g += [(f"s_add_u32 m0, s68, {q*SLOT + 1024*e}", None), (f"buffer_load_dwordx4 v{1+e}, s[{SW1}:{SW1+3}], s71 offen lds", f"c{p}")]
            if e2 == 1: g += adv()
            L.append(guard(g))
        return L
    def m_wait(tag):
        lbl[0] += 1
        M.I(f"s_cbranch_vccz L_{name}_g{lbl[0]}")
        M.wait_vm(tag)
        M.label(f"L_{name}_g{lbl[0]}")
    M.vm = []
    if "early" in dbg: stamp()
    emit(M, m_dma(0))
    if "early" in dbg: stamp()
    mk_srd(M, SDB, 28, 29, 256)
    M.I(f"s_mul_i32 s36, s33, {AGG_G}")
    mk_srd(M, SAGM, 30, 31, AGG_G, 36, AGG_OFF)
    for k in range(2): M.I(f"v_mov_b32 v{14+k}, 0")
    for k in range(4): M.I(f"v_mov_b32 v{18+k}, 0x3f803f80")
    savevm = list(M.vm)
    M.I(f"s_cbranch_vccnz L_{name}_noclr")
    M.I("v_min_u32 v8, 19, v0")
    M.I("v_lshlrev_b32 v8, 2, v8")
    M.I("s_mul_i32 s36, s33, 80")
    M.I("v_add_u32 v8, s36, v8")
    M.I("global_load_dword v1, v8, s[6:7]")
    M.I("global_load_dword v2, v8, s[8:9]")
    M.I("global_load_dword v3, v8, s[18:19]")
    M.I("v_min_u32 v8, 47, v0")
    M.I("v_lshlrev_b32 v8, 2, v8")
    M.I("s_mul_i32 s36, s33, 192")
    M.I("v_add_u32 v8, s36, v8")
    M.I("global_load_dword v4, v8, s[22:23]")
    mk_srd(M, SB1, 30, 31, 8192, None, FL_OFF)
    M.I("s_lshl_b32 s36, s32, 7")
    M.I("s_lshl_b32 s39, s33, 2")
    M.I("s_add_u32 s36, s36, s39")
    M.I("v_and_b32 v8, 1, v0")
    M.I("v_lshlrev_b32 v8, 11, v8")
    M.I("v_add_u32 v8, s36, v8")
    M.I("s_and_b32 s36, s2, 7")
    M.I("s_lshr_b32 s39, s2, 3")
    M.I("s_and_b32 s26, s36, 3")
    M.I("s_lshl_b32 s26, s26, 3")
    M.I("s_and_b32 s27, s39, 7")
    M.I("s_add_u32 s26, s26, s27")
    M.I("s_lshr_b32 s27, s36, 2")
    M.I("s_lshl_b32 s27, s27, 2")
    M.I("s_lshr_b32 s39, s39, 3")
    M.I("s_add_u32 s27, s27, s39")
    M.I("s_lshl_b32 s36, s27, 7")
    M.I("s_lshl_b32 s39, s26, 2")
    M.I("s_add_u32 s36, s36, s39")
    M.I("s_add_u32 s36, s36, 4096")
    M.I("v_writelane_b32 v8, s36, 2")
    M.I("s_mov_b64 exec, 7")
    M.I(f"buffer_store_dword v14, v8, s[{SB1}:{SB1+3}], 0 offen sc1")
    M.I("s_mov_b64 exec, -1")
    M.I("v_lshlrev_b32 v8, 3, v0")
    M.I("v_and_b32 v10, 15, v0")
    M.I("v_lshlrev_b32 v10, 3, v10")
    M.I("s_add_u32 s37, s32, 15")
    M.I("s_mul_i32 s37, s37, 640")
    M.I(f"buffer_store_dwordx2 v[14:15], v8, s[{SAGM}:{SAGM+3}], s37 offen sc1")
    M.I(f"buffer_store_dwordx2 v[14:15], v10, s[{SAGM}:{SAGM+3}], s37 offen offset:512 sc1")
    M.I("s_lshl_b32 s37, s32, 7")
    M.I(f"s_add_u32 s37, s37, {GO_O}")
    M.I(f"buffer_store_dwordx2 v[14:15], v14, s[{SAGM}:{SAGM+3}], s37 offen sc1")
    M.I("s_cmp_lg_u32 s32, 0")
    M.I(f"s_cbranch_scc1 L_{name}_noclr")
    M.I("v_mov_b32 v10, 0")
    M.I(f"v_mov_b32 v11, {TAG}")
    M.I("s_mov_b32 s37, 0")
    for k in range(19):
        if k == 18:
            M.I("v_min_u32 v8, 376, v8")
        M.I(f"buffer_store_dwordx2 v[10:11], v8, s[{SAGM}:{SAGM+3}], s37 offen offset:{(k%8)*512} sc1")
        if k % 8 == 7: M.I("s_add_u32 s37, s37, 4096")
    M.label(f"L_{name}_noclr")
    M.vm = savevm
    stamp()
    M.I("v_and_b32 v22, 15, v0")
    M.I("v_bfe_u32 v23, v0, 4, 1")
    T1 = XB
    M.I(f"v_lshrrev_b32 v{T1}, 2, v22")
    M.I(f"v_and_b32 v{T1+1}, 3, v22")
    M.I(f"v_lshlrev_b32 v{T1+2}, 3, v{T1}")
    M.I(f"v_lshl_add_u32 v{T1+2}, v23, 2, v{T1+2}")
    M.I(f"v_add_u32 v{T1+2}, v{T1+2}, v{T1+1}")
    M.I("s_lshl_b32 s36, s35, 5")
    M.I(f"v_add_u32 v{T1+5}, s36, v{T1+2}")
    M.I(f"v_lshlrev_b32 v{T1+2}, 7, v{T1+5}")
    M.I(f"v_lshrrev_b32 v{T1+3}, 1, v{T1}")
    M.I(f"v_lshlrev_b32 v{T1+3}, 2, v{T1+3}")
    M.I(f"v_and_b32 v{T1+4}, 2, v{T1+1}")
    M.I(f"v_or3_b32 v{T1+3}, v{T1+3}, v{T1+4}, v23")
    M.I(f"v_lshrrev_b32 v{T1+4}, 5, v0")
    M.I(f"v_xor_b32 v{T1+3}, v{T1+3}, v{T1+4}")
    M.I(f"v_lshlrev_b32 v{T1+6}, 3, v{T1+4}")
    M.I(f"v_bfe_u32 v{T1+7}, v0, 2, 2")
    M.I(f"v_add_u32 v{T1+6}, v{T1+6}, v{T1+7}")
    M.I(f"v_mul_u32_u24 v{T1+6}, 192, v{T1+6}")
    M.I(f"v_lshl_add_u32 v{T1+6}, v23, 5, v{T1+6}")
    M.I(f"v_and_b32 v{T1+7}, 3, v0")
    M.I(f"v_lshl_add_u32 v{T1+6}, v{T1+7}, 3, v{T1+6}")
    M.I(f"v_add_u32 v{T1+6}, {W1_O}, v{T1+6}")
    M.I(f"v_xor_b32 v{T1+7}, v23, v0")
    M.I(f"v_and_b32 v{T1+7}, 1, v{T1+7}")
    M.I(f"v_add_u32 v{T1+7}, -1, v{T1+7}")
    M.I(f"v_and_b32 v{MSK}, 0x3f803f80, v{T1+7}")
    for k in range(1, 4): M.I(f"v_mov_b32 v{MSK+k}, v{MSK}")
    for u in range(4):
        M.I(f"v_xor_b32 v{T1+4}, {2*u}, v{T1+3}")
        M.I(f"v_lshl_add_u32 v{5+u}, v{T1+4}, 4, v{T1+2}")
    for j2 in range(3):
        M.I(f"s_add_u32 s36, s35, {j2}")
        M.I("s_sub_u32 s39, s36, 3")
        M.I("s_cmp_ge_u32 s36, 3")
        M.I(f"s_cselect_b32 s{4+j2}, s39, s36")
        M.I(f"s_lshl_b32 s39, s{4+j2}, 6")
        M.I(f"v_add_u32 v{9+j2}, s39, v{T1+6}")
    M.I(f"v_lshlrev_b32 v23, 3, v{T1+5}")
    mk_srd(M, SB1, 22, 23, 3072)
    M.I(f"v_lshrrev_b32 v{T1}, 4, v0")
    M.I("s_and_b32 s36, s35, 1")
    M.I("s_lshl_b32 s36, s36, 2")
    M.I(f"v_add_u32 v{T1}, s36, v{T1}")
    M.I(f"v_and_b32 v{T1+1}, 7, v0")
    M.I(f"v_xor_b32 v{T1}, v{T1}, v{T1+1}")
    M.I(f"v_lshlrev_b32 v{T1+1}, 7, v22")
    M.I(f"v_lshl_add_u32 v16, v{T1}, 4, v{T1+1}")
    M.I(f"v_add_u32 v16, {BB_O}, v16")
    M.I(f"v_lshlrev_b32 v{T1}, 3, v0")
    M.I(f"v_add_u32 v{T1}, {CSW_L}, v{T1}")
    M.I(f"ds_write_b64 v{T1}, v[14:15]")
    for k in range(20): M.I(f"v_mov_b32 v{CBA+k}, 0")
    M.I("s_lshr_b32 s37, s35, 1")
    emit(M, m_dma(1))
    M.raw(";;DRYPT")
    def m_reads(p):
        L = []
        for u in range(4):
            L.append([(f"ds_read_b128 {vr(XB+16*(p&1)+4*u,4)}, v{5+u}", f"r{p}")])
            for jt in range(3):
                L.append([(f"ds_read_b64_tr_b16 {vr(WB+48*(p&1)+12*u+4*jt+2*e,2)}, v{9+jt} offset:{u*3072+e*768}", f"r{p}") for e in range(2)])
        delta = SLOT if p % 4 != 3 else (-3 * SLOT) & 0xffffffff
        L.append([(f"v_add_u32 v{k}, {delta}, v{k}", None) for k in range(5, 12)])
        return L
    def m_mfma(p):
        L = []
        for u in range(4):
            c = "0" if (p == 0 and u < 2) else vr(WA + 4 * (u & 1), 4)
            L.append(f"v_mfma_f32_16x16x32_bf16 {vr(WA+4*(u&1),4)}, {vr(WB+48*(p&1)+12*u,4)}, {vr(MSK,4)}, {c}")
        for u in range(4):
            for jt in range(3):
                c = "0" if (p == 0 and u == 0) else vr(MACC + 16 * jt, 16)
                L.append(f"v_mfma_f32_32x32x16_bf16 {vr(MACC+16*jt,16)}, {vr(WB+48*(p&1)+12*u+4*jt,4)}, {vr(XB+16*(p&1)+4*u,4)}, {c}")
        return L
    SJL = 2 * SLOT
    def sj_ids(M=None):
        M.I("s_and_b32 s36, s2, 7")
        M.I("s_lshr_b32 s39, s2, 3")
        M.I("s_and_b32 s26, s36, 3")
        M.I("s_lshl_b32 s26, s26, 3")
        M.I("s_and_b32 s27, s39, 7")
        M.I("s_add_u32 s26, s26, s27")
        M.I("s_lshr_b32 s27, s36, 2")
        M.I("s_lshl_b32 s27, s27, 2")
        M.I("s_lshr_b32 s39, s39, 3")
        M.I("s_add_u32 s27, s27, s39")
    def sj_issue_w(M=None):
        mk_srd(M, 40, 24, 25, 1966080)
        for jk in range(2):
            M.I(f"s_add_u32 s39, s26, {32*jk}")
            M.I("s_min_u32 s39, s39, 47")
            M.I(f"s_mul_i32 s{68+jk}, s27, {5*H1F_RT}")
            M.I("s_lshl_b32 s36, s39, 10")
            M.I(f"s_add_u32 s{68+jk}, s{68+jk}, s36")
            M.I("s_mul_i32 s39, s39, 40960")
            M.I("s_mul_i32 s36, s27, 160")
            M.I(f"s_add_u32 s{22+jk}, s36, s39")
        for e in range(5):
            M.I(f"v_add_u32 v1, {64*e}, v0")
            M.I("v_mul_u32_u24 v2, 6554, v1")
            M.I("v_lshrrev_b32 v2, 16, v2")
            M.I("v_mul_u32_u24 v3, 10, v2")
            M.I("v_sub_u32 v1, v1, v3")
            M.I("v_mul_u32_u24 v2, 1280, v2")
            M.I("v_lshl_add_u32 v1, v1, 4, v2")
            for jk in range(2):
                M.I(f"s_mov_b32 m0, {SJL + 5120*jk + 1024*e}")
                M.I(f"buffer_load_dwordx4 v1, s[40:43], s{22+jk} offen lds")
    def sj_issue_c(M=None):
        mk_srd(M, 44, 14, 15, 819200)
        mk_srd(M, 48, 16, 17, 819200)
        for jk in range(2):
            M.I(f"s_add_u32 s38, s26, {32*jk}")
            M.I("s_min_u32 s38, s38, 49")
            M.I(f"s_mul_hi_u32 s36, s38, {(2**32 + 9)//10}")
            M.I("s_mul_i32 s39, s36, 10")
            M.I("s_sub_u32 s39, s38, s39")
            M.I("s_mul_i32 s38, s27, 5")
            M.I("s_add_u32 s36, s36, s38")
            M.I(f"s_mul_i32 s{70+jk}, s36, {HF_RT}")
            M.I("s_lshl_b32 s38, s39, 12")
            M.I(f"s_add_u32 s{70+jk}, s{70+jk}, s38")
            M.I(f"s_add_u32 s{70+jk}, s{70+jk}, {CF_OFF - W2F_OFF}")
            M.I("s_mul_i32 s36, s36, 20480")
            M.I("s_lshl_b32 s39, s39, 7")
            M.I("s_add_u32 s36, s36, s39")
            M.I("s_add_u32 s39, s36, 10240")
            for (sr, mo) in ((44, 0), (48, 2048)):
                M.I(f"s_mov_b32 m0, {SJL + 10240 + 4096*jk + mo}")
                M.I(f"buffer_load_dwordx4 v13, s[{sr}:{sr+3}], s36 offen lds")
                M.I(f"s_mov_b32 m0, {SJL + 10240 + 4096*jk + mo + 1024}")
                M.I(f"buffer_load_dwordx4 v13, s[{sr}:{sr+3}], s39 offen lds")
    def sj_rec(rec, p):
        if p == 7:
            sj_ids(rec); sj_issue_w(rec)
        else: sj_issue_c(rec)
    def sj_finish():
        mk_srd(M, 40, 30, 31, STATS_OFF - W2F_OFF, None, W2F_OFF)
        M.I("v_lshrrev_b32 v1, 4, v0")
        M.I("v_lshrrev_b32 v2, 1, v1")
        M.I("v_lshlrev_b32 v12, 4, v2")
        M.I("v_and_b32 v3, 1, v1")
        M.I("v_lshl_add_u32 v12, v3, 2, v12")
        M.I("v_lshrrev_b32 v17, 2, v22")
        M.I("v_add_u32 v12, v12, v17")
        M.I("v_mul_u32_u24 v12, 160, v12")
        M.I("v_and_b32 v17, 3, v22")
        M.I("v_lshl_add_u32 v12, v17, 3, v12")
        M.I(f"v_add_u32 v12, {SJL}, v12")
        M.I("v_lshlrev_b32 v3, 11, v3")
        M.I("v_lshl_add_u32 v3, v22, 7, v3")
        M.I("v_and_b32 v17, 7, v22")
        M.I("v_xor_b32 v2, v2, v17")
        M.I("v_lshl_add_u32 v3, v2, 4, v3")
        M.I(f"v_add_u32 v3, {SJL + 10240}, v3")
        M.I("v_lshlrev_b32 v1, 4, v0")
        RW = [WB, WB + 20]; RC_ = [CBF, CBA]
        for jk in range(2):
            for j in range(5):
                for e in range(2):
                    M.I(f"ds_read_b64_tr_b16 {vr(RW[jk]+4*j+2*e,2)}, v12 offset:{5120*jk+32*j+1280*e}")
        for j in range(4):
            M.I(f"v_xor_b32 v2, {32*j}, v3")
            for jk in range(2):
                M.I(f"ds_read_b128 {vr(RC_[jk]+4*j,4)}, v2 offset:{4096*jk}")
        M.I("s_waitcnt lgkmcnt(0)")
        for jk in range(2):
            for j in range(5):
                M.I(f"buffer_store_dwordx4 {vr(RW[jk]+4*j,4)}, v1, s[40:43], s{68+jk} offen sc1")
                M.vm.pop()
                if j < 4: M.I(f"s_add_u32 s{68+jk}, s{68+jk}, {H1F_RT}")
        for jk in range(2):
            for j in range(4):
                M.I(f"buffer_store_dwordx4 {vr(RC_[jk]+4*j,4)}, v1, s[40:43], s{70+jk} offen offset:{1024*j} sc1")
                M.vm.pop()
    B1V = WB + 24
    for p in range(10):
        m_wait(f"c{p}")
        if p == 1:
            M.I(f"s_cbranch_vccnz L_{name}_w7")
            M.I("s_waitcnt vmcnt(0)")
            M.I("v_min_u32 v17, 19, v0")
            M.I("v_lshlrev_b32 v17, 2, v17")
            M.I(f"v_add_u32 v17, {PAR_L}, v17")
            M.I("ds_write_b32 v17, v1")
            M.I("ds_write_b32 v17, v2 offset:128")
            M.I("ds_write_b32 v17, v3 offset:256")
            M.lg = []
            M.label(f"L_{name}_w7")
        if p == 0: M.wait_lg()
        M.I("s_barrier")
        stamp(True)
        if p in (0, 9): stamp()
        side = m_dma(p + 3) if p + 3 <= 9 else []
        if p == 0: side = m_dma(2)
        if p == 1: side = m_dma(3) + side
        rd = m_reads(p)
        M.I(f"s_cmp_lg_u32 s37, {p & 1}")
        M.I(f"s_cbranch_scc1 L_{name}_cs{p}a")
        for j in range(5):
            M.I(f"ds_read_b128 {vr(CBF+4*j,4)}, v16 offset:{2048*j}")
            M.lg.pop()
        M.label(f"L_{name}_cs{p}a")
        delta = SLOT if p % 4 != 3 else (-3 * SLOT) & 0xffffffff
        M.I(f"v_add_u32 v16, {delta}, v16")
        def cs_mfma():
            M.I(f"s_cmp_lg_u32 s37, {p & 1}")
            M.I(f"s_cbranch_scc1 L_{name}_cs{p}b")
            for j in range(5):
                M.I(f"v_mfma_f32_16x16x32_bf16 {vr(CBA+4*j,4)}, v[18:21], {vr(CBF+4*j,4)}, {vr(CBA+4*j,4)}")
            M.label(f"L_{name}_cs{p}b")
        if "dmaonly" in dbg: emit(M, side)
        elif p == 0: emit(M, rd + side)
        elif p == 9:
            mm8 = m_mfma(8)
            for m in mm8[:6]: M.I(m)
            M.I("s_waitcnt lgkmcnt(0)")
            cs_mfma()
            for m in mm8[6:8]: M.I(m)
            M.I("s_mul_i32 s36, s35, 320")
            M.I(f"s_add_u32 s36, s36, {CSB_L}")
            M.I("v_lshlrev_b32 v17, 2, v22")
            M.I("v_add_u32 v17, s36, v17")
            M.I("s_nop 3")
            M.I("s_mov_b64 exec, 0xffff")
            for j in range(5):
                M.I(f"ds_write_b32 v17, v{CBA+4*j} offset:{64*j}", tag="sw")
            cnt_add(M, 16, 17, CNT_L + 4)
            merge(M, mm8[8:], rd, 0.9)
            M.I(f"s_cbranch_vccnz L_{name}_nb1")
            M.I("v_min_u32 v17, 47, v0")
            M.I("v_lshlrev_b32 v17, 3, v17")
            M.I(f"v_add_u32 v17, {B1F_L}, v17")
            M.I("v_lshlrev_b32 v2, 16, v4")
            M.I("v_and_b32 v3, 0xffff0000, v4")
            M.I("ds_write_b64 v17, v[2:3]")
            M.label(f"L_{name}_nb1")
        elif p in (7, 8):
            class Rec:
                def __init__(self): self.L = []; self.vm = []
                def I(self, t, tag=None): self.L.append(t)
            Msave = M; rec = Rec()
            globals()["_REC"] = rec
            sj_rec(rec, p)
            groups = []
            n = 9
            for k in range(0, len(rec.L), n):
                chunk = rec.L[k:k + n]
                groups.append(chunk)
            fixed = []; cur = []
            for t in rec.L:
                cur.append(t)
                if len(cur) >= n and not (t.startswith("s_mov_b32 m0") or t.startswith("s_add_u32") or t.startswith("s_cmp")):
                    fixed.append(cur); cur = []
            if cur: fixed.append(cur)
            gs = []
            for g in fixed:
                lbl[0] += 1
                gs.append([(f"s_cbranch_vccnz L_{name}_g{lbl[0]}", None)] + [(t, "sj") for t in g] + [(f"L_{name}_g{lbl[0]}:", None)])
            merge(M, m_mfma(p - 1), mix(rd, gs), 0.95)
            M.vm = [t for t in M.vm if t != "sj"]
        else: merge(M, m_mfma(p - 1), mix(rd, side), 0.9)
        if p == 6:
            svm = list(M.vm)
            M.I(f"s_cbranch_vccnz L_{name}_si{p}")
            if p == 6:
                M.I("s_waitcnt vmcnt(0)")
                M.I("v_readfirstlane_b32 s36, v15")
                M.I("s_and_b32 s36, s36, 15")
                M.I("s_cmp_lg_u32 s36, 15")
                M.I(f"s_cbranch_scc1 L_{name}_nb")
                mk_srd(M, SB1, 30, 31, 16 * AGG_G, None, AGG_OFF)
                M.I("v_lshlrev_b32 v14, 7, v22")
                M.I("v_lshrrev_b32 v15, 4, v0")
                M.I(f"v_mul_u32_u24 v15, {AGG_G}, v15")
                M.I(f"v_add3_u32 v14, v14, v15, {0}") if False else M.I("v_add_u32 v14, v14, v15")
                M.I(f"v_add_u32 v14, {GO_O}, v14")
                M.I(f"v_mov_b32 v15, {TAG}")
                for n in range(4):
                    M.I(f"s_mov_b32 s36, {4*n*AGG_G}")
                    M.I(f"buffer_store_dword v15, v14, s[{SB1}:{SB1+3}], s36 offen sc1")
                    M.vm.pop()
                M.label(f"L_{name}_nb")
                pass
            M.label(f"L_{name}_si{p}")
            M.vm = svm
        if p == 1:
            M.I(f"s_cbranch_vccnz L_{name}_na")
            M.I("s_waitcnt vmcnt(0)")
            M.I("s_lshl_b32 s36, s33, 4")
            M.I("v_mov_b32 v14, s36")
            M.I("v_mov_b32 v15, 1")
            M.I("s_mov_b64 exec, 1")
            M.I(f"buffer_atomic_add v15, v14, s[{SDB}:{SDB+3}], 0 offen sc0")
            M.vm.pop()
            M.I("s_mov_b64 exec, -1")
            M.label(f"L_{name}_na")
        if p == 4:
            M.I(f"s_cbranch_vccnz L_{name}_n2")
            M.I("s_waitcnt vmcnt(0)")
            M.I("v_readfirstlane_b32 s36, v15")
            M.I("v_mov_b32 v15, 0")
            M.I("s_and_b32 s36, s36, 15")
            M.I("s_cmp_lg_u32 s36, 15")
            M.I(f"s_cbranch_scc1 L_{name}_n2")
            M.I("v_mov_b32 v14, 4")
            M.I("v_mov_b32 v15, 1")
            M.I("s_mov_b64 exec, 1")
            M.I(f"buffer_atomic_add v15, v14, s[{SDB}:{SDB+3}], 0 offen sc0")
            M.vm.pop()
            M.I("s_mov_b64 exec, -1")
            M.label(f"L_{name}_n2")
        M.I("s_waitcnt lgkmcnt(0)")
        M.lg = []
        if p < 9: cs_mfma()
    mm = m_mfma(9)
    M.raw(";;DRYSTART")
    M.I("s_lshl_b32 s38, s35, 2")
    M.I(f"s_add_u32 s38, s38, {CNT_L+16}")
    if "mdelay" in dbg: cnt_wait(M, f"L_{name}_mw2", 16, 17, "s38", 1)
    for m in mm[:4]: M.I(m)
    for m in mm[4:8]: M.I(m)
    for r in range(4): M.I(f"v_add_f32 v{WA+r}, v{WA+r}, v{WA+4+r}")
    M.I("v_and_b32 v16, 1, v0")
    M.I("v_lshlrev_b32 v16, 6, v16")
    M.I("v_lshrrev_b32 v17, 4, v0")
    M.I("v_lshl_add_u32 v16, v17, 4, v16")
    M.I("s_lshl_b32 s36, s4, 7")
    M.I(f"s_add_u32 s36, s36, {CSW_L}")
    M.I("v_add_u32 v16, s36, v16")
    M.I("s_mov_b32 exec_lo, 0x00030003")
    M.I("s_mov_b32 exec_hi, 0x00030003")
    M.I(f"ds_write_b128 v16, {vr(WA,4)}")
    cnt_add(M, 16, 17, CNT_L + 8)
    for m in mm[8:]: M.I(m)
    svm, slg = list(M.vm), list(M.lg)
    M.I(f"s_cbranch_vccnz L_{name}_sjl")
    M.I("s_waitcnt vmcnt(0)")
    sj_finish()
    cnt_add(M, 1, 2, CNT_L + 40)
    M.label(f"L_{name}_sjl")
    M.vm, M.lg = svm, slg
    stamp()
    cnt_wait(M, f"L_{name}_mw1", 16, 17, CNT_L + 8, 4)
    if "mdelay" not in dbg: cnt_wait(M, f"L_{name}_mw2", 16, 17, "s38", 1)
    stamp()
    M.I("s_lshl_b32 s36, s32, 7")
    M.I(f"s_add_u32 s36, s36, {GO_O}")
    M.I("v_mov_b32 v7, s36")
    M.I(f"buffer_load_dword v7, v7, s[{SAGM}:{SAGM+3}], 0 offen sc1")
    M.vm.pop()
    if "sprio" not in dbg: M.I("s_setprio 3")
    CSV = XB
    B1V = WB + 16
    M.I("v_lshrrev_b32 v10, 5, v0")
    M.I("v_lshlrev_b32 v11, 4, v10")
    M.I(f"v_add_u32 v12, {B1F_L}, v11")
    M.I(f"v_add_u32 v11, {CSW_L}, v11")
    M.I("v_lshrrev_b32 v23, 1, v23")
    M.I(f"v_add_u32 v23, {STATS_L}, v23")
    M.I("ds_read_b32 v14, v23")
    M.I("ds_read_b32 v15, v23 offset:512")
    for jt in range(3):
        M.I(f"s_lshl_b32 s36, s{4+jt}, 7")
        M.I("v_add_u32 v16, s36, v11")
        M.I("v_add_u32 v17, s36, v12")
        M.I(f"s_lshl_b32 s{4+jt}, s{4+jt}, 10")
        for q in range(4):
            M.I(f"ds_read_b128 {vr(CSV+(jt*4+q)*4,4)}, v16 offset:{32*q}", tag=f"cr{jt}")
            M.I(f"ds_read_b128 {vr(B1V+(jt*4+q)*4,4)}, v17 offset:{32*q}", tag=f"cr{jt}")
    M.I("s_lshl_b32 s36, s32, 2")
    M.I("s_add_u32 s36, s36, s35")
    M.I(f"s_mul_i32 s36, s36, {2*H1F_RT}")
    M.I("s_mul_i32 s39, s33, 3072")
    M.I("s_add_u32 s36, s36, s39")
    mk_srd(M, SH1, 30, 31, H1F_RT + 3072, 36, H1F_OFF)
    M.I("v_bfe_u32 v9, v0, 4, 1")
    M.I(f"v_mul_u32_u24 v9, {H1F_RT}, v9")
    M.I("v_lshl_add_u32 v9, v10, 8, v9")
    M.I("v_lshl_add_u32 v9, v22, 4, v9")
    C1 = -2.0 * 1.4426950408889634 * 0.7978845608028654
    C2 = C1 * 0.044715
    M.I(f"v_mov_b32 v16, {f2u(C2)}")
    M.I(f"v_mov_b32 v17, {f2u(C1)}")
    TM = FR
    late = []
    for jt in range(3):
        M.wait_lg(f"cr{jt}")
        P = [MACC + 16 * jt + 2 * k for k in range(8)]
        cs = [CSV + jt * 16 + 2 * k for k in range(8)]
        b1 = [B1V + jt * 16 + 2 * k for k in range(8)]
        T_ = [TM + 2 * k for k in range(8)]
        for k in range(8):
            M.I(f"v_pk_fma_f32 {vr(b1[k],2)}, v[14:15], {vr(cs[k],2)}, {vr(b1[k],2)} op_sel:[0,0,0] op_sel_hi:[0,1,1] neg_lo:[1,0,0] neg_hi:[1,0,0]")
        for k in range(8):
            M.I(f"v_pk_fma_f32 {vr(P[k],2)}, {vr(P[k],2)}, v[14:15], {vr(b1[k],2)} op_sel:[0,1,0] op_sel_hi:[1,1,1]")
        for k in range(8):
            M.I(f"v_pk_mul_f32 {vr(T_[k],2)}, {vr(P[k],2)}, {vr(P[k],2)}")
        for k in range(8):
            M.I(f"v_pk_fma_f32 {vr(T_[k],2)}, {vr(T_[k],2)}, v[16:17], v[16:17] op_sel:[0,0,1] op_sel_hi:[1,0,1]")
        for k in range(8):
            M.I(f"v_pk_mul_f32 {vr(T_[k],2)}, {vr(T_[k],2)}, {vr(P[k],2)}")
        for k in range(16):
            M.I(f"v_exp_f32 v{TM+k}, v{TM+k}")
        for k in range(8):
            M.I(f"v_pk_add_f32 {vr(T_[k],2)}, {vr(T_[k],2)}, 1.0 op_sel_hi:[1,0]")
        for k in range(16):
            M.I(f"v_rcp_f32 v{TM+k}, v{TM+k}")
        for k in range(8):
            M.I(f"v_pk_mul_f32 {vr(P[k],2)}, {vr(P[k],2)}, {vr(T_[k],2)}")
        PKM = TM + 16 + 8 * jt
        for k in range(8):
            M.I(f"v_cvt_pk_bf16_f32 v{PKM+k}, v{P[k]}, v{P[k]+1}")
        def h1st(jt=jt, PKM=PKM):
            for AB in range(2):
                M.I(f"buffer_store_dwordx4 {vr(PKM+4*AB,4)}, v9, s[{SH1}:{SH1+3}], s{4+jt} offen offset:{512*AB}{STF}", tag="st")
        if jt == 1:
            M.I(f"s_cbranch_vccnz L_{name}_a2")
            M.I("s_waitcnt vmcnt(2)")
            mk_srd(M, 44, 30, 31, 8192, None, FL_OFF)
            M.I("s_lshl_b32 s36, s27, 7")
            M.I("s_lshl_b32 s39, s26, 2")
            M.I("s_add_u32 s36, s36, s39")
            M.I("s_add_u32 s36, s36, 4096")
            M.I("v_mov_b32 v1, s36")
            M.I(f"v_mov_b32 v2, {TAG}")
            M.I("s_mov_b64 exec, 1")
            M.I("buffer_store_dword v2, v1, s[44:47], 0 offen sc1")
            M.vm.pop()
            M.I("s_mov_b64 exec, -1")
            M.label(f"L_{name}_a2")
        if "mst" in dbg: late.append(h1st)
        else: h1st()
    if "mst" in dbg:
        cnt_wait(M, f"L_{name}_mw3", 16, 17, CNT_L + 12, 1)
        for f in late: f()
    M.I("s_cmp_lg_u32 s33, 0")
    M.I(f"s_cbranch_scc1 L_{name}_nostat")
    M.I("s_lshl_b32 s36, s32, 9")
    mk_srd(M, 40, 30, 31, 8192 + 512, 36, STATS_OFF)
    M.I(f"v_subrev_u32 v23, {STATS_L}, v23")
    M.I("s_mov_b32 s36, 8192")
    M.I("buffer_store_dword v14, v23, s[40:43], 0 offen sc1")
    M.I("buffer_store_dword v15, v23, s[40:43], s36 offen sc1")
    M.label(f"L_{name}_nostat")
    phaseB(M, "G", stamp)
    final_stamps(M, st)
    M.label(f"L_{name}_end")
    M.I("s_endpgm")
    if "dry" not in dbg:
        for X in (S, M): X.lines = [l for l in X.lines if not l.startswith(";;DRY")]
    else:
        print("dry blocks", add_dry(S, name, "ds", 39), add_dry(M, name, "dm", 39))
    desc = f""".section .rodata,"a"
.p2align 6
.amdhsa_kernel {name}
  .amdhsa_next_free_vgpr 256
  .amdhsa_next_free_sgpr 102
  .amdhsa_accum_offset 256
  .amdhsa_group_segment_fixed_size 0
  .amdhsa_kernarg_size 136
  .amdhsa_user_sgpr_count 2
  .amdhsa_user_sgpr_kernarg_segment_ptr 1
  .amdhsa_system_sgpr_workgroup_id_x 1
.end_amdhsa_kernel
.text"""
    return A.text() + "\n" + S.text() + "\n" + M.text() + "\n" + desc, (A.nins, S.nins, M.nins)
```

```python
from asmfw import *
from layout import *
import struct
def f2u(f): return struct.unpack("<I", struct.pack("<f", f))[0]
LOG2E = f2u(1.4426950408889634)
INV2PI = f2u(0.15915494309189535)
SLOT = 38912
BB_O = 16384
W1_O = 26624
MISC = 155648
SEG_L = MISC
CSW_L = MISC + 5120
CNT_L = CSW_L + 384
STATS_L = MISC + 5632
CSB_L = STATS_L + 1024
STG_L = 2 * SLOT
PAR_L = SEG_L
B1F_L = 34816
GR_L = 40960
TR_L = 0
Q_L = 24576
HS_L = 32768
TAG = 0x5a17c3e9
EP_L = 126976
MST_L = 0
NEG_LOG2E = 0xbfb8aa3b
DPP = "row_ror:8 row_mask:0xf bank_mask:0xf"

def mk_srd(A, d, lo, hi, nbytes, off_s=None, off_imm=0):
    if off_s is None and off_imm == 0:
        A.I(f"s_mov_b32 s{d}, s{lo}")
        A.I(f"s_and_b32 s{d+1}, s{hi}, 0xffff")
    else:
        if off_s is not None:
            if off_imm: A.I(f"s_add_u32 s{off_s}, s{off_s}, {off_imm}")
            A.I(f"s_add_u32 s{d}, s{lo}, s{off_s}")
        else:
            A.I(f"s_add_u32 s{d}, s{lo}, {off_imm}")
        A.I(f"s_addc_u32 s{d+1}, s{hi}, 0")
        A.I(f"s_and_b32 s{d+1}, s{d+1}, 0xffff")
    A.I(f"s_mov_b32 s{d+2}, {nbytes}")
    A.I(f"s_mov_b32 s{d+3}, 0x00020000")

def bb_srd(X, d, ldsreg):
    X.I(f"s_lshl_b32 s{ldsreg}, s36, 10")
    X.I(f"s_add_u32 s{ldsreg}, s{ldsreg}, {BB_O}")
    X.I("s_and_b32 s39, s36, 1")
    X.I("s_cmp_eq_u32 s39, 0")
    X.I(f"s_cselect_b32 s{d}, s10, s12")
    X.I(f"s_cselect_b32 s{d+1}, s11, s13")
    X.I("s_lshr_b32 s36, s36, 1")
    X.I("s_lshl_b32 s36, s36, 3")
    X.I("s_mul_i32 s39, s33, 40")
    X.I("s_add_u32 s36, s36, s39")
    X.I("s_mul_i32 s36, s36, 1280")
    X.I(f"s_add_u32 s{d}, s{d}, s36")
    X.I(f"s_addc_u32 s{d+1}, s{d+1}, 0")
    X.I(f"s_and_b32 s{d+1}, s{d+1}, 0xffff")
    X.I(f"s_mov_b32 s{d+2}, 10240")
    X.I(f"s_mov_b32 s{d+3}, 0x00020000")

def put(X, item):
    t, g = item
    if t.endswith(":"): X.label(t[:-1])
    else: X.I(t, tag=g)
def emit(X, L):
    for grp in L:
        for it in grp: put(X, it)
def merge(X, main, side, frac=1.0):
    side = list(side)
    n = max(1, int(len(main) * frac))
    done = 0
    for k, m in enumerate(main):
        X.I(m)
        tgt = min(len(side), ((k + 1) * len(side) + n - 1) // n)
        while done < tgt:
            for it in side[done]: put(X, it)
            done += 1
    while done < len(side):
        for it in side[done]: put(X, it)
        done += 1
def mix(a, b):
    out = []; ia = ib = 0
    while ia < len(a) or ib < len(b):
        if ib >= len(b) or (ia < len(a) and ia * len(b) <= ib * len(a)):
            out.append(a[ia]); ia += 1
        else:
            out.append(b[ib]); ib += 1
    return out

def cnt_add(X, va, vt, addr):
    X.I(f"v_mov_b32 v{va}, {addr}")
    X.I(f"v_mov_b32 v{vt}, 1")
    X.I("s_mov_b64 exec, 1")
    X.I(f"ds_add_u32 v{va}, v{vt}")
    X.I("s_mov_b64 exec, -1")
def cnt_wait(X, lab, va, vt, addr, val):
    X.I(f"v_mov_b32 v{va}, {addr}")
    X.I("s_mov_b32 s39, 0")
    X.label(lab)
    X.I(f"ds_read_b32 v{vt}, v{va}")
    X.I("s_waitcnt lgkmcnt(0)")
    X.lg = []
    X.I(f"v_readfirstlane_b32 s36, v{vt}")
    X.I("s_add_u32 s39, s39, 1")
    X.I(f"s_cmp_eq_u32 s36, {val}")
    X.I(f"s_cbranch_scc1 {lab}d")
    X.I("s_sleep 1")
    X.I("s_cmp_lt_u32 s39, 0x400000")
    X.I(f"s_cbranch_scc1 {lab}")
    X.label(lab + "d")

def pr(idx):
    return f"v[{idx & ~1}:{(idx & ~1) + 1}]", idx & 1

def add_dry(X, name, tag, sreg, minlen=10, maxlen=48):
    lines = X.lines
    i0 = lines.index(";;DRYSTART")
    head, tail = lines[:i0], lines[i0 + 1:]
    def pure(l):
        t = l.strip()
        if t.startswith("v_"):
            return not (t.startswith("v_cmp") or t.startswith("v_readfirstlane") or t.startswith("v_mfma") or t.startswith("v_readlane") or "co_u32" in t)
        return t.startswith("s_nop")
    out = []; nb = 0; i = 0
    while i < len(tail):
        j = i
        while j < len(tail) and pure(tail[j]): j += 1
        if j - i >= minlen:
            k = i
            while k < j:
                e = min(j, k + maxlen)
                if j - e < minlen: e = j
                out.append(f"L_{name}_{tag}{nb}:")
                out += tail[k:e]
                out.append(f"    s_cbranch_execz L_{name}_{tag}disp")
                nb += 1; k = e
            i = j
        else:
            out += tail[i:max(j, i + 1)]; i = max(j, i + 1)
    drv = [f"    s_mov_b32 s{sreg}, s35", "    s_mov_b64 exec, 0", f"    s_branch L_{name}_{tag}go",
           f"L_{name}_{tag}disp:", f"    s_add_u32 s{sreg}, s{sreg}, 4", f"L_{name}_{tag}go:"]
    for b in range(nb):
        drv += [f"    s_cmp_eq_u32 s{sreg}, {b}", f"    s_cbranch_scc1 L_{name}_{tag}{b}"]
    drv += ["    s_mov_b64 exec, -1"]
    p = head.index(";;DRYPT")
    X.lines = head[:p] + drv + head[p + 1:] + out
    return nb

def gen_kf(name="kf_kernel", stamps=False, rot=True, dbg=""):
    import os
    STF = os.environ.get("STF1", "")
    STH = os.environ.get("STH", STF)
    A = Stream()
    A.raw(f".globl {name}\n.p2align 8\n.type {name},@function\n{name}:")
    A.I("s_cmp_ge_u32 s2, 256")
    A.I(f"s_cbranch_scc1 L_{name}_end")
    class St:
        n = 0
    def mkstamp(X):
        st = St()
        def stamp(ph=False):
            if not stamps: return
            if ("phst" in dbg) != ph: return
            assert st.n < 12
            X.I(f"s_memtime s[{74+2*st.n}:{75+2*st.n}]"); st.n += 1
        return stamp, st
    if stamps:
        A.I("s_memtime s[72:73]")
        A.I("s_memrealtime s[98:99]")
    A.I("s_load_dwordx16 s[4:19], s[0:1], 0")
    A.I("s_load_dwordx4 s[20:23], s[0:1], 80")
    A.I("s_load_dwordx2 s[24:25], s[0:1], 96")
    A.I("s_load_dwordx4 s[28:31], s[0:1], 120")
    A.I("s_and_b32 s36, s2, 7")
    A.I("s_lshr_b32 s37, s2, 3")
    if "map2" in dbg:
        A.I("s_and_b32 s32, s37, 15")
    else:
        A.I("s_and_b32 s32, s36, 1")
        A.I("s_lshl_b32 s32, s32, 3")
        A.I("s_and_b32 s38, s37, 7")
        A.I("s_add_u32 s32, s32, s38")
    if "map2" in dbg:
        A.I("s_lshl_b32 s33, s36, 1")
        A.I("s_lshr_b32 s38, s37, 4")
    else:
        A.I("s_lshr_b32 s33, s36, 1")
        A.I("s_lshl_b32 s33, s33, 2")
        A.I("s_lshr_b32 s38, s37, 3")
    A.I("s_add_u32 s33, s33, s38")
    import os
    rm = os.environ.get("ROTM", "full")
    if rot and rm == "full":
        A.I("s_and_b32 s26, s33, 3")
        A.I("s_mul_i32 s26, s26, 3")
        A.I("s_and_b32 s27, s32, 7")
        A.I("s_add_u32 s26, s26, s27")
        A.I("s_sub_u32 s27, s26, 10")
        A.I("s_cmp_ge_u32 s26, 10")
        A.I("s_cselect_b32 s26, s27, s26")
    elif rot and rm == "r4":
        A.I("s_add_u32 s26, s33, s32")
        A.I("s_and_b32 s26, s26, 3")
    elif rot and rm == "r2":
        A.I("s_add_u32 s26, s33, s32")
        A.I("s_and_b32 s26, s26, 1")
        A.I("s_lshl_b32 s26, s26, 1")
    elif rot and rm == "r4x2":
        A.I("s_add_u32 s26, s33, s32")
        A.I("s_and_b32 s26, s26, 3")
        A.I("s_lshl_b32 s26, s26, 1")
    else:
        A.I("s_mov_b32 s26, 0")
    A.I("v_lshrrev_b32 v1, 6, v0")
    A.I("v_and_b32 v0, 63, v0")
    A.I("v_readfirstlane_b32 s34, v1")
    A.I("s_and_b32 s35, s34, 3")
    if "nocpf" not in dbg:
        A.I("s_cmp_ge_u32 s34, 2")
        A.I(f"s_cbranch_scc1 L_{name}_ncp")
        A.raw("    s_getpc_b64 s[38:39]")
        A.raw(f"L_{name}_pc:")
        A.raw(f"    s_sub_u32 s38, s38, L_{name}_pc-{name}")
        A.raw("    s_subb_u32 s39, s39, 0")
        A.I("s_lshr_b32 s36, s2, 3")
        A.I("s_lshl_b32 s36, s36, 1")
        A.I("s_add_u32 s36, s36, s34")
        A.I("s_lshl_b32 s36, s36, 10")
        A.I("v_lshlrev_b32 v2, 4, v0")
        A.I("v_add_u32 v2, s36, v2")
        A.raw(f"    v_min_u32 v2, L_{name}_codeend-{name}-16, v2")
        A.I("v_mov_b32 v3, s39")
        A.I("v_add_co_u32 v2, vcc, s38, v2")
        A.I("v_addc_co_u32 v3, vcc, 0, v3, vcc")
        A.I("global_load_dwordx4 v[16:19], v[2:3], off")
        A.vm.pop()
        A.label(f"L_{name}_ncp")
    A.I("s_cmp_ge_u32 s34, 4")
    A.wait_lg()
    if "notlb" not in dbg:
        A.I(f"s_mul_i32 s36, s32, {128*1280}")
        A.I("s_mul_i32 s37, s33, 51200")
        A.I("s_load_dword s3, s[4:5], s36")
        A.I("s_load_dword s3, s[10:11], s37")
        A.I("s_load_dword s3, s[12:13], s37")
        A.I("s_load_dword s3, s[20:21], 0")
        A.I("s_load_dword s3, s[20:21], 0xffffc")
        if "tlb2" in dbg:
            A.I("s_lshl_b32 s36, s34, 21")
            A.I("s_load_dword s3, s[30:31], s36")
            A.I("s_load_dword s3, s[24:25], 0")
            A.I("s_load_dword s3, s[24:25], 0xffffc")
            A.I("s_load_dword s3, s[14:15], 0")
            A.I("s_load_dword s3, s[16:17], 0")
        A.I("s_cmp_ge_u32 s34, 4")
    A.I(f"s_cbranch_scc1 L_{name}_M")

    def final_stamps(X, st):
        if stamps and "dbgst" in dbg:
            X.wait_all()
            X.I(f"s_memtime s[{74+2*st.n}:{75+2*st.n}]")
            X.I("s_memrealtime s[100:101]")
            X.wait_lg()
            X.I("s_cmp_lg_u32 s34, 0")
            X.I(f"s_cbranch_scc1 L_{name}_ds{id(X)%1000}")
            X.I("s_cmp_ge_u32 s2, 4")
            X.I(f"s_cbranch_scc1 L_{name}_ds{id(X)%1000}")
            mk_srd(X, 40, 28, 29, 256)
            X.I("s_sub_u32 s36, s100, s98")
            X.I(f"s_sub_u32 s37, s{74+2*st.n}, s72")
            X.I("v_mov_b32 v2, s36")
            X.I("v_mov_b32 v3, s37")
            X.I("s_lshl_b32 s38, s2, 4")
            X.I("v_mov_b32 v1, s38")
            X.I("buffer_store_dwordx2 v[2:3], v1, s[40:43], 0 offen offset:8")
            X.label(f"L_{name}_ds{id(X)%1000}")
            return
        if not stamps: return
        X.wait_all()
        X.I(f"s_memtime s[{74+2*st.n}:{75+2*st.n}]"); st.n += 1
        X.I("s_memrealtime s[100:101]")
        X.wait_lg()
        X.I("s_lshl_b32 s36, s2, 3")
        X.I("s_add_u32 s36, s36, s34")
        X.I("s_lshl_b32 s36, s36, 7")
        X.I("s_add_u32 s36, s36, 0x2000000")
        X.I("s_add_u32 s40, s30, s36")
        X.I("s_addc_u32 s41, s31, 0")
        X.I("s_and_b32 s41, s41, 0xffff")
        X.I("s_mov_b32 s42, 128")
        X.I("s_mov_b32 s43, 0x00020000")
        X.I("v_mov_b32 v1, 0")
        for i in range(st.n + 1):
            X.I(f"v_mov_b32 v2, s{72+2*i}")
            X.I(f"buffer_store_dword v2, v1, s[40:43], 0 offen offset:{4*i}")
        X.I("v_mov_b32 v2, s98")
        X.I("buffer_store_dword v2, v1, s[40:43], 0 offen offset:120")
        X.I("v_mov_b32 v2, s100")
        X.I("buffer_store_dword v2, v1, s[40:43], 0 offen offset:124")
    def side_issue(S, vG_, vC_, vBB, SJA, SJB, SWS, t1, t2, t3, vL, vA):
        mk_srd(S, SWS, 30, 31, STATS_OFF - W2F_OFF, None, W2F_OFF)
        S.I("s_lshl_b32 s26, s2, 2")
        S.I("s_add_u32 s26, s26, s35")
        if "nosj" in dbg: S.I("s_mov_b32 s26, 1000")
        S.I("s_lshl_b32 s27, s35, 12")
        S.I(f"s_add_u32 s27, s27, {STG_L}")
        S.I(f"v_lshlrev_b32 v{vL}, 4, v0")
        S.I(f"v_mov_b32 v{vA}, 0")
        S.I("s_mov_b32 s22, 0")
        S.I("s_mov_b32 s23, 0")
        savevm = list(S.vm)
        S.I("s_cmp_ge_u32 s26, 880")
        S.I(f"s_cbranch_scc1 L_{name}_sj0")
        S.I("s_cmp_ge_u32 s26, 480")
        S.I(f"s_cbranch_scc1 L_{name}_sjc")
        mk_srd(S, SJA, 24, 25, 1966080)
        S.I(f"s_mul_hi_u32 s36, s26, {(2**32 + 47)//48}")
        S.I("s_mul_i32 s39, s36, 48")
        S.I("s_sub_u32 s39, s26, s39")
        S.I(f"s_mul_i32 s22, s36, {4*H1F_RT}")
        S.I("s_lshl_b32 s23, s39, 10")
        S.I("s_add_u32 s22, s22, s23")
        S.I(f"s_mov_b32 s23, {H1F_RT}")
        S.I("s_mul_i32 s39, s39, 40960")
        S.I("s_lshl_b32 s36, s36, 7")
        S.I("s_add_u32 s36, s36, s39")
        S.I(f"v_lshrrev_b32 v{t1}, 3, v0")
        S.I(f"v_mul_u32_u24 v{t1}, 1280, v{t1}")
        S.I(f"v_and_b32 v{t2}, 7, v0")
        S.I(f"v_lshl_add_u32 v{t1}, v{t2}, 4, v{t1}")
        for e in range(4):
            S.I(f"s_add_u32 m0, s27, {1024*e}")
            S.I(f"buffer_load_dwordx4 v{t1}, s[{SJA}:{SJA+3}], s36 offen lds")
            if e < 3: S.I("s_add_u32 s36, s36, 10240")
        S.I(f"v_lshrrev_b32 v{t1}, 1, v{vG_}")
        S.I(f"v_lshlrev_b32 v{t1}, 11, v{t1}")
        S.I(f"v_and_b32 v{t2}, 1, v{vG_}")
        S.I(f"v_lshl_add_u32 v{t1}, v{t2}, 9, v{t1}")
        S.I(f"v_lshrrev_b32 v{t2}, 2, v{vC_}")
        S.I(f"v_lshl_add_u32 v{t1}, v{t2}, 7, v{t1}")
        S.I(f"v_and_b32 v{t2}, 3, v{vC_}")
        S.I(f"v_lshl_add_u32 v{t1}, v{t2}, 3, v{t1}")
        S.I(f"v_add_u32 v{vA}, s27, v{t1}")
        S.I(f"s_branch L_{name}_sj0")
        S.label(f"L_{name}_sjc")
        mk_srd(S, SJA, 14, 15, 819200)
        mk_srd(S, SJB, 16, 17, 819200)
        S.I("s_sub_u32 s39, s26, 480")
        S.I(f"s_mul_hi_u32 s36, s39, {(2**32 + 9)//10}")
        S.I("s_mul_i32 s22, s36, 10")
        S.I("s_sub_u32 s39, s39, s22")
        S.I(f"s_mul_i32 s22, s36, {HF_RT}")
        S.I("s_lshl_b32 s23, s39, 12")
        S.I("s_add_u32 s22, s22, s23")
        S.I(f"s_add_u32 s22, s22, {CF_OFF - W2F_OFF}")
        S.I("s_mov_b32 s23, 1024")
        S.I("s_mul_i32 s36, s36, 20480")
        S.I("s_lshl_b32 s39, s39, 7")
        S.I("s_add_u32 s36, s36, s39")
        S.I("s_add_u32 s39, s36, 10240")
        for (srd_, mo) in ((SJA, 0), (SJB, 2048)):
            S.I(f"s_add_u32 m0, s27, {mo}")
            S.I(f"buffer_load_dwordx4 v{vBB}, s[{srd_}:{srd_+3}], s36 offen lds")
            S.I(f"s_add_u32 m0, s27, {mo+1024}")
            S.I(f"buffer_load_dwordx4 v{vBB}, s[{srd_}:{srd_+3}], s39 offen lds")
        S.I(f"v_and_b32 v{t1}, 1, v{vG_}")
        S.I(f"v_lshlrev_b32 v{t1}, 11, v{t1}")
        S.I(f"v_lshl_add_u32 v{t1}, v{vC_}, 7, v{t1}")
        S.I(f"v_lshrrev_b32 v{t2}, 1, v{vG_}")
        S.I(f"v_and_b32 v{t3}, 7, v{vC_}")
        S.I(f"v_xor_b32 v{t2}, v{t2}, v{t3}")
        S.I(f"v_lshl_add_u32 v{t1}, v{t2}, 4, v{t1}")
        S.I(f"v_add_u32 v{vA}, s27, v{t1}")
        S.label(f"L_{name}_sj0")
        S.vm = savevm

    def phaseB(X, typ, stamp):
        L = f"L_{name}_{typ}"
        isG = typ == "G"
        RT = H1F_RT if isG else HF_RT
        NS = 12 if isG else 10
        D = int(os.environ.get("FDG" if isG else "FDY", "3"))
        LDF = os.environ.get("LDF", " sc1")
        ACC, STG = 16, 96
        VO = STG + 36 * D
        SA, SB0, SFL, SAGB = 40, 44, 52, 56
        PRIV = 15360
        BASE = 0 if isG else 61440 + 0
        BASE = 0 if isG else 0
        if isG: X.I("s_setprio 1")
        X.I("s_load_dwordx2 s[4:5], s[0:1], 0")
        X.I("s_load_dwordx2 s[6:7], s[0:1], 64")
        X.I("s_load_dwordx4 s[8:11], s[0:1], 104")
        X.I("s_load_dwordx2 s[24:25], s[0:1], 96")
        def signal(nyoung):
            X.I(f"s_waitcnt vmcnt({nyoung}) lgkmcnt(0)")
            X.vm = []; X.lg = []
            if not isG: X.I("v_mov_b32 v15, v254")
            cnt_add(X, 4, 5, CNT_L + (32 if isG else 44))
            cnt_add(X, 4, 5, CNT_L + 36)
            mk_srd(X, SFL, 30, 31, 8192, None, FL_OFF)
            X.I("s_cmp_lg_u32 s35, 0")
            X.I(f"s_cbranch_scc1 {L}nf")
            cnt_wait(X, f"{L}w0", 4, 5, CNT_L + (32 if isG else 44), 4)
            X.I("s_lshl_b32 s36, s32, 7")
            X.I("s_lshl_b32 s39, s33, 2")
            X.I("s_add_u32 s36, s36, s39")
            if not isG: X.I("s_add_u32 s36, s36, 2048")
            X.I("v_mov_b32 v4, s36")
            X.I(f"v_mov_b32 v5, {TAG}")
            X.I("s_mov_b64 exec, 1")
            X.I(f"buffer_store_dword v5, v4, s[{SFL}:{SFL+3}], 0 offen sc1")
            X.I("s_mov_b64 exec, -1")
            X.label(f"{L}nf")
            X.vm = []
            stamp()
        signal(0)
        X.I("s_and_b32 s36, s2, 7")
        X.I("s_lshr_b32 s37, s2, 3")
        X.I("s_and_b32 s60, s36, 3")
        X.I("s_lshl_b32 s60, s60, 3")
        X.I("s_and_b32 s38, s37, 7")
        X.I("s_add_u32 s60, s60, s38")
        X.I("s_lshr_b32 s61, s36, 2")
        X.I("s_lshl_b32 s61, s61, 2")
        X.I("s_lshr_b32 s38, s37, 3")
        X.I("s_add_u32 s61, s61, s38")
        X.I("v_lshlrev_b32 v2, 4, v0")
        X.I("v_lshrrev_b32 v1, 4, v0")
        X.I("v_and_b32 v3, 15, v0")
        for n in range(4):
            X.I(f"s_add_u32 s36, s35, {n}")
            X.I("s_and_b32 s36, s36, 3")
            X.I(f"s_mul_i32 s36, s36, {RT}")
            X.I(f"v_add_u32 v{VO+n}, s36, v2")
        for n in range(5):
            X.I(f"v_add_u32 v{VO+4+n}, {n*RT}, v2")
        X.I(f"s_mul_i32 s36, s60, {4*RT}")
        mk_srd(X, SA, 30, 31, 4 * RT, 36, H1F_OFF if isG else HF_OFF)
        X.I(f"s_mul_i32 s36, s61, {5*RT}")
        mk_srd(X, SB0, 30, 31, 5 * RT, 36, W2F_OFF if isG else CF_OFF)
        X.I(f"s_mul_i32 s63, s35, {NS*1024}")
        X.I("s_lshl_b32 s36, s60, 6")
        X.I("s_lshr_b32 s37, s35, 1")
        X.I("s_lshl_b32 s37, s37, 5")
        X.I("s_add_u32 s36, s36, s37")
        X.I("s_and_b32 s37, s35, 1")
        X.I("s_lshl_b32 s37, s37, 2")
        X.I("s_add_u32 s65, s36, s37")
        X.I("s_mul_i32 s66, s61, 160")
        X.I("s_waitcnt lgkmcnt(0)")
        X.lg = []
        EV = VO + 10
        NP = int(os.environ.get("NP", "4")) if isG else 0
        GP0, GPS = 61440, 23552
        ep = []
        if isG:
            SX, SP, SD = 48, 64 + 4, 20
            X.I(f"s_mul_i32 s62, s35, {GPS}")
            X.I(f"s_add_u32 s62, s62, {GP0}")
            X.I("s_add_u32 s67, s62, 20480")
            mk_srd(X, SX, 24, 25, 1966080)
            X.I(f"s_mul_i32 s64, s35, {12*40960}")
            X.I("s_add_u32 s64, s64, s66")
            cnt_wait(X, f"{L}p0", 4, 5, CNT_L + 40, 1)
            cnt_wait(X, f"{L}p1", 4, 5, CNT_L, 4)
            for e in range(5):
                X.I(f"v_add_u32 v4, {64*e}, v0")
                X.I("v_mul_u32_u24 v5, 6554, v4")
                X.I("v_lshrrev_b32 v5, 16, v5")
                X.I("v_mul_u32_u24 v6, 10, v5")
                X.I("v_sub_u32 v4, v4, v6")
                X.I("v_mul_u32_u24 v5, 1280, v5")
                X.I("v_lshl_add_u32 v4, v4, 4, v5")
                for q in range(NP):
                    X.I(f"s_add_u32 s36, s64, {40960*(q+12-NP)}")
                    X.I(f"s_add_u32 m0, s62, {5120*q+1024*e}")
                    X.I(f"buffer_load_dwordx4 v4, s[{SX}:{SX+3}], s36 offen lds")
            X.I("v_lshrrev_b32 v4, 1, v1")
            X.I("v_lshlrev_b32 v4, 4, v4")
            X.I("v_and_b32 v5, 1, v1")
            X.I("v_lshl_add_u32 v4, v5, 2, v4")
            X.I("v_lshrrev_b32 v5, 2, v3")
            X.I("v_add_u32 v4, v4, v5")
            X.I("v_mul_u32_u24 v4, 160, v4")
            X.I("v_and_b32 v5, 3, v3")
            X.I("v_lshl_add_u32 v4, v5, 3, v4")
            X.I(f"v_add_u32 v{EV+3}, s62, v4")
            mk_srd(X, SX, 4, 5, 2621440)
            mk_srd(X, SP, 8, 9, 1280)
            mk_srd(X, SD, 6, 7, 1280)
            X.I("s_mul_i32 s64, s65, 1280")
            X.I("s_add_u32 s64, s64, s66")
            for e in range(3):
                X.I(f"v_add_u32 v4, {64*e}, v0")
                X.I("v_min_u32 v4, 159, v4")
                X.I("v_mul_u32_u24 v5, 6554, v4")
                X.I("v_lshrrev_b32 v5, 16, v5")
                X.I("v_mul_u32_u24 v6, 10, v5")
                X.I("v_sub_u32 v4, v4, v6")
                X.I("v_lshrrev_b32 v6, 2, v5")
                X.I("v_lshl_add_u32 v5, v6, 2, v5")
                X.I("v_mul_u32_u24 v5, 1280, v5")
                X.I(f"v_lshl_add_u32 v{8+e}, v4, 4, v5")
                if e == 2: X.I("s_mov_b64 exec, 0xffffffff")
                X.I(f"s_add_u32 m0, s67, {1024*e}")
                X.I(f"buffer_load_dwordx4 v{8+e}, s[{SX}:{SX+3}], s64 offen lds")
                if e == 2: X.I("s_mov_b64 exec, -1")
            X.I("v_lshlrev_b32 v11, 2, v0")
            X.I("v_min_u32 v11, 156, v11")
            X.I("s_mov_b32 exec_hi, 0xff")
            X.I("s_add_u32 m0, s67, 2560")
            X.I(f"buffer_load_dword v11, s[{SP}:{SP+3}], s66 offen lds")
            X.I("s_add_u32 m0, s67, 2720")
            X.I(f"buffer_load_dword v11, s[{SD}:{SD+3}], s66 offen lds")
            X.I("s_mov_b64 exec, -1")
        RC = CNT_L + (80 if isG else 84)
        X.I("s_cmp_lg_u32 s35, 0")
        X.I(f"s_cbranch_scc1 {L}pw")
        X.I(f"s_mul_i32 s36, s33, {AGG_G}")
        mk_srd(X, SAGB, 30, 31, AGG_G, 36, AGG_OFF)
        X.I("s_lshl_b32 s36, s32, 7")
        X.I(f"s_add_u32 s36, s36, {GO_O}")
        X.I("v_mov_b32 v4, s36")
        X.I("s_mov_b32 s39, 0")
        if not isG: X.I("v_mov_b32 v7, 0") if False else None
        X.label(f"{L}go")
        X.I(f"v_readfirstlane_b32 s36, v{7 if isG else 15}")
        X.I("s_add_u32 s39, s39, 1")
        X.I(f"s_cmp_eq_u32 s36, {TAG}")
        X.I(f"s_cbranch_scc1 {L}god")
        X.I(f"buffer_load_dword v{7 if isG else 15}, v4, s[{SAGB}:{SAGB+3}], 0 offen sc1")
        X.I("s_waitcnt vmcnt(0)")
        X.I("s_cmp_lt_u32 s39, 0x100000")
        X.I(f"s_cbranch_scc1 {L}go")
        X.label(f"{L}god")
        X.I(f"v_mov_b32 v6, {TAG}")
        X.I("s_lshr_b32 s36, s60, 1")
        X.I("s_lshl_b32 s36, s36, 7")
        if not isG: X.I("s_add_u32 s36, s36, 2048")
        X.I("v_lshlrev_b32 v4, 2, v3")
        X.I("v_add_u32 v4, s36, v4")
        X.I("s_lshl_b32 s36, s61, 7")
        X.I("s_add_u32 s36, s36, 4096")
        X.I("v_lshlrev_b32 v5, 2, v0")
        X.I("v_add_u32 v5, s36, v5")
        X.I("v_cmp_gt_u32 vcc, 32, v0")
        X.I("v_cndmask_b32 v4, v4, v5, vcc")
        X.I("s_mov_b32 s39, 0")
        X.label(f"{L}fl")
        X.I(f"buffer_load_dword v5, v4, s[{SFL}:{SFL+3}], 0 offen sc1")
        X.I("s_waitcnt vmcnt(0)")
        X.I("v_cmp_eq_u32 vcc, v5, v6")
        X.I("s_add_u32 s39, s39, 1")
        X.I("s_cmp_eq_u64 vcc, -1")
        X.I(f"s_cbranch_scc1 {L}fld")
        X.I("s_sleep 2")
        X.I("s_cmp_lt_u32 s39, 0x100000")
        X.I(f"s_cbranch_scc1 {L}fl")
        X.label(f"{L}fld")
        if LDF == "":
            X.raw("    buffer_inv sc1")
            X.I("s_waitcnt vmcnt(0)")
        cnt_add(X, 4, 5, RC)
        X.label(f"{L}pw")
        cnt_wait(X, f"{L}pwl", 4, 5, RC, 1)
        X.vm = []
        stamp()
        def stage(s): return STG + (s % D) * 36
        def issue(s):
            b = stage(s)
            Lx = []
            for n in range(4):
                Lx.append([(f"buffer_load_dwordx4 {vr(b+4*n,4)}, v{VO+n}, s[{SA}:{SA+3}], s63 offen offset:{(s%4)*1024}{LDF}", f"st{s}")])
            for n in range(5):
                if s >= NS - NP:
                    Lx.append([(f"ds_read_b64_tr_b16 {vr(b+16+4*n+2*e,2)}, v{EV+3} offset:{5120*(s-NS+NP)+1280*e+32*n}", f"lr{s}") for e in range(2)])
                else:
                    Lx.append([(f"buffer_load_dwordx4 {vr(b+16+4*n,4)}, v{VO+4+n}, s[{SB0}:{SB0+3}], s63 offen offset:{(s%4)*1024}{LDF}", f"st{s}")])
            if s % 4 == 3: Lx[-1].append(("s_add_u32 s63, s63, 4096", None))
            return Lx
        if not isG: X.I("s_setprio 0")
        for s in range(D - 1): emit(X, issue(s))
        if isG:
            mk_srd(X, SAGB, 30, 31, 16384, None, STATS_OFF)
            X.I("s_lshl_b32 s38, s65, 2")
            X.I("v_lshrrev_b32 v4, 2, v3")
            X.I("v_lshl_add_u32 v4, v4, 2, v3")
            X.I("v_lshlrev_b32 v4, 2, v4")
            X.I("v_add_u32 v5, 8192, v4")
            X.I(f"buffer_load_dword v{EV}, v4, s[{SAGB}:{SAGB+3}], s38 offen sc1", tag="ep")
            X.I(f"buffer_load_dword v{EV+1}, v5, s[{SAGB}:{SAGB+3}], s38 offen sc1", tag="ep")
        DB = GP0 if isG else 0
        if isG: PRIV = GPS
        else: X.I(f"s_mul_i32 s62, s35, {PRIV}")
        DW = EV + 2
        X.I(f"v_add_u32 v{DW}, s62, v2")
        for s in range(NS):
            X.wait_vm(f"st{s}")
            X.wait_lg(f"lr{s}")
            b = stage(s)
            side = issue(s + D - 1) if s + D - 1 < NS else []
            if s == NP + 1: side = side + ep
            mm = []
            order = [1, 2, 3, 0] if s == NS - 1 else range(4)
            for n in order:
                for dt in range(5):
                    ac = vr(ACC + (n * 5 + dt) * 4, 4)
                    mm.append(f"v_mfma_f32_16x16x32_bf16 {ac}, {vr(b+16+4*dt,4)}, {vr(b+4*n,4)}, {'0' if s == 0 else ac}")
            if s == NS - 1:
                cnt_wait(X, f"{L}w1", 4, 5, CNT_L + 36, 8)
                for k, m in enumerate(mm):
                    X.I(m)
                    j = k - 7
                    if 0 <= j < 15: X.I(f"ds_write_b128 v{DW}, {vr(ACC+20+4*j,4)} offset:{1024*j}")
                for j in (13, 14): X.I(f"ds_write_b128 v{DW}, {vr(ACC+20+4*j,4)} offset:{1024*j}")
            else:
                merge(X, mm, side, 0.9)
        stamp()
        cnt_add(X, 4, 5, CNT_L + (48 if isG else 56))
        for k in range(1, 4):
            X.I(f"s_add_u32 s36, s35, {k}")
            X.I("s_and_b32 s36, s36, 3")
            X.I(f"s_mul_i32 s36, s36, {PRIV}")
            X.I(f"s_add_u32 s36, s36, {DB + (3 - k) * 5120}")
            X.I(f"v_add_u32 v{6+k}, s36, v2")
        cnt_wait(X, f"{L}w2", 4, 5, CNT_L + (48 if isG else 56), 4)
        RD = STG
        for dt in range(5):
            for k in range(3):
                X.I(f"ds_read_b128 {vr(RD+(dt*3+k)*4,4)}, v{7+k} offset:{1024*dt}", tag=f"p{dt}")
        if isG:
            T = ACC + 20; BS = ACC + 40; DS_ = ACC + 60
            X.I("v_lshlrev_b32 v10, 3, v1")
            X.I("v_add_u32 v10, s67, v10")
            X.I("v_mul_u32_u24 v11, 160, v3")
            X.I("v_add_u32 v11, v11, v10")
            for dt in range(5):
                X.I(f"ds_read_b64 {vr(T+4*dt+2,2)}, v10 offset:{2560+32*dt}", tag="e")
                X.I(f"ds_read_b64 {vr(DS_+4*dt+2,2)}, v10 offset:{2720+32*dt}", tag="e")
                X.I(f"ds_read_b64 {vr(BS+4*dt+2,2)}, v11 offset:{32*dt}", tag="e")
        for dt in range(5):
            X.wait_lg(f"p{dt}")
            a = ACC + 4 * dt; r0 = RD + dt * 12
            for r in range(4): X.I(f"v_add_f32 v{a+r}, v{a+r}, v{r0+r}")
            for r in range(4): X.I(f"v_add_f32 v{r0+4+r}, v{r0+4+r}, v{r0+8+r}")
            for r in range(4): X.I(f"v_add_f32 v{a+r}, v{a+r}, v{r0+4+r}")
        if isG:
            X.wait_lg()
            cnt_add(X, 4, 5, CNT_L + 52)
            X.I("s_mov_b32 s36, 0xffff0000")
            X.I(f"s_mov_b32 s37, {NEG_LOG2E}")
            for q in [T + 4 * dt for dt in range(5)] + [BS + 4 * dt for dt in range(5)] + [DS_ + 4 * dt for dt in range(5)]:
                X.I(f"v_lshlrev_b32 v{q}, 16, v{q+2}")
                X.I(f"v_and_b32 v{q+1}, s36, v{q+2}")
                X.I(f"v_lshlrev_b32 v{q+2}, 16, v{q+3}")
                X.I(f"v_and_b32 v{q+3}, s36, v{q+3}")
            for e in range(20): X.I(f"v_add_f32 v{ACC+e}, v{ACC+e}, v{T+e}")
            for e in range(20): X.I(f"v_mul_f32 v{T+e}, s37, v{ACC+e}")
            for e in range(20): X.I(f"v_exp_f32 v{T+e}, v{T+e}")
            for e in range(20): X.I(f"v_add_f32 v{T+e}, 1.0, v{T+e}")
            for e in range(20): X.I(f"v_rcp_f32 v{T+e}, v{T+e}")
            for e in range(20): X.I(f"v_mul_f32 v{ACC+e}, v{ACC+e}, v{T+e}")
            for e in range(20): X.I(f"v_fma_f32 v{T+e}, v{BS+e}, v{EV+1}, -v{EV}")
            for e in range(20): X.I(f"v_mul_f32 v{DS_+e}, v{DS_+e}, v{ACC+e}")
            for e in range(20): X.I(f"v_fmac_f32 v{BS+e}, v{T+e}, v{DS_+e}")
            cnt_wait(X, f"{L}w3", 4, 5, CNT_L + 52, 4)
            for dt in range(5):
                X.I(f"ds_write_b128 v{DW}, {vr(ACC+4*dt,4)} offset:{1024*dt}")
                X.I(f"ds_write_b128 v{DW}, {vr(BS+4*dt,4)} offset:{5120+1024*dt}")
            X.I("s_lshl_b32 s38, s35, 2")
            X.I(f"s_add_u32 s38, s38, {CNT_L+64}")
            cnt_add(X, 4, 5, "s38")
            X.wait_lg()
        else:
            SO = 48
            mk_srd(X, SO, 10, 11, 5242880)
            X.I("v_lshrrev_b32 v4, 2, v3")
            X.I("v_lshl_add_u32 v4, v4, 2, v3")
            X.I("v_add_u32 v4, s65, v4")
            X.I("v_mul_u32_u24 v10, 2560, v4")
            X.I("v_lshl_add_u32 v10, v1, 4, v10")
            X.I("s_lshl_b32 s66, s66, 1")
            X.I(f"s_mul_i32 s67, s35, {GPS}")
            X.I(f"s_add_u32 s67, s67, {GP0}")
            X.I("v_add_u32 v11, s67, v2")
            X.I("s_lshl_b32 s38, s35, 2")
            X.I(f"s_add_u32 s38, s38, {CNT_L+64}")
            cnt_wait(X, f"{L}w3", 4, 5, "s38", 1)
            GQ = ACC + 20; BQ = ACC + 40
            for dt in range(5):
                X.I(f"ds_read_b128 {vr(GQ+4*dt,4)}, v11 offset:{1024*dt}", tag=f"g{dt}")
                X.I(f"ds_read_b128 {vr(BQ+4*dt,4)}, v11 offset:{5120+1024*dt}", tag=f"g{dt}")
            if "coal" in dbg:
                X.I("v_mul_u32_u24 v12, 320, v3")
                X.I("v_lshl_add_u32 v12, v1, 4, v12")
                X.I("v_add_u32 v12, s67, v12")
                OVO = RD
                for e in range(5):
                    X.I(f"v_add_u32 v4, {64*e}, v0")
                    X.I("v_mul_u32_u24 v5, 3277, v4")
                    X.I("v_lshrrev_b32 v5, 16, v5")
                    X.I("v_mul_u32_u24 v6, 20, v5")
                    X.I("v_sub_u32 v4, v4, v6")
                    X.I("v_lshrrev_b32 v6, 2, v5")
                    X.I("v_lshl_add_u32 v5, v6, 2, v5")
                    X.I("v_add_u32 v5, s65, v5")
                    X.I("v_mul_u32_u24 v5, 2560, v5")
                    X.I(f"v_lshl_add_u32 v{OVO+e}, v4, 4, v5")
            for dt in range(5):
                X.wait_lg(f"g{dt}")
                for r in range(4): X.I(f"v_fmac_f32 v{BQ+4*dt+r}, v{ACC+4*dt+r}, v{GQ+4*dt+r}")
                if "coal" in dbg:
                    X.I(f"ds_write_b128 v12, {vr(BQ+4*dt,4)} offset:{10240+64*dt}")
                else:
                    X.I(f"buffer_store_dwordx4 {vr(BQ+4*dt,4)}, v10, s[{SO}:{SO+3}], s66 offen offset:{64*dt}{os.environ.get('STF2','')}")
            if "coal" in dbg:
                for e in range(5):
                    X.I(f"ds_read_b128 {vr(GQ+4*e,4)}, v11 offset:{10240+1024*e}", tag=f"o{e}")
                for e in range(5):
                    X.wait_lg(f"o{e}")
                    X.I(f"buffer_store_dwordx4 {vr(GQ+4*e,4)}, v{OVO+e}, s[{SO}:{SO+3}], s66 offen{os.environ.get('STF2','')}")
    def adv():
        return [("s_add_u32 s26, s26, 1", None), ("s_cmp_eq_u32 s26, 10", None), ("s_cselect_b32 s26, 0, s26", None)]

    S = Stream(A)
    stamp, st = mkstamp(S)
    ACC = 16
    BUF = 56
    CA, CSB, CCO, CCX, CAS, CSBS = 168, 173, 178, 183, 188, 193
    A8, SB8, A128, SB128 = 198, 200, 202, 204
    SUM, SQ, ONE = 206, 214, 222
    MRV, RV = 226, 234
    DV = 246
    vG_, vC_, vSg = 1, 2, 3
    SX, SBBS = 40, 44
    if "early" in dbg: stamp()
    S.I(f"s_mul_i32 s36, s32, {128*1280}")
    mk_srd(S, SX, 4, 5, 128 * 1280, 36)
    S.I("v_lshrrev_b32 v4, 3, v0")
    S.I("v_and_b32 v5, 7, v0")
    S.I("v_and_b32 v6, 2, v4")
    S.I("v_lshrrev_b32 v7, 2, v4")
    S.I("v_or_b32 v6, v6, v7")
    S.I("v_xor_b32 v6, v6, v5")
    S.I("s_mul_i32 s36, s35, 40960")
    S.I("v_mul_u32_u24 v7, 1280, v4")
    S.I("v_add_u32 v8, s36, v7")
    for e in range(4):
        S.I(f"v_xor_b32 v9, {4 if e >= 2 else 0}, v6")
        S.I(f"v_lshl_add_u32 v{DV+e}, v9, 4, v8")
        if e: S.I(f"v_add_u32 v{DV+e}, {10240*e}, v{DV+e}")
    S.I("v_xor_b32 v9, v4, v5")
    S.I(f"v_lshl_add_u32 v{DV+4}, v9, 4, v7")
    S.I("s_lshl_b32 s37, s35, 12")
    S.I("s_mov_b32 s36, s35")
    bb_srd(S, SBBS, 27)
    def s_dma(p):
        q = p % 4
        L = []
        for e in range(4):
            g = [(f"s_add_u32 m0, s37, {q*SLOT + 1024*e}", None), (f"buffer_load_dwordx4 v{DV+e}, s[{SX}:{SX+3}], s38 offen lds", f"c{p}")]
            if e == 0: g = [("s_lshl_b32 s38, s26, 7", None)] + g
            L.append(g)
        L.append([(f"s_add_u32 m0, s27, {q*SLOT}", None), (f"buffer_load_dwordx4 v{DV+4}, s[{SBBS}:{SBBS+3}], s38 offen lds", f"c{p}")] + adv())
        return L
    S.I(f"v_lshrrev_b32 v{vG_}, 4, v0")
    S.I(f"v_and_b32 v{vC_}, 15, v0")
    if "early" in dbg: stamp()
    emit(S, s_dma(0))
    if "early" in dbg: stamp()
    def pslots(t):
        return (CCO + t, CCX + t, CAS + t) if t < 5 else (A128, SB128, A128 + 1)
    def par_issue():
        S.I("v_and_b32 v11, 7, v0")
        S.I("v_lshlrev_b32 v11, 1, v11")
        S.I(f"v_add_u32 v11, {PAR_L}, v11")
        S.I(f"v_lshlrev_b32 v12, 4, v{vG_}")
        S.I("v_add_u32 v12, v11, v12")
        for t in range(6):
            vo = "v11" if t < 5 else "v12"
            off = 16 * t if t < 5 else 0
            lre, lim, ldt = pslots(t)
            S.I(f"ds_read_u16 v{lre}, {vo} offset:{off}")
            S.I(f"ds_read_u16 v{lim}, {vo} offset:{off+128}")
            S.I(f"ds_read_u16 v{ldt}, {vo} offset:{off+256}")
    SJA, SJB, SWS = 56, 60, 64
    TT = BUF + 48
    S.I(f"v_lshrrev_b32 v{TT}, 2, v{vC_}")
    S.I(f"v_and_b32 v{TT+1}, 3, v{vC_}")
    S.I(f"v_lshlrev_b32 v{TT+2}, 3, v{TT}")
    S.I(f"v_add_u32 v{TT+2}, v{TT+2}, v{TT+1}")
    S.I("s_lshl_b32 s36, s35, 5")
    S.I(f"v_add_u32 v{TT+2}, s36, v{TT+2}")
    S.I(f"v_lshlrev_b32 v{TT+2}, 7, v{TT+2}")
    S.I(f"v_lshrrev_b32 v{TT+3}, 1, v{TT}")
    S.I(f"v_lshlrev_b32 v{TT+3}, 2, v{TT+3}")
    S.I(f"v_and_b32 v{TT+4}, 2, v{TT+1}")
    S.I(f"v_or_b32 v{TT+3}, v{TT+3}, v{TT+4}")
    S.I(f"v_xor_b32 v{TT+3}, v{TT+3}, v{vG_}")
    for T in range(2):
        for sp in range(2):
            d = 4 + 2 * T + sp
            S.I(f"v_xor_b32 v{TT+4}, {(4*sp) ^ T}, v{TT+3}")
            S.I(f"v_lshl_add_u32 v{d}, v{TT+4}, 4, v{TT+2}")
            if T: S.I(f"v_add_u32 v{d}, 512, v{d}")
    S.I(f"v_and_b32 v{TT}, 7, v{vC_}")
    S.I(f"v_xor_b32 v{TT}, v{TT}, v{vG_}")
    S.I(f"v_lshlrev_b32 v{TT+1}, 7, v{vC_}")
    for sp in range(2):
        S.I(f"v_xor_b32 v{TT+2}, {4*sp}, v{TT}")
        S.I(f"v_lshl_add_u32 v{8+sp}, v{TT+2}, 4, v{TT+1}")
        S.I(f"v_add_u32 v{8+sp}, {BB_O}, v{8+sp}")
    for k in range(4): S.I(f"v_mov_b32 v{ONE+k}, 0x3f803f80")
    S.I(f"v_mul_u32_u24 v10, 80, v{vG_}")
    S.I(f"v_lshrrev_b32 v{vSg}, 3, v{vC_}")
    S.I(f"v_cvt_f32_u32 v{vSg}, v{vSg}")
    S.I(f"v_fma_f32 v{vSg}, v{vSg}, 2.0, -1.0")
    S.I(f"s_mov_b32 s20, {LOG2E}")
    S.I(f"s_mov_b32 s21, {INV2PI}")
    def powr(ar, rev, n, da, dsb, t0):
        L = []
        if n is None:
            L.append(f"v_exp_f32 v{t0}, v{ar}")
            L.append(f"v_fract_f32 v{t0+1}, v{rev}")
        else:
            L.append(f"v_mul_f32 v{t0}, {n}, v{ar}")
            L.append(f"v_mul_f32 v{t0+1}, {n}, v{rev}")
            L.append(f"v_exp_f32 v{t0}, v{t0}")
            L.append(f"v_fract_f32 v{t0+1}, v{t0+1}")
        L.append(f"v_cos_f32 v{t0+2}, v{t0+1}")
        L.append(f"v_sin_f32 v{t0+3}, v{t0+1}")
        L.append(f"v_mul_f32 v{t0+3}, v{t0}, v{t0+3}")
        L.append(f"v_mul_f32 v{da}, v{t0}, v{t0+2}")
        L.append(f"v_mul_f32 v{dsb}, v{t0+3}, v{vSg}")
        return L
    def arrev(t):
        return (CAS + t, CSBS + t) if t < 5 else (A128, SB128)
    partA = ["s_lshl_b32 s36, s35, 2", f"v_add_u32 v245, s36, v{vG_}", "v_lshlrev_b32 v245, 3, v245", "v_cvt_f32_u32 v245, v245"]
    for t in range(6):
        lre, lim, ldt = pslots(t)
        ar, rev = 242, 243
        partA += [f"v_lshlrev_b32 v{lre}, 16, v{lre}", f"v_lshlrev_b32 v{lim}, 16, v{lim}", f"v_lshlrev_b32 v11, 16, v{ldt}",
                  "v_mul_f32 v11, s20, v11", "v_exp_f32 v11, v11", "v_cvt_pk_bf16_f32 v11, 0, v11",
                  f"v_mul_f32 v12, v11, v{lre}", f"v_mul_f32 v13, v11, v{lim}",
                  f"v_mul_f32 v{ar}, s20, v12", f"v_mul_f32 v{rev}, s21, v13"]
        if t < 5:
            partA += powr(ar, rev, None, CA + t, CSB + t, 11)
            partA += [f"v_add_f32 v11, -1.0, v{CA+t}", f"v_mul_f32 v12, v{lre}, v{lre}", f"v_fmac_f32 v12, v{lim}, v{lim}",
                      "v_rcp_f32 v12, v12", f"v_mul_f32 v13, v11, v{lre}", f"v_fmac_f32 v13, v14, v{lim}",
                      f"v_mul_f32 v244, v14, v{lre}", f"v_fma_f32 v244, -v11, v{lim}, v244", "v_mul_f32 v12, -2.0, v12",
                      f"v_mul_f32 v{CCX+t}, v244, v12", "v_mul_f32 v13, v13, v12", f"v_mul_f32 v{CCO+t}, v13, v{vSg}"]
            partA += powr(ar, rev, "v245", CAS + t, CSBS + t, 11)
        if t >= 4:
            k = 1 if t == 4 else 0
            partA += powr(ar, rev, f"{f2u(8.0)}", A8 + k, SB8 + k, 11)
            partA += powr(ar, rev, f"{f2u(128.0)}", 254 if t == 4 else A128, 255 if t == 4 else SB128, 11)
    partA += [f"v_mov_b32 v{A128+1}, v254", f"v_mov_b32 v{SB128+1}, v255"]
    SAG, SST = 48, 52
    S.I(f"s_mul_i32 s36, s33, {AGG_G}")
    mk_srd(S, SAG, 30, 31, AGG_G, 36, AGG_OFF)
    emit(S, s_dma(1))
    S.raw(";;DRYPT")
    stamp()
    def s_reads(p):
        b = BUF + (p & 1) * 56
        L = []
        for sp in range(2):
            for T in range(2):
                L.append([(f"ds_read_b128 {vr(b+(sp*2+T)*4,4)}, v{4+2*T+sp}", f"r{p}")])
            for j in range(5):
                L.append([(f"ds_read_b128 {vr(b+16+(sp*5+j)*4,4)}, v{8+sp} offset:{2048*j}", f"r{p}")])
        delta = SLOT if p % 4 != 3 else (-3 * SLOT) & 0xffffffff
        L.append([(f"v_add_u32 v{k}, {delta}, v{k}", None) for k in range(4, 10)])
        return L
    def s_stat(p):
        b = BUF + (p & 1) * 56
        L = []
        for sp in range(2):
            for T in range(2):
                x = vr(b + (sp * 2 + T) * 4, 4)
                z = (p == 0 and sp == 0)
                L.append(f"v_mfma_f32_16x16x32_bf16 {vr(SUM+4*T,4)}, {x}, {vr(ONE,4)}, {'0' if z else vr(SUM+4*T,4)}")
                L.append(f"v_mfma_f32_16x16x32_bf16 {vr(SQ+4*T,4)}, {x}, {x}, {'0' if z else vr(SQ+4*T,4)}")
        return L
    def s_mfma(p):
        b = BUF + (p & 1) * 56
        L = []
        for sp in range(2):
            for j in range(5):
                for T in range(2):
                    ac = ACC + 8 * j + 4 * T
                    c = "0" if (p == 0 and sp == 0) else vr(ac, 4)
                    L.append(f"v_mfma_f32_16x16x32_bf16 {vr(ac,4)}, {vr(b+(sp*2+T)*4,4)}, {vr(b+16+(sp*5+j)*4,4)}, {c}")
        return L
    for p in range(10):
        S.wait_vm(f"c{p}")
        S.I("s_barrier")
        stamp(True)
        if p in (0, 9): stamp()
        side = s_dma(p + 3) if p + 3 <= 9 else []
        if p == 0: side = s_dma(2)
        if p == 1: side = s_dma(3) + side
        rd = s_reads(p)
        if p == 2:
            par_issue()
        fill = []
        if 3 <= p <= 8:
            nper = (len(partA) + 5) // 6
            fill = [[(m, None)] for m in partA[(p - 3) * nper:(p - 2) * nper]]
        if p == 9:
            fill += [[("s_lshl_b32 s36, s32, 7", None), (f"s_add_u32 s36, s36, {GO_O}", None), ("v_mov_b32 v15, s36", None),
                      (f"buffer_load_dword v15, v15, s[{SAG}:{SAG+3}], 0 offen sc1", "clr")]]
        if "dmaonly" in dbg: emit(S, side)
        elif p == 0: emit(S, rd + side + fill)
        else: merge(S, s_stat(p - 1) + s_mfma(p - 1), mix(mix(rd, side), fill), 0.9)
        S.wait_lg()
    S.raw(";;DRYSTART")
    if "fine" in dbg: stamp()
    for m in s_stat(9): S.I(m)
    mm = s_mfma(9)
    CSV = BUF + 16
    S.I(f"v_lshlrev_b32 v12, 2, v{vC_}")
    for m in mm[:5]: S.I(m)
    for T in range(2):
        for r in range(4):
            S.I(f"ds_bpermute_b32 v{SQ+4*T+r}, v10, v{SQ+4*T+r} offset:{4*r}", tag="bp")
    for m in mm[5:9]: S.I(m)
    S.wait_lg("bp")
    if "fine" in dbg: stamp()
    fin = []
    K640 = f2u(1.0 / 640)
    for step in range(12):
        for k in range(8):
            su, sq = SUM + k, SQ + k
            fin.append([
                f"v_mul_f32 v{su}, {K640}, v{su}",
                f"v_mul_f32 v{sq}, {K640}, v{sq}",
                f"v_fma_f32 v{sq}, -v{su}, v{su}, v{sq}",
                f"v_max_f32 v{sq}, 0, v{sq}",
                f"v_cvt_pk_bf16_f32 v{su}, 0, v{su}",
                f"v_cvt_pk_bf16_f32 v{sq}, 0, v{sq}",
                f"v_add_f32 v{sq}, {f2u(1e-5)}, v{sq}",
                f"v_cvt_pk_bf16_f32 v{sq}, 0, v{sq}",
                f"v_sqrt_f32 v{sq}, v{sq}",
                f"v_cvt_pk_bf16_f32 v{sq}, 0, v{sq}",
                f"v_rcp_f32 v{RV+k}, v{sq}",
                f"v_mul_f32 v{MRV+k}, v{su}, v{RV+k}"][step])
    adds = ["s_lshl_b32 s36, s35, 7", f"v_lshlrev_b32 v13, 5, v{vG_}", "v_add_u32 v13, s36, v13", f"v_add_u32 v14, {STATS_L}, v13",
             "s_mul_i32 s36, s35, 1280", f"v_mul_u32_u24 v6, 320, v{vG_}", "v_add3_u32 v6, v6, v12, s36", f"v_add_u32 v7, {SEG_L}, v6",
             "v_lshlrev_b32 v8, 2, v0", f"v_add_u32 v9, {SEG_L}, v8", "v_mov_b32 v10, v12", f"v_add_u32 v11, {SEG_L+256}, v10",
             "s_lshl_b32 s38, s35, 2", f"s_add_u32 s38, s38, {CNT_L+16}", f"v_add_u32 v13, {CSB_L}, v12"]
    fin = fin[:40] + adds + fin[40:]
    merge(S, mm[9:], [[(m, None)] for m in fin], 1.0)
    stamp()
    cnt_wait(S, f"L_{name}_e0", 4, 5, CNT_L + 4, 4)
    S.I("s_setprio 3" if "sprio" in dbg else "s_setprio 2")
    if "f2" in dbg: stamp()
    for wv in range(4):
        for j in range(5):
            S.I(f"ds_read_b32 v{CSV+5*wv+j}, v13 offset:{320*wv+64*j}", tag="stt")
    S.I("s_mov_b32 exec_lo, 0x00010001")
    S.I("s_mov_b32 exec_hi, 0x00010001")
    for k in range(2):
        S.I(f"ds_write_b128 v14, {vr(MRV+4*k,4)} offset:{16*k}")
        S.I(f"ds_write_b128 v14, {vr(RV+4*k,4)} offset:{512+16*k}")
    cnt_add(S, 4, 5, "s38")
    for t2 in range(4):
        for j in range(5):
            a = ACC + 8 * j + 2 * t2
            S.I(f"v_mul_f32 v{a}, v{a}, v{RV+2*t2}")
            S.I(f"v_mul_f32 v{a+1}, v{a+1}, v{RV+2*t2+1}")
    S.wait_lg("stt")
    if "f2" in dbg: stamp()
    for j in range(5):
        S.I(f"v_add_f32 v{CSV+j}, v{CSV+j}, v{CSV+5+j}")
        S.I(f"v_add_f32 v{CSV+10+j}, v{CSV+10+j}, v{CSV+15+j}")
    for j in range(5):
        S.I(f"v_add_f32 v{CSV+j}, v{CSV+j}, v{CSV+10+j}")
    EA, EB = BUF + 40, BUF + 45
    cur = None
    for tl in range(8):
        for j in range(5):
            a = ACC + 8 * j + tl
            S.I(f"v_fma_f32 v{a}, -v{MRV+tl}, v{CSV+j}, v{a}")
        if tl == 0:
            cur = [ACC + 8 * j for j in range(5)]
        else:
            dst = EA if tl & 1 else EB
            for j in range(5):
                S.I(f"v_fma_f32 v{dst+j}, v{CA+j}, v{cur[j]}, v{ACC+8*j+tl}")
            for j in range(5):
                S.I(f"v_fmac_f32_dpp v{dst+j}, v{cur[j]}, v{CSB+j} {DPP}")
            cur = [dst + j for j in range(5)]
    if "f2" in dbg: stamp()
    for j in range(5):
        S.I(f"ds_write_b32 v7, v{cur[j]} offset:{64*j}")
    cnt_add(S, 4, 5, CNT_L)
    S.I("s_waitcnt vmcnt(0)")
    S.vm = []
    if "f2" in dbg: stamp()
    cnt_wait(S, f"L_{name}_x1", 4, 5, CNT_L, 4)
    stamp()
    EC = BUF + 56
    for s_ in range(16):
        S.I(f"ds_read_b32 v{EC+s_}, v9 offset:{320*s_}", tag=f"e{s_}")
        S.I(f"ds_read_b32 v{EC+16+s_}, v11 offset:{320*s_}", tag=f"e{s_}")
    S.I("v_lshlrev_b32 v4, 3, v0")
    S.I(f"v_lshlrev_b32 v5, 3, v{vC_}")
    PB = BUF + 90
    S.I(f"v_mov_b32 v{PB+1}, {TAG}")
    S.I(f"v_mov_b32 v{PB+3}, {TAG}")
    S.I("s_add_u32 s37, s32, 15")
    S.I("s_mul_i32 s37, s37, 640")
    for s_ in range(1, 16):
        S.wait_lg(f"e{s_}")
        for k in range(2):
            S.I(f"v_fmac_f32 v{EC+16*k+s_}, v{A8+k}, v{EC+16*k+s_-1}")
        for k in range(2):
            S.I(f"v_fmac_f32_dpp v{EC+16*k+s_}, v{EC+16*k+s_-1}, v{SB8+k} {DPP}")
    S.I("s_cmp_lg_u32 s35, 0")
    S.I(f"s_cbranch_scc1 L_{name}_nopub")
    S.I(f"v_mov_b32 v{PB}, v{EC+15}")
    S.I(f"v_mov_b32 v{PB+2}, v{EC+31}")
    S.I(f"buffer_store_dwordx2 {vr(PB,2)}, v4, s[{SAG}:{SAG+3}], s37 offen sc1")
    S.vm.pop()
    S.I(f"buffer_store_dwordx2 {vr(PB+2,2)}, v5, s[{SAG}:{SAG+3}], s37 offen offset:512 sc1")
    S.vm.pop()
    S.label(f"L_{name}_nopub")
    S.I("v_mov_b32 v254, v15")
    stamp()
    GL = BUF
    G0, G1 = 206, 221
    QV = BUF + 96
    S.I("v_lshlrev_b32 v252, 4, v0")
    S.I("s_mul_i32 s70, s32, 640")
    S.I("s_add_u32 s71, s70, 4096")
    S.I("s_add_u32 s69, s70, 8192")
    def gran_issue():
        for n in range(10):
            so = "s70" if n < 4 else ("s71" if n < 8 else "s69")
            S.I(f"buffer_load_dwordx4 {vr(GL+4*n,4)}, v252, s[{SAG}:{SAG+3}], {so} offen offset:{(n%4)*1024} sc1")
        S.vm = []
    def qstuff():
        S.I(f"v_add_u32 v9, {Q_L}, v8")
        S.I(f"v_add_u32 v11, {Q_L+256}, v10")
        S.I(f"v_mov_b32 v{PB}, 0")
        S.I(f"ds_write_b32 v9, v{PB}", tag="q")
        for s_ in range(15):
            S.I(f"ds_write_b32 v9, v{EC+s_} offset:{320*(s_+1)}", tag="q")
        S.I("s_mov_b64 exec, 0xffff")
        S.I(f"ds_write_b32 v11, v{PB}", tag="q")
        for s_ in range(15):
            S.I(f"ds_write_b32 v11, v{EC+16+s_} offset:{320*(s_+1)}", tag="q")
        S.I("s_mov_b64 exec, -1")
        S.I(f"v_add_u32 v7, {Q_L}, v6")
        for j in range(5):
            S.I(f"ds_read_b32 v{QV+j}, v7 offset:{64*j}", tag="qv")
    qstuff()
    S.I(f"v_add_u32 v9, {HS_L}, v8")
    S.I(f"v_add_u32 v11, {HS_L}, v10")
    S.I("s_cmp_lg_u32 s35, 0")
    S.I(f"s_cbranch_scc1 L_{name}_hw")
    S.I("s_cmp_eq_u32 s32, 0")
    S.I(f"s_cbranch_scc1 L_{name}_r0")
    S.I("s_mov_b32 s39, 0")
    S.I("s_lshl_b32 s38, s32, 7")
    S.I(f"s_add_u32 s38, s38, {GO_O}")
    S.I("v_mov_b32 v14, s38")
    S.label(f"L_{name}_cl")
    S.I("v_readfirstlane_b32 s38, v15")
    S.I("s_add_u32 s39, s39, 1")
    S.I(f"s_cmp_eq_u32 s38, {TAG}")
    S.I(f"s_cbranch_scc1 L_{name}_clok")
    S.I(f"buffer_load_dword v15, v14, s[{SAG}:{SAG+3}], 0 offen sc1")
    S.I("s_waitcnt vmcnt(0)")
    S.I("s_cmp_lt_u32 s39, 0x100000" if "nosync" not in dbg else "s_cmp_lt_u32 s39, 0")
    S.I(f"s_cbranch_scc1 L_{name}_cl")
    S.label(f"L_{name}_clok")
    S.I("v_mov_b32 v254, v15")
    gran_issue()
    cnt_wait(S, f"L_{name}_m9", 12, 13, CNT_L + 8, 4)
    S.I(f"v_mov_b32 v14, {TAG}")
    S.I(f"v_add_u32 v4, {GR_L}, v4")
    S.I(f"v_add_u32 v5, {GR_L}, v5")
    S.I(f"v_add_u32 v253, {GR_L}, v252")
    S.I("v_cmp_gt_u32 s[22:23], 24, v0")
    S.I("s_sub_u32 s38, 15, s32")
    S.I("s_mul_i32 s38, s38, 640")
    S.I("s_lshr_b32 s38, s38, 10")
    S.I("s_mov_b32 s39, 0")
    S.label(f"L_{name}_gp")
    S.I("s_waitcnt vmcnt(0)")
    S.I(f"v_cndmask_b32 v{GL+37}, v14, v{GL+37}, s[22:23]")
    S.I(f"v_cndmask_b32 v{GL+39}, v14, v{GL+39}, s[22:23]")
    S.I(f"v_and_b32 v12, v{GL+1}, v{GL+3}")
    S.I(f"v_or_b32 v13, v{GL+1}, v{GL+3}")
    for n in range(1, 10):
        S.I(f"v_and_b32 v15, v{GL+4*n+1}, v{GL+4*n+3}")
        S.I(f"v_or3_b32 v13, v13, v{GL+4*n+1}, v{GL+4*n+3}")
        S.I("v_and_b32 v12, v12, v15")
    S.I("v_cmp_eq_u32 vcc, v12, v14")
    S.I("v_cmp_eq_u32 s[24:25], v13, v14")
    S.I("s_and_b64 s[24:25], s[24:25], vcc")
    S.I("s_add_u32 s39, s39, 1")
    S.I("s_cmp_eq_u64 s[24:25], -1")
    S.I(f"s_cbranch_scc1 L_{name}_gpv")
    S.I("s_cmp_ge_u32 s39, 0x40000" if "nosync" not in dbg else "s_cmp_ge_u32 s39, 0")
    S.I(f"s_cbranch_scc1 L_{name}_gpv")
    for n in range(10):
        so = "s70" if n < 4 else ("s71" if n < 8 else "s69")
        if n < 9:
            S.I(f"s_cmp_gt_u32 s38, {n}")
            S.I(f"s_cbranch_scc1 L_{name}_gs{n}")
        S.I(f"buffer_load_dwordx4 {vr(GL+4*n,4)}, v252, s[{SAG}:{SAG+3}], {so} offen offset:{(n%4)*1024} sc1")
        if n < 9: S.label(f"L_{name}_gs{n}")
    S.I(f"s_branch L_{name}_gp")
    S.label(f"L_{name}_gpv")
    for n in range(10):
        S.I(f"ds_write_b128 v253, {vr(GL+4*n,4)} offset:{1024*n}")
    for d in range(15, 0, -1):
        o = (15 - d) * 640
        S.I(f"ds_read_b32 v{G0+d-1}, v4 offset:{o}")
        S.I(f"ds_read_b32 v{G1+d-1}, v5 offset:{o+512}")
    S.I("s_waitcnt lgkmcnt(0)")
    S.label(f"L_{name}_gpok")
    S.lg = []; S.vm = []
    for d in range(14, 0, -1):
        for (g_, k) in ((G0, 0), (G1, 1)):
            S.I(f"v_fmac_f32 v{g_+d-1}, v{A128+k}, v{g_+d}")
        for (g_, k) in ((G0, 0), (G1, 1)):
            S.I(f"v_fmac_f32_dpp v{g_+d-1}, v{g_+d}, v{SB128+k} {DPP}")
    S.I(f"s_branch L_{name}_hp")
    S.label(f"L_{name}_r0")
    S.I(f"v_mov_b32 v{G0}, 0")
    S.I(f"v_mov_b32 v{G1}, 0")
    S.label(f"L_{name}_hp")
    S.I(f"ds_write_b32 v9, v{G0}", tag="h")
    S.I(f"ds_write_b32 v11, v{G1} offset:256", tag="h")
    cnt_add(S, 12, 13, CNT_L + 12)
    S.label(f"L_{name}_hw")
    cnt_wait(S, f"L_{name}_hwl", 12, 13, CNT_L + 12, 1)
    stamp()
    HV = BUF + 32
    for j in range(5):
        S.I(f"ds_read_b32 v{HV+j}, v11 offset:{64*j}", tag="hv")
    S.I(f"v_mul_u32_u24 v9, 272, v{vC_}")
    S.I(f"v_lshlrev_b32 v12, 4, v{vG_}")
    S.I("s_lshl_b32 s36, s35, 6")
    S.I("v_add3_u32 v9, v9, v12, s36")
    S.wait_lg()
    for j in range(5):
        S.I(f"v_fmac_f32 v{QV+j}, v{CAS+j}, v{HV+j}")
    for j in range(5):
        S.I(f"v_fmac_f32_dpp v{QV+j}, v{HV+j}, v{CSBS+j} {DPP}")
    for tl in range(8):
        prev = [QV + j if tl == 0 else ACC + 8 * j + tl - 1 for j in range(5)]
        for j in range(5):
            S.I(f"v_fmac_f32 v{ACC+8*j+tl}, v{CA+j}, v{prev[j]}")
        for j in range(5):
            S.I(f"v_fmac_f32_dpp v{ACC+8*j+tl}, v{prev[j]}, v{CSB+j} {DPP}")
    OV = BUF + 40
    PK = BUF + 80
    for j in range(5):
        p_, sel = pr(CCO + j)
        for t2 in range(4):
            S.I(f"v_pk_mul_f32 {vr(OV+8*j+2*t2,2)}, {vr(ACC+8*j+2*t2,2)}, {p_} op_sel:[0,{sel}] op_sel_hi:[1,{sel}]")
        for tl in range(8):
            S.I(f"v_fmac_f32_dpp v{OV+8*j+tl}, v{ACC+8*j+tl}, v{CCX+j} {DPP}")
        for k in range(4):
            S.I(f"v_cvt_pk_bf16_f32 v{PK+4*j+k}, v{OV+8*j+2*k}, v{OV+8*j+2*k+1}")
        S.I(f"ds_write_b128 v9, {vr(PK+4*j,4)} offset:{16*272*j}", tag="tw")
    S.I(f"v_lshrrev_b32 v11, 2, v{vC_}")
    S.I("v_mul_u32_u24 v11, 272, v11")
    S.I(f"v_and_b32 v4, 3, v{vC_}")
    S.I("v_lshlrev_b32 v4, 4, v4")
    S.I("v_add3_u32 v11, v11, v4, s36")
    S.I(f"v_mul_u32_u24 v4, {8*272}, v{vG_}")
    S.I("v_add_u32 v4, v11, v4")
    S.I(f"v_and_b32 v5, 1, v{vG_}")
    S.I(f"v_mul_u32_u24 v5, {8*272}, v5")
    S.I(f"v_lshrrev_b32 v7, 1, v{vG_}")
    S.I("v_lshlrev_b32 v7, 3, v7")
    S.I("v_add3_u32 v5, v11, v5, v7")
    SHF = 40
    S.I("s_lshl_b32 s36, s32, 2")
    S.I("s_add_u32 s36, s36, s35")
    S.I(f"s_mul_i32 s36, s36, {2*HF_RT}")
    S.I("s_mul_i32 s37, s33, 2560")
    S.I("s_add_u32 s36, s36, s37")
    mk_srd(S, SHF, 30, 31, HF_RT + 2560, 36, HF_OFF)
    S.I("v_lshlrev_b32 v7, 4, v0")
    S.I(f"v_and_b32 v10, 1, v{vG_}")
    S.I("v_lshlrev_b32 v10, 8, v10")
    S.I(f"v_lshlrev_b32 v8, 4, v{vC_}")
    S.I("v_add_u32 v10, v10, v8")
    S.I(f"v_lshrrev_b32 v8, 1, v{vG_}")
    S.I(f"v_mul_u32_u24 v8, {HF_RT}, v8")
    S.I("v_add_u32 v10, v10, v8")
    S.I(f"s_mov_b32 s37, {HF_RT}")
    S.wait_lg()
    RD = BUF
    for n in range(5):
        for e in range(2):
            if n < 4:
                off = (n & 1) * 32 * 272 + e * 4 * 272 + (n >> 1) * 8
                S.I(f"ds_read_b64_tr_b16 {vr(RD+4*n+2*e,2)}, v4 offset:{off}", tag=f"t{n}")
            else:
                S.I(f"ds_read_b64_tr_b16 {vr(RD+4*n+2*e,2)}, v5 offset:{64*272+e*4*272}", tag=f"t{n}")
    for n in range(5):
        S.wait_lg(f"t{n}")
        if n < 4:
            so = "0" if n < 2 else "s37"
            S.I(f"buffer_store_dwordx4 {vr(RD+4*n,4)}, v7, s[{SHF}:{SHF+3}], {so} offen offset:{(n&1)*1024}{STH}", tag="st")
        else:
            S.I(f"buffer_store_dwordx4 {vr(RD+4*n,4)}, v10, s[{SHF}:{SHF+3}], 0 offen offset:2048{STH}", tag="st")
    phaseB(S, "Y", stamp)
    final_stamps(S, st)
    S.I("s_endpgm")

    M = Stream(A)
    M.label(f"L_{name}_M")
    stamp, st = mkstamp(M)
    SBB, SW1, SB1, SH1, SDB, SAGM = 40, 48, 52, 56, 60, 64
    MACC, XB, WB, FR = 24, 72, 104, 200
    CBA, CBF, WA, MSK = FR, FR + 20, FR + 40, FR + 52
    lbl = [0]
    if "early" in dbg: stamp()
    M.I("s_cmp_lg_u32 s35, 3")
    M.I("s_cselect_b64 vcc, -1, 0")
    mk_srd(M, SW1, 20, 21, 1966080)
    M.I("s_mul_i32 s39, s33, 192")
    M.I("s_lshl_b32 s36, s35, 8")
    for e in range(4):
        M.I(f"v_add_u32 v22, {64*e}, v0")
        M.I("v_add_u32 v22, s36, v22")
        M.I("v_min_u32 v22, 767, v22")
        M.I("v_mul_u32_u24 v23, 43691, v22")
        M.I("v_lshrrev_b32 v23, 19, v23")
        M.I("v_mul_u32_u24 v9, 12, v23")
        M.I("v_sub_u32 v22, v22, v9")
        M.I("v_lshlrev_b32 v22, 4, v22")
        M.I("v_mul_u32_u24 v23, 3072, v23")
        M.I(f"v_add3_u32 v{1+e}, v22, v23, s39")
    M.I("s_lshl_b32 s68, s35, 12")
    M.I(f"s_add_u32 s68, s68, {W1_O}")
    M.I("s_lshl_b32 s36, s35, 1")
    M.I("s_add_u32 s36, s36, 4")
    M.I("s_min_u32 s36, s36, 8")
    bb_srd(M, SBB, 69)
    M.I("s_lshl_b32 s36, s35, 1")
    M.I("s_add_u32 s36, s36, 5")
    M.I("s_min_u32 s36, s36, 9")
    bb_srd(M, SBB + 4, 70)
    M.I("v_lshrrev_b32 v22, 3, v0")
    M.I("v_and_b32 v23, 7, v0")
    M.I("v_xor_b32 v13, v22, v23")
    M.I("v_mul_u32_u24 v5, 1280, v22")
    M.I("v_lshl_add_u32 v13, v13, 4, v5")
    def guard(g):
        lbl[0] += 1
        return [(f"s_cbranch_vccz L_{name}_g{lbl[0]}", None)] + g + [(f"L_{name}_g{lbl[0]}:", None)]
    def m_dma(p):
        q = p % 4
        L = []
        g = [("s_lshl_b32 s38, s26, 7", None)]
        for e in range(2):
            g += [(f"s_add_u32 m0, s{69+e}, {q*SLOT}", None), (f"buffer_load_dwordx4 v13, s[{SBB+4*e}:{SBB+4*e+3}], s38 offen lds", f"c{p}")]
        L.append(guard(g))
        for e2 in range(2):
            g = [("s_mul_i32 s71, s26, 196608", None)] if e2 == 0 else []
            for e in (2 * e2, 2 * e2 + 1):
                g += [(f"s_add_u32 m0, s68, {q*SLOT + 1024*e}", None), (f"buffer_load_dwordx4 v{1+e}, s[{SW1}:{SW1+3}], s71 offen lds", f"c{p}")]
            if e2 == 1: g += adv()
            L.append(guard(g))
        return L
    def m_wait(tag):
        lbl[0] += 1
        M.I(f"s_cbranch_vccz L_{name}_g{lbl[0]}")
        M.wait_vm(tag)
        M.label(f"L_{name}_g{lbl[0]}")
    M.vm = []
    if "early" in dbg: stamp()
    emit(M, m_dma(0))
    if "early" in dbg: stamp()
    mk_srd(M, SDB, 28, 29, 256)
    M.I(f"s_mul_i32 s36, s33, {AGG_G}")
    mk_srd(M, SAGM, 30, 31, AGG_G, 36, AGG_OFF)
    for k in range(2): M.I(f"v_mov_b32 v{14+k}, 0")
    for k in range(4): M.I(f"v_mov_b32 v{18+k}, 0x3f803f80")
    savevm = list(M.vm)
    M.I(f"s_cbranch_vccnz L_{name}_noclr")
    M.I("v_min_u32 v8, 19, v0")
    M.I("v_lshlrev_b32 v8, 2, v8")
    M.I("s_mul_i32 s36, s33, 80")
    M.I("v_add_u32 v8, s36, v8")
    M.I("global_load_dword v1, v8, s[6:7]")
    M.I("global_load_dword v2, v8, s[8:9]")
    M.I("global_load_dword v3, v8, s[18:19]")
    M.I("v_min_u32 v8, 47, v0")
    M.I("v_lshlrev_b32 v8, 2, v8")
    M.I("s_mul_i32 s36, s33, 192")
    M.I("v_add_u32 v8, s36, v8")
    M.I("global_load_dword v4, v8, s[22:23]")
    mk_srd(M, SB1, 30, 31, 8192, None, FL_OFF)
    M.I("s_lshl_b32 s36, s32, 7")
    M.I("s_lshl_b32 s39, s33, 2")
    M.I("s_add_u32 s36, s36, s39")
    M.I("v_and_b32 v8, 1, v0")
    M.I("v_lshlrev_b32 v8, 11, v8")
    M.I("v_add_u32 v8, s36, v8")
    M.I("s_and_b32 s36, s2, 7")
    M.I("s_lshr_b32 s39, s2, 3")
    M.I("s_and_b32 s26, s36, 3")
    M.I("s_lshl_b32 s26, s26, 3")
    M.I("s_and_b32 s27, s39, 7")
    M.I("s_add_u32 s26, s26, s27")
    M.I("s_lshr_b32 s27, s36, 2")
    M.I("s_lshl_b32 s27, s27, 2")
    M.I("s_lshr_b32 s39, s39, 3")
    M.I("s_add_u32 s27, s27, s39")
    M.I("s_lshl_b32 s36, s27, 7")
    M.I("s_lshl_b32 s39, s26, 2")
    M.I("s_add_u32 s36, s36, s39")
    M.I("s_add_u32 s36, s36, 4096")
    M.I("v_writelane_b32 v8, s36, 2")
    M.I("s_mov_b64 exec, 7")
    M.I(f"buffer_store_dword v14, v8, s[{SB1}:{SB1+3}], 0 offen sc1")
    M.I("s_mov_b64 exec, -1")
    M.I("v_lshlrev_b32 v8, 3, v0")
    M.I("v_and_b32 v10, 15, v0")
    M.I("v_lshlrev_b32 v10, 3, v10")
    M.I("s_add_u32 s37, s32, 15")
    M.I("s_mul_i32 s37, s37, 640")
    M.I(f"buffer_store_dwordx2 v[14:15], v8, s[{SAGM}:{SAGM+3}], s37 offen sc1")
    M.I(f"buffer_store_dwordx2 v[14:15], v10, s[{SAGM}:{SAGM+3}], s37 offen offset:512 sc1")
    M.I("s_lshl_b32 s37, s32, 7")
    M.I(f"s_add_u32 s37, s37, {GO_O}")
    M.I(f"buffer_store_dwordx2 v[14:15], v14, s[{SAGM}:{SAGM+3}], s37 offen sc1")
    M.I("s_cmp_lg_u32 s32, 0")
    M.I(f"s_cbranch_scc1 L_{name}_noclr")
    M.I("v_mov_b32 v10, 0")
    M.I(f"v_mov_b32 v11, {TAG}")
    M.I("s_mov_b32 s37, 0")
    for k in range(19):
        if k == 18:
            M.I("v_min_u32 v8, 376, v8")
        M.I(f"buffer_store_dwordx2 v[10:11], v8, s[{SAGM}:{SAGM+3}], s37 offen offset:{(k%8)*512} sc1")
        if k % 8 == 7: M.I("s_add_u32 s37, s37, 4096")
    M.label(f"L_{name}_noclr")
    M.vm = savevm
    stamp()
    M.I("v_and_b32 v22, 15, v0")
    M.I("v_bfe_u32 v23, v0, 4, 1")
    T1 = XB
    M.I(f"v_lshrrev_b32 v{T1}, 2, v22")
    M.I(f"v_and_b32 v{T1+1}, 3, v22")
    M.I(f"v_lshlrev_b32 v{T1+2}, 3, v{T1}")
    M.I(f"v_lshl_add_u32 v{T1+2}, v23, 2, v{T1+2}")
    M.I(f"v_add_u32 v{T1+2}, v{T1+2}, v{T1+1}")
    M.I("s_lshl_b32 s36, s35, 5")
    M.I(f"v_add_u32 v{T1+5}, s36, v{T1+2}")
    M.I(f"v_lshlrev_b32 v{T1+2}, 7, v{T1+5}")
    M.I(f"v_lshrrev_b32 v{T1+3}, 1, v{T1}")
    M.I(f"v_lshlrev_b32 v{T1+3}, 2, v{T1+3}")
    M.I(f"v_and_b32 v{T1+4}, 2, v{T1+1}")
    M.I(f"v_or3_b32 v{T1+3}, v{T1+3}, v{T1+4}, v23")
    M.I(f"v_lshrrev_b32 v{T1+4}, 5, v0")
    M.I(f"v_xor_b32 v{T1+3}, v{T1+3}, v{T1+4}")
    M.I(f"v_lshlrev_b32 v{T1+6}, 3, v{T1+4}")
    M.I(f"v_bfe_u32 v{T1+7}, v0, 2, 2")
    M.I(f"v_add_u32 v{T1+6}, v{T1+6}, v{T1+7}")
    M.I(f"v_mul_u32_u24 v{T1+6}, 192, v{T1+6}")
    M.I(f"v_lshl_add_u32 v{T1+6}, v23, 5, v{T1+6}")
    M.I(f"v_and_b32 v{T1+7}, 3, v0")
    M.I(f"v_lshl_add_u32 v{T1+6}, v{T1+7}, 3, v{T1+6}")
    M.I(f"v_add_u32 v{T1+6}, {W1_O}, v{T1+6}")
    M.I(f"v_xor_b32 v{T1+7}, v23, v0")
    M.I(f"v_and_b32 v{T1+7}, 1, v{T1+7}")
    M.I(f"v_add_u32 v{T1+7}, -1, v{T1+7}")
    M.I(f"v_and_b32 v{MSK}, 0x3f803f80, v{T1+7}")
    for k in range(1, 4): M.I(f"v_mov_b32 v{MSK+k}, v{MSK}")
    for u in range(4):
        M.I(f"v_xor_b32 v{T1+4}, {2*u}, v{T1+3}")
        M.I(f"v_lshl_add_u32 v{5+u}, v{T1+4}, 4, v{T1+2}")
    for j2 in range(3):
        M.I(f"s_add_u32 s36, s35, {j2}")
        M.I("s_sub_u32 s39, s36, 3")
        M.I("s_cmp_ge_u32 s36, 3")
        M.I(f"s_cselect_b32 s{4+j2}, s39, s36")
        M.I(f"s_lshl_b32 s39, s{4+j2}, 6")
        M.I(f"v_add_u32 v{9+j2}, s39, v{T1+6}")
    M.I(f"v_lshlrev_b32 v23, 3, v{T1+5}")
    mk_srd(M, SB1, 22, 23, 3072)
    M.I(f"v_lshrrev_b32 v{T1}, 4, v0")
    M.I("s_and_b32 s36, s35, 1")
    M.I("s_lshl_b32 s36, s36, 2")
    M.I(f"v_add_u32 v{T1}, s36, v{T1}")
    M.I(f"v_and_b32 v{T1+1}, 7, v0")
    M.I(f"v_xor_b32 v{T1}, v{T1}, v{T1+1}")
    M.I(f"v_lshlrev_b32 v{T1+1}, 7, v22")
    M.I(f"v_lshl_add_u32 v16, v{T1}, 4, v{T1+1}")
    M.I(f"v_add_u32 v16, {BB_O}, v16")
    M.I(f"v_lshlrev_b32 v{T1}, 3, v0")
    M.I(f"v_add_u32 v{T1}, {CSW_L}, v{T1}")
    M.I(f"ds_write_b64 v{T1}, v[14:15]")
    for k in range(20): M.I(f"v_mov_b32 v{CBA+k}, 0")
    M.I("s_lshr_b32 s37, s35, 1")
    emit(M, m_dma(1))
    M.raw(";;DRYPT")
    def m_reads(p):
        L = []
        for u in range(4):
            L.append([(f"ds_read_b128 {vr(XB+16*(p&1)+4*u,4)}, v{5+u}", f"r{p}")])
            for jt in range(3):
                L.append([(f"ds_read_b64_tr_b16 {vr(WB+48*(p&1)+12*u+4*jt+2*e,2)}, v{9+jt} offset:{u*3072+e*768}", f"r{p}") for e in range(2)])
        delta = SLOT if p % 4 != 3 else (-3 * SLOT) & 0xffffffff
        L.append([(f"v_add_u32 v{k}, {delta}, v{k}", None) for k in range(5, 12)])
        return L
    def m_mfma(p):
        L = []
        for u in range(4):
            c = "0" if (p == 0 and u < 2) else vr(WA + 4 * (u & 1), 4)
            L.append(f"v_mfma_f32_16x16x32_bf16 {vr(WA+4*(u&1),4)}, {vr(WB+48*(p&1)+12*u,4)}, {vr(MSK,4)}, {c}")
        for u in range(4):
            for jt in range(3):
                c = "0" if (p == 0 and u == 0) else vr(MACC + 16 * jt, 16)
                L.append(f"v_mfma_f32_32x32x16_bf16 {vr(MACC+16*jt,16)}, {vr(WB+48*(p&1)+12*u+4*jt,4)}, {vr(XB+16*(p&1)+4*u,4)}, {c}")
        return L
    SJL = 2 * SLOT
    def sj_ids(M=None):
        M.I("s_and_b32 s36, s2, 7")
        M.I("s_lshr_b32 s39, s2, 3")
        M.I("s_and_b32 s26, s36, 3")
        M.I("s_lshl_b32 s26, s26, 3")
        M.I("s_and_b32 s27, s39, 7")
        M.I("s_add_u32 s26, s26, s27")
        M.I("s_lshr_b32 s27, s36, 2")
        M.I("s_lshl_b32 s27, s27, 2")
        M.I("s_lshr_b32 s39, s39, 3")
        M.I("s_add_u32 s27, s27, s39")
    def sj_issue_w(M=None):
        mk_srd(M, 40, 24, 25, 1966080)
        for jk in range(2):
            M.I(f"s_add_u32 s39, s26, {32*jk}")
            M.I("s_min_u32 s39, s39, 47")
            M.I(f"s_mul_i32 s{68+jk}, s27, {5*H1F_RT}")
            M.I("s_lshl_b32 s36, s39, 10")
            M.I(f"s_add_u32 s{68+jk}, s{68+jk}, s36")
            M.I("s_mul_i32 s39, s39, 40960")
            M.I("s_mul_i32 s36, s27, 160")
            M.I(f"s_add_u32 s{22+jk}, s36, s39")
        for e in range(5):
            M.I(f"v_add_u32 v1, {64*e}, v0")
            M.I("v_mul_u32_u24 v2, 6554, v1")
            M.I("v_lshrrev_b32 v2, 16, v2")
            M.I("v_mul_u32_u24 v3, 10, v2")
            M.I("v_sub_u32 v1, v1, v3")
            M.I("v_mul_u32_u24 v2, 1280, v2")
            M.I("v_lshl_add_u32 v1, v1, 4, v2")
            for jk in range(2):
                M.I(f"s_mov_b32 m0, {SJL + 5120*jk + 1024*e}")
                M.I(f"buffer_load_dwordx4 v1, s[40:43], s{22+jk} offen lds")
    def sj_issue_c(M=None):
        mk_srd(M, 44, 14, 15, 819200)
        mk_srd(M, 48, 16, 17, 819200)
        for jk in range(2):
            M.I(f"s_add_u32 s38, s26, {32*jk}")
            M.I("s_min_u32 s38, s38, 49")
            M.I(f"s_mul_hi_u32 s36, s38, {(2**32 + 9)//10}")
            M.I("s_mul_i32 s39, s36, 10")
            M.I("s_sub_u32 s39, s38, s39")
            M.I("s_mul_i32 s38, s27, 5")
            M.I("s_add_u32 s36, s36, s38")
            M.I(f"s_mul_i32 s{70+jk}, s36, {HF_RT}")
            M.I("s_lshl_b32 s38, s39, 12")
            M.I(f"s_add_u32 s{70+jk}, s{70+jk}, s38")
            M.I(f"s_add_u32 s{70+jk}, s{70+jk}, {CF_OFF - W2F_OFF}")
            M.I("s_mul_i32 s36, s36, 20480")
            M.I("s_lshl_b32 s39, s39, 7")
            M.I("s_add_u32 s36, s36, s39")
            M.I("s_add_u32 s39, s36, 10240")
            for (sr, mo) in ((44, 0), (48, 2048)):
                M.I(f"s_mov_b32 m0, {SJL + 10240 + 4096*jk + mo}")
                M.I(f"buffer_load_dwordx4 v13, s[{sr}:{sr+3}], s36 offen lds")
                M.I(f"s_mov_b32 m0, {SJL + 10240 + 4096*jk + mo + 1024}")
                M.I(f"buffer_load_dwordx4 v13, s[{sr}:{sr+3}], s39 offen lds")
    def sj_rec(rec, p):
        if p == 7:
            sj_ids(rec); sj_issue_w(rec)
        else: sj_issue_c(rec)
    def sj_finish():
        mk_srd(M, 40, 30, 31, STATS_OFF - W2F_OFF, None, W2F_OFF)
        M.I("v_lshrrev_b32 v1, 4, v0")
        M.I("v_lshrrev_b32 v2, 1, v1")
        M.I("v_lshlrev_b32 v12, 4, v2")
        M.I("v_and_b32 v3, 1, v1")
        M.I("v_lshl_add_u32 v12, v3, 2, v12")
        M.I("v_lshrrev_b32 v17, 2, v22")
        M.I("v_add_u32 v12, v12, v17")
        M.I("v_mul_u32_u24 v12, 160, v12")
        M.I("v_and_b32 v17, 3, v22")
        M.I("v_lshl_add_u32 v12, v17, 3, v12")
        M.I(f"v_add_u32 v12, {SJL}, v12")
        M.I("v_lshlrev_b32 v3, 11, v3")
        M.I("v_lshl_add_u32 v3, v22, 7, v3")
        M.I("v_and_b32 v17, 7, v22")
        M.I("v_xor_b32 v2, v2, v17")
        M.I("v_lshl_add_u32 v3, v2, 4, v3")
        M.I(f"v_add_u32 v3, {SJL + 10240}, v3")
        M.I("v_lshlrev_b32 v1, 4, v0")
        RW = [WB, WB + 20]; RC_ = [CBF, CBA]
        for jk in range(2):
            for j in range(5):
                for e in range(2):
                    M.I(f"ds_read_b64_tr_b16 {vr(RW[jk]+4*j+2*e,2)}, v12 offset:{5120*jk+32*j+1280*e}")
        for j in range(4):
            M.I(f"v_xor_b32 v2, {32*j}, v3")
            for jk in range(2):
                M.I(f"ds_read_b128 {vr(RC_[jk]+4*j,4)}, v2 offset:{4096*jk}")
        M.I("s_waitcnt lgkmcnt(0)")
        for jk in range(2):
            for j in range(5):
                M.I(f"buffer_store_dwordx4 {vr(RW[jk]+4*j,4)}, v1, s[40:43], s{68+jk} offen sc1")
                M.vm.pop()
                if j < 4: M.I(f"s_add_u32 s{68+jk}, s{68+jk}, {H1F_RT}")
        for jk in range(2):
            for j in range(4):
                M.I(f"buffer_store_dwordx4 {vr(RC_[jk]+4*j,4)}, v1, s[40:43], s{70+jk} offen offset:{1024*j} sc1")
                M.vm.pop()
    B1V = WB + 24
    for p in range(10):
        m_wait(f"c{p}")
        if p == 1:
            M.I(f"s_cbranch_vccnz L_{name}_w7")
            M.I("s_waitcnt vmcnt(0)")
            M.I("v_min_u32 v17, 19, v0")
            M.I("v_lshlrev_b32 v17, 2, v17")
            M.I(f"v_add_u32 v17, {PAR_L}, v17")
            M.I("ds_write_b32 v17, v1")
            M.I("ds_write_b32 v17, v2 offset:128")
            M.I("ds_write_b32 v17, v3 offset:256")
            M.lg = []
            M.label(f"L_{name}_w7")
        if p == 0: M.wait_lg()
        M.I("s_barrier")
        stamp(True)
        if p in (0, 9): stamp()
        side = m_dma(p + 3) if p + 3 <= 9 else []
        if p == 0: side = m_dma(2)
        if p == 1: side = m_dma(3) + side
        rd = m_reads(p)
        M.I(f"s_cmp_lg_u32 s37, {p & 1}")
        M.I(f"s_cbranch_scc1 L_{name}_cs{p}a")
        for j in range(5):
            M.I(f"ds_read_b128 {vr(CBF+4*j,4)}, v16 offset:{2048*j}")
            M.lg.pop()
        M.label(f"L_{name}_cs{p}a")
        delta = SLOT if p % 4 != 3 else (-3 * SLOT) & 0xffffffff
        M.I(f"v_add_u32 v16, {delta}, v16")
        def cs_mfma():
            M.I(f"s_cmp_lg_u32 s37, {p & 1}")
            M.I(f"s_cbranch_scc1 L_{name}_cs{p}b")
            for j in range(5):
                M.I(f"v_mfma_f32_16x16x32_bf16 {vr(CBA+4*j,4)}, v[18:21], {vr(CBF+4*j,4)}, {vr(CBA+4*j,4)}")
            M.label(f"L_{name}_cs{p}b")
        if "dmaonly" in dbg: emit(M, side)
        elif p == 0: emit(M, rd + side)
        elif p == 9:
            mm8 = m_mfma(8)
            for m in mm8[:6]: M.I(m)
            M.I("s_waitcnt lgkmcnt(0)")
            cs_mfma()
            for m in mm8[6:8]: M.I(m)
            M.I("s_mul_i32 s36, s35, 320")
            M.I(f"s_add_u32 s36, s36, {CSB_L}")
            M.I("v_lshlrev_b32 v17, 2, v22")
            M.I("v_add_u32 v17, s36, v17")
            M.I("s_nop 3")
            M.I("s_mov_b64 exec, 0xffff")
            for j in range(5):
                M.I(f"ds_write_b32 v17, v{CBA+4*j} offset:{64*j}", tag="sw")
            cnt_add(M, 16, 17, CNT_L + 4)
            merge(M, mm8[8:], rd, 0.9)
            M.I(f"s_cbranch_vccnz L_{name}_nb1")
            M.I("v_min_u32 v17, 47, v0")
            M.I("v_lshlrev_b32 v17, 3, v17")
            M.I(f"v_add_u32 v17, {B1F_L}, v17")
            M.I("v_lshlrev_b32 v2, 16, v4")
            M.I("v_and_b32 v3, 0xffff0000, v4")
            M.I("ds_write_b64 v17, v[2:3]")
            M.label(f"L_{name}_nb1")
        elif p in (7, 8):
            class Rec:
                def __init__(self): self.L = []; self.vm = []
                def I(self, t, tag=None): self.L.append(t)
            Msave = M; rec = Rec()
            globals()["_REC"] = rec
            sj_rec(rec, p)
            groups = []
            n = 9
            for k in range(0, len(rec.L), n):
                chunk = rec.L[k:k + n]
                groups.append(chunk)
            fixed = []; cur = []
            for t in rec.L:
                cur.append(t)
                if len(cur) >= n and not (t.startswith("s_mov_b32 m0") or t.startswith("s_add_u32") or t.startswith("s_cmp")):
                    fixed.append(cur); cur = []
            if cur: fixed.append(cur)
            gs = []
            for g in fixed:
                lbl[0] += 1
                gs.append([(f"s_cbranch_vccnz L_{name}_g{lbl[0]}", None)] + [(t, "sj") for t in g] + [(f"L_{name}_g{lbl[0]}:", None)])
            merge(M, m_mfma(p - 1), mix(rd, gs), 0.95)
            M.vm = [t for t in M.vm if t != "sj"]
        else: merge(M, m_mfma(p - 1), mix(rd, side), 0.9)
        if p == 6:
            svm = list(M.vm)
            M.I(f"s_cbranch_vccnz L_{name}_si{p}")
            if p == 6:
                M.I("s_waitcnt vmcnt(0)")
                M.I("v_readfirstlane_b32 s36, v15")
                M.I("s_and_b32 s36, s36, 15")
                M.I("s_cmp_lg_u32 s36, 15")
                M.I(f"s_cbranch_scc1 L_{name}_nb")
                mk_srd(M, SB1, 30, 31, 16 * AGG_G, None, AGG_OFF)
                M.I("v_lshlrev_b32 v14, 7, v22")
                M.I("v_lshrrev_b32 v15, 4, v0")
                M.I(f"v_mul_u32_u24 v15, {AGG_G}, v15")
                M.I(f"v_add3_u32 v14, v14, v15, {0}") if False else M.I("v_add_u32 v14, v14, v15")
                M.I(f"v_add_u32 v14, {GO_O}, v14")
                M.I(f"v_mov_b32 v15, {TAG}")
                for n in range(4):
                    M.I(f"s_mov_b32 s36, {4*n*AGG_G}")
                    M.I(f"buffer_store_dword v15, v14, s[{SB1}:{SB1+3}], s36 offen sc1")
                    M.vm.pop()
                M.label(f"L_{name}_nb")
                pass
            M.label(f"L_{name}_si{p}")
            M.vm = svm
        if p == 1:
            M.I(f"s_cbranch_vccnz L_{name}_na")
            M.I("s_waitcnt vmcnt(0)")
            M.I("s_lshl_b32 s36, s33, 4")
            M.I("v_mov_b32 v14, s36")
            M.I("v_mov_b32 v15, 1")
            M.I("s_mov_b64 exec, 1")
            M.I(f"buffer_atomic_add v15, v14, s[{SDB}:{SDB+3}], 0 offen sc0")
            M.vm.pop()
            M.I("s_mov_b64 exec, -1")
            M.label(f"L_{name}_na")
        if p == 4:
            M.I(f"s_cbranch_vccnz L_{name}_n2")
            M.I("s_waitcnt vmcnt(0)")
            M.I("v_readfirstlane_b32 s36, v15")
            M.I("v_mov_b32 v15, 0")
            M.I("s_and_b32 s36, s36, 15")
            M.I("s_cmp_lg_u32 s36, 15")
            M.I(f"s_cbranch_scc1 L_{name}_n2")
            M.I("v_mov_b32 v14, 4")
            M.I("v_mov_b32 v15, 1")
            M.I("s_mov_b64 exec, 1")
            M.I(f"buffer_atomic_add v15, v14, s[{SDB}:{SDB+3}], 0 offen sc0")
            M.vm.pop()
            M.I("s_mov_b64 exec, -1")
            M.label(f"L_{name}_n2")
        M.I("s_waitcnt lgkmcnt(0)")
        M.lg = []
        if p < 9: cs_mfma()
    mm = m_mfma(9)
    M.raw(";;DRYSTART")
    M.I("s_lshl_b32 s38, s35, 2")
    M.I(f"s_add_u32 s38, s38, {CNT_L+16}")
    if "mdelay" in dbg: cnt_wait(M, f"L_{name}_mw2", 16, 17, "s38", 1)
    for m in mm[:4]: M.I(m)
    for m in mm[4:8]: M.I(m)
    for r in range(4): M.I(f"v_add_f32 v{WA+r}, v{WA+r}, v{WA+4+r}")
    M.I("v_and_b32 v16, 1, v0")
    M.I("v_lshlrev_b32 v16, 6, v16")
    M.I("v_lshrrev_b32 v17, 4, v0")
    M.I("v_lshl_add_u32 v16, v17, 4, v16")
    M.I("s_lshl_b32 s36, s4, 7")
    M.I(f"s_add_u32 s36, s36, {CSW_L}")
    M.I("v_add_u32 v16, s36, v16")
    M.I("s_mov_b32 exec_lo, 0x00030003")
    M.I("s_mov_b32 exec_hi, 0x00030003")
    M.I(f"ds_write_b128 v16, {vr(WA,4)}")
    cnt_add(M, 16, 17, CNT_L + 8)
    for m in mm[8:]: M.I(m)
    svm, slg = list(M.vm), list(M.lg)
    M.I(f"s_cbranch_vccnz L_{name}_sjl")
    M.I("s_waitcnt vmcnt(0)")
    sj_finish()
    cnt_add(M, 1, 2, CNT_L + 40)
    M.label(f"L_{name}_sjl")
    M.vm, M.lg = svm, slg
    stamp()
    cnt_wait(M, f"L_{name}_mw1", 16, 17, CNT_L + 8, 4)
    if "mdelay" not in dbg: cnt_wait(M, f"L_{name}_mw2", 16, 17, "s38", 1)
    stamp()
    M.I("s_lshl_b32 s36, s32, 7")
    M.I(f"s_add_u32 s36, s36, {GO_O}")
    M.I("v_mov_b32 v7, s36")
    M.I(f"buffer_load_dword v7, v7, s[{SAGM}:{SAGM+3}], 0 offen sc1")
    M.vm.pop()
    if "sprio" not in dbg: M.I("s_setprio 3")
    CSV = XB
    B1V = WB + 16
    M.I("v_lshrrev_b32 v10, 5, v0")
    M.I("v_lshlrev_b32 v11, 4, v10")
    M.I(f"v_add_u32 v12, {B1F_L}, v11")
    M.I(f"v_add_u32 v11, {CSW_L}, v11")
    M.I("v_lshrrev_b32 v23, 1, v23")
    M.I(f"v_add_u32 v23, {STATS_L}, v23")
    M.I("ds_read_b32 v14, v23")
    M.I("ds_read_b32 v15, v23 offset:512")
    for jt in range(3):
        M.I(f"s_lshl_b32 s36, s{4+jt}, 7")
        M.I("v_add_u32 v16, s36, v11")
        M.I("v_add_u32 v17, s36, v12")
        M.I(f"s_lshl_b32 s{4+jt}, s{4+jt}, 10")
        for q in range(4):
            M.I(f"ds_read_b128 {vr(CSV+(jt*4+q)*4,4)}, v16 offset:{32*q}", tag=f"cr{jt}")
            M.I(f"ds_read_b128 {vr(B1V+(jt*4+q)*4,4)}, v17 offset:{32*q}", tag=f"cr{jt}")
    M.I("s_lshl_b32 s36, s32, 2")
    M.I("s_add_u32 s36, s36, s35")
    M.I(f"s_mul_i32 s36, s36, {2*H1F_RT}")
    M.I("s_mul_i32 s39, s33, 3072")
    M.I("s_add_u32 s36, s36, s39")
    mk_srd(M, SH1, 30, 31, H1F_RT + 3072, 36, H1F_OFF)
    M.I("v_bfe_u32 v9, v0, 4, 1")
    M.I(f"v_mul_u32_u24 v9, {H1F_RT}, v9")
    M.I("v_lshl_add_u32 v9, v10, 8, v9")
    M.I("v_lshl_add_u32 v9, v22, 4, v9")
    C1 = -2.0 * 1.4426950408889634 * 0.7978845608028654
    C2 = C1 * 0.044715
    M.I(f"v_mov_b32 v16, {f2u(C2)}")
    M.I(f"v_mov_b32 v17, {f2u(C1)}")
    TM = FR
    late = []
    for jt in range(3):
        M.wait_lg(f"cr{jt}")
        P = [MACC + 16 * jt + 2 * k for k in range(8)]
        cs = [CSV + jt * 16 + 2 * k for k in range(8)]
        b1 = [B1V + jt * 16 + 2 * k for k in range(8)]
        T_ = [TM + 2 * k for k in range(8)]
        for k in range(8):
            M.I(f"v_pk_fma_f32 {vr(b1[k],2)}, v[14:15], {vr(cs[k],2)}, {vr(b1[k],2)} op_sel:[0,0,0] op_sel_hi:[0,1,1] neg_lo:[1,0,0] neg_hi:[1,0,0]")
        for k in range(8):
            M.I(f"v_pk_fma_f32 {vr(P[k],2)}, {vr(P[k],2)}, v[14:15], {vr(b1[k],2)} op_sel:[0,1,0] op_sel_hi:[1,1,1]")
        for k in range(8):
            M.I(f"v_pk_mul_f32 {vr(T_[k],2)}, {vr(P[k],2)}, {vr(P[k],2)}")
        for k in range(8):
            M.I(f"v_pk_fma_f32 {vr(T_[k],2)}, {vr(T_[k],2)}, v[16:17], v[16:17] op_sel:[0,0,1] op_sel_hi:[1,0,1]")
        for k in range(8):
            M.I(f"v_pk_mul_f32 {vr(T_[k],2)}, {vr(T_[k],2)}, {vr(P[k],2)}")
        for k in range(16):
            M.I(f"v_exp_f32 v{TM+k}, v{TM+k}")
        for k in range(8):
            M.I(f"v_pk_add_f32 {vr(T_[k],2)}, {vr(T_[k],2)}, 1.0 op_sel_hi:[1,0]")
        for k in range(16):
            M.I(f"v_rcp_f32 v{TM+k}, v{TM+k}")
        for k in range(8):
            M.I(f"v_pk_mul_f32 {vr(P[k],2)}, {vr(P[k],2)}, {vr(T_[k],2)}")
        PKM = TM + 16 + 8 * jt
        for k in range(8):
            M.I(f"v_cvt_pk_bf16_f32 v{PKM+k}, v{P[k]}, v{P[k]+1}")
        def h1st(jt=jt, PKM=PKM):
            for AB in range(2):
                M.I(f"buffer_store_dwordx4 {vr(PKM+4*AB,4)}, v9, s[{SH1}:{SH1+3}], s{4+jt} offen offset:{512*AB}{STF}", tag="st")
        if jt == 1:
            M.I(f"s_cbranch_vccnz L_{name}_a2")
            M.I("s_waitcnt vmcnt(2)")
            mk_srd(M, 44, 30, 31, 8192, None, FL_OFF)
            M.I("s_lshl_b32 s36, s27, 7")
            M.I("s_lshl_b32 s39, s26, 2")
            M.I("s_add_u32 s36, s36, s39")
            M.I("s_add_u32 s36, s36, 4096")
            M.I("v_mov_b32 v1, s36")
            M.I(f"v_mov_b32 v2, {TAG}")
            M.I("s_mov_b64 exec, 1")
            M.I("buffer_store_dword v2, v1, s[44:47], 0 offen sc1")
            M.vm.pop()
            M.I("s_mov_b64 exec, -1")
            M.label(f"L_{name}_a2")
        if "mst" in dbg: late.append(h1st)
        else: h1st()
    if "mst" in dbg:
        cnt_wait(M, f"L_{name}_mw3", 16, 17, CNT_L + 12, 1)
        for f in late: f()
    M.I("s_cmp_lg_u32 s33, 0")
    M.I(f"s_cbranch_scc1 L_{name}_nostat")
    M.I("s_lshl_b32 s36, s32, 9")
    mk_srd(M, 40, 30, 31, 8192 + 512, 36, STATS_OFF)
    M.I(f"v_subrev_u32 v23, {STATS_L}, v23")
    M.I("s_mov_b32 s36, 8192")
    M.I("buffer_store_dword v14, v23, s[40:43], 0 offen sc1")
    M.I("buffer_store_dword v15, v23, s[40:43], s36 offen sc1")
    M.label(f"L_{name}_nostat")
    phaseB(M, "G", stamp)
    final_stamps(M, st)
    M.label(f"L_{name}_end")
    M.I("s_endpgm")
    M.label(f"L_{name}_codeend")
    if "dry" not in dbg:
        for X in (S, M): X.lines = [l for l in X.lines if not l.startswith(";;DRY")]
    else:
        print("dry blocks", add_dry(S, name, "ds", 39), add_dry(M, name, "dm", 39))
    desc = f""".section .rodata,"a"
.p2align 6
.amdhsa_kernel {name}
  .amdhsa_next_free_vgpr 256
  .amdhsa_next_free_sgpr 102
  .amdhsa_accum_offset 256
  .amdhsa_group_segment_fixed_size 0
  .amdhsa_kernarg_size 136
  .amdhsa_user_sgpr_count 2
  .amdhsa_user_sgpr_kernarg_segment_ptr 1
  .amdhsa_system_sgpr_workgroup_id_x 1
.end_amdhsa_kernel
.text"""
    return A.text() + "\n" + S.text() + "\n" + M.text() + "\n" + desc, (A.nins, S.nins, M.nins)
```
